```python
import torch

def _softmax(x, axis=-1):
    return torch.softmax(x, dim=axis)

def _gelu(x):
    return torch.nn.functional.gelu(x, approximate='tanh')

def _silu(x):
    return torch.nn.functional.silu(x)

def _sigmoid(x):
    return torch.sigmoid(x)

def _layernorm(x, axis=-1, eps=1e-05):
    m = x.mean(dim=axis, keepdim=True)
    v = x.var(dim=axis, keepdim=True, unbiased=False)
    return (x - m) / torch.sqrt(v + eps)

def _scatter_add(tgt, idx, src, axis=0):
    return tgt.clone().index_add_(axis, idx, src)

def _segment_sum(src, seg, n):
    out = torch.zeros((n,) + src.shape[1:], dtype=src.dtype)
    return out.index_add_(0, seg, src)

def _pad(x, pw):
    flat = tuple((v for pair in reversed(pw) for v in pair))
    return torch.nn.functional.pad(x, flat)
kernel_name = 'adaLN_cond__sliding_block__geglu_ffn__prompt'

def setup_inputs():

    _w = lambda a: (lambda t: t.to(torch.bfloat16) if t.is_floating_point() else t)(torch.as_tensor(a))

    def _A_setup():
        B, S, D = (1, 2048, 512)
        return {'x': _w((lambda *s: torch.randn(*s, dtype=torch.bfloat16) * 0.05)(B, S, D)), 'wqkv': _w((lambda *s: torch.randn(*s, dtype=torch.bfloat16) * 0.05)(D, 3 * D)), 'wo': _w((lambda *s: torch.randn(*s, dtype=torch.bfloat16) * 0.05)(D, D))}
    _A_in = _A_setup()

    def _B_setup():
        B, S, D, F = (1, 2048, 512, 1792)
        return {'x': _w((lambda *s: torch.randn(*s, dtype=torch.bfloat16) * 0.05)(B, S, D)), 'w_gate': _w((lambda *s: torch.randn(*s, dtype=torch.bfloat16) * 0.05)(D, F)), 'w_up': _w((lambda *s: torch.randn(*s, dtype=torch.bfloat16) * 0.05)(D, F)), 'w_down': _w((lambda *s: torch.randn(*s, dtype=torch.bfloat16) * 0.05)(F, D))}
    _B_in = _B_setup()
    return {'A_x': _A_in['x'], 'A_wqkv': _A_in['wqkv'], 'A_wo': _A_in['wo'], 'B_x': _B_in['x'], 'B_w_gate': _B_in['w_gate'], 'B_w_up': _B_in['w_up'], 'B_w_down': _B_in['w_down'], 'c': _w((lambda *s: torch.randn(*s, dtype=torch.bfloat16) * 0.1)(1, 512) * 8.0), 'w_mod': _w((lambda *s: torch.randn(*s, dtype=torch.bfloat16) * 0.1)(512, 6 * 512) * 512 ** (-0.5) * 8.0)}

def reference(A_x, A_wqkv, A_wo, B_x, B_w_gate, B_w_up, B_w_down, c, w_mod):

    def _A_ref(x, wqkv, wo):
        B, S, D = x.shape
        H = 32
        Dh = D // H
        W = 256
        qkv = (lambda x, *d: x.permute(*d))((x @ wqkv).reshape(B, S, 3, H, Dh), 2, 0, 3, 1, 4)
        q, k, v = (qkv[0], qkv[1], qkv[2])
        scores = torch.einsum('bhqd,bhkd->bhqk', q, k) * Dh ** (-0.5)
        idx = torch.arange(S)
        mask = (idx[:, None] - idx[None, :] >= 0) & (idx[:, None] - idx[None, :] < W)
        scores = torch.where(mask[None, None], scores, -1000000000.0)
        p = _softmax(scores, axis=-1)
        o = torch.einsum('bhqk,bhkd->bhqd', p, v)
        return (lambda x, *d: x.permute(*d))(o, 0, 2, 1, 3).reshape(B, S, D) @ wo

    def _B_ref(x, w_gate, w_up, w_down):
        return _gelu(x @ w_gate) * (x @ w_up) @ w_down
    x = A_x
    mod = (_silu(c) @ w_mod).reshape(c.shape[0], 6, 1, -1)
    sa, ca, ga, sb, cb, gb = (mod[:, 0].clone(), mod[:, 1].clone(), mod[:, 2].clone(), mod[:, 3].clone(), mod[:, 4].clone(), mod[:, 5].clone())
    h = _layernorm(x, axis=-1) * (1 + ca) + sa
    x = x + ga * _A_ref(h, A_wqkv, A_wo)
    h = _layernorm(x, axis=-1) * (1 + cb) + sb
    x = x + gb * _B_ref(h, B_w_gate, B_w_up, B_w_down)
    return x
```

```python
import re

REG_RE = re.compile(r'^(-?)(?:abs\()?([vsa])(?:(\d+)|\[(\d+):(\d+)\])\)?$')


def regs_of(tok):
    t = tok.strip()
    if t in ('vcc', 'exec', 'm0', 'scc'):
        return {(t, 0)}
    if t in ('vcc_lo', 'vcc_hi'):
        return {('vcc', 0)}
    if t in ('exec_lo', 'exec_hi'):
        return {('exec', 0)}
    m = REG_RE.match(t)
    if not m:
        return set()
    k = m.group(2)
    if m.group(3) is not None:
        return {(k, int(m.group(3)))}
    return {(k, i) for i in range(int(m.group(4)), int(m.group(5)) + 1)}


TRANS = ('v_exp_f32', 'v_log_f32', 'v_rcp_f32', 'v_rsq_f32', 'v_sqrt_f32', 'v_sin_f32', 'v_cos_f32',
         'v_rcp_iflag_f32')


def v(n, cnt=1):
    return f'v{n}' if cnt == 1 else f'v[{n}:{n + cnt - 1}]'


def a(n, cnt=1):
    return f'a{n}' if cnt == 1 else f'a[{n}:{n + cnt - 1}]'


def s(n, cnt=1):
    return f's{n}' if cnt == 1 else f's[{n}:{n + cnt - 1}]'


class Ins:
    __slots__ = ('op', 'cls', 'wr', 'rd', 'rdA', 'rdC', 'passes', 'ws', 'trans', 'wide_store_data', 'dpp')


class Kernel:
    def __init__(self, name):
        self.name = name
        self.lines = []
        self.hist = []
        self.max_v = -1
        self.max_s = -1
        self.max_a = -1
        self.nops_inserted = 0
        self.n_ins = 0

    def raw(self, text):
        self.lines.append(text)

    def comment(self, text):
        self.lines.append(f'    ; {text}')

    def label(self, name, flush=True):
        if flush:
            self.flush()
        self.lines.append(f'{name}:')

    def flush(self):
        need = 0
        dist = 0
        for p in reversed(self.hist):
            req = 0
            if p.cls == 'mfma':
                req = {4: 8, 8: 12, 16: 20, 2: 5}[p.passes]
            elif p.cls == 'valu':
                req = 5 if any(r[0] in ('s', 'vcc', 'exec') for r in p.wr) else 3
            elif p.cls == 'salu':
                req = 1 if ('m0', 0) in p.wr else 0
            elif p.wide_store_data:
                req = 2
            need = max(need, req - dist)
            dist += p.ws
            if dist > 24:
                break
        if need > 0:
            self._nop(need)
        self.hist = []

    def _nop(self, n):
        self.nops_inserted += n
        while n > 0:
            k = min(n, 16)
            self.lines.append(f'    s_nop {k - 1}')
            i = Ins()
            i.op = 's_nop'; i.cls = 'nop'; i.wr = set(); i.rd = set(); i.rdA = set(); i.rdC = set()
            i.passes = 0; i.ws = k; i.trans = False; i.wide_store_data = set(); i.dpp = False
            self.hist.append(i)
            n -= k

    def nop(self, n):
        self._nop(n)

    def _classify(self, op, ops, mods):
        i = Ins()
        i.op = op
        i.ws = 1
        i.passes = 0
        i.trans = op.split('_e')[0] in TRANS or op in TRANS
        i.wide_store_data = set()
        i.rdA = set()
        i.rdC = set()
        i.dpp = ('row_' in mods) or ('quad_perm' in mods) or ('wave_' in mods) or ('row_bcast' in mods)
        R = [regs_of(o) for o in ops]
        wr = set()
        rd = set()
        if op.startswith('v_mfma'):
            i.cls = 'mfma'
            i.passes = 8 if '32x32x16' in op else 4 if '16x16x32' in op else None
            assert i.passes
            wr |= R[0]
            i.rdA = R[1] | R[2]
            i.rdC = R[3]
            rd |= i.rdA | i.rdC
        elif op.startswith('v_'):
            i.cls = 'valu'
            rd.add(('exec', 0))
            if op.startswith('v_cmpx'):
                wr |= R[0] | {('exec', 0)}
                for r in R[1:]:
                    rd |= r
            elif op.startswith('v_permlane') and 'swap' in op:
                wr |= R[0] | R[1]
                rd |= R[0] | R[1]
            elif op.startswith(('v_add_co', 'v_sub_co', 'v_subrev_co', 'v_addc_co', 'v_subb_co')):
                wr |= R[0] | R[1]
                for r in R[2:]:
                    rd |= r
            else:
                wr |= R[0]
                for r in R[1:]:
                    rd |= r
                if op.startswith(('v_fmac', 'v_pk_fmac', 'v_dot2c', 'v_writelane')):
                    rd |= R[0]
                if 'op_sel' in mods or 'sdwa' in op or 'dst_sel' in mods:
                    rd |= R[0]
        elif op.startswith('ds_'):
            i.cls = 'ds'
            rd.add(('exec', 0))
            if op.startswith(('ds_read', 'ds_bpermute', 'ds_permute', 'ds_swizzle')):
                wr |= R[0]
                for r in R[1:]:
                    rd |= r
            else:
                for r in R:
                    rd |= r
        elif op.startswith(('buffer_', 'global_')):
            i.cls = 'vmem'
            rd.add(('exec', 0))
            is_lds = re.search(r'\blds\b', mods) is not None or '_lds_' in op
            if 'load' in op and not is_lds:
                wr |= R[0]
                for r in R[1:]:
                    rd |= r
                if 'd16' in op:
                    rd |= R[0]
            elif is_lds:
                for r in R:
                    rd |= r
                rd.add(('m0', 0))
            else:
                for r in R:
                    rd |= r
                if 'store' in op and ('x4' in op or 'x3' in op):
                    di = 0 if op.startswith('buffer_') else 1
                    i.wide_store_data = set(R[di])
        elif op.startswith('s_'):
            i.cls = 'salu'
            if op.startswith(('s_load', 's_buffer_load', 's_memtime', 's_memrealtime')):
                i.cls = 'smem'
                wr |= R[0]
                for r in R[1:]:
                    rd |= r
            elif op.startswith(('s_cmp', 's_cbranch', 's_branch', 's_waitcnt', 's_barrier', 's_endpgm', 's_setprio',
                                's_sleep', 's_bitcmp')):
                for r in R:
                    rd |= r
            else:
                if R:
                    wr |= R[0]
                for r in R[1:]:
                    rd |= r
                if 'saveexec' in op:
                    wr.add(('exec', 0))
        else:
            raise ValueError('unknown op ' + op)
        i.wr = wr
        i.rd = rd
        for (k, n) in wr | rd:
            if k == 'v':
                self.max_v = max(self.max_v, n)
            elif k == 's':
                self.max_s = max(self.max_s, n)
            elif k == 'a':
                self.max_a = max(self.max_a, n)
        return i

    def _required(self, p, c):
        req = 0
        pv = {r for r in p.wr if r[0] in ('v', 'a')}
        ps = {r for r in p.wr if r[0] in ('s', 'vcc')}
        if p.cls == 'valu':
            if p.op.startswith('v_dot') and (pv & (c.rd | c.wr)):
                req = max(req, 3)
            if c.cls == 'mfma' and (pv & c.rd):
                req = max(req, 2)
            if c.cls == 'mfma' and ('exec', 0) in p.wr:
                req = max(req, 4)
            if c.cls == 'valu':
                if p.trans and not c.trans and (pv & (c.rd | set())):
                    req = max(req, 1)
                if c.op.startswith('v_permlane') and (pv & c.rd):
                    req = max(req, 2)
                if c.dpp and (pv & c.rd):
                    req = max(req, 2)
                if c.dpp and ('exec', 0) in p.wr:
                    req = max(req, 5)
                if c.op.startswith(('v_readlane', 'v_readfirstlane')) and (pv & c.rd):
                    req = max(req, 1)
                if ps & c.rd:
                    req = max(req, 2)
                    if c.op.startswith(('v_readlane', 'v_writelane')):
                        req = max(req, 4)
                if ('exec', 0) in p.wr and c.op.startswith(('v_readlane', 'v_readfirstlane', 'v_writelane', 'v_permlane')):
                    req = max(req, 4)
            if c.cls == 'vmem' and (ps & c.rd):
                req = max(req, 5)
            if c.cls in ('salu', 'smem') and (ps & c.rd):
                req = max(req, 1)
            if p.trans and c.cls in ('vmem', 'ds') and (pv & c.rd):
                req = max(req, 1)
        elif p.cls == 'mfma':
            P = p.passes
            d = pv
            if c.cls == 'mfma':
                if d & c.rdA:
                    req = max(req, {2: 5, 4: 8, 8: 12, 16: 20}[P])
                if d & c.rdC:
                    if d == c.rdC and c.passes == P:
                        req = max(req, 2 if P == 2 else 0)
                    else:
                        req = max(req, {2: 4, 4: 6, 8: 10, 16: 18}[P])
                elif d & c.wr:
                    req = max(req, {2: 4, 4: 6, 8: 10, 16: 18}[P])
            else:
                if d & (c.rd | c.wr):
                    req = max(req, {2: 5, 4: 8, 8: 12, 16: 20}[P])
                if c.cls == 'valu' and (p.rdC & c.wr):
                    req = max(req, {2: 1, 4: 3, 8: 7, 16: 15}[P])
                if c.cls in ('ds', 'vmem') and (p.rdC & c.wr):
                    req = max(req, {2: 1, 4: 3, 8: 7, 16: 15}[P])
        elif p.cls == 'salu':
            if ('m0', 0) in p.wr and ('m0', 0) in c.rd and c.cls in ('vmem', 'ds'):
                req = max(req, 1)
        if p.wide_store_data and (p.wide_store_data & c.wr):
            req = max(req, 2 if c.cls in ('valu', 'mfma') else 1)
        return req

    def I(self, op, *ops, mods=''):
        ops = [str(o) for o in ops]
        c = self._classify(op, ops, mods)
        need = 0
        dist = 0
        for p in reversed(self.hist):
            r = self._required(p, c)
            if r - dist > need:
                need = r - dist
            dist += p.ws
            if dist > 24:
                break
        if need > 0:
            self._nop(need)
        txt = f'    {op} ' + ', '.join(ops)
        if mods:
            txt += ' ' + mods
        self.lines.append(txt.rstrip())
        self.hist.append(c)
        if len(self.hist) > 40:
            self.hist = self.hist[-40:]
        self.n_ins += 1
        return c

    def waitcnt(self, vm=None, lgkm=None):
        parts = []
        if vm is not None:
            assert 0 <= vm <= 63, vm
            parts.append(f'vmcnt({vm})')
        if lgkm is not None:
            assert 0 <= lgkm <= 15, lgkm
            parts.append(f'lgkmcnt({lgkm})')
        self.I('s_waitcnt', ' '.join(parts))

    def barrier(self):
        self.I('s_barrier')

    def text(self):
        return '\n'.join(self.lines)


def kernel_text(k, nvgpr=None, nsgpr=None):
    nv = (k.max_v + 1) if nvgpr is None else nvgpr
    assert nv >= k.max_v + 1
    ns = (k.max_s + 1) if nsgpr is None else nsgpr
    acc = max(4, (nv + 3) // 4 * 4)
    if acc > 256:
        raise ValueError('use AGPR split for > 256 regs')
    if k.max_a >= 0:
        nv = acc + k.max_a + 1
    body = f""".globl {k.name}
.p2align 8
.type {k.name},@function
{k.name}:
{k.text()}
"""
    desc = f""".p2align 6
.amdhsa_kernel {k.name}
  .amdhsa_next_free_vgpr {nv}
  .amdhsa_next_free_sgpr {max(ns, 8)}
  .amdhsa_accum_offset {acc}
  .amdhsa_group_segment_fixed_size 0
  .amdhsa_kernarg_size 96
  .amdhsa_user_sgpr_count 2
  .amdhsa_user_sgpr_kernarg_segment_ptr 1
  .amdhsa_system_sgpr_workgroup_id_x 1
.end_amdhsa_kernel
"""
    return body, desc
```

```python
import sys
import struct
import math
from asmlib import *

XN = 0x0000000
W1 = 0x0200000
W1_NB = 34 * 3072
MODP = 0x0400000
MODF = 0x0420000
MF_GA, MF_G2, MF_GB, MF_SB = 0, 2048, 4096, 6144
QB = 0x0500000
KB = 0x0700000
VB = 0x0900000
OB = 0x0B00000
X1 = 0x0D00000
ST2 = 0x0F00000
CSP = 0x0F80000
W4 = 0x1000000
W4_NB = 33 * 7168
WO = 0x1400000
WD = 0x1500000
ACT = 0x1800000
STAMPS = 0x2000000
WS_SIZE = 0x2100000

STAMP = False


def f32bits(x):
    return struct.unpack('<I', struct.pack('<f', x))[0]


S_X, S_WQKV, S_WO, S_BX, S_WG, S_WU, S_WD, S_C = 16, 18, 20, 22, 24, 26, 28, 30
S_WMOD, S_OUT, S_DBG, S_WS = 32, 34, 36, 38
R_WS = 40


def srd(k, d, base, nbytes):
    k.I('s_mov_b32', s(d), s(base))
    k.I('s_mov_b32', s(d + 1), s(base + 1))
    k.I('s_mov_b32', s(d + 2), nbytes)
    k.I('s_mov_b32', s(d + 3), 0x20000)


def prologue(k, nwg, need_lo=True):
    I = k.I
    if STAMP:
        I('s_memrealtime', s(96, 2))
    I('s_cmp_ge_u32', 's2', nwg)
    I('s_cbranch_scc1', f'L_end_{k.name}')
    if need_lo:
        I('s_load_dwordx16', s(16, 16), s(0, 2), 0)
    I('s_load_dwordx8', s(32, 8), s(0, 2), 64)
    I('v_and_b32', 'v1', 63, 'v0')
    I('v_lshrrev_b32', 'v2', 6, 'v0')
    I('v_readfirstlane_b32', 's3', 'v2')


def xcd_map(k, mbits, dm, dn):
    I = k.I
    I('s_bfe_u32', s(dm), 's2', (2 << 16) | 1)
    I('s_lshl_b32', s(dm), s(dm), mbits)
    I('s_bfe_u32', s(dn), 's2', (mbits << 16) | 3)
    I('s_add_u32', s(dm), s(dm), s(dn))
    I('s_and_b32', s(dn), 's2', 1)
    I('s_lshl_b32', s(dn), s(dn), 5 - mbits)
    I('s_lshr_b32', 's62', 's2', 3 + mbits)
    I('s_add_u32', s(dn), s(dn), 's62')


def tick(k):
    if STAMP:
        n = getattr(k, 'nticks', 0)
        assert n < 24
        k.I('s_memrealtime', s(94, 2))
        k.waitcnt(lgkm=0)
        k.I('s_mov_b32', s(70 + n), 's94')
        k.nticks = n + 1


def epilogue(k, idx, vtmp=2):
    I = k.I
    if STAMP:
        k.flush()
        tick(k)
        k.waitcnt(vm=0, lgkm=0)
        I('s_memrealtime', s(98, 2))
        k.waitcnt(lgkm=0)
        I('s_cmp_lg_u32', 's3', 0)
        I('s_cbranch_scc1', f'L_end_{k.name}')
        I('v_mov_b32', v(vtmp), 's96')
        I('v_mov_b32', v(vtmp + 1), 's98')
        I('s_lshl_b32', 's96', 's2', 3)
        I('s_add_u32', 's96', 's96', STAMPS + idx * 4096)
        I('v_mov_b32', v(vtmp + 2), 's96')
        I('s_mov_b64', 'exec', 1)
        I('buffer_store_dwordx2', v(vtmp, 2), v(vtmp + 2), s(R_WS, 4), 0, mods='offen')
        I('s_lshl_b32', 's96', 's2', 7)
        I('s_add_u32', 's96', 's96', STAMPS + 0x10000 + idx * 0x8000)
        I('v_mov_b32', v(vtmp + 2), 's96')
        for n in range(24):
            I('v_mov_b32', v(vtmp), s(70 + n) if n < k.nticks else 0)
            I('buffer_store_dword', v(vtmp), v(vtmp + 2), s(R_WS, 4), 0, mods=f'offen offset:{4 * n}')
    k.label(f'L_end_{k.name}')
    I('s_endpgm')


def wave_sum_to_sgpr(k, regs, sdst):
    I = k.I
    for sh in ('row_shr:1', 'row_shr:2', 'row_shr:4', 'row_shr:8'):
        for r in regs:
            I('v_add_f32', v(r), v(r), v(r), mods=f'{sh} row_mask:0xf bank_mask:0xf')
    for r in regs:
        I('v_add_f32', v(r), v(r), v(r), mods='row_bcast:15 row_mask:0xa bank_mask:0xf')
    for r in regs:
        I('v_add_f32', v(r), v(r), v(r), mods='row_bcast:31 row_mask:0xc bank_mask:0xf')
    for r, sd in zip(regs, sdst):
        I('v_readlane_b32', s(sd), v(r), 63)


def unpack8(k, dst, src):
    for j in range(4):
        k.I('v_lshlrev_b32', v(dst + 2 * j), 16, v(src + j))
        k.I('v_and_b32', v(dst + 2 * j + 1), 0xffff0000, v(src + j))


def pack8(k, dst, src):
    for j in range(4):
        k.I('v_cvt_pk_bf16_f32', v(dst + j), v(src + 2 * j), v(src + 2 * j + 1))


def gen_k0():
    k = Kernel('k0_mod_kernel')
    I = k.I
    L_A, L_B, L_W, L_S, L_G, L_SA, L_DUM = 0, 65536, 73728, 81920, 82944, 83072, 83200
    LDS = 83456
    prologue(k, 256)
    I('s_and_b32', 's4', 's2', 7)
    xcd_map(k, 2, 5, 6)
    I('v_lshrrev_b32', 'v2', 2, 'v1')
    I('v_and_b32', 'v3', 3, 'v1')
    I('v_lshlrev_b32', 'v3', 4, 'v3')
    I('v_mul_u32_u24', 'v4', 6144, 'v2')
    I('v_add_u32', 'v4', 'v4', 'v3')
    I('v_mul_u32_u24', 'v5', 3072, 'v2')
    I('v_add_u32', 'v5', 'v5', 'v3')
    I('v_lshlrev_b32', 'v6', 2, 'v0')
    I('v_lshlrev_b32', 'v7', 4, 'v1')
    k.waitcnt(lgkm=0)
    tick(k)
    srd(k, R_WS, S_WS, WS_SIZE)
    srd(k, 44, S_WMOD, 512 * 6144)
    srd(k, 48, S_WQKV, 512 * 3072)
    srd(k, 52, S_X, 2048 * 1024)
    srd(k, 56, S_C, 1024)
    I('buffer_load_dword', 'v8', 'v6', s(56, 4), 0, mods='offen')
    I('s_lshr_b32', 's7', 's3', 1)
    I('s_lshl_b32', 's7', 's7', 10)
    I('s_lshl_b32', 's8', 's5', 6)
    I('s_add_u32', 's7', 's7', 's8')
    I('s_and_b32', 's8', 's3', 1)
    I('s_mul_i32', 's8', 's8', 16 * 98304)
    I('s_add_u32', 's7', 's7', 's8')
    I('s_lshl_b32', 's8', 's3', 14)
    for j in range(16):
        I('s_add_u32', 'm0', 's8', L_A + j * 1024)
        I('s_add_u32', 's9', 's7', j * 98304)
        I('buffer_load_dwordx4', 'v4', s(44, 4), 's9', mods='offen lds')
    I('s_min_u32', 's7', 's3', 2)
    I('s_lshl_b32', 's7', 's7', 10)
    I('s_mul_i32', 's8', 's5', 32 * 3072)
    I('s_add_u32', 's7', 's7', 's8')
    I('s_lshl_b32', 's8', 's6', 6)
    I('s_add_u32', 's7', 's7', 's8')
    I('s_lshl_b32', 's8', 's3', 11)
    for j in range(2):
        I('s_add_u32', 'm0', 's8', L_W + j * 1024)
        I('s_add_u32', 's9', 's7', j * 49152)
        I('buffer_load_dwordx4', 'v5', s(48, 4), 's9', mods='offen lds')
    I('s_lshl_b32', 's10', 's4', 5)
    I('s_lshr_b32', 's11', 's2', 3)
    I('s_add_u32', 's10', 's10', 's11')
    I('s_lshl_b32', 's10', 's10', 3)
    I('s_lshl_b32', 's11', 's3', 1)
    I('s_add_u32', 's10', 's10', 's11')
    I('s_lshl_b32', 's11', 's10', 10)
    I('buffer_load_dwordx4', v(12, 4), 'v7', s(52, 4), 's11', mods='offen')
    I('buffer_load_dwordx4', v(16, 4), 'v7', s(52, 4), 's11', mods='offen offset:1024')
    I('s_lshr_b32', 's12', 's2', 2)
    I('s_and_b32', 's13', 's2', 3)
    I('s_lshl_b32', 's7', 's12', 6)
    I('s_add_u32', 's7', 's7', 2048)
    I('s_lshl_b32', 's8', 's13', 7)
    I('s_lshl_b32', 's9', 's3', 5)
    I('s_add_u32', 's8', 's8', 's9')
    I('s_mul_i32', 's8', 's8', 6144)
    I('s_add_u32', 's7', 's7', 's8')
    I('s_lshl_b32', 's8', 's3', 11)
    for j in range(2):
        I('s_add_u32', 'm0', 's8', L_B + j * 1024)
        I('s_add_u32', 's9', 's7', j * 98304)
        I('buffer_load_dwordx4', 'v4', s(44, 4), 's9', mods='offen lds')
    tick(k)
    k.waitcnt(vm=22)
    tick(k)
    I('v_lshlrev_b32', 'v9', 16, 'v8')
    I('v_and_b32', 'v10', 0xffff0000, 'v8')
    I('s_mov_b32', 's14', f32bits(-1.4426950408889634))
    for r, t in ((9, 20), (10, 21)):
        I('v_mul_f32', v(t), 's14', v(r))
    for t in (20, 21):
        I('v_exp_f32', v(t), v(t))
    for t in (20, 21):
        I('v_add_f32', v(t), 1.0, v(t))
    for t in (20, 21):
        I('v_rcp_f32', v(t), v(t))
    for r, t in ((9, 20), (10, 21)):
        I('v_mul_f32', v(r), v(r), v(t))
    I('v_cvt_pk_bf16_f32', 'v9', 'v9', 'v10')
    I('v_add_u32', 'v10', L_S, 'v6')
    I('ds_write_b32', 'v10', 'v9')
    k.waitcnt(vm=2)
    tick(k)
    unpack8(k, 24, 12)
    unpack8(k, 32, 16)
    for b in (24, 32):
        t = 40 if b == 24 else 41
        I('v_add_f32', v(t), v(b), v(b + 1))
        for j in range(2, 8):
            I('v_add_f32', v(t), v(t), v(b + j))
    wave_sum_to_sgpr(k, [40, 41], [60, 61])
    I('s_mov_b32', 's14', f32bits(1.0 / 512))
    for t, sd in ((40, 60), (41, 61)):
        I('v_mov_b32', v(t), s(sd))
        I('v_mul_f32', v(t), 's14', v(t))
    for b, t in ((24, 40), (32, 41)):
        for j in range(8):
            I('v_sub_f32', v(b + j), v(b + j), v(t))
    for b, t in ((24, 42), (32, 43)):
        I('v_mul_f32', v(t), v(b), v(b))
        for j in range(1, 8):
            I('v_fmac_f32', v(t), v(b + j), v(b + j))
    wave_sum_to_sgpr(k, [42, 43], [60, 61])
    I('s_mov_b32', 's15', f32bits(1e-5))
    for t, sd in ((42, 60), (43, 61)):
        I('v_mov_b32', v(t), s(sd))
        I('v_mov_b32', v(44), 's15')
        I('v_fma_f32', v(t), v(t), 's14', v(44))
        I('v_rsq_f32', v(t), v(t))
    for b, t in ((24, 42), (32, 43)):
        for j in range(8):
            I('v_mul_f32', v(b + j), v(b + j), v(t))
    pack8(k, 12, 24)
    pack8(k, 16, 32)
    I('s_lshr_b32', 's11', 's10', 5)
    I('s_lshl_b32', 's11', 's11', 15)
    I('s_and_b32', 's14', 's10', 31)
    I('s_lshl_b32', 's14', 's14', 4)
    I('s_add_u32', 's11', 's11', 's14')
    I('s_add_u32', 's11', 's11', XN)
    I('v_lshlrev_b32', 'v11', 9, 'v1')
    I('buffer_store_dwordx4', v(12, 4), 'v11', s(R_WS, 4), 's11', mods='offen')
    I('buffer_store_dwordx4', v(16, 4), 'v11', s(R_WS, 4), 's11', mods='offen offset:16')
    I('v_lshrrev_b32', 'v2', 4, 'v1')
    I('v_bfe_u32', 'v3', 'v1', 2, 2)
    I('v_and_b32', 'v8', 3, 'v1')
    I('v_lshlrev_b32', 'v9', 3, 'v2')
    I('v_add_u32', 'v9', 'v9', 'v3')
    I('v_lshlrev_b32', 'v9', 6, 'v9')
    I('v_lshl_add_u32', 'v9', 'v8', 3, 'v9')
    I('s_and_b32', 's7', 's3', 1)
    I('s_lshl_b32', 's7', 's7', 5)
    I('s_lshr_b32', 's8', 's3', 1)
    I('s_lshl_b32', 's9', 's8', 15)
    I('s_add_u32', 's9', 's9', 's7')
    I('v_add_u32', 'v20', 's9', 'v9')
    I('s_lshl_b32', 's9', 's8', 12)
    I('s_add_u32', 's9', 's9', 's7')
    I('s_add_u32', 's9', 's9', L_B)
    I('v_add_u32', 'v21', 's9', 'v9')
    I('v_lshlrev_b32', 'v22', 4, 'v2')
    I('v_add_u32', 'v22', L_S, 'v22')
    I('s_lshl_b32', 's9', 's13', 8)
    I('s_lshl_b32', 's14', 's8', 7)
    I('s_add_u32', 's9', 's9', 's14')
    I('v_add_u32', 'v23', 's9', 'v22')
    I('v_lshrrev_b32', 'v24', 5, 'v1')
    I('v_lshlrev_b32', 'v25', 3, 'v24')
    I('v_add_u32', 'v25', 'v25', 'v3')
    I('v_lshlrev_b32', 'v25', 6, 'v25')
    I('v_bfe_u32', 'v26', 'v1', 4, 1)
    I('v_lshl_add_u32', 'v25', 'v26', 5, 'v25')
    I('v_lshl_add_u32', 'v25', 'v8', 3, 'v25')
    I('s_lshl_b32', 's9', 's3', 11)
    I('s_add_u32', 's9', 's9', L_W)
    I('v_add_u32', 'v25', 's9', 'v25')
    tick(k)
    k.waitcnt(vm=2, lgkm=0)
    tick(k)
    k.barrier()
    tick(k)
    NB = 4
    buf = lambda st: 64 + 8 * (st % NB)

    def rd(st):
        b = buf(st)
        if st < 16:
            I('ds_read_b128', v(b, 4), 'v22', mods=f'offset:{st * 64}')
            I('ds_read_b64_tr_b16', v(b + 4, 2), 'v20', mods=f'offset:{st * 2048}')
            I('ds_read_b64_tr_b16', v(b + 6, 2), 'v20', mods=f'offset:{st * 2048 + 256}')
        else:
            q = st - 16
            I('ds_read_b128', v(b, 4), 'v23', mods=f'offset:{q * 64}')
            I('ds_read_b64_tr_b16', v(b + 4, 2), 'v21', mods=f'offset:{q * 2048}')
            I('ds_read_b64_tr_b16', v(b + 6, 2), 'v21', mods=f'offset:{q * 2048 + 256}')
    NS = 18
    for st in range(NB):
        rd(st)
    for st in range(NS):
        rem = min(NS - 1 - st, NB - 1)
        k.waitcnt(lgkm=3 * rem)
        b = buf(st)
        if st < 16:
            I('v_mfma_f32_16x16x32_bf16', v(100, 4), v(b, 4), v(b + 4, 4), 0 if st == 0 else v(100, 4))
        else:
            I('v_mfma_f32_16x16x32_bf16', v(104, 4), v(b, 4), v(b + 4, 4), 0 if st == 16 else v(104, 4))
        if st + NB < NS:
            rd(st + NB)
    for sl in range(2):
        I('ds_read_b64_tr_b16', v(108 + 4 * sl, 2), 'v25', mods=f'offset:{sl * 1024}')
        I('ds_read_b64_tr_b16', v(110 + 4 * sl, 2), 'v25', mods=f'offset:{sl * 1024 + 256}')
    I('v_cvt_pk_bf16_f32', 'v26', 'v100', 'v100')
    I('v_and_b32', 'v27', 0xffff0000, 'v26')
    I('v_add_f32', 'v27', 1.0, 'v27')
    I('v_cvt_pk_bf16_f32', 'v27', 'v27', 'v27')
    I('v_and_b32', 'v27', 0xffff0000, 'v27')
    I('v_and_b32', 'v28', 15, 'v1')
    I('s_lshr_b32', 's9', 's7', 1)
    I('v_add_u32', 'v28', 's9', 'v28')
    I('s_mov_b32', 's15', L_DUM)
    I('s_cmp_lt_u32', 's3', 2)
    I('s_cselect_b32', 's9', L_SA, 's15')
    I('s_cselect_b32', 's14', 's15', L_G)
    I('v_lshl_add_u32', 'v29', 'v28', 1, 's9')
    I('v_lshl_add_u32', 'v30', 'v28', 2, 's14')
    I('ds_write_b16', 'v29', 'v26')
    I('ds_write_b32', 'v30', 'v27')
    I('s_lshl_b32', 's9', 's13', 1)
    I('s_add_u32', 's9', 's9', 's8')
    I('s_lshl_b32', 's9', 's9', 13)
    I('s_lshl_b32', 's14', 's12', 7)
    I('s_add_u32', 's9', 's9', 's14')
    I('s_add_u32', 's9', 's9', MODP)
    I('v_lshlrev_b32', 'v31', 2, 'v28')
    I('s_mov_b64', 'exec', 0xffff)
    I('buffer_store_dword', 'v104', 'v31', s(R_WS, 4), 's9', mods='offen')
    I('s_mov_b64', 'exec', -1)
    k.waitcnt(lgkm=0)
    tick(k)
    k.barrier()
    tick(k)
    I('s_cmp_eq_u32', 's3', 3)
    I('s_cbranch_scc1', 'L_k0_done')
    I('v_lshlrev_b32', 'v26', 5, 'v24')
    I('v_add_u32', 'v26', L_G, 'v26')
    I('v_lshlrev_b32', 'v27', 4, 'v24')
    I('v_add_u32', 'v27', L_SA, 'v27')
    for sl in range(2):
        I('ds_read_b128', v(120 + 8 * sl, 4), 'v26', mods=f'offset:{sl * 64}')
        I('ds_read_b128', v(124 + 8 * sl, 4), 'v26', mods=f'offset:{sl * 64 + 16}')
        I('ds_read_b128', v(136 + 4 * sl, 4), 'v27', mods=f'offset:{sl * 32}')
    I('s_mul_i32', 's9', 's6', W1_NB)
    I('s_lshl_b32', 's14', 's3', 10)
    I('s_add_u32', 's9', 's9', 's14')
    I('s_add_u32', 's9', 's9', W1)
    I('s_mul_i32', 's14', 's5', 6144)
    I('s_add_u32', 's14', 's14', 's9')
    k.waitcnt(lgkm=0)
    I('v_mfma_f32_32x32x16_bf16', v(144, 16), v(136, 4), v(108, 4), 0)
    I('v_mfma_f32_32x32x16_bf16', v(144, 16), v(140, 4), v(112, 4), v(144, 16))
    for sl in range(2):
        unpack8(k, 64 + 8 * sl, 108 + 4 * sl)
        for j in range(8):
            I('v_mul_f32', v(64 + 8 * sl + j), v(64 + 8 * sl + j), v(120 + 8 * sl + j))
        pack8(k, 80 + 4 * sl, 64 + 8 * sl)
        I('buffer_store_dwordx4', v(80 + 4 * sl, 4), 'v7', s(R_WS, 4), 's14', mods=f'offen offset:{sl * 3072}')
    I('v_cvt_pk_bf16_f32', 'v26', 'v144', 'v144')
    I('v_and_b32', 'v27', 0xffff0000, 'v26')
    I('v_sub_f32', 'v27', 'v144', 'v27')
    I('v_cvt_pk_bf16_f32', 'v27', 'v27', 'v27')
    I('v_cmp_eq_u32', 'vcc', 0, 'v24')
    I('v_cndmask_b32', 'v26', 'v27', 'v26', 'vcc')
    I('v_mul_u32_u24', 'v28', 3072, 'v24')
    I('v_and_b32', 'v29', 31, 'v1')
    I('v_lshl_add_u32', 'v28', 'v29', 4, 'v28')
    I('s_lshr_b32', 's14', 's5', 3)
    I('s_lshl_b32', 's14', 's14', 9)
    I('s_and_b32', 's15', 's5', 7)
    I('s_lshl_b32', 's15', 's15', 1)
    I('s_add_u32', 's14', 's14', 's15')
    I('s_add_u32', 's14', 's14', 's9')
    I('s_add_u32', 's14', 's14', 32 * 3072)
    I('buffer_store_short', 'v26', 'v28', s(R_WS, 4), 's14', mods='offen')
    k.label('L_k0_done')
    epilogue(k, 0)
    return k, 256, 256, LDS


QSCALE = 0.25 * 1.4426950408889634


def gen_k1():
    k = Kernel('k1_qkv_kernel')
    I = k.I
    LDS = 8 * 12288 + 8192
    prologue(k, 256, need_lo=False)
    xcd_map(k, 2, 4, 5)
    I('s_lshl_b32', 's6', 's4', 2)
    I('s_add_u32', 's6', 's6', 's3')
    I('v_lshlrev_b32', 'v2', 4, 'v1')
    I('s_mul_i32', 's7', 's5', W1_NB)
    I('s_mul_i32', 's8', 's3', 3072)
    I('s_add_u32', 's7', 's7', 's8')
    I('s_add_u32', 's7', 's7', W1)
    I('s_lshl_b32', 's9', 's6', 15)
    I('s_add_u32', 's9', 's9', XN)
    k.waitcnt(lgkm=0)
    tick(k)
    srd(k, R_WS, S_WS, WS_SIZE)
    TOK = 64
    ACC = 16
    WF = 192
    for c in range(8):
        I('s_add_u32', 'm0', 's8', c * 12288)
        I('s_add_u32', 's10', 's7', c * 12288)
        for q in range(3):
            I('buffer_load_dwordx4', 'v2', s(R_WS, 4), 's10', mods=f'offen offset:{q * 1024} lds')
        I('s_add_u32', 's10', 's9', c * 4096)
        for q in range(4):
            I('buffer_load_dwordx4', v(TOK + 16 * c + 4 * q, 4), 'v2', s(R_WS, 4), 's10', mods=f'offen offset:{q * 1024}')
    I('s_lshl_b32', 's11', 's3', 11)
    I('s_add_u32', 'm0', 's11', 8 * 12288)
    I('s_sub_u32', 's10', 's7', 's8')
    I('s_add_u32', 's10', 's10', 's11')
    I('s_add_u32', 's10', 's10', 8 * 12288)
    for q in range(2):
        I('buffer_load_dwordx4', 'v2', s(R_WS, 4), 's10', mods=f'offen offset:{q * 1024} lds')
    NV = 58
    I('s_cmp_ge_u32', 's2', 8)
    I('s_cbranch_scc1', 'L_k1_nomod')
    I('s_lshl_b32', 's10', 's2', 10)
    I('s_add_u32', 's10', 's10', MODP)
    I('v_lshlrev_b32', 'v3', 2, 'v0')
    for p in range(8):
        I('s_add_u32', 's11', 's10', p * 8192)
        I('buffer_load_dword', v(216 + p), 'v3', s(R_WS, 4), 's11', mods='offen')
    k.waitcnt(vm=0)
    for p in range(1, 8):
        I('v_add_f32', 'v216', 'v216', v(216 + p))
    I('v_cvt_pk_bf16_f32', 'v217', 'v216', 'v216')
    I('v_and_b32', 'v218', 0xffff0000, 'v217')
    I('v_add_f32', 'v219', 1.0, 'v218')
    I('v_cvt_pk_bf16_f32', 'v219', 'v219', 'v219')
    I('v_and_b32', 'v219', 0xffff0000, 'v219')
    I('s_lshr_b32', 's11', 's2', 1)
    I('s_and_b32', 's12', 's2', 1)
    I('s_cmp_eq_u32', 's11', 1)
    I('s_cbranch_scc1', 'L_k1_sb')
    I('s_mov_b32', 's13', MF_GB)
    I('s_cmp_eq_u32', 's11', 2)
    I('s_cselect_b64', 'vcc', -1, 0)
    I('v_cndmask_b32', 'v218', 'v218', 'v219', 'vcc')
    I('s_cselect_b32', 's13', MF_G2, 's13')
    I('s_cmp_eq_u32', 's11', 0)
    I('s_cselect_b32', 's13', MF_GA, 's13')
    I('s_lshl_b32', 's12', 's12', 10)
    I('s_add_u32', 's13', 's13', 's12')
    I('s_add_u32', 's13', 's13', MODF)
    I('buffer_store_dword', 'v218', 'v3', s(R_WS, 4), 's13', mods='offen')
    I('s_branch', 'L_k1_modw')
    k.label('L_k1_sb')
    I('s_lshl_b32', 's12', 's12', 9)
    I('s_add_u32', 's13', 's12', MODF + MF_SB)
    I('v_lshlrev_b32', 'v3', 1, 'v0')
    I('buffer_store_short', 'v217', 'v3', s(R_WS, 4), 's13', mods='offen')
    k.label('L_k1_modw')
    k.waitcnt(vm=0)
    k.label('L_k1_nomod')
    for j in range(4):
        I('v_mov_b32', v(8 + j), 0x3f803f80)
    I('v_add_u32', 'v3', 61440, 'v2')

    def rdw(sidx):
        st = WF + 12 * (sidx & 1)
        off = sidx * 3072
        base = 'v2'
        if off + 2048 > 65535:
            base = 'v3'
            off -= 61440
        for f in range(3):
            I('ds_read_b128', v(st + 4 * f, 4), base, mods=f'offset:{off + f * 1024}')

    def mm(sidx):
        st = WF + 12 * (sidx & 1)
        tok = v(TOK + 4 * sidx, 4) if sidx < 32 else v(8, 4)
        for f in range(3):
            c = 0 if sidx == 0 else v(ACC + 16 * f, 16)
            if f < 2:
                I('v_mfma_f32_32x32x16_bf16', v(ACC + 16 * f, 16), v(st + 4 * f, 4), tok, c)
            else:
                I('v_mfma_f32_32x32x16_bf16', v(ACC + 16 * f, 16), tok, v(st + 4 * f, 4), c)

    def chunk_wait(c):
        done = 7 * (c + 1) if c < 8 else NV
        k.waitcnt(vm=NV - done)
        k.barrier()
        tick(k)
    tick(k)
    chunk_wait(0)
    rdw(0)
    NSTEP = 34
    for sidx in range(NSTEP):
        nxt = sidx + 1
        if nxt < NSTEP:
            if nxt % 4 == 0:
                chunk_wait(nxt // 4)
            rdw(nxt)
            k.waitcnt(lgkm=3)
        else:
            k.waitcnt(lgkm=0)
        mm(sidx)
    tick(k)
    I('s_mov_b32', 's10', f32bits(QSCALE))
    I('s_lshl_b32', 's11', 's5', 17)
    I('s_lshl_b32', 's12', 's6', 10)
    I('s_add_u32', 's11', 's11', 's12')
    I('s_add_u32', 's12', 's11', QB)
    I('s_add_u32', 's13', 's11', QB + 65536)
    I('s_add_u32', 's14', 's11', KB)
    I('s_add_u32', 's15', 's11', KB + 65536)
    I('s_add_u32', 's60', 's11', VB)
    I('v_bfe_u32', 'v4', 'v1', 4, 1)
    I('v_lshlrev_b32', 'v4', 16, 'v4')
    I('v_lshrrev_b32', 'v5', 5, 'v1')
    I('v_lshl_add_u32', 'v4', 'v5', 8, 'v4')
    I('v_and_b32', 'v5', 15, 'v1')
    I('v_lshl_add_u32', 'v4', 'v5', 4, 'v4')
    for r in range(16):
        I('v_mul_f32', v(ACC + r), 's10', v(ACC + r))
    P = 192
    for f in range(3):
        for hh in range(2):
            pack8(k, P + 8 * f + 4 * hh, ACC + 16 * f + 8 * hh)
    I('buffer_store_dwordx4', v(P, 4), 'v2', s(R_WS, 4), 's12', mods='offen')
    I('buffer_store_dwordx4', v(P + 4, 4), 'v2', s(R_WS, 4), 's13', mods='offen')
    I('buffer_store_dwordx4', v(P + 8, 4), 'v2', s(R_WS, 4), 's14', mods='offen')
    I('buffer_store_dwordx4', v(P + 12, 4), 'v2', s(R_WS, 4), 's15', mods='offen')
    I('buffer_store_dwordx4', v(P + 16, 4), 'v4', s(R_WS, 4), 's60', mods='offen')
    I('buffer_store_dwordx4', v(P + 20, 4), 'v4', s(R_WS, 4), 's60', mods='offen offset:512')
    epilogue(k, 1, vtmp=4)
    return k, 256, 256, LDS


BIG = 1e30


def gen_k2():
    k = Kernel('k2_attn_kernel')
    I = k.I
    L_K, L_V, L_SIDE = 0, 16384, 32768
    L_WD = L_SIDE + 16384
    LDS = L_SIDE + 73728
    Q, KF, VF, SB_, PB, OA, NM, MK = 16, 20, 56, 128, 176, 192, 208, 224
    prologue(k, 256)
    xcd_map(k, 1, 5, 4)
    I('s_lshl_b32', 's6', 's5', 3)
    I('s_add_u32', 's6', 's6', 's3')
    I('v_lshlrev_b32', 'v2', 4, 'v1')
    I('s_lshl_b32', 's7', 's5', 3)
    I('s_lshl_b32', 's8', 's3', 1)
    I('s_add_i32', 's7', 's7', 's8')
    I('s_add_i32', 's7', 's7', -8)
    I('s_max_i32', 's7', 's7', 0)
    I('s_lshl_b32', 's7', 's7', 10)
    I('s_lshl_b32', 's9', 's4', 16)
    I('s_add_u32', 's7', 's7', 's9')
    I('s_lshl_b32', 's10', 's6', 10)
    I('s_add_u32', 's10', 's10', 's9')
    I('s_add_u32', 's10', 's10', QB)
    I('s_lshl_b32', 's8', 's3', 11)
    I('v_lshrrev_b32', 'v3', 5, 'v1')
    I('v_bfe_u32', 'v4', 'v1', 4, 1)
    I('v_bfe_u32', 'v5', 'v1', 2, 2)
    I('v_and_b32', 'v6', 1, 'v1')
    I('v_bfe_u32', 'v7', 'v1', 1, 1)
    I('v_lshl_add_u32', 'v6', 'v6', 1, 'v7')
    k.waitcnt(lgkm=0)
    tick(k)
    srd(k, R_WS, S_WS, WS_SIZE)
    I('s_add_u32', 'm0', 's8', L_K)
    I('s_add_u32', 's11', 's7', KB)
    I('buffer_load_dwordx4', 'v2', s(R_WS, 4), 's11', mods='offen lds')
    I('buffer_load_dwordx4', 'v2', s(R_WS, 4), 's11', mods='offen offset:1024 lds')
    I('buffer_load_dwordx4', v(Q, 4), 'v2', s(R_WS, 4), 's10', mods='offen')
    I('s_add_u32', 'm0', 's8', L_V)
    I('s_add_u32', 's11', 's7', VB)
    I('buffer_load_dwordx4', 'v2', s(R_WS, 4), 's11', mods='offen lds')
    I('buffer_load_dwordx4', 'v2', s(R_WS, 4), 's11', mods='offen offset:1024 lds')
    I('s_cmp_eq_u32', 's5', 0)
    I('s_cbranch_scc1', 'L_k2_ld0')
    I('s_mul_i32', 's12', 's4', 7)
    I('s_add_u32', 's12', 's12', 's5')
    I('s_sub_u32', 's12', 's12', 1)
    I('s_lshr_b32', 's13', 's12', 3)
    I('s_and_b32', 's14', 's12', 7)
    I('s_cmp_lt_u32', 's3', 4)
    I('s_cselect_b32', 's44', s(S_WG), s(S_WU))
    I('s_cselect_b32', 's45', s(S_WG + 1), s(S_WU + 1))
    I('s_mov_b32', 's46', 512 * 3584)
    I('s_mov_b32', 's47', 0x20000)
    I('v_lshrrev_b32', 'v8', 3, 'v1')
    I('v_mul_u32_u24', 'v8', 3584, 'v8')
    I('v_and_b32', 'v9', 7, 'v1')
    I('v_lshl_add_u32', 'v8', 'v9', 4, 'v8')
    I('s_lshl_b32', 's15', 's14', 6)
    I('s_and_b32', 's60', 's3', 3)
    I('s_lshl_b32', 's60', 's60', 4)
    I('s_add_u32', 's15', 's15', 's60')
    I('s_mul_i32', 's15', 's15', 3584)
    I('s_lshl_b32', 's60', 's13', 7)
    I('s_add_u32', 's15', 's15', 's60')
    I('s_add_u32', 'm0', 's8', L_SIDE)
    I('buffer_load_dwordx4', 'v8', s(44, 4), 's15', mods='offen lds')
    I('s_add_u32', 'm0', 's8', L_SIDE + 1024)
    I('s_add_u32', 's15', 's15', 8 * 3584)
    I('buffer_load_dwordx4', 'v8', s(44, 4), 's15', mods='offen lds')
    I('s_lshr_b32', 's60', 's3', 2)
    I('s_lshl_b32', 's60', 's60', 5)
    I('s_lshl_b32', 's61', 's14', 6)
    I('s_add_u32', 's60', 's60', 's61')
    I('s_lshl_b32', 's61', 's60', 2)
    I('s_add_u32', 's61', 's61', MODF + MF_G2)
    I('v_lshlrev_b32', 'v9', 5, 'v3')
    for u in range(2):
        I('buffer_load_dwordx4', v(NM + 8 * u, 4), 'v9', s(R_WS, 4), 's61', mods=f'offen offset:{64 * u}')
        I('buffer_load_dwordx4', v(NM + 8 * u + 4, 4), 'v9', s(R_WS, 4), 's61', mods=f'offen offset:{64 * u + 16}')
    I('s_lshl_b32', 's61', 's60', 1)
    I('s_add_u32', 's61', 's61', MODF + MF_SB)
    I('v_lshlrev_b32', 'v9', 4, 'v3')
    for u in range(2):
        I('buffer_load_dwordx4', v(OA + 4 * u, 4), 'v9', s(R_WS, 4), 's61', mods=f'offen offset:{32 * u}')
    I('s_branch', 'L_k2_ld1')
    k.label('L_k2_ld0')
    srd(k, 44, S_WO, 512 * 1024)
    srd(k, 48, S_WD, 1792 * 1024)
    I('s_lshl_b32', 's12', 's4', 14)
    I('s_add_u32', 's12', 's12', 's8')
    I('s_add_u32', 'm0', 's8', L_SIDE)
    I('buffer_load_dwordx4', 'v2', s(44, 4), 's12', mods='offen lds')
    I('buffer_load_dwordx4', 'v2', s(44, 4), 's12', mods='offen offset:1024 lds')
    I('v_lshlrev_b32', 'v8', 10, 'v3')
    I('v_and_b32', 'v9', 31, 'v1')
    I('v_lshl_add_u32', 'v8', 'v9', 4, 'v8')
    I('s_lshr_b32', 's12', 's4', 1)
    I('s_mul_i32', 's12', 's12', 112)
    I('s_mul_i32', 's13', 's3', 14)
    I('s_add_u32', 's12', 's12', 's13')
    I('s_lshl_b32', 's12', 's12', 10)
    I('s_and_b32', 's13', 's4', 1)
    I('s_lshl_b32', 's13', 's13', 9)
    I('s_add_u32', 's12', 's12', 's13')
    I('s_mul_i32', 's13', 's3', 7168)
    for i in range(7):
        I('s_add_u32', 'm0', 's13', L_WD + i * 1024)
        I('s_add_u32', 's14', 's12', i * 2048)
        I('buffer_load_dwordx4', 'v8', s(48, 4), 's14', mods='offen lds')
    k.label('L_k2_ld1')
    I('v_and_b32', 'v10', 31, 'v1')
    I('v_lshlrev_b32', 'v11', 2, 'v3')
    I('v_sub_u32', 'v10', 'v10', 'v11')
    I('v_mov_b32', 'v11', f32bits(-BIG))
    for r in range(16):
        kk = (r & 3) + 8 * (r >> 2)
        I('v_cmp_le_i32', 'vcc', kk, 'v10')
        I('v_cndmask_b32_e64', v(MK + r), 'v11', 0, 'vcc')
    for r in range(72):
        I('v_mov_b32', v(VF + r), 0x3f803f80)
    I('s_lshl_b32', 's9', 's3', 10)
    I('v_add_u32', 'v12', 's9', 'v2')
    I('v_lshlrev_b32', 'v13', 8, 'v3')
    I('v_and_b32', 'v14', 15, 'v1')
    I('v_lshl_add_u32', 'v13', 'v14', 4, 'v13')
    I('v_add_u32', 'v13', 's9', 'v13')
    tick(k)
    k.waitcnt(vm=0)
    tick(k)
    k.barrier()
    tick(k)
    for t in range(8, -1, -1):
        I('ds_read_b128', v(KF + 4 * t, 4), 'v12', mods=f'offset:{L_K + t * 1024}')
    I('s_cmp_eq_u32', 's5', 0)
    I('s_cbranch_scc1', 'L_k2_sw0')
    I('v_lshlrev_b32', 'v8', 13, 'v4')
    I('v_lshl_add_u32', 'v9', 'v3', 3, 'v5')
    I('v_lshl_add_u32', 'v8', 'v9', 7, 'v8')
    I('v_lshl_add_u32', 'v8', 'v6', 3, 'v8')
    I('s_and_b32', 's15', 's3', 3)
    I('s_lshl_b32', 's60', 's15', 5)
    I('s_lshr_b32', 's61', 's3', 2)
    I('s_lshl_b32', 's62', 's61', 12)
    I('s_add_u32', 's60', 's60', 's62')
    I('s_add_u32', 's60', 's60', L_SIDE)
    I('v_add_u32', 'v8', 's60', 'v8')
    RW = PB
    for u in range(2):
        I('ds_read_b64_tr_b16', v(RW + 4 * u, 2), 'v8', mods=f'offset:{u * 2048}')
        I('ds_read_b64_tr_b16', v(RW + 4 * u + 2, 2), 'v8', mods=f'offset:{u * 2048 + 512}')
    I('s_lshl_b32', 's60', 's13', 2)
    I('s_add_u32', 's60', 's60', 's15')
    I('s_mul_i32', 's62', 's60', 147)
    I('s_lshr_b32', 's62', 's62', 10)
    I('s_mul_i32', 's63', 's62', 7)
    I('s_sub_u32', 's63', 's60', 's63')
    I('s_mul_i32', 's62', 's62', W4_NB)
    I('s_lshl_b32', 's63', 's63', 10)
    I('s_add_u32', 's62', 's62', 's63')
    I('s_lshl_b32', 's63', 's14', 2)
    I('s_lshl_b32', 's64', 's61', 1)
    I('s_add_u32', 's63', 's63', 's64')
    I('s_mul_i32', 's63', 's63', 7168)
    I('s_add_u32', 's62', 's62', 's63')
    I('s_add_u32', 's62', 's62', W4)
    I('s_add_u32', 's63', 's62', 7168)
    for j in range(4):
        I('v_mov_b32', v(240 + j), 0x3f803f80)
    k.waitcnt(lgkm=0)
    for u in range(2):
        I('v_mfma_f32_32x32x16_bf16', v(SB_, 16), v(OA + 4 * u, 4), v(RW + 4 * u, 4), 0 if u == 0 else v(SB_, 16))
    for u in range(2):
        T = SB_ + 32
        unpack8(k, T + 8 * u, RW + 4 * u)
        for j in range(8):
            I('v_mul_f32', v(T + 8 * u + j), v(T + 8 * u + j), v(NM + 8 * u + j))
        pack8(k, RW + 8 + 4 * u, T + 8 * u)
        I('buffer_store_dwordx4', v(RW + 8 + 4 * u, 4), 'v2', s(R_WS, 4), 's62' if u == 0 else 's63', mods='offen')
    for u in range(2):
        I('v_mfma_f32_32x32x16_bf16', v(SB_ + 16, 16), v(240, 4), v(RW + 8 + 4 * u, 4), 0 if u == 0 else v(SB_ + 16, 16))
    I('s_lshl_b32', 's62', 's14', 1)
    I('s_add_u32', 's62', 's62', 's61')
    I('s_mul_i32', 's62', 's62', 28672)
    I('s_lshl_b32', 's63', 's60', 7)
    I('s_add_u32', 's62', 's62', 's63')
    I('s_add_u32', 's62', 's62', CSP)
    I('v_mul_u32_u24', 'v8', 14336, 'v3')
    I('v_and_b32', 'v9', 31, 'v1')
    I('v_lshl_add_u32', 'v8', 'v9', 2, 'v8')
    I('v_cmp_eq_u32', 'vcc', 0, 'v3')
    I('v_cndmask_b32', 'v9', v(SB_), v(SB_ + 16), 'vcc')
    I('buffer_store_dword', 'v9', 'v8', s(R_WS, 4), 's62', mods='offen')
    I('s_branch', 'L_k2_sw1')
    k.label('L_k2_sw0')
    I('v_lshl_add_u32', 'v9', 'v3', 2, 'v5')
    I('v_lshlrev_b32', 'v8', 10, 'v9')
    I('v_lshl_add_u32', 'v8', 'v4', 5, 'v8')
    I('v_lshl_add_u32', 'v8', 'v6', 3, 'v8')
    I('s_lshl_b32', 's12', 's3', 7)
    I('s_add_u32', 's12', 's12', L_SIDE)
    I('v_add_u32', 'v8', 's12', 'v8')
    for u in range(2):
        I('ds_read_b64_tr_b16', v(SB_ + 4 * u, 2), 'v8', mods=f'offset:{u * 64}')
        I('ds_read_b64_tr_b16', v(SB_ + 4 * u + 2, 2), 'v8', mods=f'offset:{u * 64 + 8192}')
    I('v_lshl_add_u32', 'v9', 'v3', 3, 'v5')
    I('v_lshlrev_b32', 'v9', 9, 'v9')
    I('v_lshl_add_u32', 'v9', 'v4', 5, 'v9')
    I('v_lshl_add_u32', 'v9', 'v6', 3, 'v9')
    I('s_lshl_b32', 's12', 's3', 6)
    I('s_add_u32', 's12', 's12', L_WD)
    I('v_add_u32', 'v9', 's12', 'v9')
    I('s_lshl_b32', 's12', 's3', 16)
    I('s_lshl_b32', 's13', 's4', 10)
    I('s_add_u32', 's12', 's12', 's13')
    I('s_add_u32', 's12', 's12', WO)
    I('s_add_u32', 's13', 's12', 32768)
    k.waitcnt(lgkm=0)
    I('buffer_store_dwordx4', v(SB_, 4), 'v2', s(R_WS, 4), 's12', mods='offen')
    I('buffer_store_dwordx4', v(SB_ + 4, 4), 'v2', s(R_WS, 4), 's13', mods='offen')
    for i in range(7):
        I('ds_read_b64_tr_b16', v(SB_ + 8 + 4 * i, 2), 'v9', mods=f'offset:{i * 8192}')
        I('ds_read_b64_tr_b16', v(SB_ + 8 + 4 * i + 2, 2), 'v9', mods=f'offset:{i * 8192 + 2048}')
    I('s_and_b32', 's12', 's4', 1)
    I('s_lshl_b32', 's12', 's12', 3)
    I('s_add_u32', 's12', 's12', 's3')
    I('s_mul_i32', 's12', 's12', 114688)
    I('s_lshr_b32', 's13', 's4', 1)
    I('s_mul_i32', 's13', 's13', 7168)
    I('s_add_u32', 's12', 's12', 's13')
    I('s_add_u32', 's12', 's12', WD)
    I('s_add_u32', 's13', 's12', 4096)
    k.waitcnt(lgkm=0)
    for i in range(7):
        I('buffer_store_dwordx4', v(SB_ + 8 + 4 * i, 4), 'v2', s(R_WS, 4), 's12' if i < 4 else 's13',
          mods=f'offen offset:{(i % 4) * 1024}')
    k.label('L_k2_sw1')
    k.nop(12)
    tick(k)
    I('s_mov_b32', 's12', 0xffff)
    I('s_mov_b32', 's13', 0xffff)
    I('s_mov_b64', 'exec', s(12, 2))
    for t in range(8, -1, -1):
        for j in range(2):
            I('ds_read_b128', v(VF + 8 * t + 4 * j, 4), 'v13', mods=f'offset:{L_V + t * 1024 + j * 512}')
        if t == 4:
            k.waitcnt(lgkm=8)
    I('s_mov_b64', 'exec', -1)
    I('s_sub_i32', 's14', 8, 's6')
    I('s_max_i32', 's14', 's14', 0)
    Sb = lambda t: SB_ + 16 * (t % 3)
    MX = 244

    def qk(t, C):
        I('v_mfma_f32_32x32x16_bf16', v(Sb(t), 16), v(KF + 4 * t, 4), v(Q, 4), C)
    qk(8, v(MK, 16))
    qk(7, 0)
    for t in range(8, -1, -1):
        if t - 2 > 0:
            qk(t - 2, 0)
        elif t - 2 == 0:
            for r in range(16):
                I('v_sub_f32', v(Sb(0) + r), 'v11', v(MK + r))
            qk(0, v(Sb(0), 16))
        b = Sb(t)
        if t == 8:
            I('v_max3_f32', v(MX), v(b), v(b + 1), v(b + 2))
            I('v_max3_f32', v(MX + 1), v(b + 3), v(b + 4), v(b + 5))
            rest = list(range(6, 16))
        else:
            rest = list(range(16))
        for i in range(0, len(rest), 2):
            m = MX + ((i // 2) & 1)
            I('v_max3_f32', v(m), v(m), v(b + rest[i]), v(b + rest[i + 1]))
        if t > 0:
            I('s_cmp_eq_u32', 's14', t)
            I('s_cbranch_scc1', 'L_k2_p1done')
    k.label('L_k2_p1done')
    I('v_max_f32', v(MX), v(MX), v(MX + 1))
    I('v_mov_b32', v(MX + 1), v(MX))
    I('v_permlane32_swap_b32', v(MX), v(MX + 1))
    I('v_max_f32', v(MX), v(MX), v(MX + 1))
    for r in range(16):
        I('v_sub_f32', v(NM + r), 0, v(MX))
    k.nop(4)
    for r in range(16):
        I('v_add_f32', v(Sb(8) + r), v(MK + r), v(NM))
    k.waitcnt(lgkm=0)
    tick(k)
    qk(8, v(Sb(8), 16))
    qk(7, v(NM, 16))
    for t in range(8, -1, -1):
        if t - 2 > 0:
            qk(t - 2, v(NM, 16))
        elif t - 2 == 0:
            for r in range(16):
                I('v_sub_f32', v(Sb(0) + r), 'v11', v(MK + r))
            for r in range(16):
                I('v_add_f32', v(Sb(0) + r), v(Sb(0) + r), v(NM))
            qk(0, v(Sb(0), 16))
        b = Sb(t)
        P = PB + 8 * (t & 1)
        for j in range(2):
            for r in range(8):
                I('v_exp_f32', v(b + 8 * j + r), v(b + 8 * j + r))
            pack8(k, P + 4 * j, b + 8 * j)
            I('v_mfma_f32_32x32x16_bf16', v(OA, 16), v(VF + 8 * t + 4 * j, 4), v(P + 4 * j, 4),
              0 if (t == 8 and j == 0) else v(OA, 16))
        if t > 0:
            I('s_cmp_eq_u32', 's14', t)
            I('s_cbranch_scc1', 'L_k2_p2done')
    k.label('L_k2_p2done')
    k.nop(12)
    tick(k)
    I('v_rcp_f32', v(MX), v(OA + 8))
    for r in range(8):
        I('v_mul_f32', v(OA + r), v(OA + r), v(MX))
    pack8(k, PB, OA)
    I('s_lshl_b32', 's12', 's6', 15)
    I('s_lshl_b32', 's13', 's4', 10)
    I('s_add_u32', 's12', 's12', 's13')
    I('s_add_u32', 's12', 's12', OB)
    I('buffer_store_dwordx4', v(PB, 4), 'v2', s(R_WS, 4), 's12', mods='offen')
    epilogue(k, 2, vtmp=4)
    return k, 256, 512, LDS


def gen_gemm64(name, idx, NS, A_BASE, A_TB, B_BASE, B_NF, is_k3):
    k = Kernel(name)
    I = k.I
    LDS = 4 * 3 * 4096
    prologue(k, 256, need_lo=is_k3)
    xcd_map(k, 3, 4, 5)
    I('v_lshlrev_b32', 'v2', 4, 'v1')
    I('v_lshrrev_b32', 'v3', 5, 'v1')
    I('v_and_b32', 'v4', 31, 'v1')
    I('s_mul_i32', 's6', 's3', NS * 1024)
    I('s_mul_i32', 's7', 's4', 2 * A_TB)
    I('s_add_u32', 's7', 's7', 's6')
    I('s_add_u32', 's7', 's7', A_BASE)
    I('s_add_u32', 's8', 's7', A_TB)
    I('s_mul_i32', 's9', 's5', 2 * B_NF)
    I('s_add_u32', 's9', 's9', 's6')
    I('s_add_u32', 's9', 's9', B_BASE)
    I('s_add_u32', 's10', 's9', B_NF)
    I('s_and_b32', 's11', 's3', 1)
    I('s_lshr_b32', 's12', 's3', 1)
    I('s_lshl_b32', 's13', 's4', 1)
    I('s_add_u32', 's13', 's13', 's12')
    I('s_lshl_b32', 's14', 's5', 1)
    I('s_add_u32', 's14', 's14', 's11')
    k.waitcnt(lgkm=0)
    tick(k)
    srd(k, R_WS, S_WS, WS_SIZE)
    ACC = 16
    GV = 80
    XR = 96
    RING = 104
    DEPTH = min(NS, 8)
    LOG = []

    def ld(st):
        b = RING + 16 * (st % DEPTH)
        if st % 4 == 0 and st > 0:
            for r in (7, 8, 9, 10):
                I('s_add_u32', s(r), s(r), 4096)
        off = (st % 4) * 1024
        for j, r in enumerate((9, 7, 10, 8)):
            I('buffer_load_dwordx4', v(b + 4 * j, 4), 'v2', s(R_WS, 4), s(r), mods=f'offen offset:{off}')
            LOG.append(('k', st))

    def side_loads():
        I('s_lshl_b32', 's15', 's14', 7)
        I('s_add_u32', 's15', 's15', MODF + (MF_GA if is_k3 else MF_GB))
        I('v_lshlrev_b32', 'v5', 5, 'v3')
        for sp in range(2):
            for q in range(2):
                I('buffer_load_dwordx4', v(GV + 8 * sp + 4 * q, 4), 'v5', s(R_WS, 4), 's15', mods=f'offen offset:{64 * sp + 16 * q}')
                LOG.append(('s', 0))
        if is_k3:
            srd(k, 44, S_X, 2048 * 1024)
            I('s_lshl_b32', 's15', 's13', 15)
            I('s_lshl_b32', 's60', 's14', 6)
            I('s_add_u32', 's15', 's15', 's60')
            I('v_lshlrev_b32', 'v6', 10, 'v4')
            I('v_lshl_add_u32', 'v6', 'v3', 4, 'v6')
            for sp in range(2):
                I('buffer_load_dwordx4', v(XR + 4 * sp, 4), 'v6', s(44, 4), 's15', mods=f'offen offset:{32 * sp}')
                LOG.append(('s', 0))
        else:
            I('s_lshl_b32', 's15', 's13', 15)
            I('s_lshl_b32', 's60', 's14', 11)
            I('s_add_u32', 's15', 's15', 's60')
            I('s_add_u32', 's15', 's15', X1)
            for sp in range(2):
                I('buffer_load_dwordx4', v(XR + 4 * sp, 4), 'v2', s(R_WS, 4), 's15', mods=f'offen offset:{1024 * sp}')
                LOG.append(('s', 0))

    PRE = min(DEPTH, 4)
    nxt = 0
    for st in range(PRE):
        ld(st)
        nxt += 1
    side_done = False
    for st in range(NS):
        tgt = min(NS, st + DEPTH)
        n_issue = 0
        while nxt < tgt and n_issue < 2:
            ld(nxt)
            nxt += 1
            n_issue += 1
        if nxt == NS and not side_done:
            side_loads()
            side_done = True
        last = max(i for i, e in enumerate(LOG) if e == ('k', st))
        k.waitcnt(vm=len(LOG) - 1 - last)
        b = RING + 16 * (st % DEPTH)
        B0, A0, B1, A1 = (v(b + 4 * j, 4) for j in range(4))
        for nfl, Bf in ((0, B0), (1, B1)):
            for tbl, Af in ((0, A0), (1, A1)):
                a_ = ACC + 16 * (2 * nfl + tbl)
                I('v_mfma_f32_32x32x16_bf16', v(a_, 16), Bf, Af, 0 if st == 0 else v(a_, 16))
    tick(k)
    k.flush()
    for o in range(4):
        q = 2 * (o & 1) + (o >> 1)
        lab = f'L_{name}_skip{o}'
        I('s_cmp_eq_u32', 's3', o)
        I('s_cbranch_scc1', lab)
        I('s_sub_u32', 's15', 's3', o + 1)
        I('s_and_b32', 's15', 's15', 3)
        I('s_lshl_b32', 's15', 's15', 12)
        I('v_add_u32', 'v7', 's15', 'v2')
        for j in range(4):
            I('ds_write_b128', 'v7', v(ACC + 16 * q + 4 * j, 4), mods=f'offset:{o * 12288 + j * 1024}')
        k.label(lab)
    OWN = RING
    for o in range(4):
        q = 2 * (o & 1) + (o >> 1)
        lab = f'L_{name}_own{o}'
        I('s_cmp_lg_u32', 's3', o)
        I('s_cbranch_scc1', lab)
        for r in range(16):
            I('v_mov_b32', v(OWN + r), v(ACC + 16 * q + r))
        k.label(lab)
    k.waitcnt(lgkm=0)
    k.barrier()
    tick(k)
    I('s_mul_i32', 's15', 's3', 12288)
    I('v_add_u32', 'v7', 's15', 'v2')
    for p in range(3):
        for j in range(4):
            I('ds_read_b128', v(ACC + 16 * p + 4 * j, 4), 'v7', mods=f'offset:{p * 4096 + j * 1024}')
    for p in range(3):
        k.waitcnt(lgkm=8 - 4 * p)
        for r in range(16):
            I('v_add_f32', v(OWN + r), v(OWN + r), v(ACC + 16 * p + r))
    k.waitcnt(vm=0)
    T = ACC
    unpack8(k, T, XR)
    unpack8(k, T + 8, XR + 4)
    for r in range(16):
        I('v_fmac_f32', v(T + r), v(OWN + r), v(GV + r))
    P = ACC + 16
    pack8(k, P, T)
    pack8(k, P + 4, T + 8)
    if is_k3:
        I('s_lshl_b32', 's15', 's13', 15)
        I('s_lshl_b32', 's60', 's14', 11)
        I('s_add_u32', 's15', 's15', 's60')
        I('s_add_u32', 's15', 's15', X1)
        for sp in range(2):
            I('buffer_store_dwordx4', v(P + 4 * sp, 4), 'v2', s(R_WS, 4), 's15', mods=f'offen offset:{1024 * sp}')
        unpack8(k, T, P)
        unpack8(k, T + 8, P + 4)
        I('v_add_f32', 'v8', v(T), v(T + 1))
        I('v_add_f32', 'v9', v(T + 2), v(T + 3))
        for r in range(4, 16, 2):
            I('v_add_f32', 'v8', 'v8', v(T + r))
            I('v_add_f32', 'v9', 'v9', v(T + r + 1))
        I('v_add_f32', 'v8', 'v8', 'v9')
        I('v_mov_b32', 'v9', 'v8')
        I('v_permlane32_swap_b32', 'v8', 'v9')
        I('v_add_f32', 'v8', 'v8', 'v9')
        I('v_mul_f32', 'v8', f32bits(1.0 / 32), 'v8')
        for r in range(16):
            I('v_sub_f32', v(T + r), v(T + r), 'v8')
        I('v_mul_f32', 'v9', v(T), v(T))
        I('v_mul_f32', 'v10', v(T + 1), v(T + 1))
        for r in range(2, 16, 2):
            I('v_fmac_f32', 'v9', v(T + r), v(T + r))
            I('v_fmac_f32', 'v10', v(T + r + 1), v(T + r + 1))
        I('v_add_f32', 'v9', 'v9', 'v10')
        I('v_mov_b32', 'v10', 'v9')
        I('v_permlane32_swap_b32', 'v9', 'v10')
        I('v_add_f32', 'v9', 'v9', 'v10')
        I('s_lshl_b32', 's15', 's13', 12)
        I('s_lshl_b32', 's60', 's5', 9)
        I('s_add_u32', 's15', 's15', 's60')
        I('s_lshl_b32', 's60', 's11', 3)
        I('s_add_u32', 's15', 's15', 's60')
        I('s_add_u32', 's15', 's15', ST2)
        I('v_lshlrev_b32', 'v10', 4, 'v4')
        I('s_mov_b64', 'exec', 0xffffffff)
        I('buffer_store_dwordx2', v(8, 2), 'v10', s(R_WS, 4), 's15', mods='offen')
        I('s_mov_b64', 'exec', -1)
        I('s_cmp_ge_u32', 's2', 112)
        I('s_cbranch_scc1', f'L_{name}_noside')
        I('s_cmp_lg_u32', 's3', 0)
        I('s_cbranch_scc1', f'L_{name}_noside')
        I('v_mul_u32_u24', 'v8', 14336, 'v3')
        I('v_lshl_add_u32', 'v8', 'v4', 2, 'v8')
        I('s_lshl_b32', 's15', 's2', 7)
        I('s_add_u32', 's15', 's15', CSP)
        for p in range(16):
            I('s_add_u32', 's60', 's15', p * 28672)
            I('buffer_load_dword', v(T + p), 'v8', s(R_WS, 4), 's60', mods='offen')
        k.waitcnt(vm=0)
        for st_ in (8, 4, 2, 1):
            for r in range(st_):
                I('v_add_f32', v(T + r), v(T + r), v(T + r + st_))
        I('v_cvt_pk_bf16_f32', v(P), v(T), v(T))
        I('v_and_b32', 'v9', 0xffff0000, v(P))
        I('v_sub_f32', 'v9', v(T), 'v9')
        I('v_cvt_pk_bf16_f32', v(P + 1), 'v9', 'v9')
        I('v_mov_b32', v(P + 2), 0)
        I('v_mov_b32', v(P + 3), 0)
        I('s_mul_i32', 's60', 's2', 147)
        I('s_lshr_b32', 's60', 's60', 10)
        I('s_mul_i32', 's61', 's60', 7)
        I('s_sub_u32', 's61', 's2', 's61')
        I('s_mul_i32', 's60', 's60', W4_NB)
        I('s_lshl_b32', 's61', 's61', 10)
        I('s_add_u32', 's60', 's60', 's61')
        I('s_add_u32', 's60', 's60', W4 + 32 * 7168)
        I('buffer_store_dwordx4', v(P, 4), 'v2', s(R_WS, 4), 's60', mods='offen')
        k.label(f'L_{name}_noside')
    else:
        srd(k, 44, S_OUT, 2048 * 1024)
        I('s_lshl_b32', 's15', 's13', 15)
        I('s_lshl_b32', 's60', 's14', 6)
        I('s_add_u32', 's15', 's15', 's60')
        I('v_lshlrev_b32', 'v6', 10, 'v4')
        I('v_lshl_add_u32', 'v6', 'v3', 4, 'v6')
        for sp in range(2):
            I('buffer_store_dwordx4', v(P + 4 * sp, 4), 'v6', s(44, 4), 's15', mods=f'offen offset:{32 * sp}')
    epilogue(k, idx, vtmp=4)
    return k, 256, 256, LDS


def gen_k3():
    return gen_gemm64('k3_wo_kernel', 3, 8, OB, 32768, WO, 32768, True)


def gen_k5():
    return gen_gemm64('k5_down_kernel', 5, 28, ACT, 112 * 1024, WD, 112 * 1024, False)


def gen_k4():
    k = Kernel('k4_ffn1_kernel')
    I = k.I
    CH = 4
    NCH = 9
    CHB = CH * 7168
    NSLOT = 5
    LDS = NSLOT * CHB
    prologue(k, 256, need_lo=False)
    xcd_map(k, 2, 4, 5)
    I('s_lshl_b32', 's6', 's4', 2)
    I('s_add_u32', 's6', 's6', 's3')
    I('v_lshlrev_b32', 'v2', 4, 'v1')
    I('v_lshrrev_b32', 'v3', 5, 'v1')
    I('v_and_b32', 'v4', 31, 'v1')
    I('s_mul_i32', 's7', 's5', W4_NB)
    I('s_mul_i32', 's8', 's3', 7168)
    I('s_add_u32', 's7', 's7', 's8')
    I('s_add_u32', 's7', 's7', W4)
    I('s_lshl_b32', 's9', 's6', 15)
    I('s_add_u32', 's9', 's9', X1)
    k.waitcnt(lgkm=0)
    tick(k)
    srd(k, R_WS, S_WS, WS_SIZE)
    ACC = 16
    WF = 128
    EXT = 184
    STT = 188
    LOG = []

    def issue_chunk(c):
        slot = c % NSLOT
        if c < 8:
            I('s_add_u32', 'm0', 's8', slot * CHB)
            I('s_add_u32', 's10', 's7', c * CHB)
            for q in range(4):
                I('buffer_load_dwordx4', 'v2', s(R_WS, 4), 's10', mods=f'offen offset:{q * 1024} lds')
                LOG.append(c)
            I('s_add_u32', 'm0', 's8', slot * CHB + 4096)
            I('s_add_u32', 's10', 's10', 4096)
            for q in range(3):
                I('buffer_load_dwordx4', 'v2', s(R_WS, 4), 's10', mods=f'offen offset:{q * 1024} lds')
                LOG.append(c)
            I('s_add_u32', 's10', 's9', c * 4096)
            for q in range(4):
                I('buffer_load_dwordx4', a(16 * c + 4 * q, 4), 'v2', s(R_WS, 4), 's10', mods=f'offen offset:{q * 1024}')
                LOG.append(c)
        else:
            I('s_lshl_b32', 's11', 's3', 11)
            I('s_add_u32', 'm0', 's11', slot * CHB)
            I('s_sub_u32', 's10', 's7', 's8')
            I('s_add_u32', 's10', 's10', 's11')
            I('s_add_u32', 's10', 's10', 8 * CHB)
            for q in range(2):
                I('buffer_load_dwordx4', 'v2', s(R_WS, 4), 's10', mods=f'offen offset:{q * 1024} lds')
                LOG.append(c)

    issue_chunk(0)
    I('s_lshl_b32', 's11', 's6', 12)
    I('s_add_u32', 's11', 's11', ST2)
    I('v_lshlrev_b32', 'v5', 11, 'v3')
    I('v_lshl_add_u32', 'v5', 'v4', 4, 'v5')
    for q in range(4):
        I('buffer_load_dwordx4', v(STT + 4 * q, 4), 'v5', s(R_WS, 4), 's11', mods=f'offen offset:{q * 512}')
        LOG.append(-1)
    issue_chunk(1)
    for b_ in range(1, 3):
        I('v_add_u32', v(5 + b_), b_ * 57344, 'v2')

    def rdw(sidx):
        st = WF + 28 * (sidx & 1)
        c = sidx // CH
        off = (c % NSLOT) * CHB + (sidx % CH) * 7168
        bi = off // 57344
        base = ('v2', 'v6', 'v7')[bi]
        off -= bi * 57344
        for f in range(7):
            I('ds_read_b128', v(st + 4 * f, 4), base, mods=f'offset:{off + f * 1024}')

    def mm(sidx, extra=None):
        st = WF + 28 * (sidx & 1)
        tok = a(4 * sidx, 4) if sidx < 32 else v(EXT, 4)
        for f in range(7):
            I('v_mfma_f32_32x32x16_bf16', v(ACC + 16 * f, 16), v(st + 4 * f, 4), tok, 0 if sidx == 0 else v(ACC + 16 * f, 16))

    def chunk_wait(c):
        last = max(i for i, e in enumerate(LOG) if e == c)
        k.waitcnt(vm=len(LOG) - 1 - last)
        k.barrier()
        tick(k)

    def stats():
        I('v_add_f32', 'v8', v(STT), v(STT + 2))
        for r in range(4, 16, 2):
            I('v_add_f32', 'v8', 'v8', v(STT + r))
        I('v_mov_b32', 'v9', 'v8')
        I('v_permlane32_swap_b32', 'v8', 'v9')
        I('v_add_f32', 'v8', 'v8', 'v9')
        I('v_mul_f32', 'v8', f32bits(1.0 / 16), 'v8')
        I('v_add_f32', 'v9', v(STT + 1), v(STT + 3))
        for r in range(5, 16, 2):
            I('v_add_f32', 'v9', 'v9', v(STT + r))
        I('v_mov_b32', 'v10', 0)
        for r in range(0, 16, 2):
            I('v_sub_f32', v(STT + r), v(STT + r), 'v8')
            I('v_fmac_f32', 'v10', v(STT + r), v(STT + r))
        I('v_fmac_f32', 'v9', f32bits(32.0), 'v10')
        I('v_mov_b32', 'v10', 'v9')
        I('v_permlane32_swap_b32', 'v9', 'v10')
        I('v_add_f32', 'v9', 'v9', 'v10')
        I('v_mov_b32', 'v10', f32bits(1e-5))
        I('v_fmac_f32', 'v10', f32bits(1.0 / 512), 'v9')
        I('v_rsq_f32', 'v11', 'v10')
        I('v_mul_f32', 'v12', 'v10', 'v11')
        I('v_sub_f32', 'v13', 0, 'v8')
        I('v_cmp_eq_u32', 'vcc', 0, 'v3')
        I('v_cndmask_b32', 'v13', 'v12', 'v13', 'vcc')
        I('v_cvt_pk_bf16_f32', 'v14', 'v13', 'v13')
        I('v_and_b32', 'v14', 0xffff0000, 'v14')
        I('v_sub_f32', 'v15', 'v13', 'v14')
        I('v_cvt_pk_bf16_f32', v(EXT), 'v14', 'v15')
        I('v_mov_b32', v(EXT + 1), v(EXT))
        I('v_mov_b32', v(EXT + 2), 0)
        I('v_mov_b32', v(EXT + 3), 0)
        c0 = -2.0 * 1.4426950408889634 * math.sqrt(2.0 / math.pi)
        c1 = c0 * 0.044715
        I('v_mul_f32', 'v12', f32bits(c0), 'v11')
        I('v_mul_f32', 'v13', 'v11', 'v11')
        I('v_mul_f32', 'v13', 'v13', 'v11')
        I('v_mul_f32', 'v13', f32bits(c1), 'v13')

    chunk_wait(0)
    rdw(0)
    issue_chunk(2)
    NSTEP = 33
    stats_done = False
    for sidx in range(NSTEP):
        nxt = sidx + 1
        if nxt < NSTEP:
            if nxt % CH == 0:
                c = nxt // CH
                chunk_wait(c)
                if c + 2 < NCH:
                    pending = c + 2
                else:
                    pending = None
            rdw(nxt)
            k.waitcnt(lgkm=7)
        else:
            k.waitcnt(lgkm=0)
        mm(sidx)
        if nxt < NSTEP and nxt % CH == 0 and pending is not None:
            issue_chunk(pending)
        if sidx == 4 and not stats_done:
            stats()
            stats_done = True
    tick(k)
    I('s_mul_i32', 's10', 's6', 112 * 1024)
    I('s_mul_i32', 's11', 's5', 7 * 1024)
    I('s_add_u32', 's10', 's10', 's11')
    I('s_add_u32', 's10', 's10', ACT)
    I('s_add_u32', 's11', 's10', 4096)
    T = WF
    for f in range(7):
        g_ = ACC + 16 * f
        u_ = g_ + 8
        for e in range(8):
            I('v_mul_f32', v(T + e), v(g_ + e), v(g_ + e))
        for e in range(8):
            I('v_fma_f32', v(T + e), v(T + e), 'v13', 'v12')
        for e in range(8):
            I('v_mul_f32', v(T + e), v(T + e), v(g_ + e))
        for e in range(8):
            I('v_exp_f32', v(T + e), v(T + e))
        for e in range(8):
            I('v_mul_f32', v(u_ + e), v(u_ + e), v(g_ + e))
        for e in range(8):
            I('v_fma_f32', v(T + e), v(T + e), 'v10', 'v10')
        for e in range(8):
            I('v_rcp_f32', v(T + e), v(T + e))
        for e in range(8):
            I('v_mul_f32', v(T + e), v(T + e), v(u_ + e))
        P = T + 8 + 4 * (f & 1)
        pack8(k, P, T)
        I('buffer_store_dwordx4', v(P, 4), 'v2', s(R_WS, 4), 's10' if f < 4 else 's11', mods=f'offen offset:{(f % 4) * 1024}')
    epilogue(k, 4, vtmp=4)
    return k, 256, 256, LDS


HEADER = """; adaLN_cond + sliding-window attention + GEGLU FFN block, gfx950 (MI355X).
"""


def build(gens, path):
    hdr, bodies, descs = [], [], []
    for g in gens:
        k, grid, block, lds = g()
        b, d = kernel_text(k)
        bodies.append(b)
        descs.append(d)
        hdr.append(f'; @launch kernel={k.name} grid=({grid},1,1) block=({block},1,1) lds={lds}')
        print(f'{k.name}: {k.n_ins} instr, vgpr {k.max_v + 1}, agpr {k.max_a + 1}, sgpr {k.max_s + 1}, nops {k.nops_inserted}, lds {lds}',
              file=sys.stderr)
    out = HEADER + '\n'.join(hdr) + '\n.amdgcn_target "amdgcn-amd-amdhsa--gfx950"\n.text\n' + '\n'.join(bodies) + \
        '\n.section .rodata,"a"\n' + '\n'.join(descs)
    open(path, 'w').write(out)


if __name__ == '__main__':
    import argparse
    ap = argparse.ArgumentParser()
    ap.add_argument('-o', default='adaLN_cond__sliding_block__geglu_ffn__prompt.s')
    ap.add_argument('--stamp', action='store_true')
    ap.add_argument('-n', type=int, default=6)
    args = ap.parse_args()
    STAMP = args.stamp
    allg = [gen_k0, gen_k1]
    for nm in ('gen_k2', 'gen_k3', 'gen_k4', 'gen_k5'):
        if nm in globals():
            allg.append(globals()[nm])
    build(allg[:args.n], args.o)
```

```python
import sys
import struct
import math
from asmlib import *

XN = 0x0000000
W1 = 0x0200000
W1_NB = 32 * 3072
MODP = 0x0400000
MODP_P = 3072 * 4
MODF = 0x0420000
MF_GA, MF_G2, MF_GB, MF_SB = 0, 2048, 4096, 6144
NRM = 0x0440000
TMX = 0x04C0000
QB = 0x0500000
KB = 0x0700000
VB = 0x0900000
OB = 0x0B00000
X1 = 0x0D00000
ST2 = 0x0F00000
CSP = 0x1F00000
W4 = 0x1000000
W4_NB = 33 * 7168
WO = 0x1400000
WD = 0x1500000
ACT = 0x1800000
STAMPS = 0x2000000
WS_SIZE = 0x2100000

STAMP = False
ST_POL = 'sc1'
OPT = {}


def f32bits(x):
    return struct.unpack('<I', struct.pack('<f', x))[0]


S_X, S_WQKV, S_WO, S_BX, S_WG, S_WU, S_WD, S_C = 16, 18, 20, 22, 24, 26, 28, 30
S_WMOD, S_OUT, S_DBG, S_WS = 32, 34, 36, 38
R_WS = 40


def srd(k, d, base, nbytes):
    k.I('s_mov_b32', s(d), s(base))
    k.I('s_mov_b32', s(d + 1), s(base + 1))
    k.I('s_mov_b32', s(d + 2), nbytes)
    k.I('s_mov_b32', s(d + 3), 0x20000)


def prologue(k, nwg, need_lo=True):
    I = k.I
    if STAMP:
        I('s_memrealtime', s(96, 2))
    I('s_cmp_ge_u32', 's2', nwg)
    I('s_cbranch_scc1', f'L_end_{k.name}')
    if need_lo:
        I('s_load_dwordx16', s(16, 16), s(0, 2), 0)
    I('s_load_dwordx8', s(32, 8), s(0, 2), 64)
    I('v_and_b32', 'v1', 63, 'v0')
    I('v_lshrrev_b32', 'v2', 6, 'v0')
    I('v_readfirstlane_b32', 's3', 'v2')


def xcd_map(k, mbits, dm, dn):
    I = k.I
    I('s_bfe_u32', s(dm), 's2', (2 << 16) | 1)
    I('s_lshl_b32', s(dm), s(dm), mbits)
    I('s_bfe_u32', s(dn), 's2', (mbits << 16) | 3)
    I('s_add_u32', s(dm), s(dm), s(dn))
    I('s_and_b32', s(dn), 's2', 1)
    I('s_lshl_b32', s(dn), s(dn), 5 - mbits)
    I('s_lshr_b32', 's62', 's2', 3 + mbits)
    I('s_add_u32', s(dn), s(dn), 's62')


def tick(k):
    if STAMP:
        n = getattr(k, 'nticks', 0)
        assert n < 12
        k.I('s_memrealtime', s(94, 2))
        k.I('s_memtime', s(100, 2))
        k.waitcnt(lgkm=0)
        k.I('s_mov_b32', s(70 + n), 's94')
        k.I('s_mov_b32', s(82 + n), 's100')
        k.nticks = n + 1


def epilogue(k, idx, vtmp=2):
    I = k.I
    if STAMP:
        k.flush()
        tick(k)
        k.waitcnt(vm=0, lgkm=0)
        I('s_memrealtime', s(98, 2))
        k.waitcnt(lgkm=0)
        I('s_cmp_lg_u32', 's3', 0)
        I('s_cbranch_scc1', f'L_end_{k.name}')
        I('v_mov_b32', v(vtmp), 's96')
        I('v_mov_b32', v(vtmp + 1), 's98')
        I('s_lshl_b32', 's96', 's2', 3)
        I('s_add_u32', 's96', 's96', STAMPS + idx * 4096)
        I('v_mov_b32', v(vtmp + 2), 's96')
        I('s_mov_b64', 'exec', 1)
        I('buffer_store_dwordx2', v(vtmp, 2), v(vtmp + 2), s(R_WS, 4), 0, mods='offen')
        I('s_lshl_b32', 's96', 's2', 7)
        I('s_add_u32', 's96', 's96', STAMPS + 0x10000 + idx * 0x8000)
        I('v_mov_b32', v(vtmp + 2), 's96')
        for n in range(24):
            I('v_mov_b32', v(vtmp), s(70 + n) if (n % 12) < k.nticks else 0)
            I('buffer_store_dword', v(vtmp), v(vtmp + 2), s(R_WS, 4), 0, mods=f'offen offset:{4 * n}')
    k.label(f'L_end_{k.name}')
    I('s_endpgm')


def wave_sum_to_sgpr(k, regs, sdst):
    I = k.I
    for sh in ('row_shr:1', 'row_shr:2', 'row_shr:4', 'row_shr:8'):
        for r in regs:
            I('v_add_f32', v(r), v(r), v(r), mods=f'{sh} row_mask:0xf bank_mask:0xf')
    for r in regs:
        I('v_add_f32', v(r), v(r), v(r), mods='row_bcast:15 row_mask:0xa bank_mask:0xf')
    for r in regs:
        I('v_add_f32', v(r), v(r), v(r), mods='row_bcast:31 row_mask:0xc bank_mask:0xf')
    for r, sd in zip(regs, sdst):
        I('v_readlane_b32', s(sd), v(r), 63)


def unpack8(k, dst, src):
    for j in range(4):
        k.I('v_lshlrev_b32', v(dst + 2 * j), 16, v(src + j))
        k.I('v_and_b32', v(dst + 2 * j + 1), 0xffff0000, v(src + j))


def pack8(k, dst, src):
    for j in range(4):
        k.I('v_cvt_pk_bf16_f32', v(dst + j), v(src + 2 * j), v(src + 2 * j + 1))


def gen_k0():
    k = Kernel('k0_mod_kernel')
    I = k.I
    L_A = 0
    L_W = 16384
    L_X = 24576
    L_S = 32768
    L_P = 33024
    LDS = 34048
    prologue(k, 256)
    I('s_and_b32', 's4', 's2', 7)
    I('v_lshrrev_b32', 'v2', 3, 'v1')
    I('v_and_b32', 'v3', 7, 'v1')
    I('v_lshlrev_b32', 'v3', 4, 'v3')
    I('v_mul_u32_u24', 'v4', 6144, 'v2')
    I('v_add_u32', 'v4', 'v4', 'v3')
    I('v_mul_u32_u24', 'v5', 3072, 'v2')
    I('v_add_u32', 'v5', 'v5', 'v3')
    I('v_lshlrev_b32', 'v7', 4, 'v1')
    I('s_lshl_b32', 's10', 's4', 5)
    I('s_lshr_b32', 's11', 's2', 3)
    I('s_add_u32', 's10', 's10', 's11')
    I('s_lshl_b32', 's10', 's10', 3)
    I('s_lshl_b32', 's12', 's3', 1)
    I('s_add_u32', 's12', 's10', 's12')
    I('s_lshl_b32', 's12', 's12', 10)
    I('s_min_u32', 's5', 's2', 191)
    I('s_lshr_b32', 's5', 's5', 2)
    I('s_and_b32', 's6', 's2', 3)
    I('s_lshl_b32', 's13', 's6', 7)
    I('s_lshl_b32', 's14', 's3', 5)
    I('s_add_u32', 's13', 's13', 's14')
    I('v_and_b32', 'v6', 15, 'v1')
    I('v_lshlrev_b32', 'v6', 2, 'v6')
    I('s_lshl_b32', 's15', 's13', 1)
    k.waitcnt(lgkm=0)
    tick(k)
    srd(k, R_WS, S_WS, WS_SIZE)
    srd(k, 44, S_WMOD, 512 * 6144)
    srd(k, 48, S_WQKV, 512 * 3072)
    srd(k, 52, S_X, 2048 * 1024)
    srd(k, 56, S_C, 1024)
    LOG = []
    I('buffer_load_dword', 'v8', 'v6', s(56, 4), 's15', mods='offen'); LOG.append('c')
    I('buffer_load_dwordx4', v(12, 4), 'v7', s(52, 4), 's12', mods='offen'); LOG.append('x')
    I('buffer_load_dwordx4', v(16, 4), 'v7', s(52, 4), 's12', mods='offen offset:1024'); LOG.append('x')
    I('s_mul_i32', 's7', 's13', 6144)
    I('s_lshl_b32', 's8', 's5', 7)
    I('s_add_u32', 's7', 's7', 's8')
    I('s_lshl_b32', 's8', 's3', 12)
    for j in range(4):
        I('s_add_u32', 'm0', 's8', L_A + j * 1024)
        I('s_add_u32', 's9', 's7', j * 8 * 6144)
        I('buffer_load_dwordx4', 'v4', s(44, 4), 's9', mods='offen lds'); LOG.append('g')
    I('s_min_u32', 's14', 's3', 2)
    I('s_lshl_b32', 's14', 's14', 10)
    I('s_mul_i32', 's15', 's11', 16 * 3072)
    I('s_add_u32', 's14', 's14', 's15')
    I('s_lshl_b32', 's15', 's4', 7)
    I('s_add_u32', 's14', 's14', 's15')
    I('s_lshl_b32', 's60', 's3', 11)
    for j in range(2):
        I('s_add_u32', 'm0', 's60', L_W + j * 1024)
        I('s_add_u32', 's9', 's14', j * 8 * 3072)
        I('buffer_load_dwordx4', 'v5', s(48, 4), 's9', mods='offen lds'); LOG.append('w')
    if OPT.get('k0tlb', 0):
        I('s_cmp_eq_u32', 's3', 0)
        I('s_cselect_b32', 's64', s(S_WG), s(S_WU))
        I('s_cselect_b32', 's65', s(S_WG + 1), s(S_WU + 1))
        I('s_cmp_eq_u32', 's3', 2)
        I('s_cselect_b32', 's64', s(S_WD), 's64')
        I('s_cselect_b32', 's65', s(S_WD + 1), 's65')
        I('s_cmp_eq_u32', 's3', 3)
        I('s_cselect_b32', 's64', s(S_WO), 's64')
        I('s_cselect_b32', 's65', s(S_WO + 1), 's65')
        I('s_mov_b32', 's9', 1792 * 1024)
        I('s_cselect_b32', 's66', 512 * 1024, 's9')
        I('s_cmp_lt_u32', 's2', 16)
        I('s_cselect_b32', 's66', 's66', 0)
        I('s_mov_b32', 's67', 0x20000)
        I('v_lshlrev_b32', 'v21', 15, 'v1')
        I('buffer_load_dword', 'v27', 'v21', s(64, 4), 0, mods='offen'); LOG.append('tlb')
    tick(k)

    def wait_for(tag):
        last = max(i for i, e in enumerate(LOG) if e == tag)
        k.waitcnt(vm=len(LOG) - 1 - last)
    I('v_lshrrev_b32', 'v2', 4, 'v1')
    I('v_bfe_u32', 'v3', 'v1', 2, 2)
    I('v_and_b32', 'v9', 3, 'v1')
    I('v_lshl_add_u32', 'v20', 'v2', 3, 'v3')
    I('v_lshlrev_b32', 'v20', 7, 'v20')
    I('v_lshl_add_u32', 'v20', 'v9', 3, 'v20')
    I('v_add_u32', 'v20', 's8', 'v20')
    I('s_lshl_b32', 's9', 's3', 6)
    I('s_add_u32', 's9', 's9', L_S)
    I('v_lshl_add_u32', 'v22', 'v2', 4, 's9')
    I('v_add_u32', 'v23', 's9', 'v6')
    I('v_lshrrev_b32', 'v24', 5, 'v1')
    I('v_lshl_add_u32', 'v25', 'v24', 3, 'v3')
    I('v_lshlrev_b32', 'v25', 7, 'v25')
    I('v_bfe_u32', 'v26', 'v1', 4, 1)
    I('v_lshl_add_u32', 'v25', 'v26', 5, 'v25')
    I('v_lshl_add_u32', 'v25', 'v9', 3, 'v25')
    I('s_add_u32', 's9', 's60', L_W)
    I('v_add_u32', 'v25', 's9', 'v25')
    wait_for('c')
    I('v_lshlrev_b32', 'v9', 16, 'v8')
    I('v_and_b32', 'v10', 0xffff0000, 'v8')
    I('s_mov_b32', 's14', f32bits(-1.4426950408889634))
    for r, t_ in ((9, 28), (10, 29)):
        I('v_mul_f32', v(t_), 's14', v(r))
    for t_ in (28, 29):
        I('v_exp_f32', v(t_), v(t_))
    for t_ in (28, 29):
        I('v_add_f32', v(t_), 1.0, v(t_))
    for t_ in (28, 29):
        I('v_rcp_f32', v(t_), v(t_))
    for r, t_ in ((9, 28), (10, 29)):
        I('v_mul_f32', v(r), v(r), v(t_))
    I('v_cvt_pk_bf16_f32', 'v9', 'v9', 'v10')
    I('ds_write_b32', 'v23', 'v9')
    wait_for('x')
    tick(k)
    unpack8(k, 64, 12)
    unpack8(k, 72, 16)
    k.waitcnt(lgkm=0)
    I('ds_read_b128', v(48, 4), 'v22')
    for b, t_ in ((64, 40), (72, 41)):
        I('v_add_f32', v(t_), v(b), v(b + 1))
        for j in range(2, 8):
            I('v_add_f32', v(t_), v(t_), v(b + j))
    wave_sum_to_sgpr(k, [40, 41], [62, 63])
    I('s_mov_b32', 's14', f32bits(1.0 / 512))
    for t_, sd in ((40, 62), (41, 63)):
        I('v_mov_b32', v(t_), s(sd))
        I('v_mul_f32', v(t_), 's14', v(t_))
    for b, t_ in ((64, 40), (72, 41)):
        for j in range(8):
            I('v_sub_f32', v(b + j), v(b + j), v(t_))
    for b, t_ in ((64, 42), (72, 43)):
        I('v_mul_f32', v(t_), v(b), v(b))
        for j in range(1, 8):
            I('v_fmac_f32', v(t_), v(b + j), v(b + j))
    wave_sum_to_sgpr(k, [42, 43], [62, 63])
    I('s_mov_b32', 's15', f32bits(1e-5))
    for t_, sd in ((42, 62), (43, 63)):
        I('v_mov_b32', v(t_), s(sd))
        I('v_mov_b32', v(44), 's15')
        I('v_fma_f32', v(t_), v(t_), 's14', v(44))
        I('v_rsq_f32', v(t_), v(t_))
    for b, t_ in ((64, 42), (72, 43)):
        for j in range(8):
            I('v_mul_f32', v(b + j), v(b + j), v(t_))
    pack8(k, 12, 64)
    pack8(k, 16, 72)
    I('v_lshlrev_b32', 'v11', 7, 'v1')
    I('s_lshl_b32', 's9', 's3', 5)
    I('s_add_u32', 's9', 's9', L_X)
    I('v_add_u32', 'v11', 's9', 'v11')
    I('ds_write_b128', 'v11', v(12, 4))
    I('ds_write_b128', 'v11', v(16, 4), mods='offset:16')
    wait_for('g')
    tick(k)
    for cg in range(4):
        I('ds_read_b64_tr_b16', v(80 + 4 * cg, 2), 'v20', mods=f'offset:{cg * 32}')
        I('ds_read_b64_tr_b16', v(82 + 4 * cg, 2), 'v20', mods=f'offset:{cg * 32 + 512}')
    for cg in range(4):
        k.waitcnt(lgkm=6 - 2 * cg)
        I('v_mfma_f32_16x16x32_bf16', v(100 + 4 * cg, 4), v(48, 4), v(80 + 4 * cg, 4), 0)
    wait_for('w')
    for u in range(2):
        I('ds_read_b64_tr_b16', v(52 + 4 * u, 2), 'v25', mods=f'offset:{u * 64}')
        I('ds_read_b64_tr_b16', v(54 + 4 * u, 2), 'v25', mods=f'offset:{u * 64 + 512}')
    I('s_lshl_b32', 's9', 's3', 8)
    I('s_add_u32', 's9', 's9', L_P)
    I('v_add_u32', 'v28', 's9', 'v6')
    for cg in range(4):
        I('ds_write_b32', 'v28', v(100 + 4 * cg), mods=f'offset:{cg * 64}')
    I('s_mul_i32', 's9', 's4', 2 * W1_NB)
    I('s_mul_i32', 's14', 's11', 3072)
    I('s_add_u32', 's9', 's9', 's14')
    I('s_lshl_b32', 's14', 's3', 10)
    I('s_add_u32', 's9', 's9', 's14')
    I('s_add_u32', 's9', 's9', W1)
    I('s_add_u32', 's14', 's9', W1_NB)
    k.waitcnt(lgkm=0)
    I('s_cmp_eq_u32', 's3', 3)
    I('s_cbranch_scc1', 'L_k0_now')
    I('buffer_store_dwordx4', v(52, 4), 'v7', s(R_WS, 4), 's9', mods=f'offen {ST_POL}')
    I('buffer_store_dwordx4', v(56, 4), 'v7', s(R_WS, 4), 's14', mods=f'offen {ST_POL}')
    k.label('L_k0_now')
    tick(k)
    k.barrier()
    tick(k)
    I('s_add_u32', 's9', 's60', L_X)
    I('v_add_u32', 'v11', 's9', 'v7')
    I('ds_read_b128', v(12, 4), 'v11')
    I('ds_read_b128', v(16, 4), 'v11', mods='offset:1024')
    I('v_lshlrev_b32', 'v29', 2, 'v1')
    for w in range(4):
        I('ds_read_b32', v(30 + w), 'v29', mods=f'offset:{L_P + w * 256}')
    I('s_lshr_b32', 's12', 's10', 5)
    I('s_lshl_b32', 's12', 's12', 15)
    I('s_and_b32', 's14', 's10', 31)
    I('s_lshl_b32', 's14', 's14', 4)
    I('s_add_u32', 's12', 's12', 's14')
    I('s_lshl_b32', 's14', 's3', 13)
    I('s_add_u32', 's12', 's12', 's14')
    I('s_add_u32', 's12', 's12', XN)
    I('s_add_u32', 's14', 's12', 4096)
    I('v_lshrrev_b32', 'v11', 3, 'v1')
    I('v_lshlrev_b32', 'v11', 9, 'v11')
    I('v_and_b32', 'v10', 7, 'v1')
    I('v_lshl_add_u32', 'v11', 'v10', 4, 'v11')
    k.waitcnt(lgkm=4)
    I('buffer_store_dwordx4', v(12, 4), 'v11', s(R_WS, 4), 's12', mods=f'offen {ST_POL}')
    I('buffer_store_dwordx4', v(16, 4), 'v11', s(R_WS, 4), 's14', mods=f'offen {ST_POL}')
    I('s_cmp_lg_u32', 's3', 3)
    I('s_cbranch_scc1', 'L_k0_done')
    I('s_cmp_ge_u32', 's2', 192)
    I('s_cbranch_scc1', 'L_k0_done')
    k.waitcnt(lgkm=0)
    I('v_add_f32', 'v30', 'v30', 'v31')
    I('v_add_f32', 'v32', 'v32', 'v33')
    I('v_add_f32', 'v30', 'v30', 'v32')
    I('s_mul_i32', 's9', 's6', MODP_P)
    I('s_lshl_b32', 's14', 's5', 8)
    I('s_add_u32', 's9', 's9', 's14')
    I('s_add_u32', 's9', 's9', MODP)
    I('buffer_store_dword', 'v30', 'v29', s(R_WS, 4), 's9', mods='offen')
    k.label('L_k0_done')
    epilogue(k, 0)
    return k, 256, 256, LDS


QSCALE = 0.25 * 1.4426950408889634


def gen_k1():
    k = Kernel('k1_qkv_kernel')
    I = k.I
    L_G = 98304
    L_E = L_G + 4096
    L_PF = L_E + 49152
    LDS = L_PF + 8192
    prologue(k, 256, need_lo=True)
    xcd_map(k, 2, 4, 5)
    I('s_and_b32', 's61', 's3', 3)
    I('s_lshr_b32', 's63', 's3', 2)
    I('s_lshl_b32', 's6', 's4', 2)
    I('s_add_u32', 's6', 's6', 's61')
    I('v_lshlrev_b32', 'v2', 4, 'v1')
    I('v_lshlrev_b32', 'v4', 3, 'v0')
    I('s_lshl_b32', 's8', 's63', 4)
    I('s_add_u32', 's8', 's8', 's61')
    I('s_mul_i32', 's8', 's8', 3072)
    I('s_mul_i32', 's7', 's5', W1_NB)
    I('s_add_u32', 's7', 's7', 's8')
    I('s_add_u32', 's7', 's7', W1)
    I('s_lshl_b32', 's9', 's6', 15)
    I('s_lshl_b32', 's10', 's63', 14)
    I('s_add_u32', 's9', 's9', 's10')
    I('s_add_u32', 's9', 's9', XN)
    k.waitcnt(lgkm=0)
    tick(k)
    srd(k, R_WS, S_WS, WS_SIZE)
    ACC = 16
    TOK = 64
    WF = 128
    GS = 152
    TM = 184
    LOG = []
    FILL = []
    SJ = 192
    I('s_cmp_ge_u32', 's2', 4)
    I('s_cbranch_scc1', 'L_k1_nosj')
    I('s_lshl_b32', 's10', 's2', 11)
    I('s_add_u32', 's10', 's10', MODP + 4096)
    I('v_lshlrev_b32', 'v3', 2, 'v0')
    for p in range(4):
        I('s_add_u32', 's11', 's10', p * MODP_P)
        I('buffer_load_dword', v(SJ + p), 'v3', s(R_WS, 4), 's11', mods='offen')
    k.label('L_k1_nosj')
    for p in range(4):
        I('s_mov_b32', 's10', MODP + p * MODP_P)
        I('buffer_load_dwordx2', v(ACC + 2 * p, 2), 'v4', s(R_WS, 4), 's10', mods='offen')
        LOG.append('m')

    def w_op(c, q):
        def f():
            if q == 0:
                I('s_add_u32', 's10', 's7', c * 12288)
            I('s_add_u32', 'm0', 's8', c * 12288)
            I('buffer_load_dwordx4', 'v2', s(R_WS, 4), 's10', mods=f'offen offset:{q * 1024} lds')
            LOG.append(('w', c))
        return f

    def t_op(i):
        def f():
            if i % 4 == 0:
                I('s_add_u32', 's11', 's9', i * 1024)
            I('buffer_load_dwordx4', v(TOK + 4 * i, 4), 'v2', s(R_WS, 4), 's11', mods=f'offen offset:{(i % 4) * 1024}')
            LOG.append(('t', i))
        return f
    for c in range(4):
        FILL += [w_op(c, q) for q in range(3)] + [t_op(4 * c + q) for q in range(4)]

    def pf_op(ptr, nbytes):
        def f():
            srd(k, 44, ptr, nbytes)
            I('s_lshl_b32', 's12', 's2', 13)
            I('s_lshl_b32', 's13', 's3', 10)
            I('s_add_u32', 's12', 's12', 's13')
            I('s_add_u32', 'm0', 's13', L_PF)
            I('buffer_load_dwordx4', 'v2', s(44, 4), 's12', mods='offen lds')
            LOG.append(('pf',))
        return f
    if OPT.get('k1pf', 0):
        FILL += [pf_op(S_WG, 512 * 3584), pf_op(S_WU, 512 * 3584), pf_op(S_WD, 1792 * 1024), pf_op(S_WO, 512 * 1024)]
    for _ in range(OPT.get('k1pre', 5)):
        FILL.pop(0)()
    I('s_mul_i32', 's10', 's63', 16 * 3072)
    I('v_add_u32', 'v3', 's10', 'v2')
    I('v_lshrrev_b32', 'v5', 5, 'v1')
    I('v_lshlrev_b32', 'v5', 5, 'v5')
    I('s_lshl_b32', 's10', 's63', 10)
    I('s_add_u32', 's10', 's10', L_G)
    I('v_add_u32', 'v5', 's10', 'v5')
    I('v_add_u32', 'v6', L_G, 'v4')
    k.waitcnt(vm=len(LOG) - 4)
    for e in range(2):
        I('v_add_f32', v(ACC + e), v(ACC + e), v(ACC + 2 + e))
        I('v_add_f32', v(ACC + 4 + e), v(ACC + 4 + e), v(ACC + 6 + e))
    for e in range(2):
        I('v_add_f32', v(ACC + e), v(ACC + e), v(ACC + 4 + e))
    I('v_cvt_pk_bf16_f32', v(ACC + 2), v(ACC), v(ACC + 1))
    I('v_lshlrev_b32', v(ACC), 16, v(ACC + 2))
    I('v_and_b32', v(ACC + 1), 0xffff0000, v(ACC + 2))
    I('s_cmp_eq_u32', 's63', 0)
    I('s_cbranch_scc1', 'L_k1_issa')
    for e in range(2):
        I('v_add_f32', v(ACC + e), 1.0, v(ACC + e))
    I('v_cvt_pk_bf16_f32', v(ACC + 2), v(ACC), v(ACC + 1))
    I('v_lshlrev_b32', v(ACC), 16, v(ACC + 2))
    I('v_and_b32', v(ACC + 1), 0xffff0000, v(ACC + 2))
    k.label('L_k1_issa')
    I('ds_write_b64', 'v6', v(ACC, 2))
    for _ in range(OPT.get('k1pre2', 5)):
        FILL.pop(0)()
    k.waitcnt(lgkm=0)

    def rdw(i):
        st = WF + 12 * (i & 1)
        for f in range(3):
            I('ds_read_b128', v(st + 4 * f, 4), 'v3', mods=f'offset:{i * 3072 + f * 1024}')

    def rdg(i):
        g = GS + 16 * (i & 1)
        for q in range(2):
            I('ds_read_b128', v(g + 4 * q, 4), 'v5', mods=f'offset:{i * 64 + 16 * q}')
        for q in range(2):
            I('ds_read_b128', v(g + 8 + 4 * q, 4), 'v5', mods=f'offset:{2048 + i * 64 + 16 * q}')

    def mod_ops(i):
        g = GS + 16 * (i & 1)
        tk = TOK + 4 * i
        L = []
        A_ = lambda *a_, **kw: L.append(lambda: I(*a_, **kw))
        for j in range(4):
            A_('v_lshlrev_b32', v(TM + 2 * j), 16, v(tk + j))
            A_('v_and_b32', v(TM + 2 * j + 1), 0xffff0000, v(tk + j))
        if OPT.get('k1pk', 0):
            for j in range(4):
                A_('v_pk_fma_f32', v(TM + 2 * j, 2), v(TM + 2 * j, 2), v(g + 8 + 2 * j, 2), v(g + 2 * j, 2))
        else:
            for j in range(8):
                A_('v_fma_f32', v(TM + j), v(TM + j), v(g + 8 + j), v(g + j))
        for j in range(4):
            A_('v_cvt_pk_bf16_f32', v(tk + j), v(TM + 2 * j), v(TM + 2 * j + 1))
        return L

    def need(tags):
        for tg in tags:
            while tg not in LOG or (tg[0] == 'w' and LOG.count(tg) < 3):
                FILL.pop(0)()
        last = max(i for i, e in enumerate(LOG) if e in tags)
        k.waitcnt(vm=len(LOG) - 1 - last)
    need([('w', 0), ('t', 0)])
    k.barrier()
    tick(k)
    rdw(0)
    rdg(0)
    rdg(1)
    k.waitcnt(lgkm=4)
    for f in mod_ops(0):
        f()
    NSTEP = 16
    for i in range(NSTEP):
        nxt = i + 1
        VQ = []
        if nxt < NSTEP:
            if nxt % 4 == 0:
                need([('w', nxt // 4), ('t', nxt)])
                k.barrier()
                tick(k)
            else:
                need([('t', nxt)])
            rdw(nxt)
            if i + 2 < NSTEP:
                rdg(i + 2)
                k.waitcnt(lgkm=7)
            else:
                k.waitcnt(lgkm=3)
            VQ = mod_ops(nxt)
        else:
            k.waitcnt(lgkm=0)
        st = WF + 12 * (i & 1)
        tok = v(TOK + 4 * i, 4)
        n3 = (len(VQ) + 2) // 3
        for f in range(3):
            c = 0 if i == 0 else v(ACC + 16 * f, 16)
            if f < 2:
                I('v_mfma_f32_32x32x16_bf16', v(ACC + 16 * f, 16), v(st + 4 * f, 4), tok, c)
            else:
                I('v_mfma_f32_32x32x16_bf16', v(ACC + 16 * f, 16), tok, v(st + 4 * f, 4), c)
            for _ in range(OPT.get('k1rate', 1) if f < 2 else OPT.get('k1rate', 1) - 1):
                if FILL:
                    FILL.pop(0)()
            for _ in range(n3):
                if VQ:
                    VQ.pop(0)()
    assert not FILL
    tick(k)
    I('s_mul_i32', 's10', 's3', 6144)
    I('s_add_u32', 's10', 's10', L_E)
    I('v_add_u32', 'v6', 's10', 'v2')
    I('s_xor_b32', 's11', 's3', 4)
    I('s_mul_i32', 's11', 's11', 6144)
    I('s_add_u32', 's11', 's11', L_E)
    I('v_add_u32', 'v7', 's11', 'v2')
    I('s_lshl_b32', 's11', 's5', 17)
    I('s_lshl_b32', 's12', 's6', 10)
    I('s_add_u32', 's11', 's11', 's12')
    I('s_mul_i32', 's12', 's63', KB - QB)
    I('s_add_u32', 's12', 's12', 's11')
    I('s_add_u32', 's12', 's12', QB)
    I('s_add_u32', 's13', 's12', 65536)
    I('s_lshl_b32', 's14', 's63', 9)
    I('s_add_u32', 's14', 's14', 's11')
    I('s_add_u32', 's14', 's14', VB)
    I('v_bfe_u32', 'v4', 'v1', 4, 1)
    I('v_lshlrev_b32', 'v4', 16, 'v4')
    I('v_lshrrev_b32', 'v5', 5, 'v1')
    I('v_lshl_add_u32', 'v4', 'v5', 8, 'v4')
    I('v_and_b32', 'v5', 15, 'v1')
    I('v_lshl_add_u32', 'v4', 'v5', 4, 'v4')
    k.flush()
    KEEP = TOK
    I('s_cmp_eq_u32', 's63', 0)
    I('s_cbranch_scc0', 'L_k1_x1')
    for kh in range(2):
        keep = [ACC + 16 * kh + r for r in range(16)] + [ACC + 32 + 8 * kh + r for r in range(8)]
        send = [ACC + 16 * (1 - kh) + 4 * j for j in range(4)] + [ACC + 32 + 8 * (1 - kh) + 4 * j for j in range(2)]
        for j, r in enumerate(send):
            I('ds_write_b128', 'v6', v(r, 4), mods=f'offset:{j * 1024}')
        if kh == 0:
            I('s_mov_b32', 's15', f32bits(QSCALE))
        else:
            I('s_mov_b32', 's15', f32bits(1.0))
        for j, r in enumerate(keep):
            I('v_mov_b32', v(KEEP + j), v(r))
        if kh == 0:
            I('s_branch', 'L_k1_x2')
            k.label('L_k1_x1')
    k.label('L_k1_x2')
    k.waitcnt(lgkm=0)
    k.barrier()
    for j in range(6):
        I('ds_read_b128', v(ACC + 4 * j, 4), 'v7', mods=f'offset:{j * 1024}')
    P = WF
    dst = [('v2', 's12'), ('v2', 's13'), ('v4', 's14')]
    for g in range(3):
        k.waitcnt(lgkm=4 - 2 * g)
        for r in range(8):
            I('v_add_f32', v(KEEP + 8 * g + r), v(KEEP + 8 * g + r), v(ACC + 8 * g + r))
        if g < 2:
            for r in range(8):
                I('v_mul_f32', v(KEEP + 8 * g + r), 's15', v(KEEP + 8 * g + r))
        pack8(k, P + 4 * g, KEEP + 8 * g)
        I('buffer_store_dwordx4', v(P + 4 * g, 4), dst[g][0], s(R_WS, 4), dst[g][1], mods=f'offen {ST_POL}')
    for g in range(2):
        I('v_dot2_f32_bf16', v(8 + g), v(P + 4 * g), v(P + 4 * g), 0)
        I('v_dot2_f32_bf16', v(10 + g), v(P + 4 * g + 1), v(P + 4 * g + 1), 0)
    for g in range(2):
        I('v_dot2_f32_bf16', v(8 + g), v(P + 4 * g + 2), v(P + 4 * g + 2), v(8 + g))
        I('v_dot2_f32_bf16', v(10 + g), v(P + 4 * g + 3), v(P + 4 * g + 3), v(10 + g))
    for g in range(2):
        I('v_add_f32', v(8 + g), v(8 + g), v(10 + g))
    I('v_permlane32_swap_b32', 'v8', 'v9')
    I('v_add_f32', 'v8', 'v8', 'v9')
    I('v_mov_b32', 'v9', 'v8')
    for sh in ('row_shr:1', 'row_shr:2', 'row_shr:4', 'row_shr:8'):
        I('v_max_f32', 'v9', 'v9', 'v9', mods=f'{sh} row_mask:0xf bank_mask:0xf')
    I('v_max_f32', 'v9', 'v9', 'v9', mods='row_bcast:15 row_mask:0xa bank_mask:0xf')
    I('s_lshl_b32', 's10', 's63', 18)
    I('s_lshl_b32', 's11', 's5', 14)
    I('s_add_u32', 's10', 's10', 's11')
    I('s_lshl_b32', 's11', 's6', 7)
    I('s_add_u32', 's10', 's10', 's11')
    I('s_add_u32', 's10', 's10', NRM)
    I('v_lshrrev_b32', 'v10', 5, 'v1')
    I('v_lshlrev_b32', 'v11', 13, 'v10')
    I('v_and_b32', 'v12', 31, 'v1')
    I('v_lshl_add_u32', 'v11', 'v12', 2, 'v11')
    I('buffer_store_dword', 'v8', 'v11', s(R_WS, 4), 's10', mods='offen')
    I('s_lshl_b32', 's10', 's63', 13)
    I('s_lshl_b32', 's11', 's5', 9)
    I('s_add_u32', 's10', 's10', 's11')
    I('s_lshl_b32', 's11', 's6', 2)
    I('s_add_u32', 's10', 's10', 's11')
    I('s_add_u32', 's10', 's10', TMX)
    I('v_lshlrev_b32', 'v11', 8, 'v10')
    I('s_mov_b32', 'exec_lo', 0x80000000)
    I('s_mov_b32', 'exec_hi', 0x80000000)
    I('buffer_store_dword', 'v9', 'v11', s(R_WS, 4), 's10', mods='offen')
    I('s_mov_b64', 'exec', -1)
    I('s_cmp_ge_u32', 's2', 4)
    I('s_cbranch_scc1', 'L_k1_nomod')
    I('v_lshlrev_b32', 'v3', 2, 'v0')
    I('v_add_f32', 'v16', v(SJ), v(SJ + 1))
    I('v_add_f32', 'v18', v(SJ + 2), v(SJ + 3))
    I('v_add_f32', 'v16', 'v16', 'v18')
    I('v_cvt_pk_bf16_f32', 'v17', 'v16', 'v16')
    I('v_and_b32', 'v18', 0xffff0000, 'v17')
    I('v_add_f32', 'v19', 1.0, 'v18')
    I('v_cvt_pk_bf16_f32', 'v19', 'v19', 'v19')
    I('v_and_b32', 'v19', 0xffff0000, 'v19')
    I('s_cmp_eq_u32', 's2', 1)
    I('s_cbranch_scc1', 'L_k1_sb')
    I('s_mov_b32', 's13', MF_GB)
    I('s_cmp_eq_u32', 's2', 2)
    I('s_cselect_b64', 'vcc', -1, 0)
    I('v_cndmask_b32', 'v18', 'v18', 'v19', 'vcc')
    I('s_cselect_b32', 's13', MF_G2, 's13')
    I('s_cmp_eq_u32', 's2', 0)
    I('s_cselect_b32', 's13', MF_GA, 's13')
    I('s_add_u32', 's13', 's13', MODF)
    I('buffer_store_dword', 'v18', 'v3', s(R_WS, 4), 's13', mods='offen')
    I('s_branch', 'L_k1_nomod')
    k.label('L_k1_sb')
    I('s_mov_b32', 's13', MODF + MF_SB)
    I('v_lshlrev_b32', 'v3', 1, 'v0')
    I('buffer_store_short', 'v17', 'v3', s(R_WS, 4), 's13', mods='offen')
    k.label('L_k1_nomod')
    epilogue(k, 1, vtmp=4)
    return k, 256, 512, LDS


BIG = 1e30


def gen_k2():
    k = Kernel('k2_attn_kernel')
    I = k.I
    L_K, L_V, L_SIDE = 0, 16384, 32768
    LDS = L_SIDE + 32768
    Q, KF, VF, SB_, PB, OA, NM, MK = 16, 20, 56, 128, 176, 192, 208, 224
    MX = 244
    G2R, SBR = 80, 88
    Vb = lambda t: VF + 8 * (t % 3)
    prologue(k, 256)
    xcd_map(k, 1, 5, 4)
    I('s_lshl_b32', 's6', 's5', 3)
    I('s_add_u32', 's6', 's6', 's3')
    I('v_lshlrev_b32', 'v2', 4, 'v1')
    I('s_lshl_b32', 's9', 's4', 16)
    I('s_lshl_b32', 's10', 's6', 10)
    I('s_add_u32', 's10', 's10', 's9')
    I('s_add_u32', 's10', 's10', QB)
    I('s_lshl_b32', 's8', 's3', 11)
    I('v_lshrrev_b32', 'v3', 5, 'v1')
    I('v_bfe_u32', 'v4', 'v1', 4, 1)
    I('v_bfe_u32', 'v5', 'v1', 2, 2)
    I('v_and_b32', 'v6', 1, 'v1')
    I('v_bfe_u32', 'v7', 'v1', 1, 1)
    I('v_lshl_add_u32', 'v6', 'v6', 1, 'v7')
    I('v_lshlrev_b32', 'v13', 8, 'v3')
    I('v_and_b32', 'v14', 15, 'v1')
    I('v_lshl_add_u32', 'v13', 'v14', 4, 'v13')
    I('v_and_b32', 'v12', 31, 'v1')
    I('v_lshlrev_b32', 'v12', 2, 'v12')
    I('v_lshlrev_b32', 'v14', 5, 'v3')
    I('v_lshlrev_b32', 'v15', 4, 'v3')
    I('s_and_b32', 's12', 's3', 3)
    I('s_mul_i32', 's13', 's2', 3)
    I('s_add_u32', 's13', 's13', 's12')
    I('s_lshr_b32', 's15', 's2', 1)
    I('s_add_u32', 's15', 's15', 768)
    I('s_cmp_eq_u32', 's3', 3)
    I('s_cselect_b32', 's57', 's15', 's13')
    I('s_and_b32', 's15', 's2', 1)
    I('s_lshr_b32', 's13', 's3', 2)
    I('s_cmp_eq_u32', 's3', 3)
    I('s_cselect_b32', 's64', 's15', 's13')
    I('s_cmp_eq_u32', 's3', 7)
    I('s_cselect_b32', 's57', 's2', 's57')
    I('s_mul_i32', 's66', 's57', 2341)
    I('s_lshr_b32', 's66', 's66', 16)
    I('s_min_u32', 's66', 's66', 31)
    I('s_mul_i32', 's65', 's66', 28)
    I('s_sub_u32', 's65', 's57', 's65')
    I('s_lshl_b32', 's67', 's66', 6)
    I('s_add_u32', 's67', 's67', MODF + MF_G2)
    I('s_lshl_b32', 's68', 's66', 5)
    I('s_add_u32', 's68', 's68', MODF + MF_SB)
    I('s_lshl_b32', 's11', 's4', 13)
    I('s_lshl_b32', 's12', 's6', 7)
    I('s_add_u32', 's11', 's11', 's12')
    I('s_add_u32', 's11', 's11', NRM)
    I('s_lshl_b32', 's12', 's4', 8)
    I('s_lshl_b32', 's13', 's6', 2)
    I('s_add_u32', 's12', 's12', 's13')
    I('s_add_u32', 's12', 's12', TMX + 8192 - 32)
    I('s_sub_i32', 's14', 8, 's6')
    I('s_max_i32', 's14', 's14', 0)
    I('s_mov_b32', 's58', 0xffff)
    I('s_mov_b32', 's59', 0xffff)
    k.waitcnt(lgkm=0)
    tick(k)
    srd(k, R_WS, S_WS, WS_SIZE)
    I('s_buffer_load_dwordx8', s(48, 8), s(R_WS, 4), 's12')
    I('s_add_u32', 's12', 's12', 32)
    I('s_buffer_load_dword', 's56', s(R_WS, 4), 's12')
    Sb = lambda t: SB_ + 16 * (t % 3)

    def qk(t, C):
        I('v_mfma_f32_32x32x16_bf16', v(Sb(t), 16), v(KF + 4 * t, 4), v(Q, 4), C)

    def consts():
        I('v_and_b32', 'v10', 31, 'v1')
        I('v_lshlrev_b32', 'v11', 2, 'v3')
        I('v_sub_u32', 'v10', 'v10', 'v11')
        I('v_mov_b32', 'v11', f32bits(-BIG))
        for r in range(0, 16, 2):
            for q in range(2):
                kk = ((r + q) & 3) + 8 * ((r + q) >> 2)
                I('v_cmp_le_i32', s(60 + 2 * q, 2), kk, 'v10')
            for q in range(2):
                I('v_cndmask_b32', v(MK + r + q), 'v11', 0, s(60 + 2 * q, 2))

    def rdv(t):
        I('s_mov_b64', 'exec', s(58, 2))
        for j in range(2):
            I('ds_read_b128', v(Vb(t) + 4 * j, 4), 'v247', mods=f'offset:{L_V + t * 1024 + j * 512}')
        I('s_mov_b64', 'exec', -1)

    def lds_reads():
        for t in range(8, -1, -1):
            I('ds_read_b128', v(KF + 4 * t, 4), 'v246', mods=f'offset:{L_K + t * 1024}')

    def attn(tag, exact):
        rdv(8)
        rdv(7)
        if exact:
            qk(8, v(MK, 16))
            qk(7, 0)
            for t in range(8, -1, -1):
                if t - 2 > 0:
                    qk(t - 2, 0)
                elif t - 2 == 0:
                    for r in range(16):
                        I('v_sub_f32', v(Sb(0) + r), 'v11', v(MK + r))
                    qk(0, v(Sb(0), 16))
                b = Sb(t)
                if t == 8:
                    I('v_max3_f32', v(MX), v(b), v(b + 1), v(b + 2))
                    I('v_max3_f32', v(MX + 1), v(b + 3), v(b + 4), v(b + 5))
                    rest = list(range(6, 16))
                else:
                    rest = list(range(16))
                for i in range(0, len(rest), 2):
                    m = MX + ((i // 2) & 1)
                    I('v_max3_f32', v(m), v(m), v(b + rest[i]), v(b + rest[i + 1]))
                if t > 0:
                    I('s_cmp_eq_u32', 's14', t)
                    I('s_cbranch_scc1', f'L_k2_p1{tag}')
            k.label(f'L_k2_p1{tag}')
            k.nop(12)
            I('v_max_f32', v(MX), v(MX), v(MX + 1))
            I('v_mov_b32', v(MX + 1), v(MX))
            I('v_permlane32_swap_b32', v(MX), v(MX + 1))
            I('v_max_f32', v(MX), v(MX), v(MX + 1))
            for r in range(16):
                I('v_sub_f32', v(NM + r), 0, v(MX))
            for r in range(16):
                I('v_add_f32', v(Sb(8) + r), v(MK + r), v(NM))
        else:
            k.waitcnt(lgkm=11)
        qk(8, v(Sb(8), 16))
        qk(7, v(NM, 16))
        if not exact:
            k.waitcnt(lgkm=4)
        qk(6, v(NM, 16))
        for t in range(8, -1, -1):
            b = Sb(t)
            P = PB + 8 * (t & 1)
            E = lambda r: I('v_exp_f32', v(b + r), v(b + r))
            C = lambda j: I('v_cvt_pk_bf16_f32', v(P + j), v(b + 2 * j), v(b + 2 * j + 1))
            if t - 2 >= 0:
                rdv(t - 2)
            for r in range(9):
                E(r)
            for j in range(4):
                C(j)
                E(9 + j)
            E(13)
            k.waitcnt(lgkm=4 if t - 2 >= 0 else (2 if t == 1 else 0))
            I('v_mfma_f32_32x32x16_bf16', v(OA, 16), v(Vb(t), 4), v(P, 4), 0 if t == 8 else v(OA, 16))
            E(14)
            E(15)
            for j in range(4, 8):
                C(j)
            if t - 3 > 0:
                qk(t - 3, v(NM, 16))
            elif t - 3 == 0:
                for r in range(16):
                    I('v_sub_f32', v(Sb(0) + r), 'v11', v(MK + r))
                for r in range(16):
                    I('v_add_f32', v(Sb(0) + r), v(Sb(0) + r), v(NM))
                qk(0, v(Sb(0), 16))
            if t > 0:
                I('s_cmp_eq_u32', 's14', t)
            I('v_mfma_f32_32x32x16_bf16', v(OA, 16), v(Vb(t) + 4, 4), v(P + 4, 4), v(OA, 16))
            if t > 0:
                I('s_cbranch_scc1', f'L_k2_p2{tag}')
        k.label(f'L_k2_p2{tag}')
        k.nop(12)
        k.waitcnt(lgkm=0)

    def side_loads():
        I('v_lshrrev_b32', 'v8', 3, 'v1')
        I('v_and_b32', 'v9', 7, 'v1')
        I('v_lshlrev_b32', 'v9', 4, 'v9')
        I('v_lshl_add_u32', 'v248', 'v8', 10, 'v9')
        I('v_mul_u32_u24', 'v8', 3584, 'v8')
        I('v_add_u32', 'v8', 'v8', 'v9')
        I('s_lshl_b32', 's69', 's3', 12)
        I('s_add_u32', 's69', 's69', L_SIDE)
        I('s_cmp_eq_u32', 's64', 0)
        I('s_cbranch_scc0', 'L_k2_sl1')
        I('s_mul_i32', 's15', 's66', 16 * 3584)
        I('s_lshl_b32', 's60', 's65', 7)
        I('s_add_u32', 's15', 's15', 's60')
        I('s_add_u32', 's60', 's15', 8 * 3584)
        for m_, ptr in enumerate((S_WG, S_WU)):
            srd(k, 44, ptr, 512 * 3584)
            I('s_add_u32', 'm0', 's69', m_ * 2048)
            I('buffer_load_dwordx4', 'v8', s(44, 4), 's15', mods='offen lds')
            I('s_add_u32', 'm0', 's69', m_ * 2048 + 1024)
            I('buffer_load_dwordx4', 'v8', s(44, 4), 's60', mods='offen lds')
        I('s_branch', 'L_k2_sl2')
        k.label('L_k2_sl1')
        I('s_cmp_eq_u32', 's3', 7)
        I('s_cselect_b32', 's44', s(S_WO), s(S_WD))
        I('s_cselect_b32', 's45', s(S_WO + 1), s(S_WD + 1))
        I('s_mov_b32', 's13', 1792 * 1024)
        I('s_cselect_b32', 's46', 512 * 1024, 's13')
        I('s_mov_b32', 's47', 0x20000)
        I('s_lshr_b32', 's12', 's57', 3)
        I('s_lshl_b32', 's12', 's12', 14)
        I('s_and_b32', 's13', 's57', 7)
        I('s_lshl_b32', 's13', 's13', 7)
        I('s_add_u32', 's12', 's12', 's13')
        I('s_mov_b32', 'm0', 's69')
        I('buffer_load_dwordx4', 'v248', s(44, 4), 's12', mods='offen lds')
        I('s_add_u32', 'm0', 's69', 1024)
        I('s_add_u32', 's12', 's12', 8192)
        I('buffer_load_dwordx4', 'v248', s(44, 4), 's12', mods='offen lds')
        k.label('L_k2_sl2')

    I('s_lshl_b32', 's7', 's5', 3)
    I('s_lshl_b32', 's13', 's3', 1)
    I('s_add_i32', 's7', 's7', 's13')
    I('s_add_i32', 's7', 's7', -8)
    I('s_max_i32', 's7', 's7', 0)
    I('s_lshl_b32', 's7', 's7', 10)
    I('s_add_u32', 's7', 's7', 's9')
    I('s_add_u32', 'm0', 's8', L_K)
    I('s_add_u32', 's13', 's7', KB)
    I('buffer_load_dwordx4', 'v2', s(R_WS, 4), 's13', mods='offen lds')
    I('buffer_load_dwordx4', 'v2', s(R_WS, 4), 's13', mods='offen offset:1024 lds')
    I('buffer_load_dwordx4', v(Q, 4), 'v2', s(R_WS, 4), 's10', mods='offen')
    I('buffer_load_dword', v(MX), 'v12', s(R_WS, 4), 's11', mods='offen')
    I('s_add_u32', 'm0', 's8', L_V)
    I('s_add_u32', 's13', 's7', VB)
    I('buffer_load_dwordx4', 'v2', s(R_WS, 4), 's13', mods='offen lds')
    I('buffer_load_dwordx4', 'v2', s(R_WS, 4), 's13', mods='offen offset:1024 lds')
    I('buffer_load_dwordx4', v(G2R, 4), 'v14', s(R_WS, 4), 's67', mods='offen')
    I('buffer_load_dwordx4', v(G2R + 4, 4), 'v14', s(R_WS, 4), 's67', mods='offen offset:16')
    I('buffer_load_dwordx4', v(SBR, 4), 'v15', s(R_WS, 4), 's68', mods='offen')
    consts()
    for r in range(24):
        I('v_mov_b32', v(VF + r), 0x3f803f80)
    I('s_lshl_b32', 's13', 's3', 10)
    I('v_add_u32', 'v246', 's13', 'v2')
    I('v_add_u32', 'v247', 's13', 'v13')
    k.waitcnt(lgkm=0)
    for i in range(1, 9):
        I('s_max_u32', 's48', 's48', s(48 + i))
    k.waitcnt(vm=5)
    I('v_mul_f32', v(MX), 's48', v(MX))
    I('v_sqrt_f32', v(MX), v(MX))
    for r in range(16):
        I('v_sub_f32', v(NM + r), 0, v(MX))
    for r in range(16):
        I('v_add_f32', v(Sb(8) + r), v(MK + r), v(NM))
    k.waitcnt(vm=3)
    tick(k)
    k.barrier()
    tick(k)
    lds_reads()
    side_loads()
    attn('a', exact=False)
    tick(k)
    I('v_mov_b32', v(MX), f32bits(2.0 ** -80))
    I('v_cmp_nge_f32', 'vcc', v(OA + 8), v(MX))
    if OPT.get('k2force'):
        I('s_mov_b64', 'vcc', -1)
    I('s_cbranch_vccz', 'L_k2_fin')
    attn('x', exact=True)
    k.label('L_k2_fin')
    I('v_rcp_f32', v(MX), v(OA + 8))
    for r in range(8):
        I('v_mul_f32', v(OA + r), v(OA + r), v(MX))
    pack8(k, PB, OA)
    I('s_lshl_b32', 's12', 's6', 15)
    I('s_lshl_b32', 's13', 's4', 10)
    I('s_add_u32', 's12', 's12', 's13')
    I('s_add_u32', 's12', 's12', OB)
    I('buffer_store_dwordx4', v(PB, 4), 'v2', s(R_WS, 4), 's12', mods=f'offen {ST_POL}')
    k.waitcnt(vm=1)
    tick(k)
    I('s_cmp_eq_u32', 's64', 0)
    I('s_cbranch_scc1', 'L_k2_gu')
    I('s_mov_b32', 's60', 1024)
    I('s_mov_b32', 's61', 512)
    I('s_cmp_eq_u32', 's3', 7)
    I('s_cselect_b32', 's12', 512, 's60')
    I('s_cselect_b32', 's13', 1024, 's61')
    I('v_mul_lo_u32', 'v8', 'v3', 's12')
    I('v_lshl_add_u32', 'v8', 'v5', 7, 'v8')
    I('v_lshl_add_u32', 'v8', 'v4', 5, 'v8')
    I('v_lshl_add_u32', 'v8', 'v6', 3, 'v8')
    I('v_add_u32', 'v8', 's69', 'v8')
    I('v_add_u32', 'v9', 's13', 'v8')
    RU = KF
    for u in range(2):
        I('ds_read_b64_tr_b16', v(RU + 4 * u, 2), 'v8', mods=f'offset:{u * 64}')
        I('ds_read_b64_tr_b16', v(RU + 4 * u + 2, 2), 'v9', mods=f'offset:{u * 64}')
    I('s_mov_b32', 's60', 114688)
    I('s_cselect_b32', 's60', 32768, 's60')
    I('s_mov_b32', 's61', WD)
    I('s_cselect_b32', 's61', WO, 's61')
    I('s_and_b32', 's12', 's57', 7)
    I('s_lshl_b32', 's12', 's12', 1)
    I('s_mul_i32', 's12', 's12', 's60')
    I('s_add_u32', 's61', 's61', 's12')
    I('s_lshr_b32', 's12', 's57', 3)
    I('s_lshl_b32', 's12', 's12', 10)
    I('s_add_u32', 's61', 's61', 's12')
    I('s_add_u32', 's62', 's61', 's60')
    k.waitcnt(lgkm=0)
    I('buffer_store_dwordx4', v(RU, 4), 'v2', s(R_WS, 4), 's61', mods=f'offen {ST_POL}')
    I('buffer_store_dwordx4', v(RU + 4, 4), 'v2', s(R_WS, 4), 's62', mods=f'offen {ST_POL}')
    I('s_branch', 'L_k2_sw1')
    k.label('L_k2_gu')
    I('v_lshlrev_b32', 'v10', 11, 'v4')
    I('v_lshl_add_u32', 'v11', 'v3', 3, 'v5')
    I('v_lshl_add_u32', 'v10', 'v11', 7, 'v10')
    I('v_lshl_add_u32', 'v10', 'v6', 3, 'v10')
    I('v_add_u32', 'v10', 's69', 'v10')
    RW = KF
    for u in range(4):
        I('ds_read_b64_tr_b16', v(RW + 4 * u, 2), 'v10', mods=f'offset:{u * 32}')
        I('ds_read_b64_tr_b16', v(RW + 4 * u + 2, 2), 'v10', mods=f'offset:{u * 32 + 512}')
    I('s_lshl_b32', 's60', 's65', 2)
    I('s_mul_i32', 's15', 's66', 7168)
    I('s_add_u32', 's15', 's15', W4)
    for u in range(4):
        I('s_add_u32', 's12', 's60', u)
        I('s_mul_i32', 's13', 's12', 147)
        I('s_lshr_b32', 's13', 's13', 10)
        I('s_mul_i32', 's61', 's13', 7)
        I('s_sub_u32', 's12', 's12', 's61')
        I('s_mul_i32', 's13', 's13', W4_NB)
        I('s_lshl_b32', 's12', 's12', 10)
        I('s_add_u32', 's12', 's12', 's13')
        I('s_add_u32', s(48 + u), 's12', 's15')
    for j in range(4):
        I('v_mov_b32', v(240 + j), 0x3f803f80)
    I('s_mul_i32', 's62', 's66', 28672)
    I('s_lshl_b32', 's63', 's60', 7)
    I('s_add_u32', 's62', 's62', 's63')
    I('s_add_u32', 's62', 's62', CSP)
    I('v_mul_u32_u24', 'v8', 14336, 'v3')
    I('v_add_u32', 'v8', 'v8', 'v12')
    I('v_cmp_eq_u32', 'vcc', 0, 'v3')
    BS = [96, 112, SB_, SB_ + 16]
    CS = [SB_ + 32, PB, OA, NM]
    T = MK
    for u in range(4):
        k.waitcnt(lgkm=6 - 2 * u)
        I('v_mfma_f32_32x32x16_bf16', v(BS[u], 16), v(SBR, 4), v(RW + 4 * u, 4), 0)
        unpack8(k, T + 8 * (u & 1), RW + 4 * u)
        for j in range(8):
            I('v_mul_f32', v(T + 8 * (u & 1) + j), v(T + 8 * (u & 1) + j), v(G2R + j))
        pack8(k, RW + 16 + 4 * u, T + 8 * (u & 1))
        I('buffer_store_dwordx4', v(RW + 16 + 4 * u, 4), 'v2', s(R_WS, 4), s(48 + u), mods=f'offen {ST_POL}')
        I('v_mfma_f32_32x32x16_bf16', v(CS[u], 16), v(240, 4), v(RW + 16 + 4 * u, 4), 0)
    for u in range(4):
        I('v_cndmask_b32', v(244 + u), v(BS[u]), v(CS[u]), 'vcc')
        I('buffer_store_dword', v(244 + u), 'v8', s(R_WS, 4), 's62', mods=f'offen offset:{128 * u}')
    k.label('L_k2_sw1')
    epilogue(k, 2, vtmp=4)
    return k, 256, 512, LDS


def gen_gemm64(name, idx, NS, A_BASE, A_TB, B_BASE, B_NF, is_k3):
    k = Kernel(name)
    I = k.I
    LDS = 4 * 3 * 4096
    prologue(k, 256, need_lo=is_k3)
    xcd_map(k, 3, 4, 5)
    I('v_lshlrev_b32', 'v2', 4, 'v1')
    I('v_lshrrev_b32', 'v3', 5, 'v1')
    I('v_and_b32', 'v4', 31, 'v1')
    NT = 4 * NS
    ROT = OPT.get('rot64', 0)
    I('s_lshr_b32', 's6', 's2', 3)
    I('s_mul_i32', 's6', 's6', NT * ROT)
    I('s_lshr_b32', 's6', 's6', 5)
    I('s_mul_i32', 's61', 's3', NS)
    I('s_add_u32', 's6', 's6', 's61')
    I('s_cmp_ge_u32', 's6', NT)
    I('s_cselect_b32', 's61', NT, 0)
    I('s_sub_u32', 's6', 's6', 's61')
    I('s_lshl_b32', 's6', 's6', 10)
    I('s_mul_i32', 's7', 's4', 2 * A_TB)
    I('s_add_u32', 's7', 's7', A_BASE)
    I('s_add_u32', 's8', 's7', A_TB)
    I('s_mul_i32', 's9', 's5', 2 * B_NF)
    I('s_add_u32', 's9', 's9', B_BASE)
    I('s_add_u32', 's10', 's9', B_NF)
    I('s_and_b32', 's11', 's3', 1)
    I('s_lshr_b32', 's12', 's3', 1)
    I('s_lshl_b32', 's13', 's4', 1)
    I('s_add_u32', 's13', 's13', 's12')
    I('s_lshl_b32', 's14', 's5', 1)
    I('s_add_u32', 's14', 's14', 's11')
    k.waitcnt(lgkm=0)
    tick(k)
    srd(k, R_WS, S_WS, WS_SIZE)
    ACC = 16
    GV = 80
    XR = 96
    RING = 104
    DEPTH = min(NS, 8)
    LOG = []

    def ld(st):
        b = RING + 16 * (st % DEPTH)
        va = 'v11' if st & 1 else 'v12'
        I('v_add_u32', va, 's6', 'v2')
        I('s_add_u32', 's6', 's6', 1024)
        I('s_cmp_eq_u32', 's6', NT * 1024)
        I('s_cselect_b32', 's6', 0, 's6')
        for j, r in enumerate((9, 7, 10, 8)):
            I('buffer_load_dwordx4', v(b + 4 * j, 4), va, s(R_WS, 4), s(r), mods='offen')
            LOG.append(('k', st))

    def side_loads():
        I('s_lshl_b32', 's15', 's14', 7)
        I('s_add_u32', 's15', 's15', MODF + (MF_GA if is_k3 else MF_GB))
        I('v_lshlrev_b32', 'v5', 5, 'v3')
        for sp in range(2):
            for q in range(2):
                I('buffer_load_dwordx4', v(GV + 8 * sp + 4 * q, 4), 'v5', s(R_WS, 4), 's15', mods=f'offen offset:{64 * sp + 16 * q}')
                LOG.append(('s', 0))
        if is_k3:
            srd(k, 44, S_X, 2048 * 1024)
            I('s_lshl_b32', 's15', 's13', 15)
            I('s_lshl_b32', 's60', 's14', 6)
            I('s_add_u32', 's15', 's15', 's60')
            I('v_lshlrev_b32', 'v6', 10, 'v4')
            I('v_lshl_add_u32', 'v6', 'v3', 4, 'v6')
            for sp in range(2):
                I('buffer_load_dwordx4', v(XR + 4 * sp, 4), 'v6', s(44, 4), 's15', mods=f'offen offset:{32 * sp}')
                LOG.append(('s', 0))
        else:
            I('s_lshl_b32', 's15', 's13', 15)
            I('s_lshl_b32', 's60', 's14', 11)
            I('s_add_u32', 's15', 's15', 's60')
            I('s_add_u32', 's15', 's15', X1)
            for sp in range(2):
                I('buffer_load_dwordx4', v(XR + 4 * sp, 4), 'v2', s(R_WS, 4), 's15', mods=f'offen offset:{1024 * sp}')
                LOG.append(('s', 0))

    PRE = min(DEPTH, 4)
    nxt = 0
    for st in range(PRE):
        ld(st)
        nxt += 1
    side_done = False
    for st in range(NS):
        tgt = min(NS, st + DEPTH)
        n_issue = 0
        while nxt < tgt and n_issue < 2:
            ld(nxt)
            nxt += 1
            n_issue += 1
        if nxt == NS and not side_done:
            side_loads()
            side_done = True
        last = max(i for i, e in enumerate(LOG) if e == ('k', st))
        k.waitcnt(vm=len(LOG) - 1 - last)
        b = RING + 16 * (st % DEPTH)
        B0, A0, B1, A1 = (v(b + 4 * j, 4) for j in range(4))
        for nfl, Bf in ((0, B0), (1, B1)):
            for tbl, Af in ((0, A0), (1, A1)):
                a_ = ACC + 16 * (2 * nfl + tbl)
                I('v_mfma_f32_32x32x16_bf16', v(a_, 16), Bf, Af, 0 if st == 0 else v(a_, 16))
    tick(k)
    k.flush()
    for o in range(4):
        q = 2 * (o & 1) + (o >> 1)
        lab = f'L_{name}_skip{o}'
        I('s_cmp_eq_u32', 's3', o)
        I('s_cbranch_scc1', lab)
        I('s_sub_u32', 's15', 's3', o + 1)
        I('s_and_b32', 's15', 's15', 3)
        I('s_lshl_b32', 's15', 's15', 12)
        I('v_add_u32', 'v7', 's15', 'v2')
        for j in range(4):
            I('ds_write_b128', 'v7', v(ACC + 16 * q + 4 * j, 4), mods=f'offset:{o * 12288 + j * 1024}')
        k.label(lab)
    OWN = RING
    for o in range(4):
        q = 2 * (o & 1) + (o >> 1)
        lab = f'L_{name}_own{o}'
        I('s_cmp_lg_u32', 's3', o)
        I('s_cbranch_scc1', lab)
        for r in range(16):
            I('v_mov_b32', v(OWN + r), v(ACC + 16 * q + r))
        k.label(lab)
    k.waitcnt(lgkm=0)
    k.barrier()
    tick(k)
    I('s_mul_i32', 's15', 's3', 12288)
    I('v_add_u32', 'v7', 's15', 'v2')
    for p in range(3):
        for j in range(4):
            I('ds_read_b128', v(ACC + 16 * p + 4 * j, 4), 'v7', mods=f'offset:{p * 4096 + j * 1024}')
    for p in range(3):
        k.waitcnt(lgkm=8 - 4 * p)
        for r in range(16):
            I('v_add_f32', v(OWN + r), v(OWN + r), v(ACC + 16 * p + r))
    k.waitcnt(vm=0)
    T = ACC
    unpack8(k, T, XR)
    unpack8(k, T + 8, XR + 4)
    for r in range(16):
        I('v_fmac_f32', v(T + r), v(OWN + r), v(GV + r))
    P = ACC + 16
    pack8(k, P, T)
    pack8(k, P + 4, T + 8)
    if is_k3:
        I('s_lshl_b32', 's15', 's13', 15)
        I('s_lshl_b32', 's60', 's14', 11)
        I('s_add_u32', 's15', 's15', 's60')
        I('s_add_u32', 's15', 's15', X1)
        for sp in range(2):
            I('buffer_store_dwordx4', v(P + 4 * sp, 4), 'v2', s(R_WS, 4), 's15', mods=f'offen offset:{1024 * sp} {ST_POL}')
        unpack8(k, T, P)
        unpack8(k, T + 8, P + 4)
        I('v_add_f32', 'v8', v(T), v(T + 1))
        I('v_add_f32', 'v9', v(T + 2), v(T + 3))
        for r in range(4, 16, 2):
            I('v_add_f32', 'v8', 'v8', v(T + r))
            I('v_add_f32', 'v9', 'v9', v(T + r + 1))
        I('v_add_f32', 'v8', 'v8', 'v9')
        I('v_mov_b32', 'v9', 'v8')
        I('v_permlane32_swap_b32', 'v8', 'v9')
        I('v_add_f32', 'v8', 'v8', 'v9')
        I('v_mul_f32', 'v8', f32bits(1.0 / 32), 'v8')
        for r in range(16):
            I('v_sub_f32', v(T + r), v(T + r), 'v8')
        I('v_mul_f32', 'v9', v(T), v(T))
        I('v_mul_f32', 'v10', v(T + 1), v(T + 1))
        for r in range(2, 16, 2):
            I('v_fmac_f32', 'v9', v(T + r), v(T + r))
            I('v_fmac_f32', 'v10', v(T + r + 1), v(T + r + 1))
        I('v_add_f32', 'v9', 'v9', 'v10')
        I('v_mov_b32', 'v10', 'v9')
        I('v_permlane32_swap_b32', 'v9', 'v10')
        I('v_add_f32', 'v9', 'v9', 'v10')
        I('s_lshl_b32', 's15', 's13', 12)
        I('s_lshl_b32', 's60', 's5', 9)
        I('s_add_u32', 's15', 's15', 's60')
        I('s_lshl_b32', 's60', 's11', 3)
        I('s_add_u32', 's15', 's15', 's60')
        I('s_add_u32', 's15', 's15', ST2)
        I('v_lshlrev_b32', 'v10', 4, 'v4')
        I('s_mov_b32', 'exec_hi', 0)
        I('buffer_store_dwordx2', v(8, 2), 'v10', s(R_WS, 4), 's15', mods='offen')
        I('s_mov_b64', 'exec', -1)
        I('s_cmp_ge_u32', 's2', 112)
        I('s_cbranch_scc1', f'L_{name}_noside')
        I('s_cmp_lg_u32', 's3', 0)
        I('s_cbranch_scc1', f'L_{name}_noside')
        I('v_mul_u32_u24', 'v8', 14336, 'v3')
        I('v_lshl_add_u32', 'v8', 'v4', 2, 'v8')
        I('s_lshl_b32', 's15', 's2', 7)
        I('s_add_u32', 's15', 's15', CSP)
        T = RING + 16
        for p in range(32):
            I('s_add_u32', 's60', 's15', p * 28672)
            I('buffer_load_dword', v(T + p), 'v8', s(R_WS, 4), 's60', mods='offen')
        k.waitcnt(vm=0)
        for st_ in (16, 8, 4, 2, 1):
            for r in range(st_):
                I('v_add_f32', v(T + r), v(T + r), v(T + r + st_))
        I('v_cvt_pk_bf16_f32', v(P), v(T), v(T))
        I('v_and_b32', 'v9', 0xffff0000, v(P))
        I('v_sub_f32', 'v9', v(T), 'v9')
        I('v_cvt_pk_bf16_f32', v(P + 1), 'v9', 'v9')
        I('v_mov_b32', v(P + 2), 0)
        I('v_mov_b32', v(P + 3), 0)
        I('s_mul_i32', 's60', 's2', 147)
        I('s_lshr_b32', 's60', 's60', 10)
        I('s_mul_i32', 's61', 's60', 7)
        I('s_sub_u32', 's61', 's2', 's61')
        I('s_mul_i32', 's60', 's60', W4_NB)
        I('s_lshl_b32', 's61', 's61', 10)
        I('s_add_u32', 's60', 's60', 's61')
        I('s_add_u32', 's60', 's60', W4 + 32 * 7168)
        I('buffer_store_dwordx4', v(P, 4), 'v2', s(R_WS, 4), 's60', mods='offen')
        k.label(f'L_{name}_noside')
    else:
        srd(k, 44, S_OUT, 2048 * 1024)
        I('s_lshl_b32', 's15', 's13', 15)
        I('s_lshl_b32', 's60', 's14', 6)
        I('s_add_u32', 's15', 's15', 's60')
        I('v_lshlrev_b32', 'v6', 10, 'v4')
        I('v_lshl_add_u32', 'v6', 'v3', 4, 'v6')
        for sp in range(2):
            I('buffer_store_dwordx4', v(P + 4 * sp, 4), 'v6', s(44, 4), 's15', mods=f'offen offset:{32 * sp}')
    epilogue(k, idx, vtmp=4)
    return k, 256, 256, LDS


def gen_k3():
    return gen_gemm64('k3_wo_kernel', 3, 8, OB, 32768, WO, 32768, True)


def gen_k5():
    return gen_gemm64('k5_down_kernel', 5, 28, ACT, 112 * 1024, WD, 112 * 1024, False)


def gen_k4():
    k = Kernel('k4_ffn1_kernel')
    I = k.I
    RES = {2: 131072, 3: 32768, 6: 0}
    LDS = 163840
    NR = 16
    D = OPT.get('k4d', 8)
    prologue(k, 256, need_lo=False)
    xcd_map(k, 2, 4, 5)
    I('s_and_b32', 's61', 's3', 3)
    I('s_lshr_b32', 's63', 's3', 2)
    I('s_lshl_b32', 's6', 's4', 2)
    I('s_add_u32', 's6', 's6', 's61')
    I('v_lshlrev_b32', 'v2', 4, 'v1')
    I('v_lshrrev_b32', 'v3', 5, 'v1')
    I('v_and_b32', 'v4', 31, 'v1')
    I('s_mul_i32', 's7', 's5', W4_NB)
    I('s_add_u32', 's7', 's7', W4)
    I('s_lshl_b32', 's8', 's3', 10)
    I('s_lshl_b32', 's9', 's6', 15)
    I('s_add_u32', 's9', 's9', X1)
    I('s_and_b32', 's10', 's3', 1)
    I('s_and_b32', 's11', 's3', 2)
    I('s_lshl_b32', 's11', 's11', 1)
    I('s_add_u32', 's10', 's10', 's11')
    I('s_lshl_b32', 's10', 's10', 10)
    I('s_add_u32', 's10', 's10', 's7')
    I('s_mov_b32', 's11', 7168)
    I('s_cmp_eq_u32', 's63', 0)
    I('s_cselect_b32', 's9', 's9', 's10')
    I('s_cselect_b32', 's11', 1024, 's11')
    I('s_mul_i32', 's12', 's3', 7168)
    I('s_add_u32', 's12', 's12', 's7')
    I('s_lshl_b32', 's13', 's61', 10)
    I('v_add_u32', 'v5', 's13', 'v2')
    I('s_lshl_b32', 's13', 's63', 11)
    I('s_add_u32', 's13', 's13', 4096)
    I('v_add_u32', 'v6', 's13', 'v2')
    I('v_add_u32', 'v7', RES[2], 'v2')
    I('s_xor_b32', 's13', 's63', 1)
    I('s_lshl_b32', 's13', 's13', 15)
    I('v_add_u32', 'v15', 's13', 'v2')
    I('v_add_u32', 'v0', 65536, 'v5')
    I('v_add_u32', 'v1', 65536, 'v6')
    k.waitcnt(lgkm=0)
    tick(k)
    srd(k, R_WS, S_WS, WS_SIZE)
    ACC, WF, EXT, T, PK, EXB = 16, 80, 104, 108, 116, 124
    STT = ACC + 48
    EXA = T
    I('s_cmp_eq_u32', 's63', 0)
    I('s_cbranch_scc0', 'L_k4_g1')
    nt0 = getattr(k, 'nticks', 0)
    for grp in range(2):
        k.nticks = nt0
        FA = [0, 1, 2] if grp == 0 else [4, 5]
        FB = 3 if grp == 0 else 6
        NA = len(FA)
        LOG = []

        def ring(s_):
            if s_ >= 32:
                batch(6 if s_ < 36 else 3, (s_ - 32) % 4)
                return
            I('s_add_u32', 'm0', 's8', (s_ % NR) * 8192)
            I('buffer_load_dwordx4', 'v2', s(R_WS, 4), 's9', mods='offen lds')
            I('s_add_u32', 's9', 's9', 's11')
            LOG.append(('r', s_))

        def batch(fr, i):
            I('s_add_u32', 'm0', 's8', RES[fr] + i * 8192)
            I('s_add_u32', 's13', 's12', i * 8 * 7168 + fr * 1024)
            I('buffer_load_dwordx4', 'v2', s(R_WS, 4), 's13', mods='offen lds')
            LOG.append(('b', fr, i))

        def stat_loads():
            I('s_lshl_b32', 's13', 's6', 12)
            I('s_add_u32', 's13', 's13', ST2)
            I('v_lshlrev_b32', 'v8', 11, 'v3')
            I('v_lshl_add_u32', 'v8', 'v4', 4, 'v8')
            for q in range(4):
                I('buffer_load_dwordx4', v(STT + 4 * q, 4), 'v8', s(R_WS, 4), 's13', mods=f'offen offset:{q * 512}')
                LOG.append(('st',))

        def ext_loads():
            I('s_add_u32', 's13', 's7', 32 * 7168)
            for j, f in enumerate(FA):
                I('s_add_u32', 's14', 's13', f * 1024)
                I('buffer_load_dwordx4', v(EXA + 4 * j, 4), 'v2', s(R_WS, 4), 's14', mods='offen')
                LOG.append(('x',))
            I('s_add_u32', 's14', 's13', FB * 1024)
            I('buffer_load_dwordx4', v(EXB, 4), 'v2', s(R_WS, 4), 's14', mods='offen')
            LOG.append(('x',))
            if grp == 1:
                pass

        def wait_tags(tags):
            last = max(i for i, e in enumerate(LOG) if e in tags)
            k.waitcnt(vm=len(LOG) - 1 - last)

        def rd(s_):
            so = (s_ % 8) * 8192
            hi = (s_ % NR) >= 8
            b = WF + 12 * (s_ & 1)
            I('ds_read_b128', a(4 * s_, 4), 'v0' if hi else 'v5', mods=f'offset:{so}')
            for j in range(2):
                I('ds_read_b128', v(b + 4 * j, 4), 'v1' if hi else 'v6', mods=f'offset:{so + j * 1024}')
            if grp == 0:
                I('ds_read_b128', v(b + 8, 4), 'v7', mods=f'offset:{s_ * 1024}')
        NRD = 1 + NA

        def stats_ops():
            c0 = -2.0 * 1.4426950408889634 * math.sqrt(2.0 / math.pi)
            c1 = c0 * 0.044715
            L = []
            A_ = lambda *a_, **kw: L.append(lambda: I(*a_, **kw))
            A_('v_add_f32', 'v8', v(STT), v(STT + 2))
            for r in range(4, 16, 2):
                A_('v_add_f32', 'v8', 'v8', v(STT + r))
            A_('v_mov_b32', 'v9', 'v8')
            A_('v_permlane32_swap_b32', 'v8', 'v9')
            A_('v_add_f32', 'v8', 'v8', 'v9')
            A_('v_mul_f32', 'v8', f32bits(1.0 / 16), 'v8')
            A_('v_add_f32', 'v9', v(STT + 1), v(STT + 3))
            for r in range(5, 16, 2):
                A_('v_add_f32', 'v9', 'v9', v(STT + r))
            A_('v_mov_b32', 'v10', 0)
            for r in range(0, 16, 2):
                A_('v_sub_f32', v(STT + r), v(STT + r), 'v8')
                A_('v_fmac_f32', 'v10', v(STT + r), v(STT + r))
            A_('v_fmac_f32', 'v9', f32bits(32.0), 'v10')
            A_('v_mov_b32', 'v10', 'v9')
            A_('v_permlane32_swap_b32', 'v9', 'v10')
            A_('v_add_f32', 'v9', 'v9', 'v10')
            A_('v_mov_b32', 'v10', f32bits(1e-5))
            A_('v_fmac_f32', 'v10', f32bits(1.0 / 512), 'v9')
            A_('v_rsq_f32', 'v11', 'v10')
            A_('v_mul_f32', 'v12', 'v10', 'v11')
            A_('v_sub_f32', 'v13', 0, 'v8')
            A_('v_cmp_eq_u32', 'vcc', 0, 'v3')
            A_('v_cndmask_b32', 'v13', 'v12', 'v13', 'vcc')
            A_('v_cvt_pk_bf16_f32', 'v14', 'v13', 'v13')
            A_('v_and_b32', 'v14', 0xffff0000, 'v14')
            A_('v_sub_f32', 'v9', 'v13', 'v14')
            A_('v_cvt_pk_bf16_f32', v(EXT), 'v14', 'v9')
            A_('v_mov_b32', v(EXT + 1), v(EXT))
            A_('v_mov_b32', v(EXT + 2), 0)
            A_('v_mov_b32', v(EXT + 3), 0)
            A_('v_mul_f32', 'v12', f32bits(c0), 'v11')
            A_('v_mul_f32', 'v13', 'v11', 'v11')
            A_('v_mul_f32', 'v13', 'v13', 'v11')
            A_('v_mul_f32', 'v13', f32bits(c1), 'v13')
            A_('s_mul_i32', 's60', 's6', 112 * 1024)
            A_('s_mul_i32', 's62', 's5', 7 * 1024)
            A_('s_add_u32', 's60', 's60', 's62')
            A_('s_add_u32', 's60', 's60', ACT + grp * 4096)
            return L

        def epi(ai, f):
            g_ = ACC + 16 * ai
            u_ = g_ + 8
            for e in range(8):
                I('v_mul_f32', v(T + e), v(g_ + e), v(g_ + e))
            for e in range(8):
                I('v_fma_f32', v(T + e), v(T + e), 'v13', 'v12')
            for e in range(8):
                I('v_mul_f32', v(T + e), v(T + e), v(g_ + e))
            for e in range(8):
                I('v_exp_f32', v(T + e), v(T + e))
            for e in range(8):
                I('v_mul_f32', v(u_ + e), v(u_ + e), v(g_ + e))
            for e in range(8):
                I('v_fma_f32', v(T + e), v(T + e), 'v10', 'v10')
            for e in range(8):
                I('v_rcp_f32', v(T + e), v(T + e))
            for e in range(8):
                I('v_mul_f32', v(T + e), v(T + e), v(u_ + e))
            P = PK + 4 * (ai & 1)
            pack8(k, P, T)
            I('buffer_store_dwordx4', v(P, 4), 'v2', s(R_WS, 4), 's60', mods=f'offen offset:{(f % 4) * 1024} {ST_POL}')
            LOG.append(('store',))

        def fragB():
            ai = 3 if grp == 0 else 2
            acc = v(ACC + 16 * ai, 16)
            NB_ = 6
            for u in range(NB_ - 1):
                I('ds_read_b128', v(WF + 4 * u, 4), 'v15', mods=f'offset:{u * 1024}')
            I('v_mfma_f32_32x32x16_bf16', acc, v(EXB, 4), v(EXT, 4), 0)
            for u in range(32):
                n = u + NB_ - 1
                if n < 32:
                    I('ds_read_b128', v(WF + 4 * (n % NB_), 4), 'v15', mods=f'offset:{n * 1024}')
                k.waitcnt(lgkm=min(31, n) - u)
                I('v_mfma_f32_32x32x16_bf16', acc, v(WF + 4 * (u % NB_), 4), a(4 * u, 4), acc)

        extra = {}
        bsched = [(2, 1, 1), (2, 2, 5), (2, 3, 10)]
        for fr, i, at in bsched:
            extra.setdefault(at, []).append(lambda fr=fr, i=i: batch(fr, i))
        extra.setdefault(0, []).append(stat_loads)
        extra.setdefault(16, []).append(ext_loads)
        ring(0)
        batch(2, 0)
        PRE = OPT.get('k4pre', 8)
        for s_ in range(1, PRE):
            ring(s_)
        rn = [PRE]
        wait_tags([('r', 0), ('r', 1), ('b', 2, 0)])
        k.barrier()
        tick(k)
        rd(0)
        VQ = []
        for s_ in range(32):
            n = s_ + 1
            if n < 32:
                if n % 2 == 0:
                    tags = [('r', n), ('r', n + 1)]
                    if n % 8 == 0:
                        tags.append(('b', 2, n // 8))
                    wait_tags(tags)
                    k.barrier()
                    if n % 8 == 0:
                        tick(k)
                rd(n)
                k.waitcnt(lgkm=NRD)
            else:
                k.waitcnt(lgkm=0)
            b = WF + 12 * (s_ & 1)
            for j in range(NA):
                I('v_mfma_f32_32x32x16_bf16', v(ACC + 16 * j, 16), v(b + 4 * j, 4), a(4 * s_, 4),
                  0 if s_ == 0 else v(ACC + 16 * j, 16))
                lead = D if rn[0] < 32 else OPT.get('k4db', 6)
                if j < (2 if s_ < OPT.get('k4ramp', 12) or rn[0] >= 32 else 1) and rn[0] <= s_ + lead and rn[0] < 36:
                    ring(rn[0])
                    rn[0] += 1
                if j == 1:
                    for f_ in extra.get(s_, []):
                        f_()
                for _ in range(4):
                    if VQ:
                        VQ.pop(0)()
            if s_ == 10:
                VQ.extend(stats_ops())
        assert not VQ
        tick(k)
        wait_tags([('x',)])
        for j in range(NA):
            I('v_mfma_f32_32x32x16_bf16', v(ACC + 16 * j, 16), v(EXA + 4 * j, 4), v(EXT, 4), v(ACC + 16 * j, 16))
        assert rn[0] == 36
        for i in range(4):
            batch(3, i)
        wait_tags([('b', 6, 3)])
        k.barrier()
        tick(k)
        if grp == 0:
            for j, f in enumerate(FA):
                epi(j, f)
            wait_tags([('b', 3, 3)])
            k.barrier()
            tick(k)
            fragB()
            tick(k)
            epi(3, FB)
            I('s_branch', 'L_k4_done')
            k.label('L_k4_g1')
        else:
            fragB()
            wait_tags([('b', 3, 3)])
            k.barrier()
            tick(k)
            for j, f in enumerate(FA):
                epi(j, f)
            tick(k)
            epi(2, FB)
    k.label('L_k4_done')
    epilogue(k, 4, vtmp=4)
    return k, 256, 512, LDS


HEADER = """; adaLN_cond + sliding-window attention + GEGLU FFN block, gfx950 (MI355X).
"""


def build(gens, path):
    hdr, bodies, descs = [], [], []
    for g in gens:
        k, grid, block, lds = g()
        b, d = kernel_text(k)
        bodies.append(b)
        descs.append(d)
        hdr.append(f'; @launch kernel={k.name} grid=({grid},1,1) block=({block},1,1) lds={lds}')
        print(f'{k.name}: {k.n_ins} instr, vgpr {k.max_v + 1}, agpr {k.max_a + 1}, sgpr {k.max_s + 1}, nops {k.nops_inserted}, lds {lds}',
              file=sys.stderr)
    if OPT.get('dup'):
        d_ = OPT['dup'] - 1
        hdr.insert(d_ + 1, hdr[d_])
    out = HEADER + '\n'.join(hdr) + '\n.amdgcn_target "amdgcn-amd-amdhsa--gfx950"\n.text\n' + '\n'.join(bodies) + \
        '\n.section .rodata,"a"\n' + '\n'.join(descs)
    open(path, 'w').write(out)


if __name__ == '__main__':
    import argparse
    ap = argparse.ArgumentParser()
    ap.add_argument('-o', default='adaLN_cond__sliding_block__geglu_ffn__prompt.s')
    ap.add_argument('--stamp', action='store_true')
    ap.add_argument('-n', type=int, default=6)
    ap.add_argument('--stpol', default='sc1')
    ap.add_argument('--opt', default='')
    args = ap.parse_args()
    STAMP = args.stamp
    ST_POL = args.stpol
    for kv in args.opt.split(','):
        if kv:
            a_, b_ = kv.split('=')
            OPT[a_] = int(b_)
    allg = [gen_k0, gen_k1]
    for nm in ('gen_k2', 'gen_k3', 'gen_k4', 'gen_k5'):
        if nm in globals():
            allg.append(globals()[nm])
    build(allg[:args.n], args.o)
```

```python
import sys
import struct
import math
from asmlib import *

XN = 0x0000000
W1 = 0x0200000
W1_NB = 32 * 3072
MODP = 0x0400000
MODP_P = 3072 * 4
MODF = 0x0420000
MF_GA, MF_G2, MF_GB, MF_SB = 0, 2048, 4096, 6144
NRM = 0x0440000
TMX = 0x04C0000
QB = 0x0500000
KB = 0x0700000
VB = 0x0900000
OB = 0x0B00000
X1 = 0x0D00000
ST2 = 0x0F00000
CSP = 0x1F00000
W4 = 0x1000000
W4_NB = 33 * 7168
WO = 0x1400000
WD = 0x1500000
ACT = 0x1800000
STAMPS = 0x2000000
WS_SIZE = 0x2100000

STAMP = False
ST_POL = 'sc1'
OPT = {}


def f32bits(x):
    return struct.unpack('<I', struct.pack('<f', x))[0]


S_X, S_WQKV, S_WO, S_BX, S_WG, S_WU, S_WD, S_C = 16, 18, 20, 22, 24, 26, 28, 30
S_WMOD, S_OUT, S_DBG, S_WS = 32, 34, 36, 38
R_WS = 40


def srd(k, d, base, nbytes):
    k.I('s_mov_b32', s(d), s(base))
    k.I('s_mov_b32', s(d + 1), s(base + 1))
    k.I('s_mov_b32', s(d + 2), nbytes)
    k.I('s_mov_b32', s(d + 3), 0x20000)


def prologue(k, nwg, need_lo=True):
    I = k.I
    if STAMP:
        I('s_memrealtime', s(96, 2))
    I('s_cmp_ge_u32', 's2', nwg)
    I('s_cbranch_scc1', f'L_end_{k.name}')
    if need_lo:
        I('s_load_dwordx16', s(16, 16), s(0, 2), 0)
    I('s_load_dwordx8', s(32, 8), s(0, 2), 64)
    I('v_and_b32', 'v1', 63, 'v0')
    I('v_lshrrev_b32', 'v2', 6, 'v0')
    I('v_readfirstlane_b32', 's3', 'v2')


def xcd_map(k, mbits, dm, dn):
    I = k.I
    I('s_bfe_u32', s(dm), 's2', (2 << 16) | 1)
    I('s_lshl_b32', s(dm), s(dm), mbits)
    I('s_bfe_u32', s(dn), 's2', (mbits << 16) | 3)
    I('s_add_u32', s(dm), s(dm), s(dn))
    I('s_and_b32', s(dn), 's2', 1)
    I('s_lshl_b32', s(dn), s(dn), 5 - mbits)
    I('s_lshr_b32', 's62', 's2', 3 + mbits)
    I('s_add_u32', s(dn), s(dn), 's62')


def tick(k):
    if STAMP:
        n = getattr(k, 'nticks', 0)
        assert n < 12
        k.I('s_memrealtime', s(94, 2))
        k.I('s_memtime', s(100, 2))
        k.waitcnt(lgkm=0)
        k.I('s_mov_b32', s(70 + n), 's94')
        k.I('s_mov_b32', s(82 + n), 's100')
        k.nticks = n + 1


def epilogue(k, idx, vtmp=2):
    I = k.I
    if STAMP:
        k.flush()
        tick(k)
        k.waitcnt(vm=0, lgkm=0)
        I('s_memrealtime', s(98, 2))
        k.waitcnt(lgkm=0)
        I('s_cmp_lg_u32', 's3', 0)
        I('s_cbranch_scc1', f'L_end_{k.name}')
        I('v_mov_b32', v(vtmp), 's96')
        I('v_mov_b32', v(vtmp + 1), 's98')
        I('s_lshl_b32', 's96', 's2', 3)
        I('s_add_u32', 's96', 's96', STAMPS + idx * 4096)
        I('v_mov_b32', v(vtmp + 2), 's96')
        I('s_mov_b64', 'exec', 1)
        I('buffer_store_dwordx2', v(vtmp, 2), v(vtmp + 2), s(R_WS, 4), 0, mods='offen')
        I('s_lshl_b32', 's96', 's2', 7)
        I('s_add_u32', 's96', 's96', STAMPS + 0x10000 + idx * 0x8000)
        I('v_mov_b32', v(vtmp + 2), 's96')
        for n in range(24):
            I('v_mov_b32', v(vtmp), s(70 + n) if (n % 12) < k.nticks else 0)
            I('buffer_store_dword', v(vtmp), v(vtmp + 2), s(R_WS, 4), 0, mods=f'offen offset:{4 * n}')
    k.label(f'L_end_{k.name}')
    I('s_endpgm')


def wave_sum_to_sgpr(k, regs, sdst):
    I = k.I
    for sh in ('row_shr:1', 'row_shr:2', 'row_shr:4', 'row_shr:8'):
        for r in regs:
            I('v_add_f32', v(r), v(r), v(r), mods=f'{sh} row_mask:0xf bank_mask:0xf')
    for r in regs:
        I('v_add_f32', v(r), v(r), v(r), mods='row_bcast:15 row_mask:0xa bank_mask:0xf')
    for r in regs:
        I('v_add_f32', v(r), v(r), v(r), mods='row_bcast:31 row_mask:0xc bank_mask:0xf')
    for r, sd in zip(regs, sdst):
        I('v_readlane_b32', s(sd), v(r), 63)


def unpack8(k, dst, src):
    for j in range(4):
        k.I('v_lshlrev_b32', v(dst + 2 * j), 16, v(src + j))
        k.I('v_and_b32', v(dst + 2 * j + 1), 0xffff0000, v(src + j))


def pack8(k, dst, src):
    for j in range(4):
        k.I('v_cvt_pk_bf16_f32', v(dst + j), v(src + 2 * j), v(src + 2 * j + 1))


def gen_k0():
    k = Kernel('k0_mod_kernel')
    I = k.I
    L_A = 0
    L_W = 16384
    L_X = 24576
    L_S = 32768
    L_P = 33024
    LDS = 34048
    prologue(k, 256)
    I('s_and_b32', 's4', 's2', 7)
    I('v_lshrrev_b32', 'v2', 3, 'v1')
    I('v_and_b32', 'v3', 7, 'v1')
    I('v_lshlrev_b32', 'v3', 4, 'v3')
    I('v_mul_u32_u24', 'v4', 6144, 'v2')
    I('v_add_u32', 'v4', 'v4', 'v3')
    I('v_mul_u32_u24', 'v5', 3072, 'v2')
    I('v_add_u32', 'v5', 'v5', 'v3')
    I('v_lshlrev_b32', 'v7', 4, 'v1')
    I('s_lshl_b32', 's10', 's4', 5)
    I('s_lshr_b32', 's11', 's2', 3)
    I('s_add_u32', 's10', 's10', 's11')
    I('s_lshl_b32', 's10', 's10', 3)
    I('s_lshl_b32', 's12', 's3', 1)
    I('s_add_u32', 's12', 's10', 's12')
    I('s_lshl_b32', 's12', 's12', 10)
    I('s_min_u32', 's5', 's2', 191)
    I('s_lshr_b32', 's5', 's5', 2)
    I('s_and_b32', 's6', 's2', 3)
    I('s_lshl_b32', 's13', 's6', 7)
    I('s_lshl_b32', 's14', 's3', 5)
    I('s_add_u32', 's13', 's13', 's14')
    I('v_and_b32', 'v6', 15, 'v1')
    I('v_lshlrev_b32', 'v6', 2, 'v6')
    I('s_lshl_b32', 's15', 's13', 1)
    k.waitcnt(lgkm=0)
    tick(k)
    srd(k, R_WS, S_WS, WS_SIZE)
    srd(k, 44, S_WMOD, 512 * 6144)
    srd(k, 48, S_WQKV, 512 * 3072)
    srd(k, 52, S_X, 2048 * 1024)
    srd(k, 56, S_C, 1024)
    LOG = []
    I('buffer_load_dword', 'v8', 'v6', s(56, 4), 's15', mods='offen'); LOG.append('c')
    I('buffer_load_dwordx4', v(12, 4), 'v7', s(52, 4), 's12', mods='offen'); LOG.append('x')
    I('buffer_load_dwordx4', v(16, 4), 'v7', s(52, 4), 's12', mods='offen offset:1024'); LOG.append('x')
    I('s_mul_i32', 's7', 's13', 6144)
    I('s_lshl_b32', 's8', 's5', 7)
    I('s_add_u32', 's7', 's7', 's8')
    I('s_lshl_b32', 's8', 's3', 12)
    for j in range(4):
        I('s_add_u32', 'm0', 's8', L_A + j * 1024)
        I('s_add_u32', 's9', 's7', j * 8 * 6144)
        I('buffer_load_dwordx4', 'v4', s(44, 4), 's9', mods='offen lds'); LOG.append('g')
    I('s_min_u32', 's14', 's3', 2)
    I('s_lshl_b32', 's14', 's14', 10)
    I('s_mul_i32', 's15', 's11', 16 * 3072)
    I('s_add_u32', 's14', 's14', 's15')
    I('s_lshl_b32', 's15', 's4', 7)
    I('s_add_u32', 's14', 's14', 's15')
    I('s_lshl_b32', 's60', 's3', 11)
    for j in range(2):
        I('s_add_u32', 'm0', 's60', L_W + j * 1024)
        I('s_add_u32', 's9', 's14', j * 8 * 3072)
        I('buffer_load_dwordx4', 'v5', s(48, 4), 's9', mods='offen lds'); LOG.append('w')
    if OPT.get('k0code', 1):
        I('s_getpc_b64', s(64, 2))
        k.raw('L_k0_pc:')
        I('s_lshr_b32', 's9', 's2', 3)
        I('s_lshl_b32', 's9', 's9', 2)
        I('s_add_u32', 's9', 's9', 's3')
        I('s_lshl_b32', 's9', 's9', 13)
        I('v_lshlrev_b32', 'v21', 7, 'v1')
        I('v_add_u32', 'v21', 's9', 'v21')
        I('v_min_u32', 'v21', 'L_code_end-L_k0_pc-4', 'v21')
        I('global_load_dword', 'v27', 'v21', s(64, 2)); LOG.append('code')
    if OPT.get('k0tlb', 0):
        I('s_cmp_eq_u32', 's3', 0)
        I('s_cselect_b32', 's64', s(S_WG), s(S_WU))
        I('s_cselect_b32', 's65', s(S_WG + 1), s(S_WU + 1))
        I('s_cmp_eq_u32', 's3', 2)
        I('s_cselect_b32', 's64', s(S_WD), 's64')
        I('s_cselect_b32', 's65', s(S_WD + 1), 's65')
        I('s_cmp_eq_u32', 's3', 3)
        I('s_cselect_b32', 's64', s(S_WO), 's64')
        I('s_cselect_b32', 's65', s(S_WO + 1), 's65')
        I('s_mov_b32', 's9', 1792 * 1024)
        I('s_cselect_b32', 's66', 512 * 1024, 's9')
        I('s_cmp_lt_u32', 's2', 16)
        I('s_cselect_b32', 's66', 's66', 0)
        I('s_mov_b32', 's67', 0x20000)
        I('v_lshlrev_b32', 'v21', 15, 'v1')
        I('buffer_load_dword', 'v27', 'v21', s(64, 4), 0, mods='offen'); LOG.append('tlb')
    tick(k)

    def wait_for(tag):
        last = max(i for i, e in enumerate(LOG) if e == tag)
        k.waitcnt(vm=len(LOG) - 1 - last)
    I('v_lshrrev_b32', 'v2', 4, 'v1')
    I('v_bfe_u32', 'v3', 'v1', 2, 2)
    I('v_and_b32', 'v9', 3, 'v1')
    I('v_lshl_add_u32', 'v20', 'v2', 3, 'v3')
    I('v_lshlrev_b32', 'v20', 7, 'v20')
    I('v_lshl_add_u32', 'v20', 'v9', 3, 'v20')
    I('v_add_u32', 'v20', 's8', 'v20')
    I('s_lshl_b32', 's9', 's3', 6)
    I('s_add_u32', 's9', 's9', L_S)
    I('v_lshl_add_u32', 'v22', 'v2', 4, 's9')
    I('v_add_u32', 'v23', 's9', 'v6')
    I('v_lshrrev_b32', 'v24', 5, 'v1')
    I('v_lshl_add_u32', 'v25', 'v24', 3, 'v3')
    I('v_lshlrev_b32', 'v25', 7, 'v25')
    I('v_bfe_u32', 'v26', 'v1', 4, 1)
    I('v_lshl_add_u32', 'v25', 'v26', 5, 'v25')
    I('v_lshl_add_u32', 'v25', 'v9', 3, 'v25')
    I('s_add_u32', 's9', 's60', L_W)
    I('v_add_u32', 'v25', 's9', 'v25')
    wait_for('c')
    I('v_lshlrev_b32', 'v9', 16, 'v8')
    I('v_and_b32', 'v10', 0xffff0000, 'v8')
    I('s_mov_b32', 's14', f32bits(-1.4426950408889634))
    for r, t_ in ((9, 28), (10, 29)):
        I('v_mul_f32', v(t_), 's14', v(r))
    for t_ in (28, 29):
        I('v_exp_f32', v(t_), v(t_))
    for t_ in (28, 29):
        I('v_add_f32', v(t_), 1.0, v(t_))
    for t_ in (28, 29):
        I('v_rcp_f32', v(t_), v(t_))
    for r, t_ in ((9, 28), (10, 29)):
        I('v_mul_f32', v(r), v(r), v(t_))
    I('v_cvt_pk_bf16_f32', 'v9', 'v9', 'v10')
    I('ds_write_b32', 'v23', 'v9')
    wait_for('x')
    tick(k)
    unpack8(k, 64, 12)
    unpack8(k, 72, 16)
    k.waitcnt(lgkm=0)
    I('ds_read_b128', v(48, 4), 'v22')
    for b, t_ in ((64, 40), (72, 41)):
        I('v_add_f32', v(t_), v(b), v(b + 1))
        for j in range(2, 8):
            I('v_add_f32', v(t_), v(t_), v(b + j))
    wave_sum_to_sgpr(k, [40, 41], [62, 63])
    I('s_mov_b32', 's14', f32bits(1.0 / 512))
    for t_, sd in ((40, 62), (41, 63)):
        I('v_mov_b32', v(t_), s(sd))
        I('v_mul_f32', v(t_), 's14', v(t_))
    for b, t_ in ((64, 40), (72, 41)):
        for j in range(8):
            I('v_sub_f32', v(b + j), v(b + j), v(t_))
    for b, t_ in ((64, 42), (72, 43)):
        I('v_mul_f32', v(t_), v(b), v(b))
        for j in range(1, 8):
            I('v_fmac_f32', v(t_), v(b + j), v(b + j))
    wave_sum_to_sgpr(k, [42, 43], [62, 63])
    I('s_mov_b32', 's15', f32bits(1e-5))
    for t_, sd in ((42, 62), (43, 63)):
        I('v_mov_b32', v(t_), s(sd))
        I('v_mov_b32', v(44), 's15')
        I('v_fma_f32', v(t_), v(t_), 's14', v(44))
        I('v_rsq_f32', v(t_), v(t_))
    for b, t_ in ((64, 42), (72, 43)):
        for j in range(8):
            I('v_mul_f32', v(b + j), v(b + j), v(t_))
    pack8(k, 12, 64)
    pack8(k, 16, 72)
    I('v_lshlrev_b32', 'v11', 7, 'v1')
    I('s_lshl_b32', 's9', 's3', 5)
    I('s_add_u32', 's9', 's9', L_X)
    I('v_add_u32', 'v11', 's9', 'v11')
    I('ds_write_b128', 'v11', v(12, 4))
    I('ds_write_b128', 'v11', v(16, 4), mods='offset:16')
    wait_for('g')
    tick(k)
    for cg in range(4):
        I('ds_read_b64_tr_b16', v(80 + 4 * cg, 2), 'v20', mods=f'offset:{cg * 32}')
        I('ds_read_b64_tr_b16', v(82 + 4 * cg, 2), 'v20', mods=f'offset:{cg * 32 + 512}')
    for cg in range(4):
        k.waitcnt(lgkm=6 - 2 * cg)
        I('v_mfma_f32_16x16x32_bf16', v(100 + 4 * cg, 4), v(48, 4), v(80 + 4 * cg, 4), 0)
    wait_for('w')
    for u in range(2):
        I('ds_read_b64_tr_b16', v(52 + 4 * u, 2), 'v25', mods=f'offset:{u * 64}')
        I('ds_read_b64_tr_b16', v(54 + 4 * u, 2), 'v25', mods=f'offset:{u * 64 + 512}')
    I('s_lshl_b32', 's9', 's3', 8)
    I('s_add_u32', 's9', 's9', L_P)
    I('v_add_u32', 'v28', 's9', 'v6')
    for cg in range(4):
        I('ds_write_b32', 'v28', v(100 + 4 * cg), mods=f'offset:{cg * 64}')
    I('s_mul_i32', 's9', 's4', 2 * W1_NB)
    I('s_mul_i32', 's14', 's11', 3072)
    I('s_add_u32', 's9', 's9', 's14')
    I('s_lshl_b32', 's14', 's3', 10)
    I('s_add_u32', 's9', 's9', 's14')
    I('s_add_u32', 's9', 's9', W1)
    I('s_add_u32', 's14', 's9', W1_NB)
    k.waitcnt(lgkm=0)
    I('s_cmp_eq_u32', 's3', 3)
    I('s_cbranch_scc1', 'L_k0_now')
    I('buffer_store_dwordx4', v(52, 4), 'v7', s(R_WS, 4), 's9', mods=f'offen {ST_POL}')
    I('buffer_store_dwordx4', v(56, 4), 'v7', s(R_WS, 4), 's14', mods=f'offen {ST_POL}')
    k.label('L_k0_now')
    tick(k)
    k.barrier()
    tick(k)
    I('s_add_u32', 's9', 's60', L_X)
    I('v_add_u32', 'v11', 's9', 'v7')
    I('ds_read_b128', v(12, 4), 'v11')
    I('ds_read_b128', v(16, 4), 'v11', mods='offset:1024')
    I('v_lshlrev_b32', 'v29', 2, 'v1')
    for w in range(4):
        I('ds_read_b32', v(30 + w), 'v29', mods=f'offset:{L_P + w * 256}')
    I('s_lshr_b32', 's12', 's10', 5)
    I('s_lshl_b32', 's12', 's12', 15)
    I('s_and_b32', 's14', 's10', 31)
    I('s_lshl_b32', 's14', 's14', 4)
    I('s_add_u32', 's12', 's12', 's14')
    I('s_lshl_b32', 's14', 's3', 13)
    I('s_add_u32', 's12', 's12', 's14')
    I('s_add_u32', 's12', 's12', XN)
    I('s_add_u32', 's14', 's12', 4096)
    I('v_lshrrev_b32', 'v11', 3, 'v1')
    I('v_lshlrev_b32', 'v11', 9, 'v11')
    I('v_and_b32', 'v10', 7, 'v1')
    I('v_lshl_add_u32', 'v11', 'v10', 4, 'v11')
    k.waitcnt(lgkm=4)
    I('buffer_store_dwordx4', v(12, 4), 'v11', s(R_WS, 4), 's12', mods=f'offen {ST_POL}')
    I('buffer_store_dwordx4', v(16, 4), 'v11', s(R_WS, 4), 's14', mods=f'offen {ST_POL}')
    I('s_cmp_lg_u32', 's3', 3)
    I('s_cbranch_scc1', 'L_k0_done')
    I('s_cmp_ge_u32', 's2', 192)
    I('s_cbranch_scc1', 'L_k0_done')
    k.waitcnt(lgkm=0)
    I('v_add_f32', 'v30', 'v30', 'v31')
    I('v_add_f32', 'v32', 'v32', 'v33')
    I('v_add_f32', 'v30', 'v30', 'v32')
    I('s_mul_i32', 's9', 's6', MODP_P)
    I('s_lshl_b32', 's14', 's5', 8)
    I('s_add_u32', 's9', 's9', 's14')
    I('s_add_u32', 's9', 's9', MODP)
    I('buffer_store_dword', 'v30', 'v29', s(R_WS, 4), 's9', mods='offen')
    k.label('L_k0_done')
    epilogue(k, 0)
    return k, 256, 256, LDS


QSCALE = 0.25 * 1.4426950408889634


def gen_k1():
    k = Kernel('k1_qkv_kernel')
    I = k.I
    L_G = 98304
    L_E = L_G + 4096
    L_PF = L_E + 49152
    LDS = L_PF + 8192
    prologue(k, 256, need_lo=True)
    xcd_map(k, 2, 4, 5)
    I('s_and_b32', 's61', 's3', 3)
    I('s_lshr_b32', 's63', 's3', 2)
    I('s_lshl_b32', 's6', 's4', 2)
    I('s_add_u32', 's6', 's6', 's61')
    I('v_lshlrev_b32', 'v2', 4, 'v1')
    I('v_lshlrev_b32', 'v4', 3, 'v0')
    I('s_lshl_b32', 's8', 's63', 4)
    I('s_add_u32', 's8', 's8', 's61')
    I('s_mul_i32', 's8', 's8', 3072)
    I('s_mul_i32', 's7', 's5', W1_NB)
    I('s_add_u32', 's7', 's7', 's8')
    I('s_add_u32', 's7', 's7', W1)
    I('s_lshl_b32', 's9', 's6', 15)
    I('s_lshl_b32', 's10', 's63', 14)
    I('s_add_u32', 's9', 's9', 's10')
    I('s_add_u32', 's9', 's9', XN)
    k.waitcnt(lgkm=0)
    tick(k)
    srd(k, R_WS, S_WS, WS_SIZE)
    ACC = 16
    TOK = 64
    WF = 128
    GS = 152
    TM = 184
    LOG = []
    FILL = []
    SJ = 192
    I('s_cmp_ge_u32', 's2', 4)
    I('s_cbranch_scc1', 'L_k1_nosj')
    I('s_lshl_b32', 's10', 's2', 11)
    I('s_add_u32', 's10', 's10', MODP + 4096)
    I('v_lshlrev_b32', 'v3', 2, 'v0')
    for p in range(4):
        I('s_add_u32', 's11', 's10', p * MODP_P)
        I('buffer_load_dword', v(SJ + p), 'v3', s(R_WS, 4), 's11', mods='offen')
    k.label('L_k1_nosj')
    for p in range(4):
        I('s_mov_b32', 's10', MODP + p * MODP_P)
        I('buffer_load_dwordx2', v(ACC + 2 * p, 2), 'v4', s(R_WS, 4), 's10', mods='offen')
        LOG.append('m')

    def w_op(c, q):
        def f():
            if q == 0:
                I('s_add_u32', 's10', 's7', c * 12288)
            I('s_add_u32', 'm0', 's8', c * 12288)
            I('buffer_load_dwordx4', 'v2', s(R_WS, 4), 's10', mods=f'offen offset:{q * 1024} lds')
            LOG.append(('w', c))
        return f

    def t_op(i):
        def f():
            if i % 4 == 0:
                I('s_add_u32', 's11', 's9', i * 1024)
            I('buffer_load_dwordx4', v(TOK + 4 * i, 4), 'v2', s(R_WS, 4), 's11', mods=f'offen offset:{(i % 4) * 1024}')
            LOG.append(('t', i))
        return f
    for c in range(4):
        FILL += [w_op(c, q) for q in range(3)] + [t_op(4 * c + q) for q in range(4)]

    def pf_op(ptr, nbytes):
        def f():
            srd(k, 44, ptr, nbytes)
            I('s_lshl_b32', 's12', 's2', 13)
            I('s_lshl_b32', 's13', 's3', 10)
            I('s_add_u32', 's12', 's12', 's13')
            I('s_add_u32', 'm0', 's13', L_PF)
            I('buffer_load_dwordx4', 'v2', s(44, 4), 's12', mods='offen lds')
            LOG.append(('pf',))
        return f
    if OPT.get('k1pf', 0):
        FILL += [pf_op(S_WG, 512 * 3584), pf_op(S_WU, 512 * 3584), pf_op(S_WD, 1792 * 1024), pf_op(S_WO, 512 * 1024)]
    for _ in range(OPT.get('k1pre', 5)):
        FILL.pop(0)()
    I('s_mul_i32', 's10', 's63', 16 * 3072)
    I('v_add_u32', 'v3', 's10', 'v2')
    I('v_lshrrev_b32', 'v5', 5, 'v1')
    I('v_lshlrev_b32', 'v5', 5, 'v5')
    I('s_lshl_b32', 's10', 's63', 10)
    I('s_add_u32', 's10', 's10', L_G)
    I('v_add_u32', 'v5', 's10', 'v5')
    I('v_add_u32', 'v6', L_G, 'v4')
    k.waitcnt(vm=len(LOG) - 4)
    for e in range(2):
        I('v_add_f32', v(ACC + e), v(ACC + e), v(ACC + 2 + e))
        I('v_add_f32', v(ACC + 4 + e), v(ACC + 4 + e), v(ACC + 6 + e))
    for e in range(2):
        I('v_add_f32', v(ACC + e), v(ACC + e), v(ACC + 4 + e))
    I('v_cvt_pk_bf16_f32', v(ACC + 2), v(ACC), v(ACC + 1))
    I('v_lshlrev_b32', v(ACC), 16, v(ACC + 2))
    I('v_and_b32', v(ACC + 1), 0xffff0000, v(ACC + 2))
    I('s_cmp_eq_u32', 's63', 0)
    I('s_cbranch_scc1', 'L_k1_issa')
    for e in range(2):
        I('v_add_f32', v(ACC + e), 1.0, v(ACC + e))
    I('v_cvt_pk_bf16_f32', v(ACC + 2), v(ACC), v(ACC + 1))
    I('v_lshlrev_b32', v(ACC), 16, v(ACC + 2))
    I('v_and_b32', v(ACC + 1), 0xffff0000, v(ACC + 2))
    k.label('L_k1_issa')
    I('ds_write_b64', 'v6', v(ACC, 2))
    for _ in range(OPT.get('k1pre2', 5)):
        FILL.pop(0)()
    k.waitcnt(lgkm=0)

    def rdw(i):
        st = WF + 12 * (i & 1)
        for f in range(3):
            I('ds_read_b128', v(st + 4 * f, 4), 'v3', mods=f'offset:{i * 3072 + f * 1024}')

    def rdg(i):
        g = GS + 16 * (i & 1)
        for q in range(2):
            I('ds_read_b128', v(g + 4 * q, 4), 'v5', mods=f'offset:{i * 64 + 16 * q}')
        for q in range(2):
            I('ds_read_b128', v(g + 8 + 4 * q, 4), 'v5', mods=f'offset:{2048 + i * 64 + 16 * q}')

    def mod_ops(i):
        g = GS + 16 * (i & 1)
        tk = TOK + 4 * i
        L = []
        A_ = lambda *a_, **kw: L.append(lambda: I(*a_, **kw))
        for j in range(4):
            A_('v_lshlrev_b32', v(TM + 2 * j), 16, v(tk + j))
            A_('v_and_b32', v(TM + 2 * j + 1), 0xffff0000, v(tk + j))
        if OPT.get('k1pk', 0):
            for j in range(4):
                A_('v_pk_fma_f32', v(TM + 2 * j, 2), v(TM + 2 * j, 2), v(g + 8 + 2 * j, 2), v(g + 2 * j, 2))
        else:
            for j in range(8):
                A_('v_fma_f32', v(TM + j), v(TM + j), v(g + 8 + j), v(g + j))
        for j in range(4):
            A_('v_cvt_pk_bf16_f32', v(tk + j), v(TM + 2 * j), v(TM + 2 * j + 1))
        return L

    def need(tags):
        for tg in tags:
            while tg not in LOG or (tg[0] == 'w' and LOG.count(tg) < 3):
                FILL.pop(0)()
        last = max(i for i, e in enumerate(LOG) if e in tags)
        k.waitcnt(vm=len(LOG) - 1 - last)
    need([('w', 0), ('t', 0)])
    k.barrier()
    tick(k)
    rdw(0)
    rdg(0)
    rdg(1)
    k.waitcnt(lgkm=4)
    for f in mod_ops(0):
        f()
    NSTEP = 16
    for i in range(NSTEP):
        nxt = i + 1
        VQ = []
        if nxt < NSTEP:
            if nxt % 4 == 0:
                need([('w', nxt // 4), ('t', nxt)])
                k.barrier()
                tick(k)
            else:
                need([('t', nxt)])
            rdw(nxt)
            if i + 2 < NSTEP:
                rdg(i + 2)
                k.waitcnt(lgkm=7)
            else:
                k.waitcnt(lgkm=3)
            VQ = mod_ops(nxt)
        else:
            k.waitcnt(lgkm=0)
        st = WF + 12 * (i & 1)
        tok = v(TOK + 4 * i, 4)
        n3 = (len(VQ) + 2) // 3
        for f in range(3):
            c = 0 if i == 0 else v(ACC + 16 * f, 16)
            if f < 2:
                I('v_mfma_f32_32x32x16_bf16', v(ACC + 16 * f, 16), v(st + 4 * f, 4), tok, c)
            else:
                I('v_mfma_f32_32x32x16_bf16', v(ACC + 16 * f, 16), tok, v(st + 4 * f, 4), c)
            for _ in range(OPT.get('k1rate', 1) if f < 2 else OPT.get('k1rate', 1) - 1):
                if FILL:
                    FILL.pop(0)()
            for _ in range(n3):
                if VQ:
                    VQ.pop(0)()
    assert not FILL
    tick(k)
    I('s_mul_i32', 's10', 's3', 6144)
    I('s_add_u32', 's10', 's10', L_E)
    I('v_add_u32', 'v6', 's10', 'v2')
    I('s_xor_b32', 's11', 's3', 4)
    I('s_mul_i32', 's11', 's11', 6144)
    I('s_add_u32', 's11', 's11', L_E)
    I('v_add_u32', 'v7', 's11', 'v2')
    I('s_lshl_b32', 's11', 's5', 17)
    I('s_lshl_b32', 's12', 's6', 10)
    I('s_add_u32', 's11', 's11', 's12')
    I('s_mul_i32', 's12', 's63', KB - QB)
    I('s_add_u32', 's12', 's12', 's11')
    I('s_add_u32', 's12', 's12', QB)
    I('s_add_u32', 's13', 's12', 65536)
    I('s_lshl_b32', 's14', 's63', 9)
    I('s_add_u32', 's14', 's14', 's11')
    I('s_add_u32', 's14', 's14', VB)
    I('v_bfe_u32', 'v4', 'v1', 4, 1)
    I('v_lshlrev_b32', 'v4', 16, 'v4')
    I('v_lshrrev_b32', 'v5', 5, 'v1')
    I('v_lshl_add_u32', 'v4', 'v5', 8, 'v4')
    I('v_and_b32', 'v5', 15, 'v1')
    I('v_lshl_add_u32', 'v4', 'v5', 4, 'v4')
    k.flush()
    KEEP = TOK
    I('s_cmp_eq_u32', 's63', 0)
    I('s_cbranch_scc0', 'L_k1_x1')
    for kh in range(2):
        keep = [ACC + 16 * kh + r for r in range(16)] + [ACC + 32 + 8 * kh + r for r in range(8)]
        send = [ACC + 16 * (1 - kh) + 4 * j for j in range(4)] + [ACC + 32 + 8 * (1 - kh) + 4 * j for j in range(2)]
        for j, r in enumerate(send):
            I('ds_write_b128', 'v6', v(r, 4), mods=f'offset:{j * 1024}')
        if kh == 0:
            I('s_mov_b32', 's15', f32bits(QSCALE))
        else:
            I('s_mov_b32', 's15', f32bits(1.0))
        for j, r in enumerate(keep):
            I('v_mov_b32', v(KEEP + j), v(r))
        if kh == 0:
            I('s_branch', 'L_k1_x2')
            k.label('L_k1_x1')
    k.label('L_k1_x2')
    k.waitcnt(lgkm=0)
    k.barrier()
    for j in range(6):
        I('ds_read_b128', v(ACC + 4 * j, 4), 'v7', mods=f'offset:{j * 1024}')
    P = WF
    dst = [('v2', 's12'), ('v2', 's13'), ('v4', 's14')]
    for g in range(3):
        k.waitcnt(lgkm=4 - 2 * g)
        for r in range(8):
            I('v_add_f32', v(KEEP + 8 * g + r), v(KEEP + 8 * g + r), v(ACC + 8 * g + r))
        if g < 2:
            for r in range(8):
                I('v_mul_f32', v(KEEP + 8 * g + r), 's15', v(KEEP + 8 * g + r))
        pack8(k, P + 4 * g, KEEP + 8 * g)
        I('buffer_store_dwordx4', v(P + 4 * g, 4), dst[g][0], s(R_WS, 4), dst[g][1], mods=f'offen {ST_POL}')
    for g in range(2):
        I('v_dot2_f32_bf16', v(8 + g), v(P + 4 * g), v(P + 4 * g), 0)
        I('v_dot2_f32_bf16', v(10 + g), v(P + 4 * g + 1), v(P + 4 * g + 1), 0)
    for g in range(2):
        I('v_dot2_f32_bf16', v(8 + g), v(P + 4 * g + 2), v(P + 4 * g + 2), v(8 + g))
        I('v_dot2_f32_bf16', v(10 + g), v(P + 4 * g + 3), v(P + 4 * g + 3), v(10 + g))
    for g in range(2):
        I('v_add_f32', v(8 + g), v(8 + g), v(10 + g))
    I('v_permlane32_swap_b32', 'v8', 'v9')
    I('v_add_f32', 'v8', 'v8', 'v9')
    I('v_mov_b32', 'v9', 'v8')
    for sh in ('row_shr:1', 'row_shr:2', 'row_shr:4', 'row_shr:8'):
        I('v_max_f32', 'v9', 'v9', 'v9', mods=f'{sh} row_mask:0xf bank_mask:0xf')
    I('v_max_f32', 'v9', 'v9', 'v9', mods='row_bcast:15 row_mask:0xa bank_mask:0xf')
    I('s_lshl_b32', 's10', 's63', 18)
    I('s_lshl_b32', 's11', 's5', 14)
    I('s_add_u32', 's10', 's10', 's11')
    I('s_lshl_b32', 's11', 's6', 7)
    I('s_add_u32', 's10', 's10', 's11')
    I('s_add_u32', 's10', 's10', NRM)
    I('v_lshrrev_b32', 'v10', 5, 'v1')
    I('v_lshlrev_b32', 'v11', 13, 'v10')
    I('v_and_b32', 'v12', 31, 'v1')
    I('v_lshl_add_u32', 'v11', 'v12', 2, 'v11')
    I('buffer_store_dword', 'v8', 'v11', s(R_WS, 4), 's10', mods='offen')
    I('s_lshl_b32', 's10', 's63', 13)
    I('s_lshl_b32', 's11', 's5', 9)
    I('s_add_u32', 's10', 's10', 's11')
    I('s_lshl_b32', 's11', 's6', 2)
    I('s_add_u32', 's10', 's10', 's11')
    I('s_add_u32', 's10', 's10', TMX)
    I('v_lshlrev_b32', 'v11', 8, 'v10')
    I('s_mov_b32', 'exec_lo', 0x80000000)
    I('s_mov_b32', 'exec_hi', 0x80000000)
    I('buffer_store_dword', 'v9', 'v11', s(R_WS, 4), 's10', mods='offen')
    I('s_mov_b64', 'exec', -1)
    I('s_cmp_ge_u32', 's2', 4)
    I('s_cbranch_scc1', 'L_k1_nomod')
    I('v_lshlrev_b32', 'v3', 2, 'v0')
    I('v_add_f32', 'v16', v(SJ), v(SJ + 1))
    I('v_add_f32', 'v18', v(SJ + 2), v(SJ + 3))
    I('v_add_f32', 'v16', 'v16', 'v18')
    I('v_cvt_pk_bf16_f32', 'v17', 'v16', 'v16')
    I('v_and_b32', 'v18', 0xffff0000, 'v17')
    I('v_add_f32', 'v19', 1.0, 'v18')
    I('v_cvt_pk_bf16_f32', 'v19', 'v19', 'v19')
    I('v_and_b32', 'v19', 0xffff0000, 'v19')
    I('s_cmp_eq_u32', 's2', 1)
    I('s_cbranch_scc1', 'L_k1_sb')
    I('s_mov_b32', 's13', MF_GB)
    I('s_cmp_eq_u32', 's2', 2)
    I('s_cselect_b64', 'vcc', -1, 0)
    I('v_cndmask_b32', 'v18', 'v18', 'v19', 'vcc')
    I('s_cselect_b32', 's13', MF_G2, 's13')
    I('s_cmp_eq_u32', 's2', 0)
    I('s_cselect_b32', 's13', MF_GA, 's13')
    I('s_add_u32', 's13', 's13', MODF)
    I('buffer_store_dword', 'v18', 'v3', s(R_WS, 4), 's13', mods='offen')
    I('s_branch', 'L_k1_nomod')
    k.label('L_k1_sb')
    I('s_mov_b32', 's13', MODF + MF_SB)
    I('v_lshlrev_b32', 'v3', 1, 'v0')
    I('buffer_store_short', 'v17', 'v3', s(R_WS, 4), 's13', mods='offen')
    k.label('L_k1_nomod')
    epilogue(k, 1, vtmp=4)
    return k, 256, 512, LDS


BIG = 1e30


def gen_k2():
    k = Kernel('k2_attn_kernel')
    I = k.I
    L_K, L_V, L_SIDE = 0, 16384, 32768
    LDS = L_SIDE + 32768
    Q, KF, VF, SB_, PB, OA, NM, MK = 16, 20, 56, 128, 176, 192, 208, 224
    MX = 244
    G2R, SBR = 80, 88
    Vb = lambda t: VF + 8 * (t % 3)
    prologue(k, 256)
    xcd_map(k, 1, 5, 4)
    I('s_lshl_b32', 's6', 's5', 3)
    I('s_add_u32', 's6', 's6', 's3')
    I('v_lshlrev_b32', 'v2', 4, 'v1')
    I('s_lshl_b32', 's9', 's4', 16)
    I('s_lshl_b32', 's10', 's6', 10)
    I('s_add_u32', 's10', 's10', 's9')
    I('s_add_u32', 's10', 's10', QB)
    I('s_lshl_b32', 's8', 's3', 11)
    I('v_lshrrev_b32', 'v3', 5, 'v1')
    I('v_bfe_u32', 'v4', 'v1', 4, 1)
    I('v_bfe_u32', 'v5', 'v1', 2, 2)
    I('v_and_b32', 'v6', 1, 'v1')
    I('v_bfe_u32', 'v7', 'v1', 1, 1)
    I('v_lshl_add_u32', 'v6', 'v6', 1, 'v7')
    I('v_lshlrev_b32', 'v13', 8, 'v3')
    I('v_and_b32', 'v14', 15, 'v1')
    I('v_lshl_add_u32', 'v13', 'v14', 4, 'v13')
    I('v_and_b32', 'v12', 31, 'v1')
    I('v_lshlrev_b32', 'v12', 2, 'v12')
    I('v_lshlrev_b32', 'v14', 5, 'v3')
    I('v_lshlrev_b32', 'v15', 4, 'v3')
    I('s_and_b32', 's12', 's3', 3)
    I('s_mul_i32', 's13', 's2', 3)
    I('s_add_u32', 's13', 's13', 's12')
    I('s_lshr_b32', 's15', 's2', 1)
    I('s_add_u32', 's15', 's15', 768)
    I('s_cmp_eq_u32', 's3', 3)
    I('s_cselect_b32', 's57', 's15', 's13')
    I('s_and_b32', 's15', 's2', 1)
    I('s_lshr_b32', 's13', 's3', 2)
    I('s_cmp_eq_u32', 's3', 3)
    I('s_cselect_b32', 's64', 's15', 's13')
    I('s_cmp_eq_u32', 's3', 7)
    I('s_cselect_b32', 's57', 's2', 's57')
    I('s_mul_i32', 's66', 's57', 2341)
    I('s_lshr_b32', 's66', 's66', 16)
    I('s_min_u32', 's66', 's66', 31)
    I('s_mul_i32', 's65', 's66', 28)
    I('s_sub_u32', 's65', 's57', 's65')
    I('s_lshl_b32', 's67', 's66', 6)
    I('s_add_u32', 's67', 's67', MODF + MF_G2)
    I('s_lshl_b32', 's68', 's66', 5)
    I('s_add_u32', 's68', 's68', MODF + MF_SB)
    I('s_lshl_b32', 's11', 's4', 13)
    I('s_lshl_b32', 's12', 's6', 7)
    I('s_add_u32', 's11', 's11', 's12')
    I('s_add_u32', 's11', 's11', NRM)
    I('s_lshl_b32', 's12', 's4', 8)
    I('s_lshl_b32', 's13', 's6', 2)
    I('s_add_u32', 's12', 's12', 's13')
    I('s_add_u32', 's12', 's12', TMX + 8192 - 32)
    I('s_sub_i32', 's14', 8, 's6')
    I('s_max_i32', 's14', 's14', 0)
    I('s_mov_b32', 's58', 0xffff)
    I('s_mov_b32', 's59', 0xffff)
    k.waitcnt(lgkm=0)
    tick(k)
    srd(k, R_WS, S_WS, WS_SIZE)
    I('s_buffer_load_dwordx8', s(48, 8), s(R_WS, 4), 's12')
    I('s_add_u32', 's12', 's12', 32)
    I('s_buffer_load_dword', 's56', s(R_WS, 4), 's12')
    Sb = lambda t: SB_ + 16 * (t % 3)

    def qk(t, C):
        I('v_mfma_f32_32x32x16_bf16', v(Sb(t), 16), v(KF + 4 * t, 4), v(Q, 4), C)

    def consts():
        I('v_and_b32', 'v10', 31, 'v1')
        I('v_lshlrev_b32', 'v11', 2, 'v3')
        I('v_sub_u32', 'v10', 'v10', 'v11')
        I('v_mov_b32', 'v11', f32bits(-BIG))
        for r in range(0, 16, 2):
            for q in range(2):
                kk = ((r + q) & 3) + 8 * ((r + q) >> 2)
                I('v_cmp_le_i32', s(60 + 2 * q, 2), kk, 'v10')
            for q in range(2):
                I('v_cndmask_b32', v(MK + r + q), 'v11', 0, s(60 + 2 * q, 2))

    def rdv(t):
        I('s_mov_b64', 'exec', s(58, 2))
        for j in range(2):
            I('ds_read_b128', v(Vb(t) + 4 * j, 4), 'v247', mods=f'offset:{L_V + t * 1024 + j * 512}')
        I('s_mov_b64', 'exec', -1)

    def lds_reads():
        for t in range(8, -1, -1):
            I('ds_read_b128', v(KF + 4 * t, 4), 'v246', mods=f'offset:{L_K + t * 1024}')

    def attn(tag, exact):
        rdv(8)
        rdv(7)
        if exact:
            qk(8, v(MK, 16))
            qk(7, 0)
            for t in range(8, -1, -1):
                if t - 2 > 0:
                    qk(t - 2, 0)
                elif t - 2 == 0:
                    for r in range(16):
                        I('v_sub_f32', v(Sb(0) + r), 'v11', v(MK + r))
                    qk(0, v(Sb(0), 16))
                b = Sb(t)
                if t == 8:
                    I('v_max3_f32', v(MX), v(b), v(b + 1), v(b + 2))
                    I('v_max3_f32', v(MX + 1), v(b + 3), v(b + 4), v(b + 5))
                    rest = list(range(6, 16))
                else:
                    rest = list(range(16))
                for i in range(0, len(rest), 2):
                    m = MX + ((i // 2) & 1)
                    I('v_max3_f32', v(m), v(m), v(b + rest[i]), v(b + rest[i + 1]))
                if t > 0:
                    I('s_cmp_eq_u32', 's14', t)
                    I('s_cbranch_scc1', f'L_k2_p1{tag}')
            k.label(f'L_k2_p1{tag}')
            k.nop(12)
            I('v_max_f32', v(MX), v(MX), v(MX + 1))
            I('v_mov_b32', v(MX + 1), v(MX))
            I('v_permlane32_swap_b32', v(MX), v(MX + 1))
            I('v_max_f32', v(MX), v(MX), v(MX + 1))
            for r in range(16):
                I('v_sub_f32', v(NM + r), 0, v(MX))
            for r in range(16):
                I('v_add_f32', v(Sb(8) + r), v(MK + r), v(NM))
        else:
            k.waitcnt(lgkm=11)
        qk(8, v(Sb(8), 16))
        qk(7, v(NM, 16))
        if not exact:
            k.waitcnt(lgkm=4)
        qk(6, v(NM, 16))
        for t in range(8, -1, -1):
            b = Sb(t)
            P = PB + 8 * (t & 1)
            E = lambda r: I('v_exp_f32', v(b + r), v(b + r))
            C = lambda j: I('v_cvt_pk_bf16_f32', v(P + j), v(b + 2 * j), v(b + 2 * j + 1))
            if t - 2 >= 0:
                rdv(t - 2)
            for r in range(9):
                E(r)
            for j in range(4):
                C(j)
                E(9 + j)
            E(13)
            k.waitcnt(lgkm=4 if t - 2 >= 0 else (2 if t == 1 else 0))
            I('v_mfma_f32_32x32x16_bf16', v(OA, 16), v(Vb(t), 4), v(P, 4), 0 if t == 8 else v(OA, 16))
            E(14)
            E(15)
            for j in range(4, 8):
                C(j)
            if t - 3 > 0:
                qk(t - 3, v(NM, 16))
            elif t - 3 == 0:
                for r in range(16):
                    I('v_sub_f32', v(Sb(0) + r), 'v11', v(MK + r))
                for r in range(16):
                    I('v_add_f32', v(Sb(0) + r), v(Sb(0) + r), v(NM))
                qk(0, v(Sb(0), 16))
            if t > 0:
                I('s_cmp_eq_u32', 's14', t)
            I('v_mfma_f32_32x32x16_bf16', v(OA, 16), v(Vb(t) + 4, 4), v(P + 4, 4), v(OA, 16))
            if t > 0:
                I('s_cbranch_scc1', f'L_k2_p2{tag}')
        k.label(f'L_k2_p2{tag}')
        k.nop(12)
        k.waitcnt(lgkm=0)

    def side_loads():
        I('v_lshrrev_b32', 'v8', 3, 'v1')
        I('v_and_b32', 'v9', 7, 'v1')
        I('v_lshlrev_b32', 'v9', 4, 'v9')
        I('v_lshl_add_u32', 'v248', 'v8', 10, 'v9')
        I('v_mul_u32_u24', 'v8', 3584, 'v8')
        I('v_add_u32', 'v8', 'v8', 'v9')
        I('s_lshl_b32', 's69', 's3', 12)
        I('s_add_u32', 's69', 's69', L_SIDE)
        I('s_cmp_eq_u32', 's64', 0)
        I('s_cbranch_scc0', 'L_k2_sl1')
        I('s_mul_i32', 's15', 's66', 16 * 3584)
        I('s_lshl_b32', 's60', 's65', 7)
        I('s_add_u32', 's15', 's15', 's60')
        I('s_add_u32', 's60', 's15', 8 * 3584)
        for m_, ptr in enumerate((S_WG, S_WU)):
            srd(k, 44, ptr, 512 * 3584)
            I('s_add_u32', 'm0', 's69', m_ * 2048)
            I('buffer_load_dwordx4', 'v8', s(44, 4), 's15', mods='offen lds')
            I('s_add_u32', 'm0', 's69', m_ * 2048 + 1024)
            I('buffer_load_dwordx4', 'v8', s(44, 4), 's60', mods='offen lds')
        I('s_branch', 'L_k2_sl2')
        k.label('L_k2_sl1')
        I('s_cmp_eq_u32', 's3', 7)
        I('s_cselect_b32', 's44', s(S_WO), s(S_WD))
        I('s_cselect_b32', 's45', s(S_WO + 1), s(S_WD + 1))
        I('s_mov_b32', 's13', 1792 * 1024)
        I('s_cselect_b32', 's46', 512 * 1024, 's13')
        I('s_mov_b32', 's47', 0x20000)
        I('s_lshr_b32', 's12', 's57', 3)
        I('s_lshl_b32', 's12', 's12', 14)
        I('s_and_b32', 's13', 's57', 7)
        I('s_lshl_b32', 's13', 's13', 7)
        I('s_add_u32', 's12', 's12', 's13')
        I('s_mov_b32', 'm0', 's69')
        I('buffer_load_dwordx4', 'v248', s(44, 4), 's12', mods='offen lds')
        I('s_add_u32', 'm0', 's69', 1024)
        I('s_add_u32', 's12', 's12', 8192)
        I('buffer_load_dwordx4', 'v248', s(44, 4), 's12', mods='offen lds')
        k.label('L_k2_sl2')

    I('s_lshl_b32', 's7', 's5', 3)
    I('s_lshl_b32', 's13', 's3', 1)
    I('s_add_i32', 's7', 's7', 's13')
    I('s_add_i32', 's7', 's7', -8)
    I('s_max_i32', 's7', 's7', 0)
    I('s_lshl_b32', 's7', 's7', 10)
    I('s_add_u32', 's7', 's7', 's9')
    I('s_add_u32', 'm0', 's8', L_K)
    I('s_add_u32', 's13', 's7', KB)
    I('buffer_load_dwordx4', 'v2', s(R_WS, 4), 's13', mods='offen lds')
    I('buffer_load_dwordx4', 'v2', s(R_WS, 4), 's13', mods='offen offset:1024 lds')
    I('buffer_load_dwordx4', v(Q, 4), 'v2', s(R_WS, 4), 's10', mods='offen')
    I('buffer_load_dword', v(MX), 'v12', s(R_WS, 4), 's11', mods='offen')
    I('s_add_u32', 'm0', 's8', L_V)
    I('s_add_u32', 's13', 's7', VB)
    I('buffer_load_dwordx4', 'v2', s(R_WS, 4), 's13', mods='offen lds')
    I('buffer_load_dwordx4', 'v2', s(R_WS, 4), 's13', mods='offen offset:1024 lds')
    I('buffer_load_dwordx4', v(G2R, 4), 'v14', s(R_WS, 4), 's67', mods='offen')
    I('buffer_load_dwordx4', v(G2R + 4, 4), 'v14', s(R_WS, 4), 's67', mods='offen offset:16')
    I('buffer_load_dwordx4', v(SBR, 4), 'v15', s(R_WS, 4), 's68', mods='offen')
    consts()
    for r in range(24):
        I('v_mov_b32', v(VF + r), 0x3f803f80)
    I('s_lshl_b32', 's13', 's3', 10)
    I('v_add_u32', 'v246', 's13', 'v2')
    I('v_add_u32', 'v247', 's13', 'v13')
    k.waitcnt(lgkm=0)
    for i in range(1, 9):
        I('s_max_u32', 's48', 's48', s(48 + i))
    k.waitcnt(vm=5)
    I('v_mul_f32', v(MX), 's48', v(MX))
    I('v_sqrt_f32', v(MX), v(MX))
    for r in range(16):
        I('v_sub_f32', v(NM + r), 0, v(MX))
    for r in range(16):
        I('v_add_f32', v(Sb(8) + r), v(MK + r), v(NM))
    k.waitcnt(vm=3)
    tick(k)
    k.barrier()
    tick(k)
    lds_reads()
    side_loads()
    attn('a', exact=False)
    tick(k)
    I('v_mov_b32', v(MX), f32bits(2.0 ** -80))
    I('v_cmp_nge_f32', 'vcc', v(OA + 8), v(MX))
    if OPT.get('k2force'):
        I('s_mov_b64', 'vcc', -1)
    I('s_cbranch_vccz', 'L_k2_fin')
    attn('x', exact=True)
    k.label('L_k2_fin')
    I('v_rcp_f32', v(MX), v(OA + 8))
    for r in range(8):
        I('v_mul_f32', v(OA + r), v(OA + r), v(MX))
    pack8(k, PB, OA)
    I('s_lshl_b32', 's12', 's6', 15)
    I('s_lshl_b32', 's13', 's4', 10)
    I('s_add_u32', 's12', 's12', 's13')
    I('s_add_u32', 's12', 's12', OB)
    I('buffer_store_dwordx4', v(PB, 4), 'v2', s(R_WS, 4), 's12', mods=f'offen {ST_POL}')
    k.waitcnt(vm=1)
    tick(k)
    I('s_cmp_eq_u32', 's64', 0)
    I('s_cbranch_scc1', 'L_k2_gu')
    I('s_mov_b32', 's60', 1024)
    I('s_mov_b32', 's61', 512)
    I('s_cmp_eq_u32', 's3', 7)
    I('s_cselect_b32', 's12', 512, 's60')
    I('s_cselect_b32', 's13', 1024, 's61')
    I('v_mul_lo_u32', 'v8', 'v3', 's12')
    I('v_lshl_add_u32', 'v8', 'v5', 7, 'v8')
    I('v_lshl_add_u32', 'v8', 'v4', 5, 'v8')
    I('v_lshl_add_u32', 'v8', 'v6', 3, 'v8')
    I('v_add_u32', 'v8', 's69', 'v8')
    I('v_add_u32', 'v9', 's13', 'v8')
    RU = KF
    for u in range(2):
        I('ds_read_b64_tr_b16', v(RU + 4 * u, 2), 'v8', mods=f'offset:{u * 64}')
        I('ds_read_b64_tr_b16', v(RU + 4 * u + 2, 2), 'v9', mods=f'offset:{u * 64}')
    I('s_mov_b32', 's60', 114688)
    I('s_cselect_b32', 's60', 32768, 's60')
    I('s_mov_b32', 's61', WD)
    I('s_cselect_b32', 's61', WO, 's61')
    I('s_and_b32', 's12', 's57', 7)
    I('s_lshl_b32', 's12', 's12', 1)
    I('s_mul_i32', 's12', 's12', 's60')
    I('s_add_u32', 's61', 's61', 's12')
    I('s_lshr_b32', 's12', 's57', 3)
    I('s_lshl_b32', 's12', 's12', 10)
    I('s_add_u32', 's61', 's61', 's12')
    I('s_add_u32', 's62', 's61', 's60')
    k.waitcnt(lgkm=0)
    I('buffer_store_dwordx4', v(RU, 4), 'v2', s(R_WS, 4), 's61', mods=f'offen {ST_POL}')
    I('buffer_store_dwordx4', v(RU + 4, 4), 'v2', s(R_WS, 4), 's62', mods=f'offen {ST_POL}')
    I('s_branch', 'L_k2_sw1')
    k.label('L_k2_gu')
    I('v_lshlrev_b32', 'v10', 11, 'v4')
    I('v_lshl_add_u32', 'v11', 'v3', 3, 'v5')
    I('v_lshl_add_u32', 'v10', 'v11', 7, 'v10')
    I('v_lshl_add_u32', 'v10', 'v6', 3, 'v10')
    I('v_add_u32', 'v10', 's69', 'v10')
    RW = KF
    for u in range(4):
        I('ds_read_b64_tr_b16', v(RW + 4 * u, 2), 'v10', mods=f'offset:{u * 32}')
        I('ds_read_b64_tr_b16', v(RW + 4 * u + 2, 2), 'v10', mods=f'offset:{u * 32 + 512}')
    I('s_lshl_b32', 's60', 's65', 2)
    I('s_mul_i32', 's15', 's66', 7168)
    I('s_add_u32', 's15', 's15', W4)
    for u in range(4):
        I('s_add_u32', 's12', 's60', u)
        I('s_mul_i32', 's13', 's12', 147)
        I('s_lshr_b32', 's13', 's13', 10)
        I('s_mul_i32', 's61', 's13', 7)
        I('s_sub_u32', 's12', 's12', 's61')
        I('s_mul_i32', 's13', 's13', W4_NB)
        I('s_lshl_b32', 's12', 's12', 10)
        I('s_add_u32', 's12', 's12', 's13')
        I('s_add_u32', s(48 + u), 's12', 's15')
    for j in range(4):
        I('v_mov_b32', v(240 + j), 0x3f803f80)
    I('s_mul_i32', 's62', 's66', 28672)
    I('s_lshl_b32', 's63', 's60', 7)
    I('s_add_u32', 's62', 's62', 's63')
    I('s_add_u32', 's62', 's62', CSP)
    I('v_mul_u32_u24', 'v8', 14336, 'v3')
    I('v_add_u32', 'v8', 'v8', 'v12')
    I('v_cmp_eq_u32', 'vcc', 0, 'v3')
    BS = [96, 112, SB_, SB_ + 16]
    CS = [SB_ + 32, PB, OA, NM]
    T = MK
    for u in range(4):
        k.waitcnt(lgkm=6 - 2 * u)
        I('v_mfma_f32_32x32x16_bf16', v(BS[u], 16), v(SBR, 4), v(RW + 4 * u, 4), 0)
        unpack8(k, T + 8 * (u & 1), RW + 4 * u)
        for j in range(8):
            I('v_mul_f32', v(T + 8 * (u & 1) + j), v(T + 8 * (u & 1) + j), v(G2R + j))
        pack8(k, RW + 16 + 4 * u, T + 8 * (u & 1))
        I('buffer_store_dwordx4', v(RW + 16 + 4 * u, 4), 'v2', s(R_WS, 4), s(48 + u), mods=f'offen {ST_POL}')
        I('v_mfma_f32_32x32x16_bf16', v(CS[u], 16), v(240, 4), v(RW + 16 + 4 * u, 4), 0)
    for u in range(4):
        I('v_cndmask_b32', v(244 + u), v(BS[u]), v(CS[u]), 'vcc')
        I('buffer_store_dword', v(244 + u), 'v8', s(R_WS, 4), 's62', mods=f'offen offset:{128 * u}')
    k.label('L_k2_sw1')
    epilogue(k, 2, vtmp=4)
    return k, 256, 512, LDS


def gen_gemm64(name, idx, NS, A_BASE, A_TB, B_BASE, B_NF, is_k3):
    k = Kernel(name)
    I = k.I
    LDS = 4 * 3 * 4096
    prologue(k, 256, need_lo=is_k3)
    xcd_map(k, 3, 4, 5)
    I('v_lshlrev_b32', 'v2', 4, 'v1')
    I('v_lshrrev_b32', 'v3', 5, 'v1')
    I('v_and_b32', 'v4', 31, 'v1')
    NT = 4 * NS
    ROT = OPT.get('rot64', 0)
    I('s_lshr_b32', 's6', 's2', 3)
    I('s_mul_i32', 's6', 's6', NT * ROT)
    I('s_lshr_b32', 's6', 's6', 5)
    I('s_mul_i32', 's61', 's3', NS)
    I('s_add_u32', 's6', 's6', 's61')
    I('s_cmp_ge_u32', 's6', NT)
    I('s_cselect_b32', 's61', NT, 0)
    I('s_sub_u32', 's6', 's6', 's61')
    I('s_lshl_b32', 's6', 's6', 10)
    I('s_mul_i32', 's7', 's4', 2 * A_TB)
    I('s_add_u32', 's7', 's7', A_BASE)
    I('s_add_u32', 's8', 's7', A_TB)
    I('s_mul_i32', 's9', 's5', 2 * B_NF)
    I('s_add_u32', 's9', 's9', B_BASE)
    I('s_add_u32', 's10', 's9', B_NF)
    I('s_and_b32', 's11', 's3', 1)
    I('s_lshr_b32', 's12', 's3', 1)
    I('s_lshl_b32', 's13', 's4', 1)
    I('s_add_u32', 's13', 's13', 's12')
    I('s_lshl_b32', 's14', 's5', 1)
    I('s_add_u32', 's14', 's14', 's11')
    k.waitcnt(lgkm=0)
    tick(k)
    srd(k, R_WS, S_WS, WS_SIZE)
    ACC = 16
    GV = 80
    XR = 96
    RING = 104
    DEPTH = min(NS, 8)
    LOG = []

    def ld(st):
        b = RING + 16 * (st % DEPTH)
        va = 'v11' if st & 1 else 'v12'
        I('v_add_u32', va, 's6', 'v2')
        I('s_add_u32', 's6', 's6', 1024)
        I('s_cmp_eq_u32', 's6', NT * 1024)
        I('s_cselect_b32', 's6', 0, 's6')
        for j, r in enumerate((9, 7, 10, 8)):
            I('buffer_load_dwordx4', v(b + 4 * j, 4), va, s(R_WS, 4), s(r), mods='offen')
            LOG.append(('k', st))

    def side_loads():
        I('s_lshl_b32', 's15', 's14', 7)
        I('s_add_u32', 's15', 's15', MODF + (MF_GA if is_k3 else MF_GB))
        I('v_lshlrev_b32', 'v5', 5, 'v3')
        for sp in range(2):
            for q in range(2):
                I('buffer_load_dwordx4', v(GV + 8 * sp + 4 * q, 4), 'v5', s(R_WS, 4), 's15', mods=f'offen offset:{64 * sp + 16 * q}')
                LOG.append(('s', 0))
        if is_k3:
            srd(k, 44, S_X, 2048 * 1024)
            I('s_lshl_b32', 's15', 's13', 15)
            I('s_lshl_b32', 's60', 's14', 6)
            I('s_add_u32', 's15', 's15', 's60')
            I('v_lshlrev_b32', 'v6', 10, 'v4')
            I('v_lshl_add_u32', 'v6', 'v3', 4, 'v6')
            for sp in range(2):
                I('buffer_load_dwordx4', v(XR + 4 * sp, 4), 'v6', s(44, 4), 's15', mods=f'offen offset:{32 * sp}')
                LOG.append(('s', 0))
        else:
            I('s_lshl_b32', 's15', 's13', 15)
            I('s_lshl_b32', 's60', 's14', 11)
            I('s_add_u32', 's15', 's15', 's60')
            I('s_add_u32', 's15', 's15', X1)
            for sp in range(2):
                I('buffer_load_dwordx4', v(XR + 4 * sp, 4), 'v2', s(R_WS, 4), 's15', mods=f'offen offset:{1024 * sp}')
                LOG.append(('s', 0))

    PRE = min(DEPTH, 4)
    nxt = 0
    for st in range(PRE):
        ld(st)
        nxt += 1
    side_done = False
    for st in range(NS):
        tgt = min(NS, st + DEPTH)
        n_issue = 0
        while nxt < tgt and n_issue < 2:
            ld(nxt)
            nxt += 1
            n_issue += 1
        if nxt == NS and not side_done:
            side_loads()
            side_done = True
        last = max(i for i, e in enumerate(LOG) if e == ('k', st))
        k.waitcnt(vm=len(LOG) - 1 - last)
        b = RING + 16 * (st % DEPTH)
        B0, A0, B1, A1 = (v(b + 4 * j, 4) for j in range(4))
        for nfl, Bf in ((0, B0), (1, B1)):
            for tbl, Af in ((0, A0), (1, A1)):
                a_ = ACC + 16 * (2 * nfl + tbl)
                I('v_mfma_f32_32x32x16_bf16', v(a_, 16), Bf, Af, 0 if st == 0 else v(a_, 16))
    tick(k)
    k.flush()
    for o in range(4):
        q = 2 * (o & 1) + (o >> 1)
        lab = f'L_{name}_skip{o}'
        I('s_cmp_eq_u32', 's3', o)
        I('s_cbranch_scc1', lab)
        I('s_sub_u32', 's15', 's3', o + 1)
        I('s_and_b32', 's15', 's15', 3)
        I('s_lshl_b32', 's15', 's15', 12)
        I('v_add_u32', 'v7', 's15', 'v2')
        for j in range(4):
            I('ds_write_b128', 'v7', v(ACC + 16 * q + 4 * j, 4), mods=f'offset:{o * 12288 + j * 1024}')
        k.label(lab)
    OWN = RING
    for o in range(4):
        q = 2 * (o & 1) + (o >> 1)
        lab = f'L_{name}_own{o}'
        I('s_cmp_lg_u32', 's3', o)
        I('s_cbranch_scc1', lab)
        for r in range(16):
            I('v_mov_b32', v(OWN + r), v(ACC + 16 * q + r))
        k.label(lab)
    k.waitcnt(lgkm=0)
    k.barrier()
    tick(k)
    I('s_mul_i32', 's15', 's3', 12288)
    I('v_add_u32', 'v7', 's15', 'v2')
    for p in range(3):
        for j in range(4):
            I('ds_read_b128', v(ACC + 16 * p + 4 * j, 4), 'v7', mods=f'offset:{p * 4096 + j * 1024}')
    for p in range(3):
        k.waitcnt(lgkm=8 - 4 * p)
        for r in range(16):
            I('v_add_f32', v(OWN + r), v(OWN + r), v(ACC + 16 * p + r))
    k.waitcnt(vm=0)
    T = ACC
    unpack8(k, T, XR)
    unpack8(k, T + 8, XR + 4)
    for r in range(16):
        I('v_fmac_f32', v(T + r), v(OWN + r), v(GV + r))
    P = ACC + 16
    pack8(k, P, T)
    pack8(k, P + 4, T + 8)
    if is_k3:
        I('s_lshl_b32', 's15', 's13', 15)
        I('s_lshl_b32', 's60', 's14', 11)
        I('s_add_u32', 's15', 's15', 's60')
        I('s_add_u32', 's15', 's15', X1)
        for sp in range(2):
            I('buffer_store_dwordx4', v(P + 4 * sp, 4), 'v2', s(R_WS, 4), 's15', mods=f'offen offset:{1024 * sp} {ST_POL}')
        unpack8(k, T, P)
        unpack8(k, T + 8, P + 4)
        I('v_add_f32', 'v8', v(T), v(T + 1))
        I('v_add_f32', 'v9', v(T + 2), v(T + 3))
        for r in range(4, 16, 2):
            I('v_add_f32', 'v8', 'v8', v(T + r))
            I('v_add_f32', 'v9', 'v9', v(T + r + 1))
        I('v_add_f32', 'v8', 'v8', 'v9')
        I('v_mov_b32', 'v9', 'v8')
        I('v_permlane32_swap_b32', 'v8', 'v9')
        I('v_add_f32', 'v8', 'v8', 'v9')
        I('v_mul_f32', 'v8', f32bits(1.0 / 32), 'v8')
        for r in range(16):
            I('v_sub_f32', v(T + r), v(T + r), 'v8')
        I('v_mul_f32', 'v9', v(T), v(T))
        I('v_mul_f32', 'v10', v(T + 1), v(T + 1))
        for r in range(2, 16, 2):
            I('v_fmac_f32', 'v9', v(T + r), v(T + r))
            I('v_fmac_f32', 'v10', v(T + r + 1), v(T + r + 1))
        I('v_add_f32', 'v9', 'v9', 'v10')
        I('v_mov_b32', 'v10', 'v9')
        I('v_permlane32_swap_b32', 'v9', 'v10')
        I('v_add_f32', 'v9', 'v9', 'v10')
        I('s_lshl_b32', 's15', 's13', 12)
        I('s_lshl_b32', 's60', 's5', 9)
        I('s_add_u32', 's15', 's15', 's60')
        I('s_lshl_b32', 's60', 's11', 3)
        I('s_add_u32', 's15', 's15', 's60')
        I('s_add_u32', 's15', 's15', ST2)
        I('v_lshlrev_b32', 'v10', 4, 'v4')
        I('s_mov_b32', 'exec_hi', 0)
        I('buffer_store_dwordx2', v(8, 2), 'v10', s(R_WS, 4), 's15', mods='offen')
        I('s_mov_b64', 'exec', -1)
        I('s_cmp_ge_u32', 's2', 112)
        I('s_cbranch_scc1', f'L_{name}_noside')
        I('s_cmp_lg_u32', 's3', 0)
        I('s_cbranch_scc1', f'L_{name}_noside')
        I('v_mul_u32_u24', 'v8', 14336, 'v3')
        I('v_lshl_add_u32', 'v8', 'v4', 2, 'v8')
        I('s_lshl_b32', 's15', 's2', 7)
        I('s_add_u32', 's15', 's15', CSP)
        T = RING + 16
        for p in range(32):
            I('s_add_u32', 's60', 's15', p * 28672)
            I('buffer_load_dword', v(T + p), 'v8', s(R_WS, 4), 's60', mods='offen')
        k.waitcnt(vm=0)
        for st_ in (16, 8, 4, 2, 1):
            for r in range(st_):
                I('v_add_f32', v(T + r), v(T + r), v(T + r + st_))
        I('v_cvt_pk_bf16_f32', v(P), v(T), v(T))
        I('v_and_b32', 'v9', 0xffff0000, v(P))
        I('v_sub_f32', 'v9', v(T), 'v9')
        I('v_cvt_pk_bf16_f32', v(P + 1), 'v9', 'v9')
        I('v_mov_b32', v(P + 2), 0)
        I('v_mov_b32', v(P + 3), 0)
        I('s_mul_i32', 's60', 's2', 147)
        I('s_lshr_b32', 's60', 's60', 10)
        I('s_mul_i32', 's61', 's60', 7)
        I('s_sub_u32', 's61', 's2', 's61')
        I('s_mul_i32', 's60', 's60', W4_NB)
        I('s_lshl_b32', 's61', 's61', 10)
        I('s_add_u32', 's60', 's60', 's61')
        I('s_add_u32', 's60', 's60', W4 + 32 * 7168)
        I('buffer_store_dwordx4', v(P, 4), 'v2', s(R_WS, 4), 's60', mods='offen')
        k.label(f'L_{name}_noside')
    else:
        srd(k, 44, S_OUT, 2048 * 1024)
        I('s_lshl_b32', 's15', 's13', 15)
        I('s_lshl_b32', 's60', 's14', 6)
        I('s_add_u32', 's15', 's15', 's60')
        I('v_lshlrev_b32', 'v6', 10, 'v4')
        I('v_lshl_add_u32', 'v6', 'v3', 4, 'v6')
        for sp in range(2):
            I('buffer_store_dwordx4', v(P + 4 * sp, 4), 'v6', s(44, 4), 's15', mods=f'offen offset:{32 * sp}')
    epilogue(k, idx, vtmp=4)
    return k, 256, 256, LDS


def gen_k3():
    return gen_gemm64('k3_wo_kernel', 3, 8, OB, 32768, WO, 32768, True)


def gen_k5():
    return gen_gemm64('k5_down_kernel', 5, 28, ACT, 112 * 1024, WD, 112 * 1024, False)


def gen_k4():
    k = Kernel('k4_ffn1_kernel')
    I = k.I
    RES = {2: 131072, 3: 32768, 6: 0}
    LDS = 163840
    NR = 16
    D = OPT.get('k4d', 8)
    prologue(k, 256, need_lo=False)
    xcd_map(k, 2, 4, 5)
    I('s_and_b32', 's61', 's3', 3)
    I('s_lshr_b32', 's63', 's3', 2)
    I('s_lshl_b32', 's6', 's4', 2)
    I('s_add_u32', 's6', 's6', 's61')
    I('v_lshlrev_b32', 'v2', 4, 'v1')
    I('v_lshrrev_b32', 'v3', 5, 'v1')
    I('v_and_b32', 'v4', 31, 'v1')
    I('s_mul_i32', 's7', 's5', W4_NB)
    I('s_add_u32', 's7', 's7', W4)
    I('s_lshl_b32', 's8', 's3', 10)
    I('s_lshl_b32', 's9', 's6', 15)
    I('s_add_u32', 's9', 's9', X1)
    I('s_and_b32', 's10', 's3', 1)
    I('s_and_b32', 's11', 's3', 2)
    I('s_lshl_b32', 's11', 's11', 1)
    I('s_add_u32', 's10', 's10', 's11')
    I('s_lshl_b32', 's10', 's10', 10)
    I('s_add_u32', 's10', 's10', 's7')
    I('s_mov_b32', 's11', 7168)
    I('s_cmp_eq_u32', 's63', 0)
    I('s_cselect_b32', 's9', 's9', 's10')
    I('s_cselect_b32', 's11', 1024, 's11')
    I('s_mul_i32', 's12', 's3', 7168)
    I('s_add_u32', 's12', 's12', 's7')
    I('s_lshl_b32', 's13', 's61', 10)
    I('v_add_u32', 'v5', 's13', 'v2')
    I('s_lshl_b32', 's13', 's63', 11)
    I('s_add_u32', 's13', 's13', 4096)
    I('v_add_u32', 'v6', 's13', 'v2')
    I('v_add_u32', 'v7', RES[2], 'v2')
    I('s_xor_b32', 's13', 's63', 1)
    I('s_lshl_b32', 's13', 's13', 15)
    I('v_add_u32', 'v15', 's13', 'v2')
    I('v_add_u32', 'v0', 65536, 'v5')
    I('v_add_u32', 'v1', 65536, 'v6')
    k.waitcnt(lgkm=0)
    tick(k)
    srd(k, R_WS, S_WS, WS_SIZE)
    ACC, WF, EXT, T, PK, EXB = 16, 80, 104, 108, 116, 124
    STT = ACC + 48
    EXA = T
    I('s_cmp_eq_u32', 's63', 0)
    I('s_cbranch_scc0', 'L_k4_g1')
    nt0 = getattr(k, 'nticks', 0)
    for grp in range(2):
        k.nticks = nt0
        FA = [0, 1, 2] if grp == 0 else [4, 5]
        FB = 3 if grp == 0 else 6
        NA = len(FA)
        LOG = []

        def ring(s_):
            if s_ >= 32:
                batch(6 if s_ < 36 else 3, (s_ - 32) % 4)
                return
            I('s_add_u32', 'm0', 's8', (s_ % NR) * 8192)
            I('buffer_load_dwordx4', 'v2', s(R_WS, 4), 's9', mods='offen lds')
            I('s_add_u32', 's9', 's9', 's11')
            LOG.append(('r', s_))

        def batch(fr, i):
            I('s_add_u32', 'm0', 's8', RES[fr] + i * 8192)
            I('s_add_u32', 's13', 's12', i * 8 * 7168 + fr * 1024)
            I('buffer_load_dwordx4', 'v2', s(R_WS, 4), 's13', mods='offen lds')
            LOG.append(('b', fr, i))

        def stat_loads():
            I('s_lshl_b32', 's13', 's6', 12)
            I('s_add_u32', 's13', 's13', ST2)
            I('v_lshlrev_b32', 'v8', 11, 'v3')
            I('v_lshl_add_u32', 'v8', 'v4', 4, 'v8')
            for q in range(4):
                I('buffer_load_dwordx4', v(STT + 4 * q, 4), 'v8', s(R_WS, 4), 's13', mods=f'offen offset:{q * 512}')
                LOG.append(('st',))

        def ext_loads():
            I('s_add_u32', 's13', 's7', 32 * 7168)
            for j, f in enumerate(FA):
                I('s_add_u32', 's14', 's13', f * 1024)
                I('buffer_load_dwordx4', v(EXA + 4 * j, 4), 'v2', s(R_WS, 4), 's14', mods='offen')
                LOG.append(('x',))
            I('s_add_u32', 's14', 's13', FB * 1024)
            I('buffer_load_dwordx4', v(EXB, 4), 'v2', s(R_WS, 4), 's14', mods='offen')
            LOG.append(('x',))
            if grp == 1:
                pass

        def wait_tags(tags):
            last = max(i for i, e in enumerate(LOG) if e in tags)
            k.waitcnt(vm=len(LOG) - 1 - last)

        def rd(s_):
            so = (s_ % 8) * 8192
            hi = (s_ % NR) >= 8
            b = WF + 12 * (s_ & 1)
            I('ds_read_b128', a(4 * s_, 4), 'v0' if hi else 'v5', mods=f'offset:{so}')
            for j in range(2):
                I('ds_read_b128', v(b + 4 * j, 4), 'v1' if hi else 'v6', mods=f'offset:{so + j * 1024}')
            if grp == 0:
                I('ds_read_b128', v(b + 8, 4), 'v7', mods=f'offset:{s_ * 1024}')
        NRD = 1 + NA

        def stats_ops():
            c0 = -2.0 * 1.4426950408889634 * math.sqrt(2.0 / math.pi)
            c1 = c0 * 0.044715
            L = []
            A_ = lambda *a_, **kw: L.append(lambda: I(*a_, **kw))
            A_('v_add_f32', 'v8', v(STT), v(STT + 2))
            for r in range(4, 16, 2):
                A_('v_add_f32', 'v8', 'v8', v(STT + r))
            A_('v_mov_b32', 'v9', 'v8')
            A_('v_permlane32_swap_b32', 'v8', 'v9')
            A_('v_add_f32', 'v8', 'v8', 'v9')
            A_('v_mul_f32', 'v8', f32bits(1.0 / 16), 'v8')
            A_('v_add_f32', 'v9', v(STT + 1), v(STT + 3))
            for r in range(5, 16, 2):
                A_('v_add_f32', 'v9', 'v9', v(STT + r))
            A_('v_mov_b32', 'v10', 0)
            for r in range(0, 16, 2):
                A_('v_sub_f32', v(STT + r), v(STT + r), 'v8')
                A_('v_fmac_f32', 'v10', v(STT + r), v(STT + r))
            A_('v_fmac_f32', 'v9', f32bits(32.0), 'v10')
            A_('v_mov_b32', 'v10', 'v9')
            A_('v_permlane32_swap_b32', 'v9', 'v10')
            A_('v_add_f32', 'v9', 'v9', 'v10')
            A_('v_mov_b32', 'v10', f32bits(1e-5))
            A_('v_fmac_f32', 'v10', f32bits(1.0 / 512), 'v9')
            A_('v_rsq_f32', 'v11', 'v10')
            A_('v_mul_f32', 'v12', 'v10', 'v11')
            A_('v_sub_f32', 'v13', 0, 'v8')
            A_('v_cmp_eq_u32', 'vcc', 0, 'v3')
            A_('v_cndmask_b32', 'v13', 'v12', 'v13', 'vcc')
            A_('v_cvt_pk_bf16_f32', 'v14', 'v13', 'v13')
            A_('v_and_b32', 'v14', 0xffff0000, 'v14')
            A_('v_sub_f32', 'v9', 'v13', 'v14')
            A_('v_cvt_pk_bf16_f32', v(EXT), 'v14', 'v9')
            A_('v_mov_b32', v(EXT + 1), v(EXT))
            A_('v_mov_b32', v(EXT + 2), 0)
            A_('v_mov_b32', v(EXT + 3), 0)
            A_('v_mul_f32', 'v12', f32bits(c0), 'v11')
            A_('v_mul_f32', 'v13', 'v11', 'v11')
            A_('v_mul_f32', 'v13', 'v13', 'v11')
            A_('v_mul_f32', 'v13', f32bits(c1), 'v13')
            A_('s_mul_i32', 's60', 's6', 112 * 1024)
            A_('s_mul_i32', 's62', 's5', 7 * 1024)
            A_('s_add_u32', 's60', 's60', 's62')
            A_('s_add_u32', 's60', 's60', ACT + grp * 4096)
            return L

        def epi(ai, f):
            g_ = ACC + 16 * ai
            u_ = g_ + 8
            for e in range(8):
                I('v_mul_f32', v(T + e), v(g_ + e), v(g_ + e))
            for e in range(8):
                I('v_fma_f32', v(T + e), v(T + e), 'v13', 'v12')
            for e in range(8):
                I('v_mul_f32', v(T + e), v(T + e), v(g_ + e))
            for e in range(8):
                I('v_exp_f32', v(T + e), v(T + e))
            for e in range(8):
                I('v_mul_f32', v(u_ + e), v(u_ + e), v(g_ + e))
            for e in range(8):
                I('v_fma_f32', v(T + e), v(T + e), 'v10', 'v10')
            for e in range(8):
                I('v_rcp_f32', v(T + e), v(T + e))
            for e in range(8):
                I('v_mul_f32', v(T + e), v(T + e), v(u_ + e))
            P = PK + 4 * (ai & 1)
            pack8(k, P, T)
            I('buffer_store_dwordx4', v(P, 4), 'v2', s(R_WS, 4), 's60', mods=f'offen offset:{(f % 4) * 1024} {ST_POL}')
            LOG.append(('store',))

        def fragB():
            ai = 3 if grp == 0 else 2
            acc = v(ACC + 16 * ai, 16)
            NB_ = 6
            for u in range(NB_ - 1):
                I('ds_read_b128', v(WF + 4 * u, 4), 'v15', mods=f'offset:{u * 1024}')
            I('v_mfma_f32_32x32x16_bf16', acc, v(EXB, 4), v(EXT, 4), 0)
            for u in range(32):
                n = u + NB_ - 1
                if n < 32:
                    I('ds_read_b128', v(WF + 4 * (n % NB_), 4), 'v15', mods=f'offset:{n * 1024}')
                k.waitcnt(lgkm=min(31, n) - u)
                I('v_mfma_f32_32x32x16_bf16', acc, v(WF + 4 * (u % NB_), 4), a(4 * u, 4), acc)

        extra = {}
        bsched = [(2, 1, 1), (2, 2, 5), (2, 3, 10)]
        for fr, i, at in bsched:
            extra.setdefault(at, []).append(lambda fr=fr, i=i: batch(fr, i))
        extra.setdefault(0, []).append(stat_loads)
        extra.setdefault(16, []).append(ext_loads)
        ring(0)
        batch(2, 0)
        PRE = OPT.get('k4pre', 8)
        for s_ in range(1, PRE):
            ring(s_)
        rn = [PRE]
        wait_tags([('r', 0), ('r', 1), ('b', 2, 0)])
        k.barrier()
        tick(k)
        rd(0)
        VQ = []
        for s_ in range(32):
            n = s_ + 1
            if n < 32:
                if n % 2 == 0:
                    tags = [('r', n), ('r', n + 1)]
                    if n % 8 == 0:
                        tags.append(('b', 2, n // 8))
                    wait_tags(tags)
                    k.barrier()
                    if n % 8 == 0:
                        tick(k)
                rd(n)
                k.waitcnt(lgkm=NRD)
            else:
                k.waitcnt(lgkm=0)
            b = WF + 12 * (s_ & 1)
            for j in range(NA):
                I('v_mfma_f32_32x32x16_bf16', v(ACC + 16 * j, 16), v(b + 4 * j, 4), a(4 * s_, 4),
                  0 if s_ == 0 else v(ACC + 16 * j, 16))
                lead = D if rn[0] < 32 else OPT.get('k4db', 6)
                if j < (2 if s_ < OPT.get('k4ramp', 12) or rn[0] >= 32 else 1) and rn[0] <= s_ + lead and rn[0] < 36:
                    ring(rn[0])
                    rn[0] += 1
                if j == 1:
                    for f_ in extra.get(s_, []):
                        f_()
                for _ in range(4):
                    if VQ:
                        VQ.pop(0)()
            if s_ == 10:
                VQ.extend(stats_ops())
        assert not VQ
        tick(k)
        wait_tags([('x',)])
        for j in range(NA):
            I('v_mfma_f32_32x32x16_bf16', v(ACC + 16 * j, 16), v(EXA + 4 * j, 4), v(EXT, 4), v(ACC + 16 * j, 16))
        assert rn[0] == 36
        for i in range(4):
            batch(3, i)
        wait_tags([('b', 6, 3)])
        k.barrier()
        tick(k)
        if grp == 0:
            for j, f in enumerate(FA):
                epi(j, f)
            wait_tags([('b', 3, 3)])
            k.barrier()
            tick(k)
            fragB()
            tick(k)
            epi(3, FB)
            I('s_branch', 'L_k4_done')
            k.label('L_k4_g1')
        else:
            fragB()
            wait_tags([('b', 3, 3)])
            k.barrier()
            tick(k)
            for j, f in enumerate(FA):
                epi(j, f)
            tick(k)
            epi(2, FB)
    k.label('L_k4_done')
    epilogue(k, 4, vtmp=4)
    return k, 256, 512, LDS


HEADER = """; adaLN_cond + sliding-window attention + GEGLU FFN block, gfx950 (MI355X).
"""


def build(gens, path):
    hdr, bodies, descs = [], [], []
    for g in gens:
        k, grid, block, lds = g()
        b, d = kernel_text(k)
        bodies.append(b)
        descs.append(d)
        hdr.append(f'; @launch kernel={k.name} grid=({grid},1,1) block=({block},1,1) lds={lds}')
        print(f'{k.name}: {k.n_ins} instr, vgpr {k.max_v + 1}, agpr {k.max_a + 1}, sgpr {k.max_s + 1}, nops {k.nops_inserted}, lds {lds}',
              file=sys.stderr)
    if OPT.get('dup'):
        d_ = OPT['dup'] - 1
        hdr.insert(d_ + 1, hdr[d_])
    out = HEADER + '\n'.join(hdr) + '\n.amdgcn_target "amdgcn-amd-amdhsa--gfx950"\n.text\n' + '\n'.join(bodies) + \
        '\nL_code_end:\n.section .rodata,"a"\n' + '\n'.join(descs)
    open(path, 'w').write(out)


if __name__ == '__main__':
    import argparse
    ap = argparse.ArgumentParser()
    ap.add_argument('-o', default='adaLN_cond__sliding_block__geglu_ffn__prompt.s')
    ap.add_argument('--stamp', action='store_true')
    ap.add_argument('-n', type=int, default=6)
    ap.add_argument('--stpol', default='sc1')
    ap.add_argument('--opt', default='')
    args = ap.parse_args()
    STAMP = args.stamp
    ST_POL = args.stpol
    for kv in args.opt.split(','):
        if kv:
            a_, b_ = kv.split('=')
            OPT[a_] = int(b_)
    allg = [gen_k0, gen_k1]
    for nm in ('gen_k2', 'gen_k3', 'gen_k4', 'gen_k5'):
        if nm in globals():
            allg.append(globals()[nm])
    build(allg[:args.n], args.o)
```

```python
import sys
import struct
import math
from asmlib import *

XN = 0x0000000
W1 = 0x0200000
W1_NB = 32 * 3072
MODP = 0x0400000
MODP_P = 3072 * 4
MODF = 0x0420000
MF_GA, MF_G2, MF_GB, MF_SB = 0, 2048, 4096, 6144
NRM = 0x0440000
TMX = 0x04C0000
QB = 0x0500000
KB = 0x0700000
VB = 0x0900000
OB = 0x0B00000
X1 = 0x0D00000
ST2 = 0x0F00000
CSP = 0x1F00000
W4 = 0x1000000
W4_NB = 33 * 7168
WO = 0x1400000
WD = 0x1500000
ACT = 0x1800000
STAMPS = 0x2000000
WS_SIZE = 0x2100000

STAMP = False
ST_POL = 'sc1'
OPT = {}


def f32bits(x):
    return struct.unpack('<I', struct.pack('<f', x))[0]


S_X, S_WQKV, S_WO, S_BX, S_WG, S_WU, S_WD, S_C = 16, 18, 20, 22, 24, 26, 28, 30
S_WMOD, S_OUT, S_DBG, S_WS = 32, 34, 36, 38
R_WS = 40


def srd(k, d, base, nbytes):
    k.I('s_mov_b32', s(d), s(base))
    k.I('s_mov_b32', s(d + 1), s(base + 1))
    k.I('s_mov_b32', s(d + 2), nbytes)
    k.I('s_mov_b32', s(d + 3), 0x20000)


def prologue(k, nwg, need_lo=True):
    I = k.I
    if STAMP:
        I('s_memrealtime', s(96, 2))
    I('s_cmp_ge_u32', 's2', nwg)
    I('s_cbranch_scc1', f'L_end_{k.name}')
    if need_lo:
        I('s_load_dwordx16', s(16, 16), s(0, 2), 0)
    I('s_load_dwordx8', s(32, 8), s(0, 2), 64)
    I('v_and_b32', 'v1', 63, 'v0')
    I('v_lshrrev_b32', 'v2', 6, 'v0')
    I('v_readfirstlane_b32', 's3', 'v2')


def xcd_map(k, mbits, dm, dn, xmb=2):
    I = k.I
    mtot = mbits + 2
    jm = mtot - xmb
    if xmb > 0:
        I('s_bfe_u32', s(dm), 's2', (xmb << 16) | (3 - xmb))
        I('s_lshl_b32', s(dm), s(dm), jm)
    else:
        I('s_mov_b32', s(dm), 0)
    I('s_bfe_u32', s(dn), 's2', (jm << 16) | 3)
    I('s_add_u32', s(dm), s(dm), s(dn))
    I('s_and_b32', s(dn), 's2', (1 << (3 - xmb)) - 1)
    I('s_lshl_b32', s(dn), s(dn), 5 - jm)
    I('s_lshr_b32', 's62', 's2', 3 + jm)
    I('s_add_u32', s(dn), s(dn), 's62')


NEXT = {'k0_mod_kernel': ('k1_qkv_kernel', 'k2_attn_kernel'), 'k1_qkv_kernel': ('k2_attn_kernel', 'k3_wo_kernel'),
        'k2_attn_kernel': ('k3_wo_kernel', 'k4_ffn1_kernel'), 'k3_wo_kernel': ('k4_ffn1_kernel', 'k5_down_kernel'),
        'k4_ffn1_kernel': ('k5_down_kernel', 'L_code_end')}


def code_prefetch(k, vt, vdst, sa, nwaves):
    if not OPT.get('codepf', 1) or k.name not in NEXT:
        return False
    I = k.I
    beg, end = NEXT[k.name]
    I('s_getpc_b64', s(sa, 2))
    k.raw(f'L_pc_{k.name}:')
    I('s_lshr_b32', s(sa + 2), 's2', 3)
    I('s_mul_i32', s(sa + 2), s(sa + 2), nwaves)
    I('s_add_u32', s(sa + 2), s(sa + 2), 's3')
    I('s_lshl_b32', s(sa + 2), s(sa + 2), 13)
    I('v_lshlrev_b32', v(vt), 7, 'v1')
    I('v_add_u32', v(vt), s(sa + 2), v(vt))
    I('v_min_u32', v(vt), f'{end}-{beg}-4', v(vt))
    I('v_add_u32', v(vt), f'{beg}-L_pc_{k.name}', v(vt))
    I('global_load_dword', v(vdst), v(vt), s(sa, 2))
    return True


def tick(k):
    if STAMP:
        n = getattr(k, 'nticks', 0)
        assert n < 12
        k.I('s_memrealtime', s(94, 2))
        k.I('s_memtime', s(100, 2))
        k.waitcnt(lgkm=0)
        k.I('s_mov_b32', s(70 + n), 's94')
        k.I('s_mov_b32', s(82 + n), 's100')
        k.nticks = n + 1


def epilogue(k, idx, vtmp=2):
    I = k.I
    if STAMP:
        k.flush()
        tick(k)
        k.waitcnt(vm=0, lgkm=0)
        I('s_memrealtime', s(98, 2))
        k.waitcnt(lgkm=0)
        I('s_cmp_lg_u32', 's3', 0)
        I('s_cbranch_scc1', f'L_end_{k.name}')
        I('v_mov_b32', v(vtmp), 's96')
        I('v_mov_b32', v(vtmp + 1), 's98')
        I('s_lshl_b32', 's96', 's2', 3)
        I('s_add_u32', 's96', 's96', STAMPS + idx * 4096)
        I('v_mov_b32', v(vtmp + 2), 's96')
        I('s_mov_b64', 'exec', 1)
        I('buffer_store_dwordx2', v(vtmp, 2), v(vtmp + 2), s(R_WS, 4), 0, mods='offen')
        I('s_lshl_b32', 's96', 's2', 7)
        I('s_add_u32', 's96', 's96', STAMPS + 0x10000 + idx * 0x8000)
        I('v_mov_b32', v(vtmp + 2), 's96')
        for n in range(24):
            I('v_mov_b32', v(vtmp), s(70 + n) if (n % 12) < k.nticks else 0)
            I('buffer_store_dword', v(vtmp), v(vtmp + 2), s(R_WS, 4), 0, mods=f'offen offset:{4 * n}')
    k.label(f'L_end_{k.name}')
    I('s_endpgm')


def wave_sum_to_sgpr(k, regs, sdst):
    I = k.I
    for sh in ('row_shr:1', 'row_shr:2', 'row_shr:4', 'row_shr:8'):
        for r in regs:
            I('v_add_f32', v(r), v(r), v(r), mods=f'{sh} row_mask:0xf bank_mask:0xf')
    for r in regs:
        I('v_add_f32', v(r), v(r), v(r), mods='row_bcast:15 row_mask:0xa bank_mask:0xf')
    for r in regs:
        I('v_add_f32', v(r), v(r), v(r), mods='row_bcast:31 row_mask:0xc bank_mask:0xf')
    for r, sd in zip(regs, sdst):
        I('v_readlane_b32', s(sd), v(r), 63)


def unpack8(k, dst, src):
    for j in range(4):
        k.I('v_lshlrev_b32', v(dst + 2 * j), 16, v(src + j))
        k.I('v_and_b32', v(dst + 2 * j + 1), 0xffff0000, v(src + j))


def pack8(k, dst, src):
    for j in range(4):
        k.I('v_cvt_pk_bf16_f32', v(dst + j), v(src + 2 * j), v(src + 2 * j + 1))


def gen_k0():
    k = Kernel('k0_mod_kernel')
    I = k.I
    L_A = 0
    L_W = 16384
    L_X = 24576
    L_S = 32768
    L_P = 33024
    LDS = 34048
    prologue(k, 256)
    I('s_and_b32', 's4', 's2', 7)
    I('v_lshrrev_b32', 'v2', 3, 'v1')
    I('v_and_b32', 'v3', 7, 'v1')
    I('v_lshlrev_b32', 'v3', 4, 'v3')
    I('v_mul_u32_u24', 'v4', 6144, 'v2')
    I('v_add_u32', 'v4', 'v4', 'v3')
    I('v_mul_u32_u24', 'v5', 3072, 'v2')
    I('v_add_u32', 'v5', 'v5', 'v3')
    I('v_lshlrev_b32', 'v7', 4, 'v1')
    I('s_lshl_b32', 's10', 's4', 5)
    I('s_lshr_b32', 's11', 's2', 3)
    I('s_add_u32', 's10', 's10', 's11')
    I('s_lshl_b32', 's10', 's10', 3)
    I('s_lshl_b32', 's12', 's3', 1)
    I('s_add_u32', 's12', 's10', 's12')
    I('s_lshl_b32', 's12', 's12', 10)
    I('s_min_u32', 's5', 's2', 191)
    I('s_lshr_b32', 's5', 's5', 2)
    I('s_and_b32', 's6', 's2', 3)
    I('s_lshl_b32', 's13', 's6', 7)
    I('s_lshl_b32', 's14', 's3', 5)
    I('s_add_u32', 's13', 's13', 's14')
    I('v_and_b32', 'v6', 15, 'v1')
    I('v_lshlrev_b32', 'v6', 2, 'v6')
    I('s_lshl_b32', 's15', 's13', 1)
    k.waitcnt(lgkm=0)
    tick(k)
    srd(k, R_WS, S_WS, WS_SIZE)
    srd(k, 44, S_WMOD, 512 * 6144)
    srd(k, 48, S_WQKV, 512 * 3072)
    srd(k, 52, S_X, 2048 * 1024)
    srd(k, 56, S_C, 1024)
    LOG = []
    I('buffer_load_dword', 'v8', 'v6', s(56, 4), 's15', mods='offen'); LOG.append('c')
    I('buffer_load_dwordx4', v(12, 4), 'v7', s(52, 4), 's12', mods='offen'); LOG.append('x')
    I('buffer_load_dwordx4', v(16, 4), 'v7', s(52, 4), 's12', mods='offen offset:1024'); LOG.append('x')
    I('s_mul_i32', 's7', 's13', 6144)
    I('s_lshl_b32', 's8', 's5', 7)
    I('s_add_u32', 's7', 's7', 's8')
    I('s_lshl_b32', 's8', 's3', 12)
    for j in range(4):
        I('s_add_u32', 'm0', 's8', L_A + j * 1024)
        I('s_add_u32', 's9', 's7', j * 8 * 6144)
        I('buffer_load_dwordx4', 'v4', s(44, 4), 's9', mods='offen lds'); LOG.append('g')
    I('s_min_u32', 's14', 's3', 2)
    I('s_lshl_b32', 's14', 's14', 10)
    I('s_mul_i32', 's15', 's11', 16 * 3072)
    I('s_add_u32', 's14', 's14', 's15')
    I('s_lshl_b32', 's15', 's4', 7)
    I('s_add_u32', 's14', 's14', 's15')
    I('s_lshl_b32', 's60', 's3', 11)
    for j in range(2):
        I('s_add_u32', 'm0', 's60', L_W + j * 1024)
        I('s_add_u32', 's9', 's14', j * 8 * 3072)
        I('buffer_load_dwordx4', 'v5', s(48, 4), 's9', mods='offen lds'); LOG.append('w')
    if code_prefetch(k, 21, 27, 64, 4):
        LOG.append('code')
    if OPT.get('k0tlb', 0):
        I('s_cmp_eq_u32', 's3', 0)
        I('s_cselect_b32', 's64', s(S_WG), s(S_WU))
        I('s_cselect_b32', 's65', s(S_WG + 1), s(S_WU + 1))
        I('s_cmp_eq_u32', 's3', 2)
        I('s_cselect_b32', 's64', s(S_WD), 's64')
        I('s_cselect_b32', 's65', s(S_WD + 1), 's65')
        I('s_cmp_eq_u32', 's3', 3)
        I('s_cselect_b32', 's64', s(S_WO), 's64')
        I('s_cselect_b32', 's65', s(S_WO + 1), 's65')
        I('s_mov_b32', 's9', 1792 * 1024)
        I('s_cselect_b32', 's66', 512 * 1024, 's9')
        I('s_cmp_lt_u32', 's2', 16)
        I('s_cselect_b32', 's66', 's66', 0)
        I('s_mov_b32', 's67', 0x20000)
        I('v_lshlrev_b32', 'v21', 15, 'v1')
        I('buffer_load_dword', 'v27', 'v21', s(64, 4), 0, mods='offen'); LOG.append('tlb')
    tick(k)

    def wait_for(tag):
        last = max(i for i, e in enumerate(LOG) if e == tag)
        k.waitcnt(vm=len(LOG) - 1 - last)
    I('v_lshrrev_b32', 'v2', 4, 'v1')
    I('v_bfe_u32', 'v3', 'v1', 2, 2)
    I('v_and_b32', 'v9', 3, 'v1')
    I('v_lshl_add_u32', 'v20', 'v2', 3, 'v3')
    I('v_lshlrev_b32', 'v20', 7, 'v20')
    I('v_lshl_add_u32', 'v20', 'v9', 3, 'v20')
    I('v_add_u32', 'v20', 's8', 'v20')
    I('s_lshl_b32', 's9', 's3', 6)
    I('s_add_u32', 's9', 's9', L_S)
    I('v_lshl_add_u32', 'v22', 'v2', 4, 's9')
    I('v_add_u32', 'v23', 's9', 'v6')
    I('v_lshrrev_b32', 'v24', 5, 'v1')
    I('v_lshl_add_u32', 'v25', 'v24', 3, 'v3')
    I('v_lshlrev_b32', 'v25', 7, 'v25')
    I('v_bfe_u32', 'v26', 'v1', 4, 1)
    I('v_lshl_add_u32', 'v25', 'v26', 5, 'v25')
    I('v_lshl_add_u32', 'v25', 'v9', 3, 'v25')
    I('s_add_u32', 's9', 's60', L_W)
    I('v_add_u32', 'v25', 's9', 'v25')
    wait_for('c')
    I('v_lshlrev_b32', 'v9', 16, 'v8')
    I('v_and_b32', 'v10', 0xffff0000, 'v8')
    I('s_mov_b32', 's14', f32bits(-1.4426950408889634))
    for r, t_ in ((9, 28), (10, 29)):
        I('v_mul_f32', v(t_), 's14', v(r))
    for t_ in (28, 29):
        I('v_exp_f32', v(t_), v(t_))
    for t_ in (28, 29):
        I('v_add_f32', v(t_), 1.0, v(t_))
    for t_ in (28, 29):
        I('v_rcp_f32', v(t_), v(t_))
    for r, t_ in ((9, 28), (10, 29)):
        I('v_mul_f32', v(r), v(r), v(t_))
    I('v_cvt_pk_bf16_f32', 'v9', 'v9', 'v10')
    I('ds_write_b32', 'v23', 'v9')
    wait_for('x')
    tick(k)
    unpack8(k, 64, 12)
    unpack8(k, 72, 16)
    k.waitcnt(lgkm=0)
    I('ds_read_b128', v(48, 4), 'v22')
    for b, t_ in ((64, 40), (72, 41)):
        I('v_add_f32', v(t_), v(b), v(b + 1))
        for j in range(2, 8):
            I('v_add_f32', v(t_), v(t_), v(b + j))
    wave_sum_to_sgpr(k, [40, 41], [62, 63])
    I('s_mov_b32', 's14', f32bits(1.0 / 512))
    for t_, sd in ((40, 62), (41, 63)):
        I('v_mov_b32', v(t_), s(sd))
        I('v_mul_f32', v(t_), 's14', v(t_))
    for b, t_ in ((64, 40), (72, 41)):
        for j in range(8):
            I('v_sub_f32', v(b + j), v(b + j), v(t_))
    for b, t_ in ((64, 42), (72, 43)):
        I('v_mul_f32', v(t_), v(b), v(b))
        for j in range(1, 8):
            I('v_fmac_f32', v(t_), v(b + j), v(b + j))
    wave_sum_to_sgpr(k, [42, 43], [62, 63])
    I('s_mov_b32', 's15', f32bits(1e-5))
    for t_, sd in ((42, 62), (43, 63)):
        I('v_mov_b32', v(t_), s(sd))
        I('v_mov_b32', v(44), 's15')
        I('v_fma_f32', v(t_), v(t_), 's14', v(44))
        I('v_rsq_f32', v(t_), v(t_))
    for b, t_ in ((64, 42), (72, 43)):
        for j in range(8):
            I('v_mul_f32', v(b + j), v(b + j), v(t_))
    pack8(k, 12, 64)
    pack8(k, 16, 72)
    I('v_lshlrev_b32', 'v11', 7, 'v1')
    I('s_lshl_b32', 's9', 's3', 5)
    I('s_add_u32', 's9', 's9', L_X)
    I('v_add_u32', 'v11', 's9', 'v11')
    I('ds_write_b128', 'v11', v(12, 4))
    I('ds_write_b128', 'v11', v(16, 4), mods='offset:16')
    wait_for('g')
    tick(k)
    for cg in range(4):
        I('ds_read_b64_tr_b16', v(80 + 4 * cg, 2), 'v20', mods=f'offset:{cg * 32}')
        I('ds_read_b64_tr_b16', v(82 + 4 * cg, 2), 'v20', mods=f'offset:{cg * 32 + 512}')
    for cg in range(4):
        k.waitcnt(lgkm=6 - 2 * cg)
        I('v_mfma_f32_16x16x32_bf16', v(100 + 4 * cg, 4), v(48, 4), v(80 + 4 * cg, 4), 0)
    wait_for('w')
    for u in range(2):
        I('ds_read_b64_tr_b16', v(52 + 4 * u, 2), 'v25', mods=f'offset:{u * 64}')
        I('ds_read_b64_tr_b16', v(54 + 4 * u, 2), 'v25', mods=f'offset:{u * 64 + 512}')
    I('s_lshl_b32', 's9', 's3', 8)
    I('s_add_u32', 's9', 's9', L_P)
    I('v_add_u32', 'v28', 's9', 'v6')
    for cg in range(4):
        I('ds_write_b32', 'v28', v(100 + 4 * cg), mods=f'offset:{cg * 64}')
    I('s_mul_i32', 's9', 's4', 2 * W1_NB)
    I('s_mul_i32', 's14', 's11', 3072)
    I('s_add_u32', 's9', 's9', 's14')
    I('s_lshl_b32', 's14', 's3', 10)
    I('s_add_u32', 's9', 's9', 's14')
    I('s_add_u32', 's9', 's9', W1)
    I('s_add_u32', 's14', 's9', W1_NB)
    k.waitcnt(lgkm=0)
    I('s_cmp_eq_u32', 's3', 3)
    I('s_cbranch_scc1', 'L_k0_now')
    I('buffer_store_dwordx4', v(52, 4), 'v7', s(R_WS, 4), 's9', mods=f'offen {ST_POL}')
    I('buffer_store_dwordx4', v(56, 4), 'v7', s(R_WS, 4), 's14', mods=f'offen {ST_POL}')
    k.label('L_k0_now')
    tick(k)
    k.barrier()
    tick(k)
    I('s_add_u32', 's9', 's60', L_X)
    I('v_add_u32', 'v11', 's9', 'v7')
    I('ds_read_b128', v(12, 4), 'v11')
    I('ds_read_b128', v(16, 4), 'v11', mods='offset:1024')
    I('v_lshlrev_b32', 'v29', 2, 'v1')
    for w in range(4):
        I('ds_read_b32', v(30 + w), 'v29', mods=f'offset:{L_P + w * 256}')
    I('s_lshr_b32', 's12', 's10', 5)
    I('s_lshl_b32', 's12', 's12', 15)
    I('s_and_b32', 's14', 's10', 31)
    I('s_lshl_b32', 's14', 's14', 4)
    I('s_add_u32', 's12', 's12', 's14')
    I('s_lshl_b32', 's14', 's3', 13)
    I('s_add_u32', 's12', 's12', 's14')
    I('s_add_u32', 's12', 's12', XN)
    I('s_add_u32', 's14', 's12', 4096)
    I('v_lshrrev_b32', 'v11', 3, 'v1')
    I('v_lshlrev_b32', 'v11', 9, 'v11')
    I('v_and_b32', 'v10', 7, 'v1')
    I('v_lshl_add_u32', 'v11', 'v10', 4, 'v11')
    k.waitcnt(lgkm=4)
    I('buffer_store_dwordx4', v(12, 4), 'v11', s(R_WS, 4), 's12', mods=f'offen {ST_POL}')
    I('buffer_store_dwordx4', v(16, 4), 'v11', s(R_WS, 4), 's14', mods=f'offen {ST_POL}')
    I('s_cmp_lg_u32', 's3', 3)
    I('s_cbranch_scc1', 'L_k0_done')
    I('s_cmp_ge_u32', 's2', 192)
    I('s_cbranch_scc1', 'L_k0_done')
    k.waitcnt(lgkm=0)
    I('v_add_f32', 'v30', 'v30', 'v31')
    I('v_add_f32', 'v32', 'v32', 'v33')
    I('v_add_f32', 'v30', 'v30', 'v32')
    I('s_mul_i32', 's9', 's6', MODP_P)
    I('s_lshl_b32', 's14', 's5', 8)
    I('s_add_u32', 's9', 's9', 's14')
    I('s_add_u32', 's9', 's9', MODP)
    I('buffer_store_dword', 'v30', 'v29', s(R_WS, 4), 's9', mods='offen')
    k.label('L_k0_done')
    epilogue(k, 0)
    return k, 256, 256, LDS


QSCALE = 0.25 * 1.4426950408889634


def gen_k1():
    k = Kernel('k1_qkv_kernel')
    I = k.I
    L_G = 98304
    L_E = L_G + 4096
    L_PF = L_E + 49152
    LDS = L_PF + 8192
    prologue(k, 256, need_lo=True)
    xcd_map(k, 2, 4, 5, OPT.get('x1', 2))
    I('s_and_b32', 's61', 's3', 3)
    I('s_lshr_b32', 's63', 's3', 2)
    I('s_lshl_b32', 's6', 's4', 2)
    I('s_add_u32', 's6', 's6', 's61')
    I('v_lshlrev_b32', 'v2', 4, 'v1')
    I('v_lshlrev_b32', 'v4', 3, 'v0')
    I('s_lshl_b32', 's8', 's63', 4)
    I('s_add_u32', 's8', 's8', 's61')
    I('s_mul_i32', 's8', 's8', 3072)
    I('s_mul_i32', 's7', 's5', W1_NB)
    I('s_add_u32', 's7', 's7', 's8')
    I('s_add_u32', 's7', 's7', W1)
    I('s_lshl_b32', 's9', 's6', 15)
    I('s_lshl_b32', 's10', 's63', 14)
    I('s_add_u32', 's9', 's9', 's10')
    I('s_add_u32', 's9', 's9', XN)
    k.waitcnt(lgkm=0)
    tick(k)
    srd(k, R_WS, S_WS, WS_SIZE)
    ACC = 16
    TOK = 64
    WF = 128
    GS = 152
    TM = 184
    LOG = []
    FILL = []
    SJ = 192
    I('s_cmp_ge_u32', 's2', 4)
    I('s_cbranch_scc1', 'L_k1_nosj')
    I('s_lshl_b32', 's10', 's2', 11)
    I('s_add_u32', 's10', 's10', MODP + 4096)
    I('v_lshlrev_b32', 'v3', 2, 'v0')
    for p in range(4):
        I('s_add_u32', 's11', 's10', p * MODP_P)
        I('buffer_load_dword', v(SJ + p), 'v3', s(R_WS, 4), 's11', mods='offen')
    k.label('L_k1_nosj')
    for p in range(4):
        I('s_mov_b32', 's10', MODP + p * MODP_P)
        I('buffer_load_dwordx2', v(ACC + 2 * p, 2), 'v4', s(R_WS, 4), 's10', mods='offen')
        LOG.append('m')

    def w_op(c, q):
        def f():
            if q == 0:
                I('s_add_u32', 's10', 's7', c * 12288)
            I('s_add_u32', 'm0', 's8', c * 12288)
            I('buffer_load_dwordx4', 'v2', s(R_WS, 4), 's10', mods=f'offen offset:{q * 1024} lds')
            LOG.append(('w', c))
        return f

    def t_op(i):
        def f():
            if i % 4 == 0:
                I('s_add_u32', 's11', 's9', i * 1024)
            I('buffer_load_dwordx4', v(TOK + 4 * i, 4), 'v2', s(R_WS, 4), 's11', mods=f'offen offset:{(i % 4) * 1024}')
            LOG.append(('t', i))
        return f
    for c in range(4):
        FILL += [w_op(c, q) for q in range(3)] + [t_op(4 * c + q) for q in range(4)]

    def pf_op(ptr, nbytes):
        def f():
            srd(k, 44, ptr, nbytes)
            I('s_lshl_b32', 's12', 's2', 13)
            I('s_lshl_b32', 's13', 's3', 10)
            I('s_add_u32', 's12', 's12', 's13')
            I('s_add_u32', 'm0', 's13', L_PF)
            I('buffer_load_dwordx4', 'v2', s(44, 4), 's12', mods='offen lds')
            LOG.append(('pf',))
        return f
    def cp_op():
        if code_prefetch(k, 7, 196, 44, 8):
            LOG.append(('code',))
    FILL.append(cp_op)
    if OPT.get('k1pf', 0):
        FILL += [pf_op(S_WG, 512 * 3584), pf_op(S_WU, 512 * 3584), pf_op(S_WD, 1792 * 1024), pf_op(S_WO, 512 * 1024)]
    for _ in range(OPT.get('k1pre', 5)):
        FILL.pop(0)()
    I('s_mul_i32', 's10', 's63', 16 * 3072)
    I('v_add_u32', 'v3', 's10', 'v2')
    I('v_lshrrev_b32', 'v5', 5, 'v1')
    I('v_lshlrev_b32', 'v5', 5, 'v5')
    I('s_lshl_b32', 's10', 's63', 10)
    I('s_add_u32', 's10', 's10', L_G)
    I('v_add_u32', 'v5', 's10', 'v5')
    I('v_add_u32', 'v6', L_G, 'v4')
    k.waitcnt(vm=len(LOG) - 4)
    for e in range(2):
        I('v_add_f32', v(ACC + e), v(ACC + e), v(ACC + 2 + e))
        I('v_add_f32', v(ACC + 4 + e), v(ACC + 4 + e), v(ACC + 6 + e))
    for e in range(2):
        I('v_add_f32', v(ACC + e), v(ACC + e), v(ACC + 4 + e))
    I('v_cvt_pk_bf16_f32', v(ACC + 2), v(ACC), v(ACC + 1))
    I('v_lshlrev_b32', v(ACC), 16, v(ACC + 2))
    I('v_and_b32', v(ACC + 1), 0xffff0000, v(ACC + 2))
    I('s_cmp_eq_u32', 's63', 0)
    I('s_cbranch_scc1', 'L_k1_issa')
    for e in range(2):
        I('v_add_f32', v(ACC + e), 1.0, v(ACC + e))
    I('v_cvt_pk_bf16_f32', v(ACC + 2), v(ACC), v(ACC + 1))
    I('v_lshlrev_b32', v(ACC), 16, v(ACC + 2))
    I('v_and_b32', v(ACC + 1), 0xffff0000, v(ACC + 2))
    k.label('L_k1_issa')
    I('ds_write_b64', 'v6', v(ACC, 2))
    for _ in range(OPT.get('k1pre2', 5)):
        FILL.pop(0)()
    k.waitcnt(lgkm=0)

    def rdw(i):
        st = WF + 12 * (i & 1)
        for f in range(3):
            I('ds_read_b128', v(st + 4 * f, 4), 'v3', mods=f'offset:{i * 3072 + f * 1024}')

    def rdg(i):
        g = GS + 16 * (i & 1)
        for q in range(2):
            I('ds_read_b128', v(g + 4 * q, 4), 'v5', mods=f'offset:{i * 64 + 16 * q}')
        for q in range(2):
            I('ds_read_b128', v(g + 8 + 4 * q, 4), 'v5', mods=f'offset:{2048 + i * 64 + 16 * q}')

    def mod_ops(i):
        g = GS + 16 * (i & 1)
        tk = TOK + 4 * i
        L = []
        A_ = lambda *a_, **kw: L.append(lambda: I(*a_, **kw))
        for j in range(4):
            A_('v_lshlrev_b32', v(TM + 2 * j), 16, v(tk + j))
            A_('v_and_b32', v(TM + 2 * j + 1), 0xffff0000, v(tk + j))
        if OPT.get('k1pk', 0):
            for j in range(4):
                A_('v_pk_fma_f32', v(TM + 2 * j, 2), v(TM + 2 * j, 2), v(g + 8 + 2 * j, 2), v(g + 2 * j, 2))
        else:
            for j in range(8):
                A_('v_fma_f32', v(TM + j), v(TM + j), v(g + 8 + j), v(g + j))
        for j in range(4):
            A_('v_cvt_pk_bf16_f32', v(tk + j), v(TM + 2 * j), v(TM + 2 * j + 1))
        return L

    def need(tags):
        for tg in tags:
            while tg not in LOG or (tg[0] == 'w' and LOG.count(tg) < 3):
                FILL.pop(0)()
        last = max(i for i, e in enumerate(LOG) if e in tags)
        k.waitcnt(vm=len(LOG) - 1 - last)
    need([('w', 0), ('t', 0)])
    k.barrier()
    tick(k)
    rdw(0)
    rdg(0)
    rdg(1)
    k.waitcnt(lgkm=4)
    for f in mod_ops(0):
        f()
    NSTEP = 16
    for i in range(NSTEP):
        nxt = i + 1
        VQ = []
        if nxt < NSTEP:
            if nxt % 4 == 0:
                need([('w', nxt // 4), ('t', nxt)])
                k.barrier()
                tick(k)
            else:
                need([('t', nxt)])
            rdw(nxt)
            if i + 2 < NSTEP:
                rdg(i + 2)
                k.waitcnt(lgkm=7)
            else:
                k.waitcnt(lgkm=3)
            VQ = mod_ops(nxt)
        else:
            k.waitcnt(lgkm=0)
        st = WF + 12 * (i & 1)
        tok = v(TOK + 4 * i, 4)
        n3 = (len(VQ) + 2) // 3
        for f in range(3):
            c = 0 if i == 0 else v(ACC + 16 * f, 16)
            if f < 2:
                I('v_mfma_f32_32x32x16_bf16', v(ACC + 16 * f, 16), v(st + 4 * f, 4), tok, c)
            else:
                I('v_mfma_f32_32x32x16_bf16', v(ACC + 16 * f, 16), tok, v(st + 4 * f, 4), c)
            for _ in range(OPT.get('k1rate', 1) if f < 2 else OPT.get('k1rate', 1) - 1):
                if FILL:
                    FILL.pop(0)()
            for _ in range(n3):
                if VQ:
                    VQ.pop(0)()
    assert not FILL
    tick(k)
    I('s_mul_i32', 's10', 's3', 6144)
    I('s_add_u32', 's10', 's10', L_E)
    I('v_add_u32', 'v6', 's10', 'v2')
    I('s_xor_b32', 's11', 's3', 4)
    I('s_mul_i32', 's11', 's11', 6144)
    I('s_add_u32', 's11', 's11', L_E)
    I('v_add_u32', 'v7', 's11', 'v2')
    I('s_lshl_b32', 's11', 's5', 17)
    I('s_lshl_b32', 's12', 's6', 10)
    I('s_add_u32', 's11', 's11', 's12')
    I('s_mul_i32', 's12', 's63', KB - QB)
    I('s_add_u32', 's12', 's12', 's11')
    I('s_add_u32', 's12', 's12', QB)
    I('s_add_u32', 's13', 's12', 65536)
    I('s_lshl_b32', 's14', 's63', 9)
    I('s_add_u32', 's14', 's14', 's11')
    I('s_add_u32', 's14', 's14', VB)
    I('v_bfe_u32', 'v4', 'v1', 4, 1)
    I('v_lshlrev_b32', 'v4', 16, 'v4')
    I('v_lshrrev_b32', 'v5', 5, 'v1')
    I('v_lshl_add_u32', 'v4', 'v5', 8, 'v4')
    I('v_and_b32', 'v5', 15, 'v1')
    I('v_lshl_add_u32', 'v4', 'v5', 4, 'v4')
    k.flush()
    KEEP = TOK
    I('s_cmp_eq_u32', 's63', 0)
    I('s_cbranch_scc0', 'L_k1_x1')
    for kh in range(2):
        keep = [ACC + 16 * kh + r for r in range(16)] + [ACC + 32 + 8 * kh + r for r in range(8)]
        send = [ACC + 16 * (1 - kh) + 4 * j for j in range(4)] + [ACC + 32 + 8 * (1 - kh) + 4 * j for j in range(2)]
        for j, r in enumerate(send):
            I('ds_write_b128', 'v6', v(r, 4), mods=f'offset:{j * 1024}')
        if kh == 0:
            I('s_mov_b32', 's15', f32bits(QSCALE))
        else:
            I('s_mov_b32', 's15', f32bits(1.0))
        for j, r in enumerate(keep):
            I('v_mov_b32', v(KEEP + j), v(r))
        if kh == 0:
            I('s_branch', 'L_k1_x2')
            k.label('L_k1_x1')
    k.label('L_k1_x2')
    k.waitcnt(lgkm=0)
    k.barrier()
    for j in range(6):
        I('ds_read_b128', v(ACC + 4 * j, 4), 'v7', mods=f'offset:{j * 1024}')
    P = WF
    dst = [('v2', 's12'), ('v2', 's13'), ('v4', 's14')]
    for g in range(3):
        k.waitcnt(lgkm=4 - 2 * g)
        for r in range(8):
            I('v_add_f32', v(KEEP + 8 * g + r), v(KEEP + 8 * g + r), v(ACC + 8 * g + r))
        if g < 2:
            for r in range(8):
                I('v_mul_f32', v(KEEP + 8 * g + r), 's15', v(KEEP + 8 * g + r))
        pack8(k, P + 4 * g, KEEP + 8 * g)
        I('buffer_store_dwordx4', v(P + 4 * g, 4), dst[g][0], s(R_WS, 4), dst[g][1], mods=f'offen {ST_POL}')
    for g in range(2):
        I('v_dot2_f32_bf16', v(8 + g), v(P + 4 * g), v(P + 4 * g), 0)
        I('v_dot2_f32_bf16', v(10 + g), v(P + 4 * g + 1), v(P + 4 * g + 1), 0)
    for g in range(2):
        I('v_dot2_f32_bf16', v(8 + g), v(P + 4 * g + 2), v(P + 4 * g + 2), v(8 + g))
        I('v_dot2_f32_bf16', v(10 + g), v(P + 4 * g + 3), v(P + 4 * g + 3), v(10 + g))
    for g in range(2):
        I('v_add_f32', v(8 + g), v(8 + g), v(10 + g))
    I('v_permlane32_swap_b32', 'v8', 'v9')
    I('v_add_f32', 'v8', 'v8', 'v9')
    I('v_mov_b32', 'v9', 'v8')
    for sh in ('row_shr:1', 'row_shr:2', 'row_shr:4', 'row_shr:8'):
        I('v_max_f32', 'v9', 'v9', 'v9', mods=f'{sh} row_mask:0xf bank_mask:0xf')
    I('v_max_f32', 'v9', 'v9', 'v9', mods='row_bcast:15 row_mask:0xa bank_mask:0xf')
    I('s_lshl_b32', 's10', 's63', 18)
    I('s_lshl_b32', 's11', 's5', 14)
    I('s_add_u32', 's10', 's10', 's11')
    I('s_lshl_b32', 's11', 's6', 7)
    I('s_add_u32', 's10', 's10', 's11')
    I('s_add_u32', 's10', 's10', NRM)
    I('v_lshrrev_b32', 'v10', 5, 'v1')
    I('v_lshlrev_b32', 'v11', 13, 'v10')
    I('v_and_b32', 'v12', 31, 'v1')
    I('v_lshl_add_u32', 'v11', 'v12', 2, 'v11')
    I('buffer_store_dword', 'v8', 'v11', s(R_WS, 4), 's10', mods='offen')
    I('s_lshl_b32', 's10', 's63', 13)
    I('s_lshl_b32', 's11', 's5', 9)
    I('s_add_u32', 's10', 's10', 's11')
    I('s_lshl_b32', 's11', 's6', 2)
    I('s_add_u32', 's10', 's10', 's11')
    I('s_add_u32', 's10', 's10', TMX)
    I('v_lshlrev_b32', 'v11', 8, 'v10')
    I('s_mov_b32', 'exec_lo', 0x80000000)
    I('s_mov_b32', 'exec_hi', 0x80000000)
    I('buffer_store_dword', 'v9', 'v11', s(R_WS, 4), 's10', mods='offen')
    I('s_mov_b64', 'exec', -1)
    I('s_cmp_ge_u32', 's2', 4)
    I('s_cbranch_scc1', 'L_k1_nomod')
    I('v_lshlrev_b32', 'v3', 2, 'v0')
    I('v_add_f32', 'v16', v(SJ), v(SJ + 1))
    I('v_add_f32', 'v18', v(SJ + 2), v(SJ + 3))
    I('v_add_f32', 'v16', 'v16', 'v18')
    I('v_cvt_pk_bf16_f32', 'v17', 'v16', 'v16')
    I('v_and_b32', 'v18', 0xffff0000, 'v17')
    I('v_add_f32', 'v19', 1.0, 'v18')
    I('v_cvt_pk_bf16_f32', 'v19', 'v19', 'v19')
    I('v_and_b32', 'v19', 0xffff0000, 'v19')
    I('s_cmp_eq_u32', 's2', 1)
    I('s_cbranch_scc1', 'L_k1_sb')
    I('s_mov_b32', 's13', MF_GB)
    I('s_cmp_eq_u32', 's2', 2)
    I('s_cselect_b64', 'vcc', -1, 0)
    I('v_cndmask_b32', 'v18', 'v18', 'v19', 'vcc')
    I('s_cselect_b32', 's13', MF_G2, 's13')
    I('s_cmp_eq_u32', 's2', 0)
    I('s_cselect_b32', 's13', MF_GA, 's13')
    I('s_add_u32', 's13', 's13', MODF)
    I('buffer_store_dword', 'v18', 'v3', s(R_WS, 4), 's13', mods='offen')
    I('s_branch', 'L_k1_nomod')
    k.label('L_k1_sb')
    I('s_mov_b32', 's13', MODF + MF_SB)
    I('v_lshlrev_b32', 'v3', 1, 'v0')
    I('buffer_store_short', 'v17', 'v3', s(R_WS, 4), 's13', mods='offen')
    k.label('L_k1_nomod')
    epilogue(k, 1, vtmp=4)
    return k, 256, 512, LDS


BIG = 1e30


def gen_k2():
    k = Kernel('k2_attn_kernel')
    I = k.I
    L_K, L_V, L_SIDE = 0, 16384, 32768
    LDS = L_SIDE + 32768
    Q, KF, VF, SB_, PB, OA, NM, MK = 16, 20, 56, 128, 176, 192, 208, 224
    MX = 244
    G2R, SBR = 80, 88
    Vb = lambda t: VF + 8 * (t % 3)
    prologue(k, 256)
    xcd_map(k, 1, 5, 4)
    I('s_lshl_b32', 's6', 's5', 3)
    I('s_add_u32', 's6', 's6', 's3')
    I('v_lshlrev_b32', 'v2', 4, 'v1')
    I('s_lshl_b32', 's9', 's4', 16)
    I('s_lshl_b32', 's10', 's6', 10)
    I('s_add_u32', 's10', 's10', 's9')
    I('s_add_u32', 's10', 's10', QB)
    I('s_lshl_b32', 's8', 's3', 11)
    I('v_lshrrev_b32', 'v3', 5, 'v1')
    I('v_bfe_u32', 'v4', 'v1', 4, 1)
    I('v_bfe_u32', 'v5', 'v1', 2, 2)
    I('v_and_b32', 'v6', 1, 'v1')
    I('v_bfe_u32', 'v7', 'v1', 1, 1)
    I('v_lshl_add_u32', 'v6', 'v6', 1, 'v7')
    I('v_lshlrev_b32', 'v13', 8, 'v3')
    I('v_and_b32', 'v14', 15, 'v1')
    I('v_lshl_add_u32', 'v13', 'v14', 4, 'v13')
    I('v_and_b32', 'v12', 31, 'v1')
    I('v_lshlrev_b32', 'v12', 2, 'v12')
    I('v_lshlrev_b32', 'v14', 5, 'v3')
    I('v_lshlrev_b32', 'v15', 4, 'v3')
    I('s_and_b32', 's12', 's3', 3)
    I('s_mul_i32', 's13', 's2', 3)
    I('s_add_u32', 's13', 's13', 's12')
    I('s_lshr_b32', 's15', 's2', 1)
    I('s_add_u32', 's15', 's15', 768)
    I('s_cmp_eq_u32', 's3', 3)
    I('s_cselect_b32', 's57', 's15', 's13')
    I('s_and_b32', 's15', 's2', 1)
    I('s_lshr_b32', 's13', 's3', 2)
    I('s_cmp_eq_u32', 's3', 3)
    I('s_cselect_b32', 's64', 's15', 's13')
    I('s_cmp_eq_u32', 's3', 7)
    I('s_cselect_b32', 's57', 's2', 's57')
    I('s_mul_i32', 's66', 's57', 2341)
    I('s_lshr_b32', 's66', 's66', 16)
    I('s_min_u32', 's66', 's66', 31)
    I('s_mul_i32', 's65', 's66', 28)
    I('s_sub_u32', 's65', 's57', 's65')
    I('s_lshl_b32', 's67', 's66', 6)
    I('s_add_u32', 's67', 's67', MODF + MF_G2)
    I('s_lshl_b32', 's68', 's66', 5)
    I('s_add_u32', 's68', 's68', MODF + MF_SB)
    I('s_lshl_b32', 's11', 's4', 13)
    I('s_lshl_b32', 's12', 's6', 7)
    I('s_add_u32', 's11', 's11', 's12')
    I('s_add_u32', 's11', 's11', NRM)
    I('s_lshl_b32', 's12', 's4', 8)
    I('s_lshl_b32', 's13', 's6', 2)
    I('s_add_u32', 's12', 's12', 's13')
    I('s_add_u32', 's12', 's12', TMX + 8192 - 32)
    I('s_sub_i32', 's14', 8, 's6')
    I('s_max_i32', 's14', 's14', 0)
    I('s_mov_b32', 's58', 0xffff)
    I('s_mov_b32', 's59', 0xffff)
    k.waitcnt(lgkm=0)
    tick(k)
    srd(k, R_WS, S_WS, WS_SIZE)
    I('s_buffer_load_dwordx8', s(48, 8), s(R_WS, 4), 's12')
    I('s_add_u32', 's12', 's12', 32)
    I('s_buffer_load_dword', 's56', s(R_WS, 4), 's12')
    Sb = lambda t: SB_ + 16 * (t % 3)

    def qk(t, C):
        I('v_mfma_f32_32x32x16_bf16', v(Sb(t), 16), v(KF + 4 * t, 4), v(Q, 4), C)

    def consts():
        I('v_and_b32', 'v10', 31, 'v1')
        I('v_lshlrev_b32', 'v11', 2, 'v3')
        I('v_sub_u32', 'v10', 'v10', 'v11')
        I('v_mov_b32', 'v11', f32bits(-BIG))
        for r in range(0, 16, 2):
            for q in range(2):
                kk = ((r + q) & 3) + 8 * ((r + q) >> 2)
                I('v_cmp_le_i32', s(60 + 2 * q, 2), kk, 'v10')
            for q in range(2):
                I('v_cndmask_b32', v(MK + r + q), 'v11', 0, s(60 + 2 * q, 2))

    def rdv(t):
        I('s_mov_b64', 'exec', s(58, 2))
        for j in range(2):
            I('ds_read_b128', v(Vb(t) + 4 * j, 4), 'v247', mods=f'offset:{L_V + t * 1024 + j * 512}')
        I('s_mov_b64', 'exec', -1)

    def lds_reads():
        for t in range(8, -1, -1):
            I('ds_read_b128', v(KF + 4 * t, 4), 'v246', mods=f'offset:{L_K + t * 1024}')

    def attn(tag, exact):
        rdv(8)
        rdv(7)
        if exact:
            qk(8, v(MK, 16))
            qk(7, 0)
            for t in range(8, -1, -1):
                if t - 2 > 0:
                    qk(t - 2, 0)
                elif t - 2 == 0:
                    for r in range(16):
                        I('v_sub_f32', v(Sb(0) + r), 'v11', v(MK + r))
                    qk(0, v(Sb(0), 16))
                b = Sb(t)
                if t == 8:
                    I('v_max3_f32', v(MX), v(b), v(b + 1), v(b + 2))
                    I('v_max3_f32', v(MX + 1), v(b + 3), v(b + 4), v(b + 5))
                    rest = list(range(6, 16))
                else:
                    rest = list(range(16))
                for i in range(0, len(rest), 2):
                    m = MX + ((i // 2) & 1)
                    I('v_max3_f32', v(m), v(m), v(b + rest[i]), v(b + rest[i + 1]))
                if t > 0:
                    I('s_cmp_eq_u32', 's14', t)
                    I('s_cbranch_scc1', f'L_k2_p1{tag}')
            k.label(f'L_k2_p1{tag}')
            k.nop(12)
            I('v_max_f32', v(MX), v(MX), v(MX + 1))
            I('v_mov_b32', v(MX + 1), v(MX))
            I('v_permlane32_swap_b32', v(MX), v(MX + 1))
            I('v_max_f32', v(MX), v(MX), v(MX + 1))
            for r in range(16):
                I('v_sub_f32', v(NM + r), 0, v(MX))
            for r in range(16):
                I('v_add_f32', v(Sb(8) + r), v(MK + r), v(NM))
        else:
            k.waitcnt(lgkm=11)
        qk(8, v(Sb(8), 16))
        qk(7, v(NM, 16))
        if not exact:
            k.waitcnt(lgkm=4)
        qk(6, v(NM, 16))
        for t in range(8, -1, -1):
            b = Sb(t)
            P = PB + 8 * (t & 1)
            E = lambda r: I('v_exp_f32', v(b + r), v(b + r))
            C = lambda j: I('v_cvt_pk_bf16_f32', v(P + j), v(b + 2 * j), v(b + 2 * j + 1))
            if t - 2 >= 0:
                rdv(t - 2)
            for r in range(9):
                E(r)
            for j in range(4):
                C(j)
                E(9 + j)
            E(13)
            k.waitcnt(lgkm=4 if t - 2 >= 0 else (2 if t == 1 else 0))
            I('v_mfma_f32_32x32x16_bf16', v(OA, 16), v(Vb(t), 4), v(P, 4), 0 if t == 8 else v(OA, 16))
            E(14)
            E(15)
            for j in range(4, 8):
                C(j)
            if t - 3 > 0:
                qk(t - 3, v(NM, 16))
            elif t - 3 == 0:
                for r in range(16):
                    I('v_sub_f32', v(Sb(0) + r), 'v11', v(MK + r))
                for r in range(16):
                    I('v_add_f32', v(Sb(0) + r), v(Sb(0) + r), v(NM))
                qk(0, v(Sb(0), 16))
            if t > 0:
                I('s_cmp_eq_u32', 's14', t)
            I('v_mfma_f32_32x32x16_bf16', v(OA, 16), v(Vb(t) + 4, 4), v(P + 4, 4), v(OA, 16))
            if t > 0:
                I('s_cbranch_scc1', f'L_k2_p2{tag}')
        k.label(f'L_k2_p2{tag}')
        k.nop(12)
        k.waitcnt(lgkm=0)

    def side_loads():
        I('v_lshrrev_b32', 'v8', 3, 'v1')
        I('v_and_b32', 'v9', 7, 'v1')
        I('v_lshlrev_b32', 'v9', 4, 'v9')
        I('v_lshl_add_u32', 'v248', 'v8', 10, 'v9')
        I('v_mul_u32_u24', 'v8', 3584, 'v8')
        I('v_add_u32', 'v8', 'v8', 'v9')
        I('s_lshl_b32', 's69', 's3', 12)
        I('s_add_u32', 's69', 's69', L_SIDE)
        I('s_cmp_eq_u32', 's64', 0)
        I('s_cbranch_scc0', 'L_k2_sl1')
        I('s_mul_i32', 's15', 's66', 16 * 3584)
        I('s_lshl_b32', 's60', 's65', 7)
        I('s_add_u32', 's15', 's15', 's60')
        I('s_add_u32', 's60', 's15', 8 * 3584)
        for m_, ptr in enumerate((S_WG, S_WU)):
            srd(k, 44, ptr, 512 * 3584)
            I('s_add_u32', 'm0', 's69', m_ * 2048)
            I('buffer_load_dwordx4', 'v8', s(44, 4), 's15', mods='offen lds')
            I('s_add_u32', 'm0', 's69', m_ * 2048 + 1024)
            I('buffer_load_dwordx4', 'v8', s(44, 4), 's60', mods='offen lds')
        I('s_branch', 'L_k2_sl2')
        k.label('L_k2_sl1')
        I('s_cmp_eq_u32', 's3', 7)
        I('s_cselect_b32', 's44', s(S_WO), s(S_WD))
        I('s_cselect_b32', 's45', s(S_WO + 1), s(S_WD + 1))
        I('s_mov_b32', 's13', 1792 * 1024)
        I('s_cselect_b32', 's46', 512 * 1024, 's13')
        I('s_mov_b32', 's47', 0x20000)
        I('s_lshr_b32', 's12', 's57', 3)
        I('s_lshl_b32', 's12', 's12', 14)
        I('s_and_b32', 's13', 's57', 7)
        I('s_lshl_b32', 's13', 's13', 7)
        I('s_add_u32', 's12', 's12', 's13')
        I('s_mov_b32', 'm0', 's69')
        I('buffer_load_dwordx4', 'v248', s(44, 4), 's12', mods='offen lds')
        I('s_add_u32', 'm0', 's69', 1024)
        I('s_add_u32', 's12', 's12', 8192)
        I('buffer_load_dwordx4', 'v248', s(44, 4), 's12', mods='offen lds')
        k.label('L_k2_sl2')

    I('s_lshl_b32', 's7', 's5', 3)
    I('s_lshl_b32', 's13', 's3', 1)
    I('s_add_i32', 's7', 's7', 's13')
    I('s_add_i32', 's7', 's7', -8)
    I('s_max_i32', 's7', 's7', 0)
    I('s_lshl_b32', 's7', 's7', 10)
    I('s_add_u32', 's7', 's7', 's9')
    I('s_add_u32', 'm0', 's8', L_K)
    I('s_add_u32', 's13', 's7', KB)
    I('buffer_load_dwordx4', 'v2', s(R_WS, 4), 's13', mods='offen lds')
    I('buffer_load_dwordx4', 'v2', s(R_WS, 4), 's13', mods='offen offset:1024 lds')
    I('buffer_load_dwordx4', v(Q, 4), 'v2', s(R_WS, 4), 's10', mods='offen')
    I('buffer_load_dword', v(MX), 'v12', s(R_WS, 4), 's11', mods='offen')
    I('s_add_u32', 'm0', 's8', L_V)
    I('s_add_u32', 's13', 's7', VB)
    I('buffer_load_dwordx4', 'v2', s(R_WS, 4), 's13', mods='offen lds')
    I('buffer_load_dwordx4', 'v2', s(R_WS, 4), 's13', mods='offen offset:1024 lds')
    I('buffer_load_dwordx4', v(G2R, 4), 'v14', s(R_WS, 4), 's67', mods='offen')
    I('buffer_load_dwordx4', v(G2R + 4, 4), 'v14', s(R_WS, 4), 's67', mods='offen offset:16')
    I('buffer_load_dwordx4', v(SBR, 4), 'v15', s(R_WS, 4), 's68', mods='offen')
    consts()
    for r in range(24):
        I('v_mov_b32', v(VF + r), 0x3f803f80)
    I('s_lshl_b32', 's13', 's3', 10)
    I('v_add_u32', 'v246', 's13', 'v2')
    I('v_add_u32', 'v247', 's13', 'v13')
    k.waitcnt(lgkm=0)
    for i in range(1, 9):
        I('s_max_u32', 's48', 's48', s(48 + i))
    k.waitcnt(vm=5)
    I('v_mul_f32', v(MX), 's48', v(MX))
    I('v_sqrt_f32', v(MX), v(MX))
    for r in range(16):
        I('v_sub_f32', v(NM + r), 0, v(MX))
    for r in range(16):
        I('v_add_f32', v(Sb(8) + r), v(MK + r), v(NM))
    k.waitcnt(vm=3)
    tick(k)
    k.barrier()
    tick(k)
    lds_reads()
    code_prefetch(k, 8, 249, 44, 8)
    side_loads()
    attn('a', exact=False)
    tick(k)
    I('v_mov_b32', v(MX), f32bits(2.0 ** -80))
    I('v_cmp_nge_f32', 'vcc', v(OA + 8), v(MX))
    if OPT.get('k2force'):
        I('s_mov_b64', 'vcc', -1)
    I('s_cbranch_vccz', 'L_k2_fin')
    attn('x', exact=True)
    k.label('L_k2_fin')
    I('v_rcp_f32', v(MX), v(OA + 8))
    for r in range(8):
        I('v_mul_f32', v(OA + r), v(OA + r), v(MX))
    pack8(k, PB, OA)
    I('s_lshl_b32', 's12', 's6', 15)
    I('s_lshl_b32', 's13', 's4', 10)
    I('s_add_u32', 's12', 's12', 's13')
    I('s_add_u32', 's12', 's12', OB)
    I('buffer_store_dwordx4', v(PB, 4), 'v2', s(R_WS, 4), 's12', mods=f'offen {ST_POL}')
    k.waitcnt(vm=1)
    tick(k)
    I('s_cmp_eq_u32', 's64', 0)
    I('s_cbranch_scc1', 'L_k2_gu')
    I('s_mov_b32', 's60', 1024)
    I('s_mov_b32', 's61', 512)
    I('s_cmp_eq_u32', 's3', 7)
    I('s_cselect_b32', 's12', 512, 's60')
    I('s_cselect_b32', 's13', 1024, 's61')
    I('v_mul_lo_u32', 'v8', 'v3', 's12')
    I('v_lshl_add_u32', 'v8', 'v5', 7, 'v8')
    I('v_lshl_add_u32', 'v8', 'v4', 5, 'v8')
    I('v_lshl_add_u32', 'v8', 'v6', 3, 'v8')
    I('v_add_u32', 'v8', 's69', 'v8')
    I('v_add_u32', 'v9', 's13', 'v8')
    RU = KF
    for u in range(2):
        I('ds_read_b64_tr_b16', v(RU + 4 * u, 2), 'v8', mods=f'offset:{u * 64}')
        I('ds_read_b64_tr_b16', v(RU + 4 * u + 2, 2), 'v9', mods=f'offset:{u * 64}')
    I('s_mov_b32', 's60', 114688)
    I('s_cselect_b32', 's60', 32768, 's60')
    I('s_mov_b32', 's61', WD)
    I('s_cselect_b32', 's61', WO, 's61')
    I('s_and_b32', 's12', 's57', 7)
    I('s_lshl_b32', 's12', 's12', 1)
    I('s_mul_i32', 's12', 's12', 's60')
    I('s_add_u32', 's61', 's61', 's12')
    I('s_lshr_b32', 's12', 's57', 3)
    I('s_lshl_b32', 's12', 's12', 10)
    I('s_add_u32', 's61', 's61', 's12')
    I('s_add_u32', 's62', 's61', 's60')
    k.waitcnt(lgkm=0)
    I('buffer_store_dwordx4', v(RU, 4), 'v2', s(R_WS, 4), 's61', mods=f'offen {ST_POL}')
    I('buffer_store_dwordx4', v(RU + 4, 4), 'v2', s(R_WS, 4), 's62', mods=f'offen {ST_POL}')
    I('s_branch', 'L_k2_sw1')
    k.label('L_k2_gu')
    I('v_lshlrev_b32', 'v10', 11, 'v4')
    I('v_lshl_add_u32', 'v11', 'v3', 3, 'v5')
    I('v_lshl_add_u32', 'v10', 'v11', 7, 'v10')
    I('v_lshl_add_u32', 'v10', 'v6', 3, 'v10')
    I('v_add_u32', 'v10', 's69', 'v10')
    RW = KF
    for u in range(4):
        I('ds_read_b64_tr_b16', v(RW + 4 * u, 2), 'v10', mods=f'offset:{u * 32}')
        I('ds_read_b64_tr_b16', v(RW + 4 * u + 2, 2), 'v10', mods=f'offset:{u * 32 + 512}')
    I('s_lshl_b32', 's60', 's65', 2)
    I('s_mul_i32', 's15', 's66', 7168)
    I('s_add_u32', 's15', 's15', W4)
    for u in range(4):
        I('s_add_u32', 's12', 's60', u)
        I('s_mul_i32', 's13', 's12', 147)
        I('s_lshr_b32', 's13', 's13', 10)
        I('s_mul_i32', 's61', 's13', 7)
        I('s_sub_u32', 's12', 's12', 's61')
        I('s_mul_i32', 's13', 's13', W4_NB)
        I('s_lshl_b32', 's12', 's12', 10)
        I('s_add_u32', 's12', 's12', 's13')
        I('s_add_u32', s(48 + u), 's12', 's15')
    for j in range(4):
        I('v_mov_b32', v(240 + j), 0x3f803f80)
    I('s_mul_i32', 's62', 's66', 28672)
    I('s_lshl_b32', 's63', 's60', 7)
    I('s_add_u32', 's62', 's62', 's63')
    I('s_add_u32', 's62', 's62', CSP)
    I('v_mul_u32_u24', 'v8', 14336, 'v3')
    I('v_add_u32', 'v8', 'v8', 'v12')
    I('v_cmp_eq_u32', 'vcc', 0, 'v3')
    BS = [96, 112, SB_, SB_ + 16]
    CS = [SB_ + 32, PB, OA, NM]
    T = MK
    for u in range(4):
        k.waitcnt(lgkm=6 - 2 * u)
        I('v_mfma_f32_32x32x16_bf16', v(BS[u], 16), v(SBR, 4), v(RW + 4 * u, 4), 0)
        unpack8(k, T + 8 * (u & 1), RW + 4 * u)
        for j in range(8):
            I('v_mul_f32', v(T + 8 * (u & 1) + j), v(T + 8 * (u & 1) + j), v(G2R + j))
        pack8(k, RW + 16 + 4 * u, T + 8 * (u & 1))
        I('buffer_store_dwordx4', v(RW + 16 + 4 * u, 4), 'v2', s(R_WS, 4), s(48 + u), mods=f'offen {ST_POL}')
        I('v_mfma_f32_32x32x16_bf16', v(CS[u], 16), v(240, 4), v(RW + 16 + 4 * u, 4), 0)
    for u in range(4):
        I('v_cndmask_b32', v(244 + u), v(BS[u]), v(CS[u]), 'vcc')
        I('buffer_store_dword', v(244 + u), 'v8', s(R_WS, 4), 's62', mods=f'offen offset:{128 * u}')
    k.label('L_k2_sw1')
    epilogue(k, 2, vtmp=4)
    return k, 256, 512, LDS


def gen_gemm64(name, idx, NS, A_BASE, A_TB, B_BASE, B_NF, is_k3):
    k = Kernel(name)
    I = k.I
    LDS = 4 * 3 * 4096
    prologue(k, 256, need_lo=is_k3)
    xcd_map(k, 3, 4, 5, OPT.get('x3' if is_k3 else 'x5', 2))
    I('v_lshlrev_b32', 'v2', 4, 'v1')
    I('v_lshrrev_b32', 'v3', 5, 'v1')
    I('v_and_b32', 'v4', 31, 'v1')
    NT = 4 * NS
    ROT = OPT.get('rot64', 0)
    I('s_lshr_b32', 's6', 's2', 3)
    I('s_mul_i32', 's6', 's6', NT * ROT)
    I('s_lshr_b32', 's6', 's6', 5)
    I('s_mul_i32', 's61', 's3', NS)
    I('s_add_u32', 's6', 's6', 's61')
    I('s_cmp_ge_u32', 's6', NT)
    I('s_cselect_b32', 's61', NT, 0)
    I('s_sub_u32', 's6', 's6', 's61')
    I('s_lshl_b32', 's6', 's6', 10)
    I('s_mul_i32', 's7', 's4', 2 * A_TB)
    I('s_add_u32', 's7', 's7', A_BASE)
    I('s_add_u32', 's8', 's7', A_TB)
    I('s_mul_i32', 's9', 's5', 2 * B_NF)
    I('s_add_u32', 's9', 's9', B_BASE)
    I('s_add_u32', 's10', 's9', B_NF)
    I('s_and_b32', 's11', 's3', 1)
    I('s_lshr_b32', 's12', 's3', 1)
    I('s_lshl_b32', 's13', 's4', 1)
    I('s_add_u32', 's13', 's13', 's12')
    I('s_lshl_b32', 's14', 's5', 1)
    I('s_add_u32', 's14', 's14', 's11')
    k.waitcnt(lgkm=0)
    tick(k)
    srd(k, R_WS, S_WS, WS_SIZE)
    ACC = 16
    GV = 80
    XR = 96
    RING = 104
    DEPTH = min(NS, OPT.get('gdepth', 8))
    LOG = []

    def ld(st):
        b = RING + 16 * (st % DEPTH)
        va = 'v11' if st & 1 else 'v12'
        I('v_add_u32', va, 's6', 'v2')
        I('s_add_u32', 's6', 's6', 1024)
        I('s_cmp_eq_u32', 's6', NT * 1024)
        I('s_cselect_b32', 's6', 0, 's6')
        for j, r in enumerate((9, 7, 10, 8)):
            I('buffer_load_dwordx4', v(b + 4 * j, 4), va, s(R_WS, 4), s(r), mods='offen')
            LOG.append(('k', st))

    def side_loads():
        I('s_lshl_b32', 's15', 's14', 7)
        I('s_add_u32', 's15', 's15', MODF + (MF_GA if is_k3 else MF_GB))
        I('v_lshlrev_b32', 'v5', 5, 'v3')
        for sp in range(2):
            for q in range(2):
                I('buffer_load_dwordx4', v(GV + 8 * sp + 4 * q, 4), 'v5', s(R_WS, 4), 's15', mods=f'offen offset:{64 * sp + 16 * q}')
                LOG.append(('s', 0))
        if is_k3:
            srd(k, 44, S_X, 2048 * 1024)
            I('s_lshl_b32', 's15', 's13', 15)
            I('s_lshl_b32', 's60', 's14', 6)
            I('s_add_u32', 's15', 's15', 's60')
            I('v_lshlrev_b32', 'v6', 10, 'v4')
            I('v_lshl_add_u32', 'v6', 'v3', 4, 'v6')
            for sp in range(2):
                I('buffer_load_dwordx4', v(XR + 4 * sp, 4), 'v6', s(44, 4), 's15', mods=f'offen offset:{32 * sp}')
                LOG.append(('s', 0))
        else:
            I('s_lshl_b32', 's15', 's13', 15)
            I('s_lshl_b32', 's60', 's14', 11)
            I('s_add_u32', 's15', 's15', 's60')
            I('s_add_u32', 's15', 's15', X1)
            for sp in range(2):
                I('buffer_load_dwordx4', v(XR + 4 * sp, 4), 'v2', s(R_WS, 4), 's15', mods=f'offen offset:{1024 * sp}')
                LOG.append(('s', 0))

    PRE = min(DEPTH, OPT.get('gpre', 4))
    CSL = [False]
    CPF = [0]
    nxt = 0
    for st in range(PRE):
        ld(st)
        nxt += 1
    side_done = False
    for st in range(NS):
        tgt = min(NS, st + DEPTH)
        n_issue = 0
        while nxt < tgt and n_issue < 2:
            ld(nxt)
            nxt += 1
            n_issue += 1
        if nxt == NS and not side_done:
            side_loads()
            if is_k3:
                I('v_mul_u32_u24', 'v8', 14336, 'v3')
                I('v_lshl_add_u32', 'v8', 'v4', 2, 'v8')
                I('s_min_u32', 's15', 's2', 111)
                I('s_lshl_b32', 's15', 's15', 7)
                I('s_add_u32', 's15', 's15', CSP)
                I('s_cmp_lg_u32', 's3', 0)
                I('s_cbranch_scc1', f'L_{name}_nocs')
                for p in range(32):
                    I('s_add_u32', 's60', 's15', p * 28672)
                    I('buffer_load_dword', a(p), 'v8', s(R_WS, 4), 's60', mods='offen')
                k.label(f'L_{name}_nocs', flush=False)
                CSL[0] = True
            if code_prefetch(k, 13, 14, 48, 4):
                LOG.append(('s', 0))
                CPF[0] = 1
            side_done = True
        last = max(i for i, e in enumerate(LOG) if e == ('k', st))
        if CSL[0]:
            I('s_cmp_lg_u32', 's3', 0)
            I('s_cbranch_scc1', f'L_{name}_w{st}')
            k.waitcnt(vm=min(63, len(LOG) - 1 - last + 32))
            I('s_branch', f'L_{name}_x{st}')
            k.label(f'L_{name}_w{st}', flush=False)
            k.waitcnt(vm=len(LOG) - 1 - last)
            k.label(f'L_{name}_x{st}', flush=False)
        else:
            k.waitcnt(vm=len(LOG) - 1 - last)
        b = RING + 16 * (st % DEPTH)
        B0, A0, B1, A1 = (v(b + 4 * j, 4) for j in range(4))
        for nfl, Bf in ((0, B0), (1, B1)):
            for tbl, Af in ((0, A0), (1, A1)):
                a_ = ACC + 16 * (2 * nfl + tbl)
                I('v_mfma_f32_32x32x16_bf16', v(a_, 16), Bf, Af, 0 if st == 0 else v(a_, 16))
    tick(k)
    k.flush()
    for o in range(4):
        q = 2 * (o & 1) + (o >> 1)
        lab = f'L_{name}_skip{o}'
        I('s_cmp_eq_u32', 's3', o)
        I('s_cbranch_scc1', lab)
        I('s_sub_u32', 's15', 's3', o + 1)
        I('s_and_b32', 's15', 's15', 3)
        I('s_lshl_b32', 's15', 's15', 12)
        I('v_add_u32', 'v7', 's15', 'v2')
        for j in range(4):
            I('ds_write_b128', 'v7', v(ACC + 16 * q + 4 * j, 4), mods=f'offset:{o * 12288 + j * 1024}')
        k.label(lab)
    OWN = RING
    for o in range(4):
        q = 2 * (o & 1) + (o >> 1)
        lab = f'L_{name}_own{o}'
        I('s_cmp_lg_u32', 's3', o)
        I('s_cbranch_scc1', lab)
        for r in range(16):
            I('v_mov_b32', v(OWN + r), v(ACC + 16 * q + r))
        k.label(lab)
    k.waitcnt(lgkm=0)
    k.barrier()
    tick(k)
    I('s_mul_i32', 's15', 's3', 12288)
    I('v_add_u32', 'v7', 's15', 'v2')
    for p in range(3):
        for j in range(4):
            I('ds_read_b128', v(ACC + 16 * p + 4 * j, 4), 'v7', mods=f'offset:{p * 4096 + j * 1024}')
    for p in range(3):
        k.waitcnt(lgkm=8 - 4 * p)
        for r in range(16):
            I('v_add_f32', v(OWN + r), v(OWN + r), v(ACC + 16 * p + r))
    k.waitcnt(vm=CPF[0])
    T = ACC
    unpack8(k, T, XR)
    unpack8(k, T + 8, XR + 4)
    for r in range(16):
        I('v_fmac_f32', v(T + r), v(OWN + r), v(GV + r))
    P = ACC + 16
    pack8(k, P, T)
    pack8(k, P + 4, T + 8)
    if is_k3:
        I('s_lshl_b32', 's15', 's13', 15)
        I('s_lshl_b32', 's60', 's14', 11)
        I('s_add_u32', 's15', 's15', 's60')
        I('s_add_u32', 's15', 's15', X1)
        for sp in range(2):
            I('buffer_store_dwordx4', v(P + 4 * sp, 4), 'v2', s(R_WS, 4), 's15', mods=f'offen offset:{1024 * sp} {ST_POL}')
        unpack8(k, T, P)
        unpack8(k, T + 8, P + 4)
        I('v_add_f32', 'v8', v(T), v(T + 1))
        I('v_add_f32', 'v9', v(T + 2), v(T + 3))
        for r in range(4, 16, 2):
            I('v_add_f32', 'v8', 'v8', v(T + r))
            I('v_add_f32', 'v9', 'v9', v(T + r + 1))
        I('v_add_f32', 'v8', 'v8', 'v9')
        I('v_mov_b32', 'v9', 'v8')
        I('v_permlane32_swap_b32', 'v8', 'v9')
        I('v_add_f32', 'v8', 'v8', 'v9')
        I('v_mul_f32', 'v8', f32bits(1.0 / 32), 'v8')
        for r in range(16):
            I('v_sub_f32', v(T + r), v(T + r), 'v8')
        I('v_mul_f32', 'v9', v(T), v(T))
        I('v_mul_f32', 'v10', v(T + 1), v(T + 1))
        for r in range(2, 16, 2):
            I('v_fmac_f32', 'v9', v(T + r), v(T + r))
            I('v_fmac_f32', 'v10', v(T + r + 1), v(T + r + 1))
        I('v_add_f32', 'v9', 'v9', 'v10')
        I('v_mov_b32', 'v10', 'v9')
        I('v_permlane32_swap_b32', 'v9', 'v10')
        I('v_add_f32', 'v9', 'v9', 'v10')
        I('s_lshl_b32', 's15', 's13', 12)
        I('s_lshl_b32', 's60', 's5', 9)
        I('s_add_u32', 's15', 's15', 's60')
        I('s_lshl_b32', 's60', 's11', 3)
        I('s_add_u32', 's15', 's15', 's60')
        I('s_add_u32', 's15', 's15', ST2)
        I('v_lshlrev_b32', 'v10', 4, 'v4')
        I('s_mov_b32', 'exec_hi', 0)
        I('buffer_store_dwordx2', v(8, 2), 'v10', s(R_WS, 4), 's15', mods='offen')
        I('s_mov_b64', 'exec', -1)
        I('s_cmp_ge_u32', 's2', 112)
        I('s_cbranch_scc1', f'L_{name}_noside')
        I('s_cmp_lg_u32', 's3', 0)
        I('s_cbranch_scc1', f'L_{name}_noside')
        T = RING + 16
        for p in range(32):
            I('v_accvgpr_read_b32', v(T + p), a(p))
        for st_ in (16, 8, 4, 2, 1):
            for r in range(st_):
                I('v_add_f32', v(T + r), v(T + r), v(T + r + st_))
        I('v_cvt_pk_bf16_f32', v(P), v(T), v(T))
        I('v_and_b32', 'v9', 0xffff0000, v(P))
        I('v_sub_f32', 'v9', v(T), 'v9')
        I('v_cvt_pk_bf16_f32', v(P + 1), 'v9', 'v9')
        I('v_mov_b32', v(P + 2), 0)
        I('v_mov_b32', v(P + 3), 0)
        I('s_mul_i32', 's60', 's2', 147)
        I('s_lshr_b32', 's60', 's60', 10)
        I('s_mul_i32', 's61', 's60', 7)
        I('s_sub_u32', 's61', 's2', 's61')
        I('s_mul_i32', 's60', 's60', W4_NB)
        I('s_lshl_b32', 's61', 's61', 10)
        I('s_add_u32', 's60', 's60', 's61')
        I('s_add_u32', 's60', 's60', W4 + 32 * 7168)
        I('buffer_store_dwordx4', v(P, 4), 'v2', s(R_WS, 4), 's60', mods='offen')
        k.label(f'L_{name}_noside')
    else:
        srd(k, 44, S_OUT, 2048 * 1024)
        I('s_lshl_b32', 's15', 's13', 15)
        I('s_lshl_b32', 's60', 's14', 6)
        I('s_add_u32', 's15', 's15', 's60')
        I('v_lshlrev_b32', 'v6', 10, 'v4')
        I('v_lshl_add_u32', 'v6', 'v3', 4, 'v6')
        for sp in range(2):
            I('buffer_store_dwordx4', v(P + 4 * sp, 4), 'v6', s(44, 4), 's15', mods=f'offen offset:{32 * sp}')
    epilogue(k, idx, vtmp=4)
    return k, 256, 256, LDS


def gen_k3():
    return gen_gemm64('k3_wo_kernel', 3, 8, OB, 32768, WO, 32768, True)


def gen_k5():
    return gen_gemm64('k5_down_kernel', 5, 28, ACT, 112 * 1024, WD, 112 * 1024, False)


def gen_k4():
    k = Kernel('k4_ffn1_kernel')
    I = k.I
    RES = {2: 131072, 3: 32768, 6: 0}
    LDS = 163840
    NR = 16
    D = OPT.get('k4d', 8)
    assert D <= 16 - OPT.get('k4bi', 2)
    prologue(k, 256, need_lo=False)
    xcd_map(k, 2, 4, 5, OPT.get('x4', 2))
    I('s_and_b32', 's61', 's3', 3)
    I('s_lshr_b32', 's63', 's3', 2)
    I('s_lshl_b32', 's6', 's4', 2)
    I('s_add_u32', 's6', 's6', 's61')
    I('v_lshlrev_b32', 'v2', 4, 'v1')
    I('v_lshrrev_b32', 'v3', 5, 'v1')
    I('v_and_b32', 'v4', 31, 'v1')
    I('s_mul_i32', 's7', 's5', W4_NB)
    I('s_add_u32', 's7', 's7', W4)
    I('s_lshl_b32', 's8', 's3', 10)
    I('s_lshl_b32', 's9', 's6', 15)
    I('s_add_u32', 's9', 's9', X1)
    I('s_and_b32', 's10', 's3', 1)
    I('s_and_b32', 's11', 's3', 2)
    I('s_lshl_b32', 's11', 's11', 1)
    I('s_add_u32', 's10', 's10', 's11')
    I('s_lshl_b32', 's10', 's10', 10)
    I('s_add_u32', 's10', 's10', 's7')
    I('s_mov_b32', 's11', 7168)
    I('s_cmp_eq_u32', 's63', 0)
    I('s_cselect_b32', 's9', 's9', 's10')
    I('s_cselect_b32', 's11', 1024, 's11')
    I('s_mul_i32', 's12', 's3', 7168)
    I('s_add_u32', 's12', 's12', 's7')
    I('s_lshl_b32', 's13', 's61', 10)
    I('v_add_u32', 'v5', 's13', 'v2')
    I('s_lshl_b32', 's13', 's63', 11)
    I('s_add_u32', 's13', 's13', 4096)
    I('v_add_u32', 'v6', 's13', 'v2')
    I('v_add_u32', 'v7', RES[2], 'v2')
    I('s_xor_b32', 's13', 's63', 1)
    I('s_lshl_b32', 's13', 's13', 15)
    I('v_add_u32', 'v15', 's13', 'v2')
    I('v_add_u32', 'v0', 65536, 'v5')
    I('v_add_u32', 'v1', 65536, 'v6')
    k.waitcnt(lgkm=0)
    tick(k)
    srd(k, R_WS, S_WS, WS_SIZE)
    ACC, WF, EXT, T, PK, EXB = 16, 80, 104, 108, 116, 124
    STT = ACC + 48
    EXA = T
    I('s_cmp_eq_u32', 's63', 0)
    I('s_cbranch_scc0', 'L_k4_g1')
    nt0 = getattr(k, 'nticks', 0)
    for grp in range(2):
        k.nticks = nt0
        FA = [0, 1, 2] if grp == 0 else [4, 5]
        FB = 3 if grp == 0 else 6
        NA = len(FA)
        LOG = []

        def ring(s_):
            if s_ >= 32:
                batch(6 if s_ < 36 else 3, (s_ - 32) % 4)
                return
            I('s_add_u32', 'm0', 's8', (s_ % NR) * 8192)
            I('buffer_load_dwordx4', 'v2', s(R_WS, 4), 's9', mods='offen lds')
            I('s_add_u32', 's9', 's9', 's11')
            LOG.append(('r', s_))

        def batch(fr, i):
            I('s_add_u32', 'm0', 's8', RES[fr] + i * 8192)
            I('s_add_u32', 's13', 's12', i * 8 * 7168 + fr * 1024)
            I('buffer_load_dwordx4', 'v2', s(R_WS, 4), 's13', mods='offen lds')
            LOG.append(('b', fr, i))

        def stat_loads():
            I('s_lshl_b32', 's13', 's6', 12)
            I('s_add_u32', 's13', 's13', ST2)
            I('v_lshlrev_b32', 'v8', 11, 'v3')
            I('v_lshl_add_u32', 'v8', 'v4', 4, 'v8')
            for q in range(4):
                I('buffer_load_dwordx4', v(STT + 4 * q, 4), 'v8', s(R_WS, 4), 's13', mods=f'offen offset:{q * 512}')
                LOG.append(('st',))

        def ext_loads():
            I('s_add_u32', 's13', 's7', 32 * 7168)
            for j, f in enumerate(FA):
                I('s_add_u32', 's14', 's13', f * 1024)
                I('buffer_load_dwordx4', v(EXA + 4 * j, 4), 'v2', s(R_WS, 4), 's14', mods='offen')
                LOG.append(('x',))
            I('s_add_u32', 's14', 's13', FB * 1024)
            I('buffer_load_dwordx4', v(EXB, 4), 'v2', s(R_WS, 4), 's14', mods='offen')
            LOG.append(('x',))
            if grp == 1:
                pass

        def wait_tags(tags):
            last = max(i for i, e in enumerate(LOG) if e in tags)
            k.waitcnt(vm=len(LOG) - 1 - last)

        def rd(s_):
            so = (s_ % 8) * 8192
            hi = (s_ % NR) >= 8
            b = WF + 12 * (s_ & 1)
            I('ds_read_b128', a(4 * s_, 4), 'v0' if hi else 'v5', mods=f'offset:{so}')
            for j in range(2):
                I('ds_read_b128', v(b + 4 * j, 4), 'v1' if hi else 'v6', mods=f'offset:{so + j * 1024}')
            if grp == 0:
                I('ds_read_b128', v(b + 8, 4), 'v7', mods=f'offset:{s_ * 1024}')
        NRD = 1 + NA

        def stats_ops():
            c0 = -2.0 * 1.4426950408889634 * math.sqrt(2.0 / math.pi)
            c1 = c0 * 0.044715
            L = []
            A_ = lambda *a_, **kw: L.append(lambda: I(*a_, **kw))
            A_('v_add_f32', 'v8', v(STT), v(STT + 2))
            for r in range(4, 16, 2):
                A_('v_add_f32', 'v8', 'v8', v(STT + r))
            A_('v_mov_b32', 'v9', 'v8')
            A_('v_permlane32_swap_b32', 'v8', 'v9')
            A_('v_add_f32', 'v8', 'v8', 'v9')
            A_('v_mul_f32', 'v8', f32bits(1.0 / 16), 'v8')
            A_('v_add_f32', 'v9', v(STT + 1), v(STT + 3))
            for r in range(5, 16, 2):
                A_('v_add_f32', 'v9', 'v9', v(STT + r))
            A_('v_mov_b32', 'v10', 0)
            for r in range(0, 16, 2):
                A_('v_sub_f32', v(STT + r), v(STT + r), 'v8')
                A_('v_fmac_f32', 'v10', v(STT + r), v(STT + r))
            A_('v_fmac_f32', 'v9', f32bits(32.0), 'v10')
            A_('v_mov_b32', 'v10', 'v9')
            A_('v_permlane32_swap_b32', 'v9', 'v10')
            A_('v_add_f32', 'v9', 'v9', 'v10')
            A_('v_mov_b32', 'v10', f32bits(1e-5))
            A_('v_fmac_f32', 'v10', f32bits(1.0 / 512), 'v9')
            A_('v_rsq_f32', 'v11', 'v10')
            A_('v_mul_f32', 'v12', 'v10', 'v11')
            A_('v_sub_f32', 'v13', 0, 'v8')
            A_('v_cmp_eq_u32', 'vcc', 0, 'v3')
            A_('v_cndmask_b32', 'v13', 'v12', 'v13', 'vcc')
            A_('v_cvt_pk_bf16_f32', 'v14', 'v13', 'v13')
            A_('v_and_b32', 'v14', 0xffff0000, 'v14')
            A_('v_sub_f32', 'v9', 'v13', 'v14')
            A_('v_cvt_pk_bf16_f32', v(EXT), 'v14', 'v9')
            A_('v_mov_b32', v(EXT + 1), v(EXT))
            A_('v_mov_b32', v(EXT + 2), 0)
            A_('v_mov_b32', v(EXT + 3), 0)
            A_('v_mul_f32', 'v12', f32bits(c0), 'v11')
            A_('v_mul_f32', 'v13', 'v11', 'v11')
            A_('v_mul_f32', 'v13', 'v13', 'v11')
            A_('v_mul_f32', 'v13', f32bits(c1), 'v13')
            A_('s_mul_i32', 's60', 's6', 112 * 1024)
            A_('s_mul_i32', 's62', 's5', 7 * 1024)
            A_('s_add_u32', 's60', 's60', 's62')
            A_('s_add_u32', 's60', 's60', ACT + grp * 4096)
            return L

        def epi(ai, f):
            g_ = ACC + 16 * ai
            u_ = g_ + 8
            for e in range(8):
                I('v_mul_f32', v(T + e), v(g_ + e), v(g_ + e))
            for e in range(8):
                I('v_fma_f32', v(T + e), v(T + e), 'v13', 'v12')
            for e in range(8):
                I('v_mul_f32', v(T + e), v(T + e), v(g_ + e))
            for e in range(8):
                I('v_exp_f32', v(T + e), v(T + e))
            for e in range(8):
                I('v_mul_f32', v(u_ + e), v(u_ + e), v(g_ + e))
            for e in range(8):
                I('v_fma_f32', v(T + e), v(T + e), 'v10', 'v10')
            for e in range(8):
                I('v_rcp_f32', v(T + e), v(T + e))
            for e in range(8):
                I('v_mul_f32', v(T + e), v(T + e), v(u_ + e))
            P = PK + 4 * (ai & 1)
            pack8(k, P, T)
            I('buffer_store_dwordx4', v(P, 4), 'v2', s(R_WS, 4), 's60', mods=f'offen offset:{(f % 4) * 1024} {ST_POL}')
            LOG.append(('store',))

        def fragB():
            ai = 3 if grp == 0 else 2
            acc = v(ACC + 16 * ai, 16)
            NB_ = 6
            for u in range(NB_ - 1):
                I('ds_read_b128', v(WF + 4 * u, 4), 'v15', mods=f'offset:{u * 1024}')
            I('v_mfma_f32_32x32x16_bf16', acc, v(EXB, 4), v(EXT, 4), 0)
            for u in range(32):
                n = u + NB_ - 1
                if n < 32:
                    I('ds_read_b128', v(WF + 4 * (n % NB_), 4), 'v15', mods=f'offset:{n * 1024}')
                k.waitcnt(lgkm=min(31, n) - u)
                I('v_mfma_f32_32x32x16_bf16', acc, v(WF + 4 * (u % NB_), 4), a(4 * u, 4), acc)

        extra = {}
        bsched = [(2, 1, 1), (2, 2, 5), (2, 3, 10)]
        for fr, i, at in bsched:
            extra.setdefault(at, []).append(lambda fr=fr, i=i: batch(fr, i))
        extra.setdefault(0, []).append(stat_loads)
        extra.setdefault(16, []).append(ext_loads)
        ring(0)
        batch(2, 0)
        PRE = OPT.get('k4pre', 8)
        for s_ in range(1, PRE):
            ring(s_)
        rn = [PRE]
        BI = OPT.get('k4bi', 2)
        wait_tags([('r', 0), ('r', 1), ('b', 2, 0)])
        k.barrier()
        tick(k)
        rd(0)
        VQ = []
        for s_ in range(32):
            n = s_ + 1
            if n < 32:
                if n % BI == 0 or n == 2:
                    tags = [('r', x) for x in range(n, n + (BI if n % BI == 0 else BI - 2))]
                    if n % 8 == 0:
                        tags.append(('b', 2, n // 8))
                    wait_tags(tags)
                    k.barrier()
                    if n % 8 == 0:
                        tick(k)
                rd(n)
                k.waitcnt(lgkm=NRD)
            else:
                k.waitcnt(lgkm=0)
            b = WF + 12 * (s_ & 1)
            for j in range(NA):
                I('v_mfma_f32_32x32x16_bf16', v(ACC + 16 * j, 16), v(b + 4 * j, 4), a(4 * s_, 4),
                  0 if s_ == 0 else v(ACC + 16 * j, 16))
                lead = D if rn[0] < 32 else OPT.get('k4db', 6)
                if j < (2 if s_ < OPT.get('k4ramp', 12) or rn[0] >= 32 else 1) and rn[0] <= s_ + lead and rn[0] < 36:
                    ring(rn[0])
                    rn[0] += 1
                if j == 1:
                    for f_ in extra.get(s_, []):
                        f_()
                for _ in range(4):
                    if VQ:
                        VQ.pop(0)()
            if s_ == 10:
                VQ.extend(stats_ops())
        assert not VQ
        tick(k)
        wait_tags([('x',)])
        for j in range(NA):
            I('v_mfma_f32_32x32x16_bf16', v(ACC + 16 * j, 16), v(EXA + 4 * j, 4), v(EXT, 4), v(ACC + 16 * j, 16))
        assert rn[0] == 36
        for i in range(4):
            batch(3, i)
        if grp == 0:
            I('v_lshrrev_b32', 'v1', 4, 'v2')
            if code_prefetch(k, 8, 9, 44, 8):
                LOG.append(('code',))
        wait_tags([('b', 6, 3)])
        k.barrier()
        tick(k)
        if OPT.get('k4wd', 0):
            I('s_lshr_b32', 's13', 's2', 3)
            I('s_lshl_b32', 's13', 's13', 3)
            I('s_add_u32', 's13', 's13', 's3')
            I('s_mul_i32', 's13', 's13', 3584)
            I('s_and_b32', 's14', 's2', 1)
            I('s_mul_i32', 's14', 's14', 8 * 114688)
            I('s_add_u32', 's13', 's13', 's14')
            I('s_add_u32', 's13', 's13', WD)
            I('s_lshl_b32', 's14', 's3', 12)
            I('s_add_u32', 'm0', 's14', RES[2])
            for q in range(4):
                I('buffer_load_dwordx4', 'v2', s(R_WS, 4), 's13', mods=f'offen offset:{min(q * 1024, 2560)} lds')
                LOG.append(('pf',))
        if grp == 0:
            for j, f in enumerate(FA):
                epi(j, f)
            wait_tags([('b', 3, 3)])
            k.barrier()
            tick(k)
            fragB()
            tick(k)
            epi(3, FB)
            I('s_branch', 'L_k4_done')
            k.label('L_k4_g1')
        else:
            fragB()
            wait_tags([('b', 3, 3)])
            k.barrier()
            tick(k)
            for j, f in enumerate(FA):
                epi(j, f)
            tick(k)
            epi(2, FB)
    k.label('L_k4_done')
    epilogue(k, 4, vtmp=4)
    return k, 256, 512, LDS


HEADER = """; adaLN_cond + sliding-window attention + GEGLU FFN block, gfx950 (MI355X).
"""


def build(gens, path):
    hdr, bodies, descs = [], [], []
    for g in gens:
        k, grid, block, lds = g()
        b, d = kernel_text(k)
        bodies.append(b)
        descs.append(d)
        hdr.append(f'; @launch kernel={k.name} grid=({grid},1,1) block=({block},1,1) lds={lds}')
        print(f'{k.name}: {k.n_ins} instr, vgpr {k.max_v + 1}, agpr {k.max_a + 1}, sgpr {k.max_s + 1}, nops {k.nops_inserted}, lds {lds}',
              file=sys.stderr)
    if OPT.get('dup'):
        d_ = OPT['dup'] - 1
        hdr.insert(d_ + 1, hdr[d_])
    out = HEADER + '\n'.join(hdr) + '\n.amdgcn_target "amdgcn-amd-amdhsa--gfx950"\n.text\n' + '\n'.join(bodies) + \
        '\nL_code_end:\n.section .rodata,"a"\n' + '\n'.join(descs)
    open(path, 'w').write(out)


if __name__ == '__main__':
    import argparse
    ap = argparse.ArgumentParser()
    ap.add_argument('-o', default='adaLN_cond__sliding_block__geglu_ffn__prompt.s')
    ap.add_argument('--stamp', action='store_true')
    ap.add_argument('-n', type=int, default=6)
    ap.add_argument('--stpol', default='sc1')
    ap.add_argument('--opt', default='')
    args = ap.parse_args()
    STAMP = args.stamp
    ST_POL = args.stpol
    for kv in args.opt.split(','):
        if kv:
            a_, b_ = kv.split('=')
            OPT[a_] = int(b_)
    allg = [gen_k0, gen_k1]
    for nm in ('gen_k2', 'gen_k3', 'gen_k4', 'gen_k5'):
        if nm in globals():
            allg.append(globals()[nm])
    build(allg[:args.n], args.o)
```

```python
import sys
import struct
import math
from asmlib import *

XN = 0x0000000
W1 = 0x0200000
W1_NB = 32 * 3072
MODP = 0x0400000
MODP_P = 3072 * 4
MODF = 0x0420000
MF_GA, MF_G2, MF_GB, MF_SB = 0, 2048, 4096, 6144
NRM = 0x0440000
TMX = 0x04C0000
QB = 0x0500000
KB = 0x0700000
VB = 0x0900000
OB = 0x0B00000
X1 = 0x0D00000
ST2 = 0x0F00000
CSP = 0x1F00000
W4 = 0x1000000
W4_NB = 33 * 7168
WO = 0x1400000
WD = 0x1500000
ACT = 0x1800000
STAMPS = 0x2000000
WS_SIZE = 0x2100000

STAMP = False
ST_POL = 'sc1'
OPT = {}


def f32bits(x):
    return struct.unpack('<I', struct.pack('<f', x))[0]


S_X, S_WQKV, S_WO, S_BX, S_WG, S_WU, S_WD, S_C = 16, 18, 20, 22, 24, 26, 28, 30
S_WMOD, S_OUT, S_DBG, S_WS = 32, 34, 36, 38
R_WS = 40


def srd(k, d, base, nbytes):
    k.I('s_mov_b32', s(d), s(base))
    k.I('s_mov_b32', s(d + 1), s(base + 1))
    k.I('s_mov_b32', s(d + 2), nbytes)
    k.I('s_mov_b32', s(d + 3), 0x20000)


def prologue(k, nwg, need_lo=True):
    I = k.I
    if STAMP:
        I('s_memrealtime', s(96, 2))
    I('s_cmp_ge_u32', 's2', nwg)
    I('s_cbranch_scc1', f'L_end_{k.name}')
    if need_lo:
        I('s_load_dwordx16', s(16, 16), s(0, 2), 0)
    I('s_load_dwordx8', s(32, 8), s(0, 2), 64)
    I('v_and_b32', 'v1', 63, 'v0')
    I('v_lshrrev_b32', 'v2', 6, 'v0')
    I('v_readfirstlane_b32', 's3', 'v2')


def xcd_map(k, mbits, dm, dn, xmb=2):
    I = k.I
    mtot = mbits + 2
    jm = mtot - xmb
    if xmb > 0:
        I('s_bfe_u32', s(dm), 's2', (xmb << 16) | (3 - xmb))
        I('s_lshl_b32', s(dm), s(dm), jm)
    else:
        I('s_mov_b32', s(dm), 0)
    I('s_bfe_u32', s(dn), 's2', (jm << 16) | 3)
    I('s_add_u32', s(dm), s(dm), s(dn))
    I('s_and_b32', s(dn), 's2', (1 << (3 - xmb)) - 1)
    I('s_lshl_b32', s(dn), s(dn), 5 - jm)
    I('s_lshr_b32', 's62', 's2', 3 + jm)
    I('s_add_u32', s(dn), s(dn), 's62')


NEXT = {'k0_mod_kernel': ('k1_qkv_kernel', 'k2_attn_kernel'), 'k1_qkv_kernel': ('k2_attn_kernel', 'k3_wo_kernel'),
        'k2_attn_kernel': ('k3_wo_kernel', 'k4_ffn1_kernel'), 'k3_wo_kernel': ('k4_ffn1_kernel', 'k5_down_kernel'),
        'k4_ffn1_kernel': ('k5_down_kernel', 'L_code_end')}


def code_prefetch(k, vt, vdst, sa, nwaves):
    if not OPT.get('codepf', 1) or k.name not in NEXT:
        return False
    I = k.I
    beg, end = NEXT[k.name]
    I('s_getpc_b64', s(sa, 2))
    k.raw(f'L_pc_{k.name}:')
    I('s_lshr_b32', s(sa + 2), 's2', 3)
    I('s_mul_i32', s(sa + 2), s(sa + 2), nwaves)
    I('s_add_u32', s(sa + 2), s(sa + 2), 's3')
    I('s_lshl_b32', s(sa + 2), s(sa + 2), 13)
    I('v_lshlrev_b32', v(vt), 7, 'v1')
    I('v_add_u32', v(vt), s(sa + 2), v(vt))
    I('v_min_u32', v(vt), f'{end}-{beg}-4', v(vt))
    I('v_add_u32', v(vt), f'{beg}-L_pc_{k.name}', v(vt))
    I('global_load_dword', v(vdst), v(vt), s(sa, 2))
    return True


def tick(k):
    if STAMP:
        n = getattr(k, 'nticks', 0)
        assert n < 12
        k.I('s_memrealtime', s(94, 2))
        k.I('s_memtime', s(100, 2))
        k.waitcnt(lgkm=0)
        k.I('s_mov_b32', s(70 + n), 's94')
        k.I('s_mov_b32', s(82 + n), 's100')
        k.nticks = n + 1


def epilogue(k, idx, vtmp=2):
    I = k.I
    if STAMP:
        k.flush()
        tick(k)
        k.waitcnt(vm=0, lgkm=0)
        I('s_memrealtime', s(98, 2))
        k.waitcnt(lgkm=0)
        I('s_cmp_lg_u32', 's3', 0)
        I('s_cbranch_scc1', f'L_end_{k.name}')
        I('v_mov_b32', v(vtmp), 's96')
        I('v_mov_b32', v(vtmp + 1), 's98')
        I('s_lshl_b32', 's96', 's2', 3)
        I('s_add_u32', 's96', 's96', STAMPS + idx * 4096)
        I('v_mov_b32', v(vtmp + 2), 's96')
        I('s_mov_b64', 'exec', 1)
        I('buffer_store_dwordx2', v(vtmp, 2), v(vtmp + 2), s(R_WS, 4), 0, mods='offen')
        I('s_lshl_b32', 's96', 's2', 7)
        I('s_add_u32', 's96', 's96', STAMPS + 0x10000 + idx * 0x8000)
        I('v_mov_b32', v(vtmp + 2), 's96')
        for n in range(24):
            I('v_mov_b32', v(vtmp), s(70 + n) if (n % 12) < k.nticks else 0)
            I('buffer_store_dword', v(vtmp), v(vtmp + 2), s(R_WS, 4), 0, mods=f'offen offset:{4 * n}')
    k.label(f'L_end_{k.name}')
    I('s_endpgm')


def wave_sum_to_sgpr(k, regs, sdst):
    I = k.I
    for sh in ('row_shr:1', 'row_shr:2', 'row_shr:4', 'row_shr:8'):
        for r in regs:
            I('v_add_f32', v(r), v(r), v(r), mods=f'{sh} row_mask:0xf bank_mask:0xf')
    for r in regs:
        I('v_add_f32', v(r), v(r), v(r), mods='row_bcast:15 row_mask:0xa bank_mask:0xf')
    for r in regs:
        I('v_add_f32', v(r), v(r), v(r), mods='row_bcast:31 row_mask:0xc bank_mask:0xf')
    for r, sd in zip(regs, sdst):
        I('v_readlane_b32', s(sd), v(r), 63)


def unpack8(k, dst, src):
    for j in range(4):
        k.I('v_lshlrev_b32', v(dst + 2 * j), 16, v(src + j))
        k.I('v_and_b32', v(dst + 2 * j + 1), 0xffff0000, v(src + j))


def pack8(k, dst, src):
    for j in range(4):
        k.I('v_cvt_pk_bf16_f32', v(dst + j), v(src + 2 * j), v(src + 2 * j + 1))


def gen_k0():
    k = Kernel('k0_mod_kernel')
    I = k.I
    L_A = 0
    L_W = 16384
    L_X = 24576
    L_S = 32768
    L_P = 33024
    LDS = 34048
    prologue(k, 256)
    I('s_and_b32', 's4', 's2', 7)
    I('v_lshrrev_b32', 'v2', 3, 'v1')
    I('v_and_b32', 'v3', 7, 'v1')
    I('v_lshlrev_b32', 'v3', 4, 'v3')
    I('v_mul_u32_u24', 'v4', 6144, 'v2')
    I('v_add_u32', 'v4', 'v4', 'v3')
    I('v_mul_u32_u24', 'v5', 3072, 'v2')
    I('v_add_u32', 'v5', 'v5', 'v3')
    I('v_lshlrev_b32', 'v7', 4, 'v1')
    I('s_lshl_b32', 's10', 's4', 5)
    I('s_lshr_b32', 's11', 's2', 3)
    I('s_add_u32', 's10', 's10', 's11')
    I('s_lshl_b32', 's10', 's10', 3)
    I('s_lshl_b32', 's12', 's3', 1)
    I('s_add_u32', 's12', 's10', 's12')
    I('s_lshl_b32', 's12', 's12', 10)
    I('s_min_u32', 's5', 's2', 191)
    I('s_lshr_b32', 's5', 's5', 2)
    I('s_and_b32', 's6', 's2', 3)
    I('s_lshl_b32', 's13', 's6', 7)
    I('s_lshl_b32', 's14', 's3', 5)
    I('s_add_u32', 's13', 's13', 's14')
    I('v_and_b32', 'v6', 15, 'v1')
    I('v_lshlrev_b32', 'v6', 2, 'v6')
    I('s_lshl_b32', 's15', 's13', 1)
    k.waitcnt(lgkm=0)
    tick(k)
    srd(k, R_WS, S_WS, WS_SIZE)
    srd(k, 44, S_WMOD, 512 * 6144)
    srd(k, 48, S_WQKV, 512 * 3072)
    srd(k, 52, S_X, 2048 * 1024)
    srd(k, 56, S_C, 1024)
    LOG = []
    I('buffer_load_dword', 'v8', 'v6', s(56, 4), 's15', mods='offen'); LOG.append('c')
    I('buffer_load_dwordx4', v(12, 4), 'v7', s(52, 4), 's12', mods='offen'); LOG.append('x')
    I('buffer_load_dwordx4', v(16, 4), 'v7', s(52, 4), 's12', mods='offen offset:1024'); LOG.append('x')
    I('s_mul_i32', 's7', 's13', 6144)
    I('s_lshl_b32', 's8', 's5', 7)
    I('s_add_u32', 's7', 's7', 's8')
    I('s_lshl_b32', 's8', 's3', 12)
    for j in range(4):
        I('s_add_u32', 'm0', 's8', L_A + j * 1024)
        I('s_add_u32', 's9', 's7', j * 8 * 6144)
        I('buffer_load_dwordx4', 'v4', s(44, 4), 's9', mods='offen lds'); LOG.append('g')
    I('s_min_u32', 's14', 's3', 2)
    I('s_lshl_b32', 's14', 's14', 10)
    I('s_mul_i32', 's15', 's11', 16 * 3072)
    I('s_add_u32', 's14', 's14', 's15')
    I('s_lshl_b32', 's15', 's4', 7)
    I('s_add_u32', 's14', 's14', 's15')
    I('s_lshl_b32', 's60', 's3', 11)
    for j in range(2):
        I('s_add_u32', 'm0', 's60', L_W + j * 1024)
        I('s_add_u32', 's9', 's14', j * 8 * 3072)
        I('buffer_load_dwordx4', 'v5', s(48, 4), 's9', mods='offen lds'); LOG.append('w')
    if code_prefetch(k, 21, 27, 64, 4):
        LOG.append('code')
    if OPT.get('k0tlb', 0):
        I('s_cmp_eq_u32', 's3', 0)
        I('s_cselect_b32', 's64', s(S_WG), s(S_WU))
        I('s_cselect_b32', 's65', s(S_WG + 1), s(S_WU + 1))
        I('s_cmp_eq_u32', 's3', 2)
        I('s_cselect_b32', 's64', s(S_WD), 's64')
        I('s_cselect_b32', 's65', s(S_WD + 1), 's65')
        I('s_cmp_eq_u32', 's3', 3)
        I('s_cselect_b32', 's64', s(S_WO), 's64')
        I('s_cselect_b32', 's65', s(S_WO + 1), 's65')
        I('s_mov_b32', 's9', 1792 * 1024)
        I('s_cselect_b32', 's66', 512 * 1024, 's9')
        I('s_cmp_lt_u32', 's2', 16)
        I('s_cselect_b32', 's66', 's66', 0)
        I('s_mov_b32', 's67', 0x20000)
        I('v_lshlrev_b32', 'v21', 15, 'v1')
        I('buffer_load_dword', 'v27', 'v21', s(64, 4), 0, mods='offen'); LOG.append('tlb')
    tick(k)

    def wait_for(tag):
        last = max(i for i, e in enumerate(LOG) if e == tag)
        k.waitcnt(vm=len(LOG) - 1 - last)
    I('v_lshrrev_b32', 'v2', 4, 'v1')
    I('v_bfe_u32', 'v3', 'v1', 2, 2)
    I('v_and_b32', 'v9', 3, 'v1')
    I('v_lshl_add_u32', 'v20', 'v2', 3, 'v3')
    I('v_lshlrev_b32', 'v20', 7, 'v20')
    I('v_lshl_add_u32', 'v20', 'v9', 3, 'v20')
    I('v_add_u32', 'v20', 's8', 'v20')
    I('s_lshl_b32', 's9', 's3', 6)
    I('s_add_u32', 's9', 's9', L_S)
    I('v_lshl_add_u32', 'v22', 'v2', 4, 's9')
    I('v_add_u32', 'v23', 's9', 'v6')
    I('v_lshrrev_b32', 'v24', 5, 'v1')
    I('v_lshl_add_u32', 'v25', 'v24', 3, 'v3')
    I('v_lshlrev_b32', 'v25', 7, 'v25')
    I('v_bfe_u32', 'v26', 'v1', 4, 1)
    I('v_lshl_add_u32', 'v25', 'v26', 5, 'v25')
    I('v_lshl_add_u32', 'v25', 'v9', 3, 'v25')
    I('s_add_u32', 's9', 's60', L_W)
    I('v_add_u32', 'v25', 's9', 'v25')
    wait_for('c')
    I('v_lshlrev_b32', 'v9', 16, 'v8')
    I('v_and_b32', 'v10', 0xffff0000, 'v8')
    I('s_mov_b32', 's14', f32bits(-1.4426950408889634))
    for r, t_ in ((9, 28), (10, 29)):
        I('v_mul_f32', v(t_), 's14', v(r))
    for t_ in (28, 29):
        I('v_exp_f32', v(t_), v(t_))
    for t_ in (28, 29):
        I('v_add_f32', v(t_), 1.0, v(t_))
    for t_ in (28, 29):
        I('v_rcp_f32', v(t_), v(t_))
    for r, t_ in ((9, 28), (10, 29)):
        I('v_mul_f32', v(r), v(r), v(t_))
    I('v_cvt_pk_bf16_f32', 'v9', 'v9', 'v10')
    I('ds_write_b32', 'v23', 'v9')
    wait_for('x')
    tick(k)
    unpack8(k, 64, 12)
    unpack8(k, 72, 16)
    k.waitcnt(lgkm=0)
    I('ds_read_b128', v(48, 4), 'v22')
    for b, t_ in ((64, 40), (72, 41)):
        I('v_add_f32', v(t_), v(b), v(b + 1))
        for j in range(2, 8):
            I('v_add_f32', v(t_), v(t_), v(b + j))
    wave_sum_to_sgpr(k, [40, 41], [62, 63])
    I('s_mov_b32', 's14', f32bits(1.0 / 512))
    for t_, sd in ((40, 62), (41, 63)):
        I('v_mov_b32', v(t_), s(sd))
        I('v_mul_f32', v(t_), 's14', v(t_))
    for b, t_ in ((64, 40), (72, 41)):
        for j in range(8):
            I('v_sub_f32', v(b + j), v(b + j), v(t_))
    for b, t_ in ((64, 42), (72, 43)):
        I('v_mul_f32', v(t_), v(b), v(b))
        for j in range(1, 8):
            I('v_fmac_f32', v(t_), v(b + j), v(b + j))
    wave_sum_to_sgpr(k, [42, 43], [62, 63])
    I('s_mov_b32', 's15', f32bits(1e-5))
    for t_, sd in ((42, 62), (43, 63)):
        I('v_mov_b32', v(t_), s(sd))
        I('v_mov_b32', v(44), 's15')
        I('v_fma_f32', v(t_), v(t_), 's14', v(44))
        I('v_rsq_f32', v(t_), v(t_))
    for b, t_ in ((64, 42), (72, 43)):
        for j in range(8):
            I('v_mul_f32', v(b + j), v(b + j), v(t_))
    pack8(k, 12, 64)
    pack8(k, 16, 72)
    I('v_lshlrev_b32', 'v11', 7, 'v1')
    I('s_lshl_b32', 's9', 's3', 5)
    I('s_add_u32', 's9', 's9', L_X)
    I('v_add_u32', 'v11', 's9', 'v11')
    I('ds_write_b128', 'v11', v(12, 4))
    I('ds_write_b128', 'v11', v(16, 4), mods='offset:16')
    wait_for('g')
    tick(k)
    for cg in range(4):
        I('ds_read_b64_tr_b16', v(80 + 4 * cg, 2), 'v20', mods=f'offset:{cg * 32}')
        I('ds_read_b64_tr_b16', v(82 + 4 * cg, 2), 'v20', mods=f'offset:{cg * 32 + 512}')
    for cg in range(4):
        k.waitcnt(lgkm=6 - 2 * cg)
        I('v_mfma_f32_16x16x32_bf16', v(100 + 4 * cg, 4), v(48, 4), v(80 + 4 * cg, 4), 0)
    wait_for('w')
    for u in range(2):
        I('ds_read_b64_tr_b16', v(52 + 4 * u, 2), 'v25', mods=f'offset:{u * 64}')
        I('ds_read_b64_tr_b16', v(54 + 4 * u, 2), 'v25', mods=f'offset:{u * 64 + 512}')
    I('s_lshl_b32', 's9', 's3', 8)
    I('s_add_u32', 's9', 's9', L_P)
    I('v_add_u32', 'v28', 's9', 'v6')
    for cg in range(4):
        I('ds_write_b32', 'v28', v(100 + 4 * cg), mods=f'offset:{cg * 64}')
    I('s_mul_i32', 's9', 's4', 2 * W1_NB)
    I('s_mul_i32', 's14', 's11', 3072)
    I('s_add_u32', 's9', 's9', 's14')
    I('s_lshl_b32', 's14', 's3', 10)
    I('s_add_u32', 's9', 's9', 's14')
    I('s_add_u32', 's9', 's9', W1)
    I('s_add_u32', 's14', 's9', W1_NB)
    k.waitcnt(lgkm=0)
    I('s_cmp_eq_u32', 's3', 3)
    I('s_cbranch_scc1', 'L_k0_now')
    I('buffer_store_dwordx4', v(52, 4), 'v7', s(R_WS, 4), 's9', mods=f'offen {ST_POL}')
    I('buffer_store_dwordx4', v(56, 4), 'v7', s(R_WS, 4), 's14', mods=f'offen {ST_POL}')
    k.label('L_k0_now')
    tick(k)
    k.barrier()
    tick(k)
    I('s_add_u32', 's9', 's60', L_X)
    I('v_add_u32', 'v11', 's9', 'v7')
    I('ds_read_b128', v(12, 4), 'v11')
    I('ds_read_b128', v(16, 4), 'v11', mods='offset:1024')
    I('v_lshlrev_b32', 'v29', 2, 'v1')
    for w in range(4):
        I('ds_read_b32', v(30 + w), 'v29', mods=f'offset:{L_P + w * 256}')
    I('s_lshr_b32', 's12', 's10', 5)
    I('s_lshl_b32', 's12', 's12', 15)
    I('s_and_b32', 's14', 's10', 31)
    I('s_lshl_b32', 's14', 's14', 4)
    I('s_add_u32', 's12', 's12', 's14')
    I('s_lshl_b32', 's14', 's3', 13)
    I('s_add_u32', 's12', 's12', 's14')
    I('s_add_u32', 's12', 's12', XN)
    I('s_add_u32', 's14', 's12', 4096)
    I('v_lshrrev_b32', 'v11', 3, 'v1')
    I('v_lshlrev_b32', 'v11', 9, 'v11')
    I('v_and_b32', 'v10', 7, 'v1')
    I('v_lshl_add_u32', 'v11', 'v10', 4, 'v11')
    k.waitcnt(lgkm=4)
    I('buffer_store_dwordx4', v(12, 4), 'v11', s(R_WS, 4), 's12', mods=f'offen {ST_POL}')
    I('buffer_store_dwordx4', v(16, 4), 'v11', s(R_WS, 4), 's14', mods=f'offen {ST_POL}')
    I('s_cmp_lg_u32', 's3', 3)
    I('s_cbranch_scc1', 'L_k0_done')
    I('s_cmp_ge_u32', 's2', 192)
    I('s_cbranch_scc1', 'L_k0_done')
    k.waitcnt(lgkm=0)
    I('v_add_f32', 'v30', 'v30', 'v31')
    I('v_add_f32', 'v32', 'v32', 'v33')
    I('v_add_f32', 'v30', 'v30', 'v32')
    I('s_mul_i32', 's9', 's6', MODP_P)
    I('s_lshl_b32', 's14', 's5', 8)
    I('s_add_u32', 's9', 's9', 's14')
    I('s_add_u32', 's9', 's9', MODP)
    I('buffer_store_dword', 'v30', 'v29', s(R_WS, 4), 's9', mods='offen')
    k.label('L_k0_done')
    epilogue(k, 0)
    return k, 256, 256, LDS


QSCALE = 0.25 * 1.4426950408889634


def gen_k1():
    k = Kernel('k1_qkv_kernel')
    I = k.I
    L_G = 98304
    L_E = L_G + 4096
    L_PF = L_E + 49152
    LDS = L_PF + 8192
    prologue(k, 256, need_lo=True)
    xcd_map(k, 2, 4, 5, OPT.get('x1', 2))
    I('s_and_b32', 's61', 's3', 3)
    I('s_lshr_b32', 's63', 's3', 2)
    I('s_lshl_b32', 's6', 's4', 2)
    I('s_add_u32', 's6', 's6', 's61')
    I('v_lshlrev_b32', 'v2', 4, 'v1')
    I('v_lshlrev_b32', 'v4', 3, 'v0')
    I('s_lshl_b32', 's8', 's63', 4)
    I('s_add_u32', 's8', 's8', 's61')
    I('s_mul_i32', 's8', 's8', 3072)
    I('s_mul_i32', 's7', 's5', W1_NB)
    I('s_add_u32', 's7', 's7', 's8')
    I('s_add_u32', 's7', 's7', W1)
    I('s_lshl_b32', 's9', 's6', 15)
    I('s_lshl_b32', 's10', 's63', 14)
    I('s_add_u32', 's9', 's9', 's10')
    I('s_add_u32', 's9', 's9', XN)
    k.waitcnt(lgkm=0)
    tick(k)
    srd(k, R_WS, S_WS, WS_SIZE)
    ACC = 16
    TOK = 64
    WF = 128
    GS = 152
    TM = 184
    LOG = []
    FILL = []
    SJ = 192
    I('s_cmp_ge_u32', 's2', 4)
    I('s_cbranch_scc1', 'L_k1_nosj')
    I('s_lshl_b32', 's10', 's2', 11)
    I('s_add_u32', 's10', 's10', MODP + 4096)
    I('v_lshlrev_b32', 'v3', 2, 'v0')
    for p in range(4):
        I('s_add_u32', 's11', 's10', p * MODP_P)
        I('buffer_load_dword', v(SJ + p), 'v3', s(R_WS, 4), 's11', mods='offen')
    k.label('L_k1_nosj')
    for p in range(4):
        I('s_mov_b32', 's10', MODP + p * MODP_P)
        I('buffer_load_dwordx2', v(ACC + 2 * p, 2), 'v4', s(R_WS, 4), 's10', mods='offen')
        LOG.append('m')

    def w_op(c, q):
        def f():
            if q == 0:
                I('s_add_u32', 's10', 's7', c * 12288)
            I('s_add_u32', 'm0', 's8', c * 12288)
            I('buffer_load_dwordx4', 'v2', s(R_WS, 4), 's10', mods=f'offen offset:{q * 1024} lds')
            LOG.append(('w', c))
        return f

    def t_op(i):
        def f():
            if i % 4 == 0:
                I('s_add_u32', 's11', 's9', i * 1024)
            I('buffer_load_dwordx4', v(TOK + 4 * i, 4), 'v2', s(R_WS, 4), 's11', mods=f'offen offset:{(i % 4) * 1024}')
            LOG.append(('t', i))
        return f
    for c in range(4):
        FILL += [w_op(c, q) for q in range(3)] + [t_op(4 * c + q) for q in range(4)]

    def pf_op(ptr, nbytes):
        def f():
            srd(k, 44, ptr, nbytes)
            I('s_lshl_b32', 's12', 's2', 13)
            I('s_lshl_b32', 's13', 's3', 10)
            I('s_add_u32', 's12', 's12', 's13')
            I('s_add_u32', 'm0', 's13', L_PF)
            I('buffer_load_dwordx4', 'v2', s(44, 4), 's12', mods='offen lds')
            LOG.append(('pf',))
        return f
    def cp_op():
        if code_prefetch(k, 7, 196, 44, 8):
            LOG.append(('code',))
    FILL.append(cp_op)
    if OPT.get('k1pf', 0):
        FILL += [pf_op(S_WG, 512 * 3584), pf_op(S_WU, 512 * 3584), pf_op(S_WD, 1792 * 1024), pf_op(S_WO, 512 * 1024)]
    for _ in range(OPT.get('k1pre', 5)):
        FILL.pop(0)()
    I('s_mul_i32', 's10', 's63', 16 * 3072)
    I('v_add_u32', 'v3', 's10', 'v2')
    I('v_lshrrev_b32', 'v5', 5, 'v1')
    I('v_lshlrev_b32', 'v5', 5, 'v5')
    I('s_lshl_b32', 's10', 's63', 10)
    I('s_add_u32', 's10', 's10', L_G)
    I('v_add_u32', 'v5', 's10', 'v5')
    I('v_add_u32', 'v6', L_G, 'v4')
    k.waitcnt(vm=len(LOG) - 4)
    for e in range(2):
        I('v_add_f32', v(ACC + e), v(ACC + e), v(ACC + 2 + e))
        I('v_add_f32', v(ACC + 4 + e), v(ACC + 4 + e), v(ACC + 6 + e))
    for e in range(2):
        I('v_add_f32', v(ACC + e), v(ACC + e), v(ACC + 4 + e))
    I('v_cvt_pk_bf16_f32', v(ACC + 2), v(ACC), v(ACC + 1))
    I('v_lshlrev_b32', v(ACC), 16, v(ACC + 2))
    I('v_and_b32', v(ACC + 1), 0xffff0000, v(ACC + 2))
    I('s_cmp_eq_u32', 's63', 0)
    I('s_cbranch_scc1', 'L_k1_issa')
    for e in range(2):
        I('v_add_f32', v(ACC + e), 1.0, v(ACC + e))
    I('v_cvt_pk_bf16_f32', v(ACC + 2), v(ACC), v(ACC + 1))
    I('v_lshlrev_b32', v(ACC), 16, v(ACC + 2))
    I('v_and_b32', v(ACC + 1), 0xffff0000, v(ACC + 2))
    k.label('L_k1_issa')
    I('ds_write_b64', 'v6', v(ACC, 2))
    for _ in range(OPT.get('k1pre2', 5)):
        FILL.pop(0)()
    k.waitcnt(lgkm=0)

    def rdw(i):
        st = WF + 12 * (i & 1)
        for f in range(3):
            I('ds_read_b128', v(st + 4 * f, 4), 'v3', mods=f'offset:{i * 3072 + f * 1024}')

    def rdg(i):
        g = GS + 16 * (i & 1)
        for q in range(2):
            I('ds_read_b128', v(g + 4 * q, 4), 'v5', mods=f'offset:{i * 64 + 16 * q}')
        for q in range(2):
            I('ds_read_b128', v(g + 8 + 4 * q, 4), 'v5', mods=f'offset:{2048 + i * 64 + 16 * q}')

    def mod_ops(i):
        g = GS + 16 * (i & 1)
        tk = TOK + 4 * i
        L = []
        A_ = lambda *a_, **kw: L.append(lambda: I(*a_, **kw))
        for j in range(4):
            A_('v_lshlrev_b32', v(TM + 2 * j), 16, v(tk + j))
            A_('v_and_b32', v(TM + 2 * j + 1), 0xffff0000, v(tk + j))
        if OPT.get('k1pk', 0):
            for j in range(4):
                A_('v_pk_fma_f32', v(TM + 2 * j, 2), v(TM + 2 * j, 2), v(g + 8 + 2 * j, 2), v(g + 2 * j, 2))
        else:
            for j in range(8):
                A_('v_fma_f32', v(TM + j), v(TM + j), v(g + 8 + j), v(g + j))
        for j in range(4):
            A_('v_cvt_pk_bf16_f32', v(tk + j), v(TM + 2 * j), v(TM + 2 * j + 1))
        return L

    def need(tags):
        for tg in tags:
            while tg not in LOG or (tg[0] == 'w' and LOG.count(tg) < 3):
                FILL.pop(0)()
        last = max(i for i, e in enumerate(LOG) if e in tags)
        k.waitcnt(vm=len(LOG) - 1 - last)
    need([('w', 0), ('t', 0)])
    k.barrier()
    tick(k)
    rdw(0)
    rdg(0)
    rdg(1)
    k.waitcnt(lgkm=4)
    for f in mod_ops(0):
        f()
    NSTEP = 16
    for i in range(NSTEP):
        nxt = i + 1
        VQ = []
        if nxt < NSTEP:
            if nxt % 4 == 0:
                need([('w', nxt // 4), ('t', nxt)])
                k.barrier()
                tick(k)
            else:
                need([('t', nxt)])
            rdw(nxt)
            if i + 2 < NSTEP:
                rdg(i + 2)
                k.waitcnt(lgkm=7)
            else:
                k.waitcnt(lgkm=3)
            VQ = mod_ops(nxt)
        else:
            k.waitcnt(lgkm=0)
        st = WF + 12 * (i & 1)
        tok = v(TOK + 4 * i, 4)
        n3 = (len(VQ) + 2) // 3
        for f in range(3):
            c = 0 if i == 0 else v(ACC + 16 * f, 16)
            if f < 2:
                I('v_mfma_f32_32x32x16_bf16', v(ACC + 16 * f, 16), v(st + 4 * f, 4), tok, c)
            else:
                I('v_mfma_f32_32x32x16_bf16', v(ACC + 16 * f, 16), tok, v(st + 4 * f, 4), c)
            for _ in range(OPT.get('k1rate', 1) if f < 2 else OPT.get('k1rate', 1) - 1):
                if FILL:
                    FILL.pop(0)()
            for _ in range(n3):
                if VQ:
                    VQ.pop(0)()
    assert not FILL
    tick(k)
    I('s_mul_i32', 's10', 's3', 6144)
    I('s_add_u32', 's10', 's10', L_E)
    I('v_add_u32', 'v6', 's10', 'v2')
    I('s_xor_b32', 's11', 's3', 4)
    I('s_mul_i32', 's11', 's11', 6144)
    I('s_add_u32', 's11', 's11', L_E)
    I('v_add_u32', 'v7', 's11', 'v2')
    I('s_lshl_b32', 's11', 's5', 17)
    I('s_lshl_b32', 's12', 's6', 10)
    I('s_add_u32', 's11', 's11', 's12')
    I('s_mul_i32', 's12', 's63', KB - QB)
    I('s_add_u32', 's12', 's12', 's11')
    I('s_add_u32', 's12', 's12', QB)
    I('s_add_u32', 's13', 's12', 65536)
    I('s_lshl_b32', 's14', 's63', 9)
    I('s_add_u32', 's14', 's14', 's11')
    I('s_add_u32', 's14', 's14', VB)
    I('v_bfe_u32', 'v4', 'v1', 4, 1)
    I('v_lshlrev_b32', 'v4', 16, 'v4')
    I('v_lshrrev_b32', 'v5', 5, 'v1')
    I('v_lshl_add_u32', 'v4', 'v5', 8, 'v4')
    I('v_and_b32', 'v5', 15, 'v1')
    I('v_lshl_add_u32', 'v4', 'v5', 4, 'v4')
    k.flush()
    KEEP = TOK
    I('s_cmp_eq_u32', 's63', 0)
    I('s_cbranch_scc0', 'L_k1_x1')
    for kh in range(2):
        keep = [ACC + 16 * kh + r for r in range(16)] + [ACC + 32 + 8 * kh + r for r in range(8)]
        send = [ACC + 16 * (1 - kh) + 4 * j for j in range(4)] + [ACC + 32 + 8 * (1 - kh) + 4 * j for j in range(2)]
        for j, r in enumerate(send):
            I('ds_write_b128', 'v6', v(r, 4), mods=f'offset:{j * 1024}')
        if kh == 0:
            I('s_mov_b32', 's15', f32bits(QSCALE))
        else:
            I('s_mov_b32', 's15', f32bits(1.0))
        for j, r in enumerate(keep):
            I('v_mov_b32', v(KEEP + j), v(r))
        if kh == 0:
            I('s_branch', 'L_k1_x2')
            k.label('L_k1_x1')
    k.label('L_k1_x2')
    k.waitcnt(lgkm=0)
    k.barrier()
    for j in range(6):
        I('ds_read_b128', v(ACC + 4 * j, 4), 'v7', mods=f'offset:{j * 1024}')
    P = WF
    dst = [('v2', 's12'), ('v2', 's13'), ('v4', 's14')]
    for g in range(3):
        k.waitcnt(lgkm=4 - 2 * g)
        for r in range(8):
            I('v_add_f32', v(KEEP + 8 * g + r), v(KEEP + 8 * g + r), v(ACC + 8 * g + r))
        if g < 2:
            for r in range(8):
                I('v_mul_f32', v(KEEP + 8 * g + r), 's15', v(KEEP + 8 * g + r))
        pack8(k, P + 4 * g, KEEP + 8 * g)
        I('buffer_store_dwordx4', v(P + 4 * g, 4), dst[g][0], s(R_WS, 4), dst[g][1], mods=f'offen {ST_POL}')
    for g in range(2):
        I('v_dot2_f32_bf16', v(8 + g), v(P + 4 * g), v(P + 4 * g), 0)
        I('v_dot2_f32_bf16', v(10 + g), v(P + 4 * g + 1), v(P + 4 * g + 1), 0)
    for g in range(2):
        I('v_dot2_f32_bf16', v(8 + g), v(P + 4 * g + 2), v(P + 4 * g + 2), v(8 + g))
        I('v_dot2_f32_bf16', v(10 + g), v(P + 4 * g + 3), v(P + 4 * g + 3), v(10 + g))
    for g in range(2):
        I('v_add_f32', v(8 + g), v(8 + g), v(10 + g))
    I('v_permlane32_swap_b32', 'v8', 'v9')
    I('v_add_f32', 'v8', 'v8', 'v9')
    I('v_mov_b32', 'v9', 'v8')
    for sh in ('row_shr:1', 'row_shr:2', 'row_shr:4', 'row_shr:8'):
        I('v_max_f32', 'v9', 'v9', 'v9', mods=f'{sh} row_mask:0xf bank_mask:0xf')
    I('v_max_f32', 'v9', 'v9', 'v9', mods='row_bcast:15 row_mask:0xa bank_mask:0xf')
    I('s_lshl_b32', 's10', 's63', 18)
    I('s_lshl_b32', 's11', 's5', 14)
    I('s_add_u32', 's10', 's10', 's11')
    I('s_lshl_b32', 's11', 's6', 7)
    I('s_add_u32', 's10', 's10', 's11')
    I('s_add_u32', 's10', 's10', NRM)
    I('v_lshrrev_b32', 'v10', 5, 'v1')
    I('v_lshlrev_b32', 'v11', 13, 'v10')
    I('v_and_b32', 'v12', 31, 'v1')
    I('v_lshl_add_u32', 'v11', 'v12', 2, 'v11')
    I('buffer_store_dword', 'v8', 'v11', s(R_WS, 4), 's10', mods='offen')
    I('s_lshl_b32', 's10', 's63', 13)
    I('s_lshl_b32', 's11', 's5', 9)
    I('s_add_u32', 's10', 's10', 's11')
    I('s_lshl_b32', 's11', 's6', 2)
    I('s_add_u32', 's10', 's10', 's11')
    I('s_add_u32', 's10', 's10', TMX)
    I('v_lshlrev_b32', 'v11', 8, 'v10')
    I('s_mov_b32', 'exec_lo', 0x80000000)
    I('s_mov_b32', 'exec_hi', 0x80000000)
    I('buffer_store_dword', 'v9', 'v11', s(R_WS, 4), 's10', mods='offen')
    I('s_mov_b64', 'exec', -1)
    I('s_cmp_ge_u32', 's2', 4)
    I('s_cbranch_scc1', 'L_k1_nomod')
    I('v_lshlrev_b32', 'v3', 2, 'v0')
    I('v_add_f32', 'v16', v(SJ), v(SJ + 1))
    I('v_add_f32', 'v18', v(SJ + 2), v(SJ + 3))
    I('v_add_f32', 'v16', 'v16', 'v18')
    I('v_cvt_pk_bf16_f32', 'v17', 'v16', 'v16')
    I('v_and_b32', 'v18', 0xffff0000, 'v17')
    I('v_add_f32', 'v19', 1.0, 'v18')
    I('v_cvt_pk_bf16_f32', 'v19', 'v19', 'v19')
    I('v_and_b32', 'v19', 0xffff0000, 'v19')
    I('s_cmp_eq_u32', 's2', 1)
    I('s_cbranch_scc1', 'L_k1_sb')
    I('s_mov_b32', 's13', MF_GB)
    I('s_cmp_eq_u32', 's2', 2)
    I('s_cselect_b64', 'vcc', -1, 0)
    I('v_cndmask_b32', 'v18', 'v18', 'v19', 'vcc')
    I('s_cselect_b32', 's13', MF_G2, 's13')
    I('s_cmp_eq_u32', 's2', 0)
    I('s_cselect_b32', 's13', MF_GA, 's13')
    I('s_add_u32', 's13', 's13', MODF)
    I('buffer_store_dword', 'v18', 'v3', s(R_WS, 4), 's13', mods='offen')
    I('s_branch', 'L_k1_nomod')
    k.label('L_k1_sb')
    I('s_mov_b32', 's13', MODF + MF_SB)
    I('v_lshlrev_b32', 'v3', 1, 'v0')
    I('buffer_store_short', 'v17', 'v3', s(R_WS, 4), 's13', mods='offen')
    k.label('L_k1_nomod')
    epilogue(k, 1, vtmp=4)
    return k, 256, 512, LDS


BIG = 1e30


def gen_k2():
    k = Kernel('k2_attn_kernel')
    I = k.I
    L_K, L_V, L_SIDE = 0, 16384, 32768
    LDS = L_SIDE + 32768
    Q, KF, VF, SB_, PB, OA, NM, MK = 16, 20, 56, 128, 176, 192, 208, 224
    MX = 244
    G2R, SBR = 80, 88
    Vb = lambda t: VF + 8 * (t % 3)
    prologue(k, 256)
    xcd_map(k, 1, 5, 4)
    I('s_lshl_b32', 's6', 's5', 3)
    I('s_add_u32', 's6', 's6', 's3')
    I('v_lshlrev_b32', 'v2', 4, 'v1')
    I('s_lshl_b32', 's9', 's4', 16)
    I('s_lshl_b32', 's10', 's6', 10)
    I('s_add_u32', 's10', 's10', 's9')
    I('s_add_u32', 's10', 's10', QB)
    I('s_lshl_b32', 's8', 's3', 11)
    I('v_lshrrev_b32', 'v3', 5, 'v1')
    I('v_bfe_u32', 'v4', 'v1', 4, 1)
    I('v_bfe_u32', 'v5', 'v1', 2, 2)
    I('v_and_b32', 'v6', 1, 'v1')
    I('v_bfe_u32', 'v7', 'v1', 1, 1)
    I('v_lshl_add_u32', 'v6', 'v6', 1, 'v7')
    I('v_lshlrev_b32', 'v13', 8, 'v3')
    I('v_and_b32', 'v14', 15, 'v1')
    I('v_lshl_add_u32', 'v13', 'v14', 4, 'v13')
    I('v_and_b32', 'v12', 31, 'v1')
    I('v_lshlrev_b32', 'v12', 2, 'v12')
    I('v_lshlrev_b32', 'v14', 5, 'v3')
    I('v_lshlrev_b32', 'v15', 4, 'v3')
    I('s_and_b32', 's12', 's3', 3)
    I('s_mul_i32', 's13', 's2', 3)
    I('s_add_u32', 's13', 's13', 's12')
    I('s_lshr_b32', 's15', 's2', 1)
    I('s_add_u32', 's15', 's15', 768)
    I('s_cmp_eq_u32', 's3', 3)
    I('s_cselect_b32', 's57', 's15', 's13')
    I('s_and_b32', 's15', 's2', 1)
    I('s_lshr_b32', 's13', 's3', 2)
    I('s_cmp_eq_u32', 's3', 3)
    I('s_cselect_b32', 's64', 's15', 's13')
    I('s_cmp_eq_u32', 's3', 7)
    I('s_cselect_b32', 's57', 's2', 's57')
    I('s_mul_i32', 's66', 's57', 2341)
    I('s_lshr_b32', 's66', 's66', 16)
    I('s_min_u32', 's66', 's66', 31)
    I('s_mul_i32', 's65', 's66', 28)
    I('s_sub_u32', 's65', 's57', 's65')
    I('s_lshl_b32', 's67', 's66', 6)
    I('s_add_u32', 's67', 's67', MODF + MF_G2)
    I('s_lshl_b32', 's68', 's66', 5)
    I('s_add_u32', 's68', 's68', MODF + MF_SB)
    I('s_lshl_b32', 's11', 's4', 13)
    I('s_lshl_b32', 's12', 's6', 7)
    I('s_add_u32', 's11', 's11', 's12')
    I('s_add_u32', 's11', 's11', NRM)
    I('s_lshl_b32', 's12', 's4', 8)
    I('s_lshl_b32', 's13', 's6', 2)
    I('s_add_u32', 's12', 's12', 's13')
    I('s_add_u32', 's12', 's12', TMX + 8192 - 32)
    I('s_sub_i32', 's14', 8, 's6')
    I('s_max_i32', 's14', 's14', 0)
    I('s_mov_b32', 's58', 0xffff)
    I('s_mov_b32', 's59', 0xffff)
    k.waitcnt(lgkm=0)
    tick(k)
    srd(k, R_WS, S_WS, WS_SIZE)
    I('s_buffer_load_dwordx8', s(48, 8), s(R_WS, 4), 's12')
    I('s_add_u32', 's12', 's12', 32)
    I('s_buffer_load_dword', 's56', s(R_WS, 4), 's12')
    Sb = lambda t: SB_ + 16 * (t % 3)

    def qk(t, C):
        I('v_mfma_f32_32x32x16_bf16', v(Sb(t), 16), v(KF + 4 * t, 4), v(Q, 4), C)

    def consts():
        I('v_and_b32', 'v10', 31, 'v1')
        I('v_lshlrev_b32', 'v11', 2, 'v3')
        I('v_sub_u32', 'v10', 'v10', 'v11')
        I('v_mov_b32', 'v11', f32bits(-BIG))
        for r in range(0, 16, 2):
            for q in range(2):
                kk = ((r + q) & 3) + 8 * ((r + q) >> 2)
                I('v_cmp_le_i32', s(60 + 2 * q, 2), kk, 'v10')
            for q in range(2):
                I('v_cndmask_b32', v(MK + r + q), 'v11', 0, s(60 + 2 * q, 2))

    def rdv(t):
        I('s_mov_b64', 'exec', s(58, 2))
        for j in range(2):
            I('ds_read_b128', v(Vb(t) + 4 * j, 4), 'v247', mods=f'offset:{L_V + t * 1024 + j * 512}')
        I('s_mov_b64', 'exec', -1)

    def lds_reads():
        for t in range(8, -1, -1):
            I('ds_read_b128', v(KF + 4 * t, 4), 'v246', mods=f'offset:{L_K + t * 1024}')

    def attn(tag, exact):
        rdv(8)
        rdv(7)
        if exact:
            qk(8, v(MK, 16))
            qk(7, 0)
            for t in range(8, -1, -1):
                if t - 2 > 0:
                    qk(t - 2, 0)
                elif t - 2 == 0:
                    for r in range(16):
                        I('v_sub_f32', v(Sb(0) + r), 'v11', v(MK + r))
                    qk(0, v(Sb(0), 16))
                b = Sb(t)
                if t == 8:
                    I('v_max3_f32', v(MX), v(b), v(b + 1), v(b + 2))
                    I('v_max3_f32', v(MX + 1), v(b + 3), v(b + 4), v(b + 5))
                    rest = list(range(6, 16))
                else:
                    rest = list(range(16))
                for i in range(0, len(rest), 2):
                    m = MX + ((i // 2) & 1)
                    I('v_max3_f32', v(m), v(m), v(b + rest[i]), v(b + rest[i + 1]))
                if t > 0:
                    I('s_cmp_eq_u32', 's14', t)
                    I('s_cbranch_scc1', f'L_k2_p1{tag}')
            k.label(f'L_k2_p1{tag}')
            k.nop(12)
            I('v_max_f32', v(MX), v(MX), v(MX + 1))
            I('v_mov_b32', v(MX + 1), v(MX))
            I('v_permlane32_swap_b32', v(MX), v(MX + 1))
            I('v_max_f32', v(MX), v(MX), v(MX + 1))
            for r in range(16):
                I('v_sub_f32', v(NM + r), 0, v(MX))
            for r in range(16):
                I('v_add_f32', v(Sb(8) + r), v(MK + r), v(NM))
        else:
            k.waitcnt(lgkm=11)
        qk(8, v(Sb(8), 16))
        qk(7, v(NM, 16))
        if not exact:
            k.waitcnt(lgkm=4)
        qk(6, v(NM, 16))
        for t in range(8, -1, -1):
            b = Sb(t)
            P = PB + 8 * (t & 1)
            E = lambda r: I('v_exp_f32', v(b + r), v(b + r))
            C = lambda j: I('v_cvt_pk_bf16_f32', v(P + j), v(b + 2 * j), v(b + 2 * j + 1))
            if t - 2 >= 0:
                rdv(t - 2)
            for r in range(9):
                E(r)
            for j in range(4):
                C(j)
                E(9 + j)
            E(13)
            k.waitcnt(lgkm=4 if t - 2 >= 0 else (2 if t == 1 else 0))
            I('v_mfma_f32_32x32x16_bf16', v(OA, 16), v(Vb(t), 4), v(P, 4), 0 if t == 8 else v(OA, 16))
            E(14)
            E(15)
            for j in range(4, 8):
                C(j)
            if t - 3 > 0:
                qk(t - 3, v(NM, 16))
            elif t - 3 == 0:
                for r in range(16):
                    I('v_sub_f32', v(Sb(0) + r), 'v11', v(MK + r))
                for r in range(16):
                    I('v_add_f32', v(Sb(0) + r), v(Sb(0) + r), v(NM))
                qk(0, v(Sb(0), 16))
            if t > 0:
                I('s_cmp_eq_u32', 's14', t)
            I('v_mfma_f32_32x32x16_bf16', v(OA, 16), v(Vb(t) + 4, 4), v(P + 4, 4), v(OA, 16))
            if t > 0:
                I('s_cbranch_scc1', f'L_k2_p2{tag}')
        k.label(f'L_k2_p2{tag}')
        k.nop(12)
        k.waitcnt(lgkm=0)

    def side_loads():
        I('v_lshrrev_b32', 'v8', 3, 'v1')
        I('v_and_b32', 'v9', 7, 'v1')
        I('v_lshlrev_b32', 'v9', 4, 'v9')
        I('v_lshl_add_u32', 'v248', 'v8', 10, 'v9')
        I('v_mul_u32_u24', 'v8', 3584, 'v8')
        I('v_add_u32', 'v8', 'v8', 'v9')
        I('s_lshl_b32', 's69', 's3', 12)
        I('s_add_u32', 's69', 's69', L_SIDE)
        I('s_cmp_eq_u32', 's64', 0)
        I('s_cbranch_scc0', 'L_k2_sl1')
        I('s_mul_i32', 's15', 's66', 16 * 3584)
        I('s_lshl_b32', 's60', 's65', 7)
        I('s_add_u32', 's15', 's15', 's60')
        I('s_add_u32', 's60', 's15', 8 * 3584)
        for m_, ptr in enumerate((S_WG, S_WU)):
            srd(k, 44, ptr, 512 * 3584)
            I('s_add_u32', 'm0', 's69', m_ * 2048)
            I('buffer_load_dwordx4', 'v8', s(44, 4), 's15', mods='offen lds')
            I('s_add_u32', 'm0', 's69', m_ * 2048 + 1024)
            I('buffer_load_dwordx4', 'v8', s(44, 4), 's60', mods='offen lds')
        I('s_branch', 'L_k2_sl2')
        k.label('L_k2_sl1')
        I('s_cmp_eq_u32', 's3', 7)
        I('s_cselect_b32', 's44', s(S_WO), s(S_WD))
        I('s_cselect_b32', 's45', s(S_WO + 1), s(S_WD + 1))
        I('s_mov_b32', 's13', 1792 * 1024)
        I('s_cselect_b32', 's46', 512 * 1024, 's13')
        I('s_mov_b32', 's47', 0x20000)
        I('s_lshr_b32', 's12', 's57', 3)
        I('s_lshl_b32', 's12', 's12', 14)
        I('s_and_b32', 's13', 's57', 7)
        I('s_lshl_b32', 's13', 's13', 7)
        I('s_add_u32', 's12', 's12', 's13')
        I('s_mov_b32', 'm0', 's69')
        I('buffer_load_dwordx4', 'v248', s(44, 4), 's12', mods='offen lds')
        I('s_add_u32', 'm0', 's69', 1024)
        I('s_add_u32', 's12', 's12', 8192)
        I('buffer_load_dwordx4', 'v248', s(44, 4), 's12', mods='offen lds')
        k.label('L_k2_sl2')

    I('s_lshl_b32', 's7', 's5', 3)
    I('s_lshl_b32', 's13', 's3', 1)
    I('s_add_i32', 's7', 's7', 's13')
    I('s_add_i32', 's7', 's7', -8)
    I('s_max_i32', 's7', 's7', 0)
    I('s_lshl_b32', 's7', 's7', 10)
    I('s_add_u32', 's7', 's7', 's9')
    I('s_add_u32', 'm0', 's8', L_K)
    I('s_add_u32', 's13', 's7', KB)
    I('buffer_load_dwordx4', 'v2', s(R_WS, 4), 's13', mods='offen lds')
    I('buffer_load_dwordx4', 'v2', s(R_WS, 4), 's13', mods='offen offset:1024 lds')
    I('buffer_load_dwordx4', v(Q, 4), 'v2', s(R_WS, 4), 's10', mods='offen')
    I('buffer_load_dword', v(MX), 'v12', s(R_WS, 4), 's11', mods='offen')
    I('s_add_u32', 'm0', 's8', L_V)
    I('s_add_u32', 's13', 's7', VB)
    I('buffer_load_dwordx4', 'v2', s(R_WS, 4), 's13', mods='offen lds')
    I('buffer_load_dwordx4', 'v2', s(R_WS, 4), 's13', mods='offen offset:1024 lds')
    I('buffer_load_dwordx4', v(G2R, 4), 'v14', s(R_WS, 4), 's67', mods='offen')
    I('buffer_load_dwordx4', v(G2R + 4, 4), 'v14', s(R_WS, 4), 's67', mods='offen offset:16')
    I('buffer_load_dwordx4', v(SBR, 4), 'v15', s(R_WS, 4), 's68', mods='offen')
    consts()
    for r in range(24):
        I('v_mov_b32', v(VF + r), 0x3f803f80)
    I('s_lshl_b32', 's13', 's3', 10)
    I('v_add_u32', 'v246', 's13', 'v2')
    I('v_add_u32', 'v247', 's13', 'v13')
    k.waitcnt(lgkm=0)
    for i in range(1, 9):
        I('s_max_u32', 's48', 's48', s(48 + i))
    k.waitcnt(vm=5)
    I('v_mul_f32', v(MX), 's48', v(MX))
    I('v_sqrt_f32', v(MX), v(MX))
    for r in range(16):
        I('v_sub_f32', v(NM + r), 0, v(MX))
    for r in range(16):
        I('v_add_f32', v(Sb(8) + r), v(MK + r), v(NM))
    k.waitcnt(vm=3)
    tick(k)
    k.barrier()
    tick(k)
    lds_reads()
    code_prefetch(k, 8, 249, 44, 8)
    side_loads()
    attn('a', exact=False)
    tick(k)
    I('v_mov_b32', v(MX), f32bits(2.0 ** -80))
    I('v_cmp_nge_f32', 'vcc', v(OA + 8), v(MX))
    if OPT.get('k2force'):
        I('s_mov_b64', 'vcc', -1)
    I('s_cbranch_vccz', 'L_k2_fin')
    attn('x', exact=True)
    k.label('L_k2_fin')
    I('v_rcp_f32', v(MX), v(OA + 8))
    for r in range(8):
        I('v_mul_f32', v(OA + r), v(OA + r), v(MX))
    pack8(k, PB, OA)
    I('s_lshl_b32', 's12', 's6', 15)
    I('s_lshl_b32', 's13', 's4', 10)
    I('s_add_u32', 's12', 's12', 's13')
    I('s_add_u32', 's12', 's12', OB)
    I('buffer_store_dwordx4', v(PB, 4), 'v2', s(R_WS, 4), 's12', mods=f'offen {ST_POL}')
    k.waitcnt(vm=1)
    tick(k)
    I('s_cmp_eq_u32', 's64', 0)
    I('s_cbranch_scc1', 'L_k2_gu')
    I('s_mov_b32', 's60', 1024)
    I('s_mov_b32', 's61', 512)
    I('s_cmp_eq_u32', 's3', 7)
    I('s_cselect_b32', 's12', 512, 's60')
    I('s_cselect_b32', 's13', 1024, 's61')
    I('v_mul_lo_u32', 'v8', 'v3', 's12')
    I('v_lshl_add_u32', 'v8', 'v5', 7, 'v8')
    I('v_lshl_add_u32', 'v8', 'v4', 5, 'v8')
    I('v_lshl_add_u32', 'v8', 'v6', 3, 'v8')
    I('v_add_u32', 'v8', 's69', 'v8')
    I('v_add_u32', 'v9', 's13', 'v8')
    RU = KF
    for u in range(2):
        I('ds_read_b64_tr_b16', v(RU + 4 * u, 2), 'v8', mods=f'offset:{u * 64}')
        I('ds_read_b64_tr_b16', v(RU + 4 * u + 2, 2), 'v9', mods=f'offset:{u * 64}')
    I('s_mov_b32', 's60', 114688)
    I('s_cselect_b32', 's60', 32768, 's60')
    I('s_mov_b32', 's61', WD)
    I('s_cselect_b32', 's61', WO, 's61')
    I('s_and_b32', 's12', 's57', 7)
    I('s_lshl_b32', 's12', 's12', 1)
    I('s_mul_i32', 's12', 's12', 's60')
    I('s_add_u32', 's61', 's61', 's12')
    I('s_lshr_b32', 's12', 's57', 3)
    I('s_lshl_b32', 's12', 's12', 10)
    I('s_add_u32', 's61', 's61', 's12')
    I('s_add_u32', 's62', 's61', 's60')
    k.waitcnt(lgkm=0)
    I('buffer_store_dwordx4', v(RU, 4), 'v2', s(R_WS, 4), 's61', mods=f'offen {ST_POL}')
    I('buffer_store_dwordx4', v(RU + 4, 4), 'v2', s(R_WS, 4), 's62', mods=f'offen {ST_POL}')
    I('s_branch', 'L_k2_sw1')
    k.label('L_k2_gu')
    I('v_lshlrev_b32', 'v10', 11, 'v4')
    I('v_lshl_add_u32', 'v11', 'v3', 3, 'v5')
    I('v_lshl_add_u32', 'v10', 'v11', 7, 'v10')
    I('v_lshl_add_u32', 'v10', 'v6', 3, 'v10')
    I('v_add_u32', 'v10', 's69', 'v10')
    RW = KF
    for u in range(4):
        I('ds_read_b64_tr_b16', v(RW + 4 * u, 2), 'v10', mods=f'offset:{u * 32}')
        I('ds_read_b64_tr_b16', v(RW + 4 * u + 2, 2), 'v10', mods=f'offset:{u * 32 + 512}')
    I('s_lshl_b32', 's60', 's65', 2)
    I('s_mul_i32', 's15', 's66', 7168)
    I('s_add_u32', 's15', 's15', W4)
    for u in range(4):
        I('s_add_u32', 's12', 's60', u)
        I('s_mul_i32', 's13', 's12', 147)
        I('s_lshr_b32', 's13', 's13', 10)
        I('s_mul_i32', 's61', 's13', 7)
        I('s_sub_u32', 's12', 's12', 's61')
        I('s_mul_i32', 's13', 's13', W4_NB)
        I('s_lshl_b32', 's12', 's12', 10)
        I('s_add_u32', 's12', 's12', 's13')
        I('s_add_u32', s(48 + u), 's12', 's15')
    for j in range(4):
        I('v_mov_b32', v(240 + j), 0x3f803f80)
    I('s_mul_i32', 's62', 's66', 28672)
    I('s_lshl_b32', 's63', 's60', 7)
    I('s_add_u32', 's62', 's62', 's63')
    I('s_add_u32', 's62', 's62', CSP)
    I('v_mul_u32_u24', 'v8', 14336, 'v3')
    I('v_add_u32', 'v8', 'v8', 'v12')
    I('v_cmp_eq_u32', 'vcc', 0, 'v3')
    BS = [96, 112, SB_, SB_ + 16]
    CS = [SB_ + 32, PB, OA, NM]
    T = MK
    for u in range(4):
        k.waitcnt(lgkm=6 - 2 * u)
        I('v_mfma_f32_32x32x16_bf16', v(BS[u], 16), v(SBR, 4), v(RW + 4 * u, 4), 0)
        unpack8(k, T + 8 * (u & 1), RW + 4 * u)
        for j in range(8):
            I('v_mul_f32', v(T + 8 * (u & 1) + j), v(T + 8 * (u & 1) + j), v(G2R + j))
        pack8(k, RW + 16 + 4 * u, T + 8 * (u & 1))
        I('buffer_store_dwordx4', v(RW + 16 + 4 * u, 4), 'v2', s(R_WS, 4), s(48 + u), mods=f'offen {ST_POL}')
        I('v_mfma_f32_32x32x16_bf16', v(CS[u], 16), v(240, 4), v(RW + 16 + 4 * u, 4), 0)
    for u in range(4):
        I('v_cndmask_b32', v(244 + u), v(BS[u]), v(CS[u]), 'vcc')
        I('buffer_store_dword', v(244 + u), 'v8', s(R_WS, 4), 's62', mods=f'offen offset:{128 * u}')
    k.label('L_k2_sw1')
    epilogue(k, 2, vtmp=4)
    return k, 256, 512, LDS


def gen_gemm64(name, idx, NS, A_BASE, A_TB, B_BASE, B_NF, is_k3):
    k = Kernel(name)
    I = k.I
    LDS = 4 * 3 * 4096
    prologue(k, 256, need_lo=is_k3)
    xcd_map(k, 3, 4, 5, OPT.get('x3' if is_k3 else 'x5', 2))
    I('v_lshlrev_b32', 'v2', 4, 'v1')
    I('v_lshrrev_b32', 'v3', 5, 'v1')
    I('v_and_b32', 'v4', 31, 'v1')
    NT = 4 * NS
    ROT = OPT.get('rot64', 0)
    I('s_lshr_b32', 's6', 's2', 3)
    I('s_mul_i32', 's6', 's6', NT * ROT)
    I('s_lshr_b32', 's6', 's6', 5)
    I('s_mul_i32', 's61', 's3', NS)
    I('s_add_u32', 's6', 's6', 's61')
    I('s_cmp_ge_u32', 's6', NT)
    I('s_cselect_b32', 's61', NT, 0)
    I('s_sub_u32', 's6', 's6', 's61')
    I('s_lshl_b32', 's6', 's6', 10)
    I('s_mul_i32', 's7', 's4', 2 * A_TB)
    I('s_add_u32', 's7', 's7', A_BASE)
    I('s_add_u32', 's8', 's7', A_TB)
    I('s_mul_i32', 's9', 's5', 2 * B_NF)
    I('s_add_u32', 's9', 's9', B_BASE)
    I('s_add_u32', 's10', 's9', B_NF)
    I('s_and_b32', 's11', 's3', 1)
    I('s_lshr_b32', 's12', 's3', 1)
    I('s_lshl_b32', 's13', 's4', 1)
    I('s_add_u32', 's13', 's13', 's12')
    I('s_lshl_b32', 's14', 's5', 1)
    I('s_add_u32', 's14', 's14', 's11')
    k.waitcnt(lgkm=0)
    tick(k)
    srd(k, R_WS, S_WS, WS_SIZE)
    ACC = 16
    GV = 80
    XR = 96
    RING = 104
    DEPTH = min(NS, OPT.get('gdepth', 8))
    LOG = []

    def ld(st):
        b = RING + 16 * (st % DEPTH)
        va = 'v11' if st & 1 else 'v12'
        I('v_add_u32', va, 's6', 'v2')
        I('s_add_u32', 's6', 's6', 1024)
        I('s_cmp_eq_u32', 's6', NT * 1024)
        I('s_cselect_b32', 's6', 0, 's6')
        for j, r in enumerate((9, 7, 10, 8)):
            I('buffer_load_dwordx4', v(b + 4 * j, 4), va, s(R_WS, 4), s(r), mods='offen')
            LOG.append(('k', st))

    def side_loads():
        I('s_lshl_b32', 's15', 's14', 7)
        I('s_add_u32', 's15', 's15', MODF + (MF_GA if is_k3 else MF_GB))
        I('v_lshlrev_b32', 'v5', 5, 'v3')
        for sp in range(2):
            for q in range(2):
                I('buffer_load_dwordx4', v(GV + 8 * sp + 4 * q, 4), 'v5', s(R_WS, 4), 's15', mods=f'offen offset:{64 * sp + 16 * q}')
                LOG.append(('s', 0))
        if is_k3:
            srd(k, 44, S_X, 2048 * 1024)
            I('s_lshl_b32', 's15', 's13', 15)
            I('s_lshl_b32', 's60', 's14', 6)
            I('s_add_u32', 's15', 's15', 's60')
            I('v_lshlrev_b32', 'v6', 10, 'v4')
            I('v_lshl_add_u32', 'v6', 'v3', 4, 'v6')
            for sp in range(2):
                I('buffer_load_dwordx4', v(XR + 4 * sp, 4), 'v6', s(44, 4), 's15', mods=f'offen offset:{32 * sp}')
                LOG.append(('s', 0))
        else:
            I('s_lshl_b32', 's15', 's13', 15)
            I('s_lshl_b32', 's60', 's14', 11)
            I('s_add_u32', 's15', 's15', 's60')
            I('s_add_u32', 's15', 's15', X1)
            for sp in range(2):
                I('buffer_load_dwordx4', v(XR + 4 * sp, 4), 'v2', s(R_WS, 4), 's15', mods=f'offen offset:{1024 * sp}')
                LOG.append(('s', 0))

    PRE = min(DEPTH, OPT.get('gpre', 4))
    CSL = [False]
    CPF = [0]
    nxt = 0
    for st in range(PRE):
        ld(st)
        nxt += 1
    side_done = False
    for st in range(NS):
        tgt = min(NS, st + DEPTH)
        n_issue = 0
        while nxt < tgt and n_issue < 2:
            ld(nxt)
            nxt += 1
            n_issue += 1
        if nxt == NS and not side_done:
            side_loads()
            if is_k3:
                I('v_mul_u32_u24', 'v8', 14336, 'v3')
                I('v_lshl_add_u32', 'v8', 'v4', 2, 'v8')
                I('s_min_u32', 's15', 's2', 111)
                I('s_lshl_b32', 's15', 's15', 7)
                I('s_add_u32', 's15', 's15', CSP)
                I('s_cmp_lg_u32', 's3', 0)
                I('s_cbranch_scc1', f'L_{name}_nocs')
                for p in range(32):
                    I('s_add_u32', 's60', 's15', p * 28672)
                    I('buffer_load_dword', a(p), 'v8', s(R_WS, 4), 's60', mods='offen')
                k.label(f'L_{name}_nocs', flush=False)
                CSL[0] = True
            if code_prefetch(k, 13, 14, 48, 4):
                LOG.append(('s', 0))
                CPF[0] = 1
            side_done = True
        last = max(i for i, e in enumerate(LOG) if e == ('k', st))
        if CSL[0]:
            I('s_cmp_lg_u32', 's3', 0)
            I('s_cbranch_scc1', f'L_{name}_w{st}')
            k.waitcnt(vm=min(63, len(LOG) - 1 - last + 32))
            I('s_branch', f'L_{name}_x{st}')
            k.label(f'L_{name}_w{st}', flush=False)
            k.waitcnt(vm=len(LOG) - 1 - last)
            k.label(f'L_{name}_x{st}', flush=False)
        else:
            k.waitcnt(vm=len(LOG) - 1 - last)
        b = RING + 16 * (st % DEPTH)
        B0, A0, B1, A1 = (v(b + 4 * j, 4) for j in range(4))
        for nfl, Bf in ((0, B0), (1, B1)):
            for tbl, Af in ((0, A0), (1, A1)):
                a_ = ACC + 16 * (2 * nfl + tbl)
                I('v_mfma_f32_32x32x16_bf16', v(a_, 16), Bf, Af, 0 if st == 0 else v(a_, 16))
    tick(k)
    k.flush()
    for o in range(4):
        q = 2 * (o & 1) + (o >> 1)
        lab = f'L_{name}_skip{o}'
        I('s_cmp_eq_u32', 's3', o)
        I('s_cbranch_scc1', lab)
        I('s_sub_u32', 's15', 's3', o + 1)
        I('s_and_b32', 's15', 's15', 3)
        I('s_lshl_b32', 's15', 's15', 12)
        I('v_add_u32', 'v7', 's15', 'v2')
        for j in range(4):
            I('ds_write_b128', 'v7', v(ACC + 16 * q + 4 * j, 4), mods=f'offset:{o * 12288 + j * 1024}')
        k.label(lab)
    OWN = RING
    for o in range(4):
        q = 2 * (o & 1) + (o >> 1)
        lab = f'L_{name}_own{o}'
        I('s_cmp_lg_u32', 's3', o)
        I('s_cbranch_scc1', lab)
        for r in range(16):
            I('v_mov_b32', v(OWN + r), v(ACC + 16 * q + r))
        k.label(lab)
    k.waitcnt(lgkm=0)
    k.barrier()
    tick(k)
    I('s_mul_i32', 's15', 's3', 12288)
    I('v_add_u32', 'v7', 's15', 'v2')
    for p in range(3):
        for j in range(4):
            I('ds_read_b128', v(ACC + 16 * p + 4 * j, 4), 'v7', mods=f'offset:{p * 4096 + j * 1024}')
    for p in range(3):
        k.waitcnt(lgkm=8 - 4 * p)
        for r in range(16):
            I('v_add_f32', v(OWN + r), v(OWN + r), v(ACC + 16 * p + r))
    k.waitcnt(vm=CPF[0])
    T = ACC
    unpack8(k, T, XR)
    unpack8(k, T + 8, XR + 4)
    for r in range(16):
        I('v_fmac_f32', v(T + r), v(OWN + r), v(GV + r))
    P = ACC + 16
    pack8(k, P, T)
    pack8(k, P + 4, T + 8)
    if is_k3:
        I('s_lshl_b32', 's15', 's13', 15)
        I('s_lshl_b32', 's60', 's14', 11)
        I('s_add_u32', 's15', 's15', 's60')
        I('s_add_u32', 's15', 's15', X1)
        for sp in range(2):
            I('buffer_store_dwordx4', v(P + 4 * sp, 4), 'v2', s(R_WS, 4), 's15', mods=f'offen offset:{1024 * sp} {ST_POL}')
        unpack8(k, T, P)
        unpack8(k, T + 8, P + 4)
        I('v_add_f32', 'v8', v(T), v(T + 1))
        I('v_add_f32', 'v9', v(T + 2), v(T + 3))
        for r in range(4, 16, 2):
            I('v_add_f32', 'v8', 'v8', v(T + r))
            I('v_add_f32', 'v9', 'v9', v(T + r + 1))
        I('v_add_f32', 'v8', 'v8', 'v9')
        I('v_mov_b32', 'v9', 'v8')
        I('v_permlane32_swap_b32', 'v8', 'v9')
        I('v_add_f32', 'v8', 'v8', 'v9')
        I('v_mul_f32', 'v8', f32bits(1.0 / 32), 'v8')
        for r in range(16):
            I('v_sub_f32', v(T + r), v(T + r), 'v8')
        I('v_mul_f32', 'v9', v(T), v(T))
        I('v_mul_f32', 'v10', v(T + 1), v(T + 1))
        for r in range(2, 16, 2):
            I('v_fmac_f32', 'v9', v(T + r), v(T + r))
            I('v_fmac_f32', 'v10', v(T + r + 1), v(T + r + 1))
        I('v_add_f32', 'v9', 'v9', 'v10')
        I('v_mov_b32', 'v10', 'v9')
        I('v_permlane32_swap_b32', 'v9', 'v10')
        I('v_add_f32', 'v9', 'v9', 'v10')
        I('s_lshl_b32', 's15', 's13', 12)
        I('s_lshl_b32', 's60', 's5', 9)
        I('s_add_u32', 's15', 's15', 's60')
        I('s_lshl_b32', 's60', 's11', 3)
        I('s_add_u32', 's15', 's15', 's60')
        I('s_add_u32', 's15', 's15', ST2)
        I('v_lshlrev_b32', 'v10', 4, 'v4')
        I('s_mov_b32', 'exec_hi', 0)
        I('buffer_store_dwordx2', v(8, 2), 'v10', s(R_WS, 4), 's15', mods='offen')
        I('s_mov_b64', 'exec', -1)
        I('s_cmp_ge_u32', 's2', 112)
        I('s_cbranch_scc1', f'L_{name}_noside')
        I('s_cmp_lg_u32', 's3', 0)
        I('s_cbranch_scc1', f'L_{name}_noside')
        T = RING + 16
        for p in range(32):
            I('v_accvgpr_read_b32', v(T + p), a(p))
        for st_ in (16, 8, 4, 2, 1):
            for r in range(st_):
                I('v_add_f32', v(T + r), v(T + r), v(T + r + st_))
        I('v_cvt_pk_bf16_f32', v(P), v(T), v(T))
        I('v_and_b32', 'v9', 0xffff0000, v(P))
        I('v_sub_f32', 'v9', v(T), 'v9')
        I('v_cvt_pk_bf16_f32', v(P + 1), 'v9', 'v9')
        I('v_mov_b32', v(P + 2), 0)
        I('v_mov_b32', v(P + 3), 0)
        I('s_mul_i32', 's60', 's2', 147)
        I('s_lshr_b32', 's60', 's60', 10)
        I('s_mul_i32', 's61', 's60', 7)
        I('s_sub_u32', 's61', 's2', 's61')
        I('s_mul_i32', 's60', 's60', W4_NB)
        I('s_lshl_b32', 's61', 's61', 10)
        I('s_add_u32', 's60', 's60', 's61')
        I('s_add_u32', 's60', 's60', W4 + 32 * 7168)
        I('buffer_store_dwordx4', v(P, 4), 'v2', s(R_WS, 4), 's60', mods='offen')
        k.label(f'L_{name}_noside')
    else:
        srd(k, 44, S_OUT, 2048 * 1024)
        I('s_lshl_b32', 's15', 's13', 15)
        I('s_lshl_b32', 's60', 's14', 6)
        I('s_add_u32', 's15', 's15', 's60')
        I('v_lshlrev_b32', 'v6', 10, 'v4')
        I('v_lshl_add_u32', 'v6', 'v3', 4, 'v6')
        for sp in range(2):
            I('buffer_store_dwordx4', v(P + 4 * sp, 4), 'v6', s(44, 4), 's15',
              mods=f'offen offset:{32 * sp}' + (' sc1' if OPT.get('outsc1') else ''))
    epilogue(k, idx, vtmp=4)
    return k, 256, 256, LDS


def gen_k3():
    return gen_gemm64('k3_wo_kernel', 3, 8, OB, 32768, WO, 32768, True)


def gen_k5():
    return gen_gemm64('k5_down_kernel', 5, 28, ACT, 112 * 1024, WD, 112 * 1024, False)


def gen_k4():
    k = Kernel('k4_ffn1_kernel')
    I = k.I
    RES = {2: 131072, 3: 32768, 6: 0}
    LDS = 163840
    NR = 16
    D = OPT.get('k4d', 8)
    assert D <= 16 - OPT.get('k4bi', 2)
    prologue(k, 256, need_lo=False)
    xcd_map(k, 2, 4, 5, OPT.get('x4', 2))
    I('s_and_b32', 's61', 's3', 3)
    I('s_lshr_b32', 's63', 's3', 2)
    I('s_lshl_b32', 's6', 's4', 2)
    I('s_add_u32', 's6', 's6', 's61')
    I('v_lshlrev_b32', 'v2', 4, 'v1')
    I('v_lshrrev_b32', 'v3', 5, 'v1')
    I('v_and_b32', 'v4', 31, 'v1')
    I('s_mul_i32', 's7', 's5', W4_NB)
    I('s_add_u32', 's7', 's7', W4)
    I('s_lshl_b32', 's8', 's3', 10)
    I('s_lshl_b32', 's9', 's6', 15)
    I('s_add_u32', 's9', 's9', X1)
    I('s_and_b32', 's10', 's3', 1)
    I('s_and_b32', 's11', 's3', 2)
    I('s_lshl_b32', 's11', 's11', 1)
    I('s_add_u32', 's10', 's10', 's11')
    I('s_lshl_b32', 's10', 's10', 10)
    I('s_add_u32', 's10', 's10', 's7')
    I('s_mov_b32', 's11', 7168)
    I('s_cmp_eq_u32', 's63', 0)
    I('s_cselect_b32', 's9', 's9', 's10')
    I('s_cselect_b32', 's11', 1024, 's11')
    I('s_mul_i32', 's12', 's3', 7168)
    I('s_add_u32', 's12', 's12', 's7')
    I('s_lshl_b32', 's13', 's61', 10)
    I('v_add_u32', 'v5', 's13', 'v2')
    I('s_lshl_b32', 's13', 's63', 11)
    I('s_add_u32', 's13', 's13', 4096)
    I('v_add_u32', 'v6', 's13', 'v2')
    I('v_add_u32', 'v7', RES[2], 'v2')
    I('s_xor_b32', 's13', 's63', 1)
    I('s_lshl_b32', 's13', 's13', 15)
    I('v_add_u32', 'v15', 's13', 'v2')
    I('v_add_u32', 'v0', 65536, 'v5')
    I('v_add_u32', 'v1', 65536, 'v6')
    k.waitcnt(lgkm=0)
    tick(k)
    srd(k, R_WS, S_WS, WS_SIZE)
    ACC, WF, EXT, T, PK, EXB = 16, 80, 104, 108, 116, 124
    STT = ACC + 48
    EXA = T
    I('s_cmp_eq_u32', 's63', 0)
    I('s_cbranch_scc0', 'L_k4_g1')
    nt0 = getattr(k, 'nticks', 0)
    for grp in range(2):
        k.nticks = nt0
        FA = [0, 1, 2] if grp == 0 else [4, 5]
        FB = 3 if grp == 0 else 6
        NA = len(FA)
        LOG = []

        def ring(s_):
            if s_ >= 32:
                batch(6 if s_ < 36 else 3, (s_ - 32) % 4)
                return
            I('s_add_u32', 'm0', 's8', (s_ % NR) * 8192)
            I('buffer_load_dwordx4', 'v2', s(R_WS, 4), 's9', mods='offen lds')
            I('s_add_u32', 's9', 's9', 's11')
            LOG.append(('r', s_))

        def batch(fr, i):
            I('s_add_u32', 'm0', 's8', RES[fr] + i * 8192)
            I('s_add_u32', 's13', 's12', i * 8 * 7168 + fr * 1024)
            I('buffer_load_dwordx4', 'v2', s(R_WS, 4), 's13', mods='offen lds')
            LOG.append(('b', fr, i))

        def stat_loads():
            I('s_lshl_b32', 's13', 's6', 12)
            I('s_add_u32', 's13', 's13', ST2)
            I('v_lshlrev_b32', 'v8', 11, 'v3')
            I('v_lshl_add_u32', 'v8', 'v4', 4, 'v8')
            for q in range(4):
                I('buffer_load_dwordx4', v(STT + 4 * q, 4), 'v8', s(R_WS, 4), 's13', mods=f'offen offset:{q * 512}')
                LOG.append(('st',))

        def ext_loads():
            I('s_add_u32', 's13', 's7', 32 * 7168)
            for j, f in enumerate(FA):
                I('s_add_u32', 's14', 's13', f * 1024)
                I('buffer_load_dwordx4', v(EXA + 4 * j, 4), 'v2', s(R_WS, 4), 's14', mods='offen')
                LOG.append(('x',))
            I('s_add_u32', 's14', 's13', FB * 1024)
            I('buffer_load_dwordx4', v(EXB, 4), 'v2', s(R_WS, 4), 's14', mods='offen')
            LOG.append(('x',))
            if grp == 1:
                pass

        def wait_tags(tags):
            last = max(i for i, e in enumerate(LOG) if e in tags)
            k.waitcnt(vm=len(LOG) - 1 - last)

        def rd(s_):
            so = (s_ % 8) * 8192
            hi = (s_ % NR) >= 8
            b = WF + 12 * (s_ & 1)
            I('ds_read_b128', a(4 * s_, 4), 'v0' if hi else 'v5', mods=f'offset:{so}')
            for j in range(2):
                I('ds_read_b128', v(b + 4 * j, 4), 'v1' if hi else 'v6', mods=f'offset:{so + j * 1024}')
            if grp == 0:
                I('ds_read_b128', v(b + 8, 4), 'v7', mods=f'offset:{s_ * 1024}')
        NRD = 1 + NA

        def stats_ops():
            c0 = -2.0 * 1.4426950408889634 * math.sqrt(2.0 / math.pi)
            c1 = c0 * 0.044715
            L = []
            A_ = lambda *a_, **kw: L.append(lambda: I(*a_, **kw))
            A_('v_add_f32', 'v8', v(STT), v(STT + 2))
            for r in range(4, 16, 2):
                A_('v_add_f32', 'v8', 'v8', v(STT + r))
            A_('v_mov_b32', 'v9', 'v8')
            A_('v_permlane32_swap_b32', 'v8', 'v9')
            A_('v_add_f32', 'v8', 'v8', 'v9')
            A_('v_mul_f32', 'v8', f32bits(1.0 / 16), 'v8')
            A_('v_add_f32', 'v9', v(STT + 1), v(STT + 3))
            for r in range(5, 16, 2):
                A_('v_add_f32', 'v9', 'v9', v(STT + r))
            A_('v_mov_b32', 'v10', 0)
            for r in range(0, 16, 2):
                A_('v_sub_f32', v(STT + r), v(STT + r), 'v8')
                A_('v_fmac_f32', 'v10', v(STT + r), v(STT + r))
            A_('v_fmac_f32', 'v9', f32bits(32.0), 'v10')
            A_('v_mov_b32', 'v10', 'v9')
            A_('v_permlane32_swap_b32', 'v9', 'v10')
            A_('v_add_f32', 'v9', 'v9', 'v10')
            A_('v_mov_b32', 'v10', f32bits(1e-5))
            A_('v_fmac_f32', 'v10', f32bits(1.0 / 512), 'v9')
            A_('v_rsq_f32', 'v11', 'v10')
            A_('v_mul_f32', 'v12', 'v10', 'v11')
            A_('v_sub_f32', 'v13', 0, 'v8')
            A_('v_cmp_eq_u32', 'vcc', 0, 'v3')
            A_('v_cndmask_b32', 'v13', 'v12', 'v13', 'vcc')
            A_('v_cvt_pk_bf16_f32', 'v14', 'v13', 'v13')
            A_('v_and_b32', 'v14', 0xffff0000, 'v14')
            A_('v_sub_f32', 'v9', 'v13', 'v14')
            A_('v_cvt_pk_bf16_f32', v(EXT), 'v14', 'v9')
            A_('v_mov_b32', v(EXT + 1), v(EXT))
            A_('v_mov_b32', v(EXT + 2), 0)
            A_('v_mov_b32', v(EXT + 3), 0)
            A_('v_mul_f32', 'v12', f32bits(c0), 'v11')
            A_('v_mul_f32', 'v13', 'v11', 'v11')
            A_('v_mul_f32', 'v13', 'v13', 'v11')
            A_('v_mul_f32', 'v13', f32bits(c1), 'v13')
            A_('s_mul_i32', 's60', 's6', 112 * 1024)
            A_('s_mul_i32', 's62', 's5', 7 * 1024)
            A_('s_add_u32', 's60', 's60', 's62')
            A_('s_add_u32', 's60', 's60', ACT + grp * 4096)
            return L

        def epi(ai, f):
            g_ = ACC + 16 * ai
            u_ = g_ + 8
            for e in range(8):
                I('v_mul_f32', v(T + e), v(g_ + e), v(g_ + e))
            for e in range(8):
                I('v_fma_f32', v(T + e), v(T + e), 'v13', 'v12')
            for e in range(8):
                I('v_mul_f32', v(T + e), v(T + e), v(g_ + e))
            for e in range(8):
                I('v_exp_f32', v(T + e), v(T + e))
            for e in range(8):
                I('v_mul_f32', v(u_ + e), v(u_ + e), v(g_ + e))
            for e in range(8):
                I('v_fma_f32', v(T + e), v(T + e), 'v10', 'v10')
            for e in range(8):
                I('v_rcp_f32', v(T + e), v(T + e))
            for e in range(8):
                I('v_mul_f32', v(T + e), v(T + e), v(u_ + e))
            P = PK + 4 * (ai & 1)
            pack8(k, P, T)
            I('buffer_store_dwordx4', v(P, 4), 'v2', s(R_WS, 4), 's60', mods=f'offen offset:{(f % 4) * 1024} {ST_POL}')
            LOG.append(('store',))

        def fragB():
            ai = 3 if grp == 0 else 2
            acc = v(ACC + 16 * ai, 16)
            NB_ = 6
            for u in range(NB_ - 1):
                I('ds_read_b128', v(WF + 4 * u, 4), 'v15', mods=f'offset:{u * 1024}')
            I('v_mfma_f32_32x32x16_bf16', acc, v(EXB, 4), v(EXT, 4), 0)
            for u in range(32):
                n = u + NB_ - 1
                if n < 32:
                    I('ds_read_b128', v(WF + 4 * (n % NB_), 4), 'v15', mods=f'offset:{n * 1024}')
                k.waitcnt(lgkm=min(31, n) - u)
                I('v_mfma_f32_32x32x16_bf16', acc, v(WF + 4 * (u % NB_), 4), a(4 * u, 4), acc)

        extra = {}
        bsched = [(2, 1, 1), (2, 2, 5), (2, 3, 10)]
        for fr, i, at in bsched:
            extra.setdefault(at, []).append(lambda fr=fr, i=i: batch(fr, i))
        extra.setdefault(0, []).append(stat_loads)
        extra.setdefault(16, []).append(ext_loads)
        ring(0)
        batch(2, 0)
        PRE = OPT.get('k4pre', 8)
        for s_ in range(1, PRE):
            ring(s_)
        rn = [PRE]
        BI = OPT.get('k4bi', 2)
        wait_tags([('r', 0), ('r', 1), ('b', 2, 0)])
        k.barrier()
        tick(k)
        rd(0)
        VQ = []
        for s_ in range(32):
            n = s_ + 1
            if n < 32:
                if n % BI == 0 or n == 2:
                    tags = [('r', x) for x in range(n, n + (BI if n % BI == 0 else BI - 2))]
                    if n % 8 == 0:
                        tags.append(('b', 2, n // 8))
                    wait_tags(tags)
                    k.barrier()
                    if n % 8 == 0:
                        tick(k)
                rd(n)
                k.waitcnt(lgkm=NRD)
            else:
                k.waitcnt(lgkm=0)
            b = WF + 12 * (s_ & 1)
            for j in range(NA):
                I('v_mfma_f32_32x32x16_bf16', v(ACC + 16 * j, 16), v(b + 4 * j, 4), a(4 * s_, 4),
                  0 if s_ == 0 else v(ACC + 16 * j, 16))
                lead = D if rn[0] < 32 else OPT.get('k4db', 6)
                if j < (2 if s_ < OPT.get('k4ramp', 12) or rn[0] >= 32 else 1) and rn[0] <= s_ + lead and rn[0] < 36:
                    ring(rn[0])
                    rn[0] += 1
                if j == 1:
                    for f_ in extra.get(s_, []):
                        f_()
                for _ in range(4):
                    if VQ:
                        VQ.pop(0)()
            if s_ == 10:
                VQ.extend(stats_ops())
        assert not VQ
        tick(k)
        wait_tags([('x',)])
        for j in range(NA):
            I('v_mfma_f32_32x32x16_bf16', v(ACC + 16 * j, 16), v(EXA + 4 * j, 4), v(EXT, 4), v(ACC + 16 * j, 16))
        assert rn[0] == 36
        for i in range(4):
            batch(3, i)
        if grp == 0:
            I('v_lshrrev_b32', 'v1', 4, 'v2')
            if code_prefetch(k, 8, 9, 44, 8):
                LOG.append(('code',))
        wait_tags([('b', 6, 3)])
        k.barrier()
        tick(k)
        if OPT.get('k4wd', 0):
            I('s_lshr_b32', 's13', 's2', 3)
            I('s_lshl_b32', 's13', 's13', 3)
            I('s_add_u32', 's13', 's13', 's3')
            I('s_mul_i32', 's13', 's13', 3584)
            I('s_and_b32', 's14', 's2', 1)
            I('s_mul_i32', 's14', 's14', 8 * 114688)
            I('s_add_u32', 's13', 's13', 's14')
            I('s_add_u32', 's13', 's13', WD)
            I('s_lshl_b32', 's14', 's3', 12)
            I('s_add_u32', 'm0', 's14', RES[2])
            for q in range(4):
                I('buffer_load_dwordx4', 'v2', s(R_WS, 4), 's13', mods=f'offen offset:{min(q * 1024, 2560)} lds')
                LOG.append(('pf',))
        if grp == 0:
            for j, f in enumerate(FA):
                epi(j, f)
            wait_tags([('b', 3, 3)])
            k.barrier()
            tick(k)
            fragB()
            tick(k)
            epi(3, FB)
            I('s_branch', 'L_k4_done')
            k.label('L_k4_g1')
        else:
            fragB()
            wait_tags([('b', 3, 3)])
            k.barrier()
            tick(k)
            for j, f in enumerate(FA):
                epi(j, f)
            tick(k)
            epi(2, FB)
    k.label('L_k4_done')
    epilogue(k, 4, vtmp=4)
    return k, 256, 512, LDS


HEADER = """; adaLN_cond + sliding-window attention + GEGLU FFN block, gfx950 (MI355X).
"""


def build(gens, path):
    hdr, bodies, descs = [], [], []
    global ST_POL
    base_pol = ST_POL
    for gi, g in enumerate(gens):
        ST_POL = '' if (OPT.get('plain', 0) >> gi) & 1 else base_pol
        k, grid, block, lds = g()
        b, d = kernel_text(k)
        bodies.append(b)
        descs.append(d)
        hdr.append(f'; @launch kernel={k.name} grid=({grid},1,1) block=({block},1,1) lds={lds}')
        print(f'{k.name}: {k.n_ins} instr, vgpr {k.max_v + 1}, agpr {k.max_a + 1}, sgpr {k.max_s + 1}, nops {k.nops_inserted}, lds {lds}',
              file=sys.stderr)
    if OPT.get('dup'):
        d_ = OPT['dup'] - 1
        hdr.insert(d_ + 1, hdr[d_])
    out = HEADER + '\n'.join(hdr) + '\n.amdgcn_target "amdgcn-amd-amdhsa--gfx950"\n.text\n' + '\n'.join(bodies) + \
        '\nL_code_end:\n.section .rodata,"a"\n' + '\n'.join(descs)
    open(path, 'w').write(out)


if __name__ == '__main__':
    import argparse
    ap = argparse.ArgumentParser()
    ap.add_argument('-o', default='adaLN_cond__sliding_block__geglu_ffn__prompt.s')
    ap.add_argument('--stamp', action='store_true')
    ap.add_argument('-n', type=int, default=6)
    ap.add_argument('--stpol', default='sc1')
    ap.add_argument('--opt', default='')
    args = ap.parse_args()
    STAMP = args.stamp
    ST_POL = args.stpol
    for kv in args.opt.split(','):
        if kv:
            a_, b_ = kv.split('=')
            OPT[a_] = int(b_)
    allg = [gen_k0, gen_k1]
    for nm in ('gen_k2', 'gen_k3', 'gen_k4', 'gen_k5'):
        if nm in globals():
            allg.append(globals()[nm])
    build(allg[:args.n], args.o)
```

```python
import sys
import struct
import math
from asmlib import *

XN = 0x0000000
W1 = 0x0200000
W1_NB = 32 * 3072
MODP = 0x0400000
MODP_P = 3072 * 4
MODF = 0x0420000
MF_GA, MF_G2, MF_GB, MF_SB = 0, 2048, 4096, 6144
NRM = 0x0440000
TMX = 0x04C0000
QB = 0x0500000
KB = 0x0700000
VB = 0x0900000
OB = 0x0B00000
X1 = 0x0D00000
ST2 = 0x0F00000
CSP = 0x1F00000
W4 = 0x1000000
W4_NB = 33 * 7168
WO = 0x1400000
WD = 0x1500000
ACT = 0x1800000
STAMPS = 0x2000000
WS_SIZE = 0x2100000

STAMP = False
ST_POL = 'sc1'
OPT = {}


def f32bits(x):
    return struct.unpack('<I', struct.pack('<f', x))[0]


S_X, S_WQKV, S_WO, S_BX, S_WG, S_WU, S_WD, S_C = 16, 18, 20, 22, 24, 26, 28, 30
S_WMOD, S_OUT, S_DBG, S_WS = 32, 34, 36, 38
R_WS = 40


def srd(k, d, base, nbytes):
    k.I('s_mov_b32', s(d), s(base))
    k.I('s_mov_b32', s(d + 1), s(base + 1))
    k.I('s_mov_b32', s(d + 2), nbytes)
    k.I('s_mov_b32', s(d + 3), 0x20000)


def prologue(k, nwg, need_lo=True):
    I = k.I
    if STAMP:
        I('s_memrealtime', s(96, 2))
    I('s_cmp_ge_u32', 's2', nwg)
    I('s_cbranch_scc1', f'L_end_{k.name}')
    if OPT.get('prio', 0) and k.name[1] in '124':
        I('s_setprio', 3)
    if need_lo:
        I('s_load_dwordx16', s(16, 16), s(0, 2), 0)
    I('s_load_dwordx8', s(32, 8), s(0, 2), 64)
    I('v_and_b32', 'v1', 63, 'v0')
    I('v_lshrrev_b32', 'v2', 6, 'v0')
    I('v_readfirstlane_b32', 's3', 'v2')


def xcd_map(k, mbits, dm, dn, xmb=2):
    I = k.I
    mtot = mbits + 2
    jm = mtot - xmb
    if xmb > 0:
        I('s_bfe_u32', s(dm), 's2', (xmb << 16) | (3 - xmb))
        I('s_lshl_b32', s(dm), s(dm), jm)
    else:
        I('s_mov_b32', s(dm), 0)
    I('s_bfe_u32', s(dn), 's2', (jm << 16) | 3)
    I('s_add_u32', s(dm), s(dm), s(dn))
    I('s_and_b32', s(dn), 's2', (1 << (3 - xmb)) - 1)
    I('s_lshl_b32', s(dn), s(dn), 5 - jm)
    I('s_lshr_b32', 's62', 's2', 3 + jm)
    I('s_add_u32', s(dn), s(dn), 's62')


NEXT = {'k0_mod_kernel': ('k1_qkv_kernel', 'k2_attn_kernel'), 'k1_qkv_kernel': ('k2_attn_kernel', 'k3_wo_kernel'),
        'k2_attn_kernel': ('k3_wo_kernel', 'k4_ffn1_kernel'), 'k3_wo_kernel': ('k4_ffn1_kernel', 'k5_down_kernel'),
        'k4_ffn1_kernel': ('k5_down_kernel', 'L_code_end')}


def code_prefetch(k, vt, vdst, sa, nwaves):
    if not OPT.get('codepf', 1) or k.name not in NEXT:
        return False
    I = k.I
    beg, end = NEXT[k.name]
    I('s_getpc_b64', s(sa, 2))
    k.raw(f'L_pc_{k.name}:')
    I('s_lshr_b32', s(sa + 2), 's2', 3)
    I('s_mul_i32', s(sa + 2), s(sa + 2), nwaves)
    I('s_add_u32', s(sa + 2), s(sa + 2), 's3')
    I('s_lshl_b32', s(sa + 2), s(sa + 2), 13)
    I('v_lshlrev_b32', v(vt), 7, 'v1')
    I('v_add_u32', v(vt), s(sa + 2), v(vt))
    I('v_min_u32', v(vt), f'{end}-{beg}-4', v(vt))
    I('v_add_u32', v(vt), f'{beg}-L_pc_{k.name}', v(vt))
    I('global_load_dword', v(vdst), v(vt), s(sa, 2))
    return True


def tick(k):
    if STAMP:
        n = getattr(k, 'nticks', 0)
        assert n < 12
        k.I('s_memrealtime', s(94, 2))
        k.I('s_memtime', s(100, 2))
        k.waitcnt(lgkm=0)
        k.I('s_mov_b32', s(70 + n), 's94')
        k.I('s_mov_b32', s(82 + n), 's100')
        k.nticks = n + 1


def epilogue(k, idx, vtmp=2):
    I = k.I
    if STAMP:
        k.flush()
        tick(k)
        k.waitcnt(vm=0, lgkm=0)
        I('s_memrealtime', s(98, 2))
        k.waitcnt(lgkm=0)
        I('s_cmp_lg_u32', 's3', OPT.get('stw', 0) if k.name[1] in '124' else min(3, OPT.get('stw', 0)))
        I('s_cbranch_scc1', f'L_end_{k.name}')
        I('v_mov_b32', v(vtmp), 's96')
        I('v_mov_b32', v(vtmp + 1), 's98')
        I('s_lshl_b32', 's96', 's2', 3)
        I('s_add_u32', 's96', 's96', STAMPS + idx * 4096)
        I('v_mov_b32', v(vtmp + 2), 's96')
        I('s_mov_b64', 'exec', 1)
        I('buffer_store_dwordx2', v(vtmp, 2), v(vtmp + 2), s(R_WS, 4), 0, mods='offen')
        I('s_lshl_b32', 's96', 's2', 7)
        I('s_add_u32', 's96', 's96', STAMPS + 0x10000 + idx * 0x8000)
        I('v_mov_b32', v(vtmp + 2), 's96')
        for n in range(24):
            I('v_mov_b32', v(vtmp), s(70 + n) if (n % 12) < k.nticks else 0)
            I('buffer_store_dword', v(vtmp), v(vtmp + 2), s(R_WS, 4), 0, mods=f'offen offset:{4 * n}')
    k.label(f'L_end_{k.name}')
    I('s_endpgm')


def wave_sum_to_sgpr(k, regs, sdst):
    I = k.I
    for sh in ('row_shr:1', 'row_shr:2', 'row_shr:4', 'row_shr:8'):
        for r in regs:
            I('v_add_f32', v(r), v(r), v(r), mods=f'{sh} row_mask:0xf bank_mask:0xf')
    for r in regs:
        I('v_add_f32', v(r), v(r), v(r), mods='row_bcast:15 row_mask:0xa bank_mask:0xf')
    for r in regs:
        I('v_add_f32', v(r), v(r), v(r), mods='row_bcast:31 row_mask:0xc bank_mask:0xf')
    for r, sd in zip(regs, sdst):
        I('v_readlane_b32', s(sd), v(r), 63)


def unpack8(k, dst, src):
    for j in range(4):
        k.I('v_lshlrev_b32', v(dst + 2 * j), 16, v(src + j))
        k.I('v_and_b32', v(dst + 2 * j + 1), 0xffff0000, v(src + j))


def pack8(k, dst, src):
    for j in range(4):
        k.I('v_cvt_pk_bf16_f32', v(dst + j), v(src + 2 * j), v(src + 2 * j + 1))


def gen_k0():
    k = Kernel('k0_mod_kernel')
    I = k.I
    L_A = 0
    L_W = 16384
    L_X = 24576
    L_S = 32768
    L_P = 33024
    LDS = 34048
    prologue(k, 256)
    I('s_and_b32', 's4', 's2', 7)
    I('v_lshrrev_b32', 'v2', 3, 'v1')
    I('v_and_b32', 'v3', 7, 'v1')
    I('v_lshlrev_b32', 'v3', 4, 'v3')
    I('v_mul_u32_u24', 'v4', 6144, 'v2')
    I('v_add_u32', 'v4', 'v4', 'v3')
    I('v_mul_u32_u24', 'v5', 3072, 'v2')
    I('v_add_u32', 'v5', 'v5', 'v3')
    I('v_lshlrev_b32', 'v7', 4, 'v1')
    I('s_lshl_b32', 's10', 's4', 5)
    I('s_lshr_b32', 's11', 's2', 3)
    I('s_add_u32', 's10', 's10', 's11')
    I('s_lshl_b32', 's10', 's10', 3)
    I('s_lshl_b32', 's12', 's3', 1)
    I('s_add_u32', 's12', 's10', 's12')
    I('s_lshl_b32', 's12', 's12', 10)
    I('s_min_u32', 's5', 's2', 191)
    I('s_lshr_b32', 's5', 's5', 2)
    I('s_and_b32', 's6', 's2', 3)
    I('s_lshl_b32', 's13', 's6', 7)
    I('s_lshl_b32', 's14', 's3', 5)
    I('s_add_u32', 's13', 's13', 's14')
    I('v_and_b32', 'v6', 15, 'v1')
    I('v_lshlrev_b32', 'v6', 2, 'v6')
    I('s_lshl_b32', 's15', 's13', 1)
    k.waitcnt(lgkm=0)
    tick(k)
    srd(k, R_WS, S_WS, WS_SIZE)
    srd(k, 44, S_WMOD, 512 * 6144)
    srd(k, 48, S_WQKV, 512 * 3072)
    srd(k, 52, S_X, 2048 * 1024)
    srd(k, 56, S_C, 1024)
    LOG = []
    I('buffer_load_dword', 'v8', 'v6', s(56, 4), 's15', mods='offen'); LOG.append('c')
    I('buffer_load_dwordx4', v(12, 4), 'v7', s(52, 4), 's12', mods='offen'); LOG.append('x')
    I('buffer_load_dwordx4', v(16, 4), 'v7', s(52, 4), 's12', mods='offen offset:1024'); LOG.append('x')
    I('s_mul_i32', 's7', 's13', 6144)
    I('s_lshl_b32', 's8', 's5', 7)
    I('s_add_u32', 's7', 's7', 's8')
    I('s_lshl_b32', 's8', 's3', 12)
    for j in range(4):
        I('s_add_u32', 'm0', 's8', L_A + j * 1024)
        I('s_add_u32', 's9', 's7', j * 8 * 6144)
        I('buffer_load_dwordx4', 'v4', s(44, 4), 's9', mods='offen lds'); LOG.append('g')
    I('s_min_u32', 's14', 's3', 2)
    I('s_lshl_b32', 's14', 's14', 10)
    I('s_mul_i32', 's15', 's11', 16 * 3072)
    I('s_add_u32', 's14', 's14', 's15')
    I('s_lshl_b32', 's15', 's4', 7)
    I('s_add_u32', 's14', 's14', 's15')
    I('s_lshl_b32', 's60', 's3', 11)
    for j in range(2):
        I('s_add_u32', 'm0', 's60', L_W + j * 1024)
        I('s_add_u32', 's9', 's14', j * 8 * 3072)
        I('buffer_load_dwordx4', 'v5', s(48, 4), 's9', mods='offen lds'); LOG.append('w')
    if code_prefetch(k, 21, 27, 64, 4):
        LOG.append('code')
    if OPT.get('k0tlb', 0):
        I('s_cmp_eq_u32', 's3', 0)
        I('s_cselect_b32', 's64', s(S_WG), s(S_WU))
        I('s_cselect_b32', 's65', s(S_WG + 1), s(S_WU + 1))
        I('s_cmp_eq_u32', 's3', 2)
        I('s_cselect_b32', 's64', s(S_WD), 's64')
        I('s_cselect_b32', 's65', s(S_WD + 1), 's65')
        I('s_cmp_eq_u32', 's3', 3)
        I('s_cselect_b32', 's64', s(S_WO), 's64')
        I('s_cselect_b32', 's65', s(S_WO + 1), 's65')
        I('s_mov_b32', 's9', 1792 * 1024)
        I('s_cselect_b32', 's66', 512 * 1024, 's9')
        I('s_cmp_lt_u32', 's2', 16)
        I('s_cselect_b32', 's66', 's66', 0)
        I('s_mov_b32', 's67', 0x20000)
        I('v_lshlrev_b32', 'v21', 15, 'v1')
        I('buffer_load_dword', 'v27', 'v21', s(64, 4), 0, mods='offen'); LOG.append('tlb')
    tick(k)

    def wait_for(tag):
        last = max(i for i, e in enumerate(LOG) if e == tag)
        k.waitcnt(vm=len(LOG) - 1 - last)
    I('v_lshrrev_b32', 'v2', 4, 'v1')
    I('v_bfe_u32', 'v3', 'v1', 2, 2)
    I('v_and_b32', 'v9', 3, 'v1')
    I('v_lshl_add_u32', 'v20', 'v2', 3, 'v3')
    I('v_lshlrev_b32', 'v20', 7, 'v20')
    I('v_lshl_add_u32', 'v20', 'v9', 3, 'v20')
    I('v_add_u32', 'v20', 's8', 'v20')
    I('s_lshl_b32', 's9', 's3', 6)
    I('s_add_u32', 's9', 's9', L_S)
    I('v_lshl_add_u32', 'v22', 'v2', 4, 's9')
    I('v_add_u32', 'v23', 's9', 'v6')
    I('v_lshrrev_b32', 'v24', 5, 'v1')
    I('v_lshl_add_u32', 'v25', 'v24', 3, 'v3')
    I('v_lshlrev_b32', 'v25', 7, 'v25')
    I('v_bfe_u32', 'v26', 'v1', 4, 1)
    I('v_lshl_add_u32', 'v25', 'v26', 5, 'v25')
    I('v_lshl_add_u32', 'v25', 'v9', 3, 'v25')
    I('s_add_u32', 's9', 's60', L_W)
    I('v_add_u32', 'v25', 's9', 'v25')
    wait_for('c')
    I('v_lshlrev_b32', 'v9', 16, 'v8')
    I('v_and_b32', 'v10', 0xffff0000, 'v8')
    I('s_mov_b32', 's14', f32bits(-1.4426950408889634))
    for r, t_ in ((9, 28), (10, 29)):
        I('v_mul_f32', v(t_), 's14', v(r))
    for t_ in (28, 29):
        I('v_exp_f32', v(t_), v(t_))
    for t_ in (28, 29):
        I('v_add_f32', v(t_), 1.0, v(t_))
    for t_ in (28, 29):
        I('v_rcp_f32', v(t_), v(t_))
    for r, t_ in ((9, 28), (10, 29)):
        I('v_mul_f32', v(r), v(r), v(t_))
    I('v_cvt_pk_bf16_f32', 'v9', 'v9', 'v10')
    I('ds_write_b32', 'v23', 'v9')
    wait_for('x')
    tick(k)
    unpack8(k, 64, 12)
    unpack8(k, 72, 16)
    k.waitcnt(lgkm=0)
    I('ds_read_b128', v(48, 4), 'v22')
    for b, t_ in ((64, 40), (72, 41)):
        I('v_add_f32', v(t_), v(b), v(b + 1))
        for j in range(2, 8):
            I('v_add_f32', v(t_), v(t_), v(b + j))
    wave_sum_to_sgpr(k, [40, 41], [62, 63])
    I('s_mov_b32', 's14', f32bits(1.0 / 512))
    for t_, sd in ((40, 62), (41, 63)):
        I('v_mov_b32', v(t_), s(sd))
        I('v_mul_f32', v(t_), 's14', v(t_))
    for b, t_ in ((64, 40), (72, 41)):
        for j in range(8):
            I('v_sub_f32', v(b + j), v(b + j), v(t_))
    for b, t_ in ((64, 42), (72, 43)):
        I('v_mul_f32', v(t_), v(b), v(b))
        for j in range(1, 8):
            I('v_fmac_f32', v(t_), v(b + j), v(b + j))
    wave_sum_to_sgpr(k, [42, 43], [62, 63])
    I('s_mov_b32', 's15', f32bits(1e-5))
    for t_, sd in ((42, 62), (43, 63)):
        I('v_mov_b32', v(t_), s(sd))
        I('v_mov_b32', v(44), 's15')
        I('v_fma_f32', v(t_), v(t_), 's14', v(44))
        I('v_rsq_f32', v(t_), v(t_))
    for b, t_ in ((64, 42), (72, 43)):
        for j in range(8):
            I('v_mul_f32', v(b + j), v(b + j), v(t_))
    pack8(k, 12, 64)
    pack8(k, 16, 72)
    I('v_lshlrev_b32', 'v11', 7, 'v1')
    I('s_lshl_b32', 's9', 's3', 5)
    I('s_add_u32', 's9', 's9', L_X)
    I('v_add_u32', 'v11', 's9', 'v11')
    I('ds_write_b128', 'v11', v(12, 4))
    I('ds_write_b128', 'v11', v(16, 4), mods='offset:16')
    wait_for('g')
    tick(k)
    for cg in range(4):
        I('ds_read_b64_tr_b16', v(80 + 4 * cg, 2), 'v20', mods=f'offset:{cg * 32}')
        I('ds_read_b64_tr_b16', v(82 + 4 * cg, 2), 'v20', mods=f'offset:{cg * 32 + 512}')
    for cg in range(4):
        k.waitcnt(lgkm=6 - 2 * cg)
        I('v_mfma_f32_16x16x32_bf16', v(100 + 4 * cg, 4), v(48, 4), v(80 + 4 * cg, 4), 0)
    wait_for('w')
    for u in range(2):
        I('ds_read_b64_tr_b16', v(52 + 4 * u, 2), 'v25', mods=f'offset:{u * 64}')
        I('ds_read_b64_tr_b16', v(54 + 4 * u, 2), 'v25', mods=f'offset:{u * 64 + 512}')
    I('s_lshl_b32', 's9', 's3', 8)
    I('s_add_u32', 's9', 's9', L_P)
    I('v_add_u32', 'v28', 's9', 'v6')
    for cg in range(4):
        I('ds_write_b32', 'v28', v(100 + 4 * cg), mods=f'offset:{cg * 64}')
    I('s_mul_i32', 's9', 's4', 2 * W1_NB)
    I('s_mul_i32', 's14', 's11', 3072)
    I('s_add_u32', 's9', 's9', 's14')
    I('s_lshl_b32', 's14', 's3', 10)
    I('s_add_u32', 's9', 's9', 's14')
    I('s_add_u32', 's9', 's9', W1)
    I('s_add_u32', 's14', 's9', W1_NB)
    k.waitcnt(lgkm=0)
    I('s_cmp_eq_u32', 's3', 3)
    I('s_cbranch_scc1', 'L_k0_now')
    I('buffer_store_dwordx4', v(52, 4), 'v7', s(R_WS, 4), 's9', mods=f'offen {ST_POL}')
    I('buffer_store_dwordx4', v(56, 4), 'v7', s(R_WS, 4), 's14', mods=f'offen {ST_POL}')
    k.label('L_k0_now')
    tick(k)
    k.barrier()
    tick(k)
    I('s_add_u32', 's9', 's60', L_X)
    I('v_add_u32', 'v11', 's9', 'v7')
    I('ds_read_b128', v(12, 4), 'v11')
    I('ds_read_b128', v(16, 4), 'v11', mods='offset:1024')
    I('v_lshlrev_b32', 'v29', 2, 'v1')
    for w in range(4):
        I('ds_read_b32', v(30 + w), 'v29', mods=f'offset:{L_P + w * 256}')
    I('s_lshr_b32', 's12', 's10', 5)
    I('s_lshl_b32', 's12', 's12', 15)
    I('s_and_b32', 's14', 's10', 31)
    I('s_lshl_b32', 's14', 's14', 4)
    I('s_add_u32', 's12', 's12', 's14')
    I('s_lshl_b32', 's14', 's3', 13)
    I('s_add_u32', 's12', 's12', 's14')
    I('s_add_u32', 's12', 's12', XN)
    I('s_add_u32', 's14', 's12', 4096)
    I('v_lshrrev_b32', 'v11', 3, 'v1')
    I('v_lshlrev_b32', 'v11', 9, 'v11')
    I('v_and_b32', 'v10', 7, 'v1')
    I('v_lshl_add_u32', 'v11', 'v10', 4, 'v11')
    k.waitcnt(lgkm=4)
    I('buffer_store_dwordx4', v(12, 4), 'v11', s(R_WS, 4), 's12', mods=f'offen {ST_POL}')
    I('buffer_store_dwordx4', v(16, 4), 'v11', s(R_WS, 4), 's14', mods=f'offen {ST_POL}')
    I('s_cmp_lg_u32', 's3', 3)
    I('s_cbranch_scc1', 'L_k0_done')
    I('s_cmp_ge_u32', 's2', 192)
    I('s_cbranch_scc1', 'L_k0_done')
    k.waitcnt(lgkm=0)
    I('v_add_f32', 'v30', 'v30', 'v31')
    I('v_add_f32', 'v32', 'v32', 'v33')
    I('v_add_f32', 'v30', 'v30', 'v32')
    I('s_mul_i32', 's9', 's6', MODP_P)
    I('s_lshl_b32', 's14', 's5', 8)
    I('s_add_u32', 's9', 's9', 's14')
    I('s_add_u32', 's9', 's9', MODP)
    I('buffer_store_dword', 'v30', 'v29', s(R_WS, 4), 's9', mods='offen')
    k.label('L_k0_done')
    epilogue(k, 0)
    return k, 256, 256, LDS


QSCALE = 0.25 * 1.4426950408889634


def gen_k1():
    k = Kernel('k1_qkv_kernel')
    I = k.I
    L_G = 98304
    L_E = L_G + 4096
    L_PF = L_E + 49152
    LDS = L_PF + 8192
    prologue(k, 256, need_lo=True)
    xcd_map(k, 2, 4, 5, OPT.get('x1', 2))
    I('s_and_b32', 's61', 's3', 3)
    I('s_lshr_b32', 's63', 's3', 2)
    I('s_lshl_b32', 's6', 's4', 2)
    I('s_add_u32', 's6', 's6', 's61')
    I('v_lshlrev_b32', 'v2', 4, 'v1')
    I('v_lshlrev_b32', 'v4', 3, 'v0')
    I('s_lshl_b32', 's8', 's63', 4)
    I('s_add_u32', 's8', 's8', 's61')
    I('s_mul_i32', 's8', 's8', 3072)
    I('s_mul_i32', 's7', 's5', W1_NB)
    I('s_add_u32', 's7', 's7', 's8')
    I('s_add_u32', 's7', 's7', W1)
    I('s_lshl_b32', 's9', 's6', 15)
    I('s_lshl_b32', 's10', 's63', 14)
    I('s_add_u32', 's9', 's9', 's10')
    I('s_add_u32', 's9', 's9', XN)
    k.waitcnt(lgkm=0)
    tick(k)
    srd(k, R_WS, S_WS, WS_SIZE)
    ACC = 16
    TOK = 64
    WF = 128
    GS = 152
    TM = 184
    LOG = []
    FILL = []
    SJ = 192
    I('s_cmp_ge_u32', 's2', 4)
    I('s_cbranch_scc1', 'L_k1_nosj')
    I('s_lshl_b32', 's10', 's2', 11)
    I('s_add_u32', 's10', 's10', MODP + 4096)
    I('v_lshlrev_b32', 'v3', 2, 'v0')
    for p in range(4):
        I('s_add_u32', 's11', 's10', p * MODP_P)
        I('buffer_load_dword', v(SJ + p), 'v3', s(R_WS, 4), 's11', mods='offen')
    k.label('L_k1_nosj')
    for p in range(4):
        I('s_mov_b32', 's10', MODP + p * MODP_P)
        I('buffer_load_dwordx2', v(ACC + 2 * p, 2), 'v4', s(R_WS, 4), 's10', mods='offen')
        LOG.append('m')

    def w_op(c, q):
        def f():
            if q == 0:
                I('s_add_u32', 's10', 's7', c * 12288)
            I('s_add_u32', 'm0', 's8', c * 12288)
            I('buffer_load_dwordx4', 'v2', s(R_WS, 4), 's10', mods=f'offen offset:{q * 1024} lds')
            LOG.append(('w', c))
        return f

    def t_op(i):
        def f():
            if i % 4 == 0:
                I('s_add_u32', 's11', 's9', i * 1024)
            I('buffer_load_dwordx4', v(TOK + 4 * i, 4), 'v2', s(R_WS, 4), 's11', mods=f'offen offset:{(i % 4) * 1024}')
            LOG.append(('t', i))
        return f
    for c in range(4):
        FILL += [w_op(c, q) for q in range(3)] + [t_op(4 * c + q) for q in range(4)]

    def pf_op(ptr, nbytes):
        def f():
            srd(k, 44, ptr, nbytes)
            I('s_lshl_b32', 's12', 's2', 13)
            I('s_lshl_b32', 's13', 's3', 10)
            I('s_add_u32', 's12', 's12', 's13')
            I('s_add_u32', 'm0', 's13', L_PF)
            I('buffer_load_dwordx4', 'v2', s(44, 4), 's12', mods='offen lds')
            LOG.append(('pf',))
        return f
    def cp_op():
        if code_prefetch(k, 7, 196, 44, 8):
            LOG.append(('code',))
    FILL.append(cp_op)
    if OPT.get('k1pf', 0):
        FILL += [pf_op(S_WG, 512 * 3584), pf_op(S_WU, 512 * 3584), pf_op(S_WD, 1792 * 1024), pf_op(S_WO, 512 * 1024)]
    for _ in range(OPT.get('k1pre', 5)):
        FILL.pop(0)()
    if OPT.get('prio', 0):
        I('s_setprio', 0)
    I('s_mul_i32', 's10', 's63', 16 * 3072)
    I('v_add_u32', 'v3', 's10', 'v2')
    I('v_lshrrev_b32', 'v5', 5, 'v1')
    I('v_lshlrev_b32', 'v5', 5, 'v5')
    I('s_lshl_b32', 's10', 's63', 10)
    I('s_add_u32', 's10', 's10', L_G)
    I('v_add_u32', 'v5', 's10', 'v5')
    I('v_add_u32', 'v6', L_G, 'v4')
    k.waitcnt(vm=len(LOG) - 4)
    for e in range(2):
        I('v_add_f32', v(ACC + e), v(ACC + e), v(ACC + 2 + e))
        I('v_add_f32', v(ACC + 4 + e), v(ACC + 4 + e), v(ACC + 6 + e))
    for e in range(2):
        I('v_add_f32', v(ACC + e), v(ACC + e), v(ACC + 4 + e))
    I('v_cvt_pk_bf16_f32', v(ACC + 2), v(ACC), v(ACC + 1))
    I('v_lshlrev_b32', v(ACC), 16, v(ACC + 2))
    I('v_and_b32', v(ACC + 1), 0xffff0000, v(ACC + 2))
    I('s_cmp_eq_u32', 's63', 0)
    I('s_cbranch_scc1', 'L_k1_issa')
    for e in range(2):
        I('v_add_f32', v(ACC + e), 1.0, v(ACC + e))
    I('v_cvt_pk_bf16_f32', v(ACC + 2), v(ACC), v(ACC + 1))
    I('v_lshlrev_b32', v(ACC), 16, v(ACC + 2))
    I('v_and_b32', v(ACC + 1), 0xffff0000, v(ACC + 2))
    k.label('L_k1_issa')
    I('ds_write_b64', 'v6', v(ACC, 2))
    for _ in range(OPT.get('k1pre2', 5)):
        FILL.pop(0)()
    k.waitcnt(lgkm=0)

    def rdw(i):
        st = WF + 12 * (i & 1)
        for f in range(3):
            I('ds_read_b128', v(st + 4 * f, 4), 'v3', mods=f'offset:{i * 3072 + f * 1024}')

    def rdg(i):
        g = GS + 16 * (i & 1)
        for q in range(2):
            I('ds_read_b128', v(g + 4 * q, 4), 'v5', mods=f'offset:{i * 64 + 16 * q}')
        for q in range(2):
            I('ds_read_b128', v(g + 8 + 4 * q, 4), 'v5', mods=f'offset:{2048 + i * 64 + 16 * q}')

    def mod_ops(i):
        g = GS + 16 * (i & 1)
        tk = TOK + 4 * i
        L = []
        A_ = lambda *a_, **kw: L.append(lambda: I(*a_, **kw))
        for j in range(4):
            A_('v_lshlrev_b32', v(TM + 2 * j), 16, v(tk + j))
            A_('v_and_b32', v(TM + 2 * j + 1), 0xffff0000, v(tk + j))
        if OPT.get('k1pk', 0):
            for j in range(4):
                A_('v_pk_fma_f32', v(TM + 2 * j, 2), v(TM + 2 * j, 2), v(g + 8 + 2 * j, 2), v(g + 2 * j, 2))
        else:
            for j in range(8):
                A_('v_fma_f32', v(TM + j), v(TM + j), v(g + 8 + j), v(g + j))
        for j in range(4):
            A_('v_cvt_pk_bf16_f32', v(tk + j), v(TM + 2 * j), v(TM + 2 * j + 1))
        return L

    def need(tags):
        for tg in tags:
            while tg not in LOG or (tg[0] == 'w' and LOG.count(tg) < 3):
                FILL.pop(0)()
        last = max(i for i, e in enumerate(LOG) if e in tags)
        k.waitcnt(vm=len(LOG) - 1 - last)
    need([('w', 0), ('t', 0)])
    k.barrier()
    tick(k)
    rdw(0)
    rdg(0)
    rdg(1)
    k.waitcnt(lgkm=4)
    for f in mod_ops(0):
        f()
    NSTEP = 16
    for i in range(NSTEP):
        nxt = i + 1
        VQ = []
        if nxt < NSTEP:
            if nxt % 4 == 0:
                need([('w', nxt // 4), ('t', nxt)])
                k.barrier()
                tick(k)
            else:
                need([('t', nxt)])
            rdw(nxt)
            if i + 2 < NSTEP:
                rdg(i + 2)
                k.waitcnt(lgkm=7)
            else:
                k.waitcnt(lgkm=3)
            VQ = mod_ops(nxt)
        else:
            k.waitcnt(lgkm=0)
        st = WF + 12 * (i & 1)
        tok = v(TOK + 4 * i, 4)
        n3 = (len(VQ) + 2) // 3
        for f in range(3):
            c = 0 if i == 0 else v(ACC + 16 * f, 16)
            if f < 2:
                I('v_mfma_f32_32x32x16_bf16', v(ACC + 16 * f, 16), v(st + 4 * f, 4), tok, c)
            else:
                I('v_mfma_f32_32x32x16_bf16', v(ACC + 16 * f, 16), tok, v(st + 4 * f, 4), c)
            for _ in range(OPT.get('k1rate', 1) if f < 2 else OPT.get('k1rate', 1) - 1):
                if FILL:
                    FILL.pop(0)()
            for _ in range(n3):
                if VQ:
                    VQ.pop(0)()
    assert not FILL
    tick(k)
    I('s_mul_i32', 's10', 's3', 6144)
    I('s_add_u32', 's10', 's10', L_E)
    I('v_add_u32', 'v6', 's10', 'v2')
    I('s_xor_b32', 's11', 's3', 4)
    I('s_mul_i32', 's11', 's11', 6144)
    I('s_add_u32', 's11', 's11', L_E)
    I('v_add_u32', 'v7', 's11', 'v2')
    I('s_lshl_b32', 's11', 's5', 17)
    I('s_lshl_b32', 's12', 's6', 10)
    I('s_add_u32', 's11', 's11', 's12')
    I('s_mul_i32', 's12', 's63', KB - QB)
    I('s_add_u32', 's12', 's12', 's11')
    I('s_add_u32', 's12', 's12', QB)
    I('s_add_u32', 's13', 's12', 65536)
    I('s_lshl_b32', 's14', 's63', 9)
    I('s_add_u32', 's14', 's14', 's11')
    I('s_add_u32', 's14', 's14', VB)
    I('v_bfe_u32', 'v4', 'v1', 4, 1)
    I('v_lshlrev_b32', 'v4', 16, 'v4')
    I('v_lshrrev_b32', 'v5', 5, 'v1')
    I('v_lshl_add_u32', 'v4', 'v5', 8, 'v4')
    I('v_and_b32', 'v5', 15, 'v1')
    I('v_lshl_add_u32', 'v4', 'v5', 4, 'v4')
    k.flush()
    KEEP = TOK
    I('s_cmp_eq_u32', 's63', 0)
    I('s_cbranch_scc0', 'L_k1_x1')
    for kh in range(2):
        keep = [ACC + 16 * kh + r for r in range(16)] + [ACC + 32 + 8 * kh + r for r in range(8)]
        send = [ACC + 16 * (1 - kh) + 4 * j for j in range(4)] + [ACC + 32 + 8 * (1 - kh) + 4 * j for j in range(2)]
        for j, r in enumerate(send):
            I('ds_write_b128', 'v6', v(r, 4), mods=f'offset:{j * 1024}')
        if kh == 0:
            I('s_mov_b32', 's15', f32bits(QSCALE))
        else:
            I('s_mov_b32', 's15', f32bits(1.0))
        for j, r in enumerate(keep):
            I('v_mov_b32', v(KEEP + j), v(r))
        if kh == 0:
            I('s_branch', 'L_k1_x2')
            k.label('L_k1_x1')
    k.label('L_k1_x2')
    k.waitcnt(lgkm=0)
    k.barrier()
    for j in range(6):
        I('ds_read_b128', v(ACC + 4 * j, 4), 'v7', mods=f'offset:{j * 1024}')
    P = WF
    dst = [('v2', 's12'), ('v2', 's13'), ('v4', 's14')]
    for g in range(3):
        k.waitcnt(lgkm=4 - 2 * g)
        for r in range(8):
            I('v_add_f32', v(KEEP + 8 * g + r), v(KEEP + 8 * g + r), v(ACC + 8 * g + r))
        if g < 2:
            for r in range(8):
                I('v_mul_f32', v(KEEP + 8 * g + r), 's15', v(KEEP + 8 * g + r))
        pack8(k, P + 4 * g, KEEP + 8 * g)
        I('buffer_store_dwordx4', v(P + 4 * g, 4), dst[g][0], s(R_WS, 4), dst[g][1], mods=f'offen {ST_POL}')
    for g in range(2):
        I('v_dot2_f32_bf16', v(8 + g), v(P + 4 * g), v(P + 4 * g), 0)
        I('v_dot2_f32_bf16', v(10 + g), v(P + 4 * g + 1), v(P + 4 * g + 1), 0)
    for g in range(2):
        I('v_dot2_f32_bf16', v(8 + g), v(P + 4 * g + 2), v(P + 4 * g + 2), v(8 + g))
        I('v_dot2_f32_bf16', v(10 + g), v(P + 4 * g + 3), v(P + 4 * g + 3), v(10 + g))
    for g in range(2):
        I('v_add_f32', v(8 + g), v(8 + g), v(10 + g))
    I('v_permlane32_swap_b32', 'v8', 'v9')
    I('v_add_f32', 'v8', 'v8', 'v9')
    I('v_mov_b32', 'v9', 'v8')
    for sh in ('row_shr:1', 'row_shr:2', 'row_shr:4', 'row_shr:8'):
        I('v_max_f32', 'v9', 'v9', 'v9', mods=f'{sh} row_mask:0xf bank_mask:0xf')
    I('v_max_f32', 'v9', 'v9', 'v9', mods='row_bcast:15 row_mask:0xa bank_mask:0xf')
    I('s_lshl_b32', 's10', 's63', 18)
    I('s_lshl_b32', 's11', 's5', 14)
    I('s_add_u32', 's10', 's10', 's11')
    I('s_lshl_b32', 's11', 's6', 7)
    I('s_add_u32', 's10', 's10', 's11')
    I('s_add_u32', 's10', 's10', NRM)
    I('v_lshrrev_b32', 'v10', 5, 'v1')
    I('v_lshlrev_b32', 'v11', 13, 'v10')
    I('v_and_b32', 'v12', 31, 'v1')
    I('v_lshl_add_u32', 'v11', 'v12', 2, 'v11')
    I('buffer_store_dword', 'v8', 'v11', s(R_WS, 4), 's10', mods='offen')
    I('s_lshl_b32', 's10', 's63', 13)
    I('s_lshl_b32', 's11', 's5', 9)
    I('s_add_u32', 's10', 's10', 's11')
    I('s_lshl_b32', 's11', 's6', 2)
    I('s_add_u32', 's10', 's10', 's11')
    I('s_add_u32', 's10', 's10', TMX)
    I('v_lshlrev_b32', 'v11', 8, 'v10')
    I('s_mov_b32', 'exec_lo', 0x80000000)
    I('s_mov_b32', 'exec_hi', 0x80000000)
    I('buffer_store_dword', 'v9', 'v11', s(R_WS, 4), 's10', mods='offen')
    I('s_mov_b64', 'exec', -1)
    I('s_cmp_ge_u32', 's2', 4)
    I('s_cbranch_scc1', 'L_k1_nomod')
    I('v_lshlrev_b32', 'v3', 2, 'v0')
    I('v_add_f32', 'v16', v(SJ), v(SJ + 1))
    I('v_add_f32', 'v18', v(SJ + 2), v(SJ + 3))
    I('v_add_f32', 'v16', 'v16', 'v18')
    I('v_cvt_pk_bf16_f32', 'v17', 'v16', 'v16')
    I('v_and_b32', 'v18', 0xffff0000, 'v17')
    I('v_add_f32', 'v19', 1.0, 'v18')
    I('v_cvt_pk_bf16_f32', 'v19', 'v19', 'v19')
    I('v_and_b32', 'v19', 0xffff0000, 'v19')
    I('s_cmp_eq_u32', 's2', 1)
    I('s_cbranch_scc1', 'L_k1_sb')
    I('s_mov_b32', 's13', MF_GB)
    I('s_cmp_eq_u32', 's2', 2)
    I('s_cselect_b64', 'vcc', -1, 0)
    I('v_cndmask_b32', 'v18', 'v18', 'v19', 'vcc')
    I('s_cselect_b32', 's13', MF_G2, 's13')
    I('s_cmp_eq_u32', 's2', 0)
    I('s_cselect_b32', 's13', MF_GA, 's13')
    I('s_add_u32', 's13', 's13', MODF)
    I('buffer_store_dword', 'v18', 'v3', s(R_WS, 4), 's13', mods='offen')
    I('s_branch', 'L_k1_nomod')
    k.label('L_k1_sb')
    I('s_mov_b32', 's13', MODF + MF_SB)
    I('v_lshlrev_b32', 'v3', 1, 'v0')
    I('buffer_store_short', 'v17', 'v3', s(R_WS, 4), 's13', mods='offen')
    k.label('L_k1_nomod')
    epilogue(k, 1, vtmp=4)
    return k, 256, 512, LDS


BIG = 1e30


def gen_k2():
    k = Kernel('k2_attn_kernel')
    I = k.I
    L_K, L_V, L_SIDE = 0, 16384, 32768
    LDS = L_SIDE + 32768
    Q, KF, VF, SB_, PB, OA, NM, MK = 16, 20, 56, 128, 176, 192, 208, 224
    MX = 244
    G2R, SBR = 80, 88
    Vb = lambda t: VF + 8 * (t % 3)
    prologue(k, 256)
    xcd_map(k, 1, 5, 4)
    I('s_lshl_b32', 's6', 's5', 3)
    I('s_add_u32', 's6', 's6', 's3')
    I('v_lshlrev_b32', 'v2', 4, 'v1')
    I('s_lshl_b32', 's9', 's4', 16)
    I('s_lshl_b32', 's10', 's6', 10)
    I('s_add_u32', 's10', 's10', 's9')
    I('s_add_u32', 's10', 's10', QB)
    I('s_lshl_b32', 's8', 's3', 11)
    I('v_lshrrev_b32', 'v3', 5, 'v1')
    I('v_bfe_u32', 'v4', 'v1', 4, 1)
    I('v_bfe_u32', 'v5', 'v1', 2, 2)
    I('v_and_b32', 'v6', 1, 'v1')
    I('v_bfe_u32', 'v7', 'v1', 1, 1)
    I('v_lshl_add_u32', 'v6', 'v6', 1, 'v7')
    I('v_lshlrev_b32', 'v13', 8, 'v3')
    I('v_and_b32', 'v14', 15, 'v1')
    I('v_lshl_add_u32', 'v13', 'v14', 4, 'v13')
    I('v_and_b32', 'v12', 31, 'v1')
    I('v_lshlrev_b32', 'v12', 2, 'v12')
    I('v_lshlrev_b32', 'v14', 5, 'v3')
    I('v_lshlrev_b32', 'v15', 4, 'v3')
    I('s_and_b32', 's12', 's3', 3)
    I('s_mul_i32', 's13', 's2', 3)
    I('s_add_u32', 's13', 's13', 's12')
    I('s_lshr_b32', 's15', 's2', 1)
    I('s_add_u32', 's15', 's15', 768)
    I('s_cmp_eq_u32', 's3', 3)
    I('s_cselect_b32', 's57', 's15', 's13')
    I('s_and_b32', 's15', 's2', 1)
    I('s_lshr_b32', 's13', 's3', 2)
    I('s_cmp_eq_u32', 's3', 3)
    I('s_cselect_b32', 's64', 's15', 's13')
    I('s_cmp_eq_u32', 's3', 7)
    I('s_cselect_b32', 's57', 's2', 's57')
    I('s_mul_i32', 's66', 's57', 2341)
    I('s_lshr_b32', 's66', 's66', 16)
    I('s_min_u32', 's66', 's66', 31)
    I('s_mul_i32', 's65', 's66', 28)
    I('s_sub_u32', 's65', 's57', 's65')
    I('s_lshl_b32', 's67', 's66', 6)
    I('s_add_u32', 's67', 's67', MODF + MF_G2)
    I('s_lshl_b32', 's68', 's66', 5)
    I('s_add_u32', 's68', 's68', MODF + MF_SB)
    I('s_lshl_b32', 's11', 's4', 13)
    I('s_lshl_b32', 's12', 's6', 7)
    I('s_add_u32', 's11', 's11', 's12')
    I('s_add_u32', 's11', 's11', NRM)
    I('s_lshl_b32', 's12', 's4', 8)
    I('s_lshl_b32', 's13', 's6', 2)
    I('s_add_u32', 's12', 's12', 's13')
    I('s_add_u32', 's12', 's12', TMX + 8192 - 32)
    I('s_sub_i32', 's14', 8, 's6')
    I('s_max_i32', 's14', 's14', 0)
    I('s_mov_b32', 's58', 0xffff)
    I('s_mov_b32', 's59', 0xffff)
    k.waitcnt(lgkm=0)
    tick(k)
    srd(k, R_WS, S_WS, WS_SIZE)
    I('s_buffer_load_dwordx8', s(48, 8), s(R_WS, 4), 's12')
    I('s_add_u32', 's12', 's12', 32)
    I('s_buffer_load_dword', 's56', s(R_WS, 4), 's12')
    Sb = lambda t: SB_ + 16 * (t % 3)

    def qk(t, C):
        I('v_mfma_f32_32x32x16_bf16', v(Sb(t), 16), v(KF + 4 * t, 4), v(Q, 4), C)

    def consts():
        I('v_and_b32', 'v10', 31, 'v1')
        I('v_lshlrev_b32', 'v11', 2, 'v3')
        I('v_sub_u32', 'v10', 'v10', 'v11')
        I('v_mov_b32', 'v11', f32bits(-BIG))
        for r in range(0, 16, 2):
            for q in range(2):
                kk = ((r + q) & 3) + 8 * ((r + q) >> 2)
                I('v_cmp_le_i32', s(60 + 2 * q, 2), kk, 'v10')
            for q in range(2):
                I('v_cndmask_b32', v(MK + r + q), 'v11', 0, s(60 + 2 * q, 2))

    def rdv(t):
        I('s_mov_b64', 'exec', s(58, 2))
        for j in range(2):
            I('ds_read_b128', v(Vb(t) + 4 * j, 4), 'v247', mods=f'offset:{L_V + t * 1024 + j * 512}')
        I('s_mov_b64', 'exec', -1)

    def lds_reads():
        for t in range(8, -1, -1):
            I('ds_read_b128', v(KF + 4 * t, 4), 'v246', mods=f'offset:{L_K + t * 1024}')

    def attn(tag, exact):
        rdv(8)
        rdv(7)
        if exact:
            qk(8, v(MK, 16))
            qk(7, 0)
            for t in range(8, -1, -1):
                if t - 2 > 0:
                    qk(t - 2, 0)
                elif t - 2 == 0:
                    for r in range(16):
                        I('v_sub_f32', v(Sb(0) + r), 'v11', v(MK + r))
                    qk(0, v(Sb(0), 16))
                b = Sb(t)
                if t == 8:
                    I('v_max3_f32', v(MX), v(b), v(b + 1), v(b + 2))
                    I('v_max3_f32', v(MX + 1), v(b + 3), v(b + 4), v(b + 5))
                    rest = list(range(6, 16))
                else:
                    rest = list(range(16))
                for i in range(0, len(rest), 2):
                    m = MX + ((i // 2) & 1)
                    I('v_max3_f32', v(m), v(m), v(b + rest[i]), v(b + rest[i + 1]))
                if t > 0:
                    I('s_cmp_eq_u32', 's14', t)
                    I('s_cbranch_scc1', f'L_k2_p1{tag}')
            k.label(f'L_k2_p1{tag}')
            k.nop(12)
            I('v_max_f32', v(MX), v(MX), v(MX + 1))
            I('v_mov_b32', v(MX + 1), v(MX))
            I('v_permlane32_swap_b32', v(MX), v(MX + 1))
            I('v_max_f32', v(MX), v(MX), v(MX + 1))
            for r in range(16):
                I('v_sub_f32', v(NM + r), 0, v(MX))
            for r in range(16):
                I('v_add_f32', v(Sb(8) + r), v(MK + r), v(NM))
        else:
            k.waitcnt(lgkm=11)
        qk(8, v(Sb(8), 16))
        qk(7, v(NM, 16))
        if not exact:
            k.waitcnt(lgkm=4)
        qk(6, v(NM, 16))
        for t in range(8, -1, -1):
            b = Sb(t)
            P = PB + 8 * (t & 1)
            E = lambda r: I('v_exp_f32', v(b + r), v(b + r))
            C = lambda j: I('v_cvt_pk_bf16_f32', v(P + j), v(b + 2 * j), v(b + 2 * j + 1))
            if t - 2 >= 0:
                rdv(t - 2)
            for r in range(9):
                E(r)
            for j in range(4):
                C(j)
                E(9 + j)
            E(13)
            k.waitcnt(lgkm=4 if t - 2 >= 0 else (2 if t == 1 else 0))
            I('v_mfma_f32_32x32x16_bf16', v(OA, 16), v(Vb(t), 4), v(P, 4), 0 if t == 8 else v(OA, 16))
            E(14)
            E(15)
            for j in range(4, 8):
                C(j)
            if t - 3 > 0:
                qk(t - 3, v(NM, 16))
            elif t - 3 == 0:
                for r in range(16):
                    I('v_sub_f32', v(Sb(0) + r), 'v11', v(MK + r))
                for r in range(16):
                    I('v_add_f32', v(Sb(0) + r), v(Sb(0) + r), v(NM))
                qk(0, v(Sb(0), 16))
            if t > 0:
                I('s_cmp_eq_u32', 's14', t)
            I('v_mfma_f32_32x32x16_bf16', v(OA, 16), v(Vb(t) + 4, 4), v(P + 4, 4), v(OA, 16))
            if t > 0:
                I('s_cbranch_scc1', f'L_k2_p2{tag}')
        k.label(f'L_k2_p2{tag}')
        k.nop(12)
        k.waitcnt(lgkm=0)

    def side_loads():
        I('v_lshrrev_b32', 'v8', 3, 'v1')
        I('v_and_b32', 'v9', 7, 'v1')
        I('v_lshlrev_b32', 'v9', 4, 'v9')
        I('v_lshl_add_u32', 'v248', 'v8', 10, 'v9')
        I('v_mul_u32_u24', 'v8', 3584, 'v8')
        I('v_add_u32', 'v8', 'v8', 'v9')
        I('s_lshl_b32', 's69', 's3', 12)
        I('s_add_u32', 's69', 's69', L_SIDE)
        I('s_cmp_eq_u32', 's64', 0)
        I('s_cbranch_scc0', 'L_k2_sl1')
        I('s_mul_i32', 's15', 's66', 16 * 3584)
        I('s_lshl_b32', 's60', 's65', 7)
        I('s_add_u32', 's15', 's15', 's60')
        I('s_add_u32', 's60', 's15', 8 * 3584)
        for m_, ptr in enumerate((S_WG, S_WU)):
            srd(k, 44, ptr, 512 * 3584)
            I('s_add_u32', 'm0', 's69', m_ * 2048)
            I('buffer_load_dwordx4', 'v8', s(44, 4), 's15', mods='offen lds')
            I('s_add_u32', 'm0', 's69', m_ * 2048 + 1024)
            I('buffer_load_dwordx4', 'v8', s(44, 4), 's60', mods='offen lds')
        I('s_branch', 'L_k2_sl2')
        k.label('L_k2_sl1')
        I('s_cmp_eq_u32', 's3', 7)
        I('s_cselect_b32', 's44', s(S_WO), s(S_WD))
        I('s_cselect_b32', 's45', s(S_WO + 1), s(S_WD + 1))
        I('s_mov_b32', 's13', 1792 * 1024)
        I('s_cselect_b32', 's46', 512 * 1024, 's13')
        I('s_mov_b32', 's47', 0x20000)
        I('s_lshr_b32', 's12', 's57', 3)
        I('s_lshl_b32', 's12', 's12', 14)
        I('s_and_b32', 's13', 's57', 7)
        I('s_lshl_b32', 's13', 's13', 7)
        I('s_add_u32', 's12', 's12', 's13')
        I('s_mov_b32', 'm0', 's69')
        I('buffer_load_dwordx4', 'v248', s(44, 4), 's12', mods='offen lds')
        I('s_add_u32', 'm0', 's69', 1024)
        I('s_add_u32', 's12', 's12', 8192)
        I('buffer_load_dwordx4', 'v248', s(44, 4), 's12', mods='offen lds')
        k.label('L_k2_sl2')

    I('s_lshl_b32', 's7', 's5', 3)
    I('s_lshl_b32', 's13', 's3', 1)
    I('s_add_i32', 's7', 's7', 's13')
    I('s_add_i32', 's7', 's7', -8)
    I('s_max_i32', 's7', 's7', 0)
    I('s_lshl_b32', 's7', 's7', 10)
    I('s_add_u32', 's7', 's7', 's9')
    I('s_add_u32', 'm0', 's8', L_K)
    I('s_add_u32', 's13', 's7', KB)
    I('buffer_load_dwordx4', 'v2', s(R_WS, 4), 's13', mods='offen lds')
    I('buffer_load_dwordx4', 'v2', s(R_WS, 4), 's13', mods='offen offset:1024 lds')
    I('buffer_load_dwordx4', v(Q, 4), 'v2', s(R_WS, 4), 's10', mods='offen')
    I('buffer_load_dword', v(MX), 'v12', s(R_WS, 4), 's11', mods='offen')
    I('s_add_u32', 'm0', 's8', L_V)
    I('s_add_u32', 's13', 's7', VB)
    I('buffer_load_dwordx4', 'v2', s(R_WS, 4), 's13', mods='offen lds')
    I('buffer_load_dwordx4', 'v2', s(R_WS, 4), 's13', mods='offen offset:1024 lds')
    I('buffer_load_dwordx4', v(G2R, 4), 'v14', s(R_WS, 4), 's67', mods='offen')
    I('buffer_load_dwordx4', v(G2R + 4, 4), 'v14', s(R_WS, 4), 's67', mods='offen offset:16')
    I('buffer_load_dwordx4', v(SBR, 4), 'v15', s(R_WS, 4), 's68', mods='offen')
    if OPT.get('prio', 0):
        I('s_setprio', 0)
    consts()
    for r in range(24):
        I('v_mov_b32', v(VF + r), 0x3f803f80)
    I('s_lshl_b32', 's13', 's3', 10)
    I('v_add_u32', 'v246', 's13', 'v2')
    I('v_add_u32', 'v247', 's13', 'v13')
    k.waitcnt(lgkm=0)
    for i in range(1, 9):
        I('s_max_u32', 's48', 's48', s(48 + i))
    k.waitcnt(vm=5)
    I('v_mul_f32', v(MX), 's48', v(MX))
    I('v_sqrt_f32', v(MX), v(MX))
    for r in range(16):
        I('v_sub_f32', v(NM + r), 0, v(MX))
    for r in range(16):
        I('v_add_f32', v(Sb(8) + r), v(MK + r), v(NM))
    k.waitcnt(vm=3)
    tick(k)
    k.barrier()
    tick(k)
    lds_reads()
    code_prefetch(k, 8, 249, 44, 8)
    side_loads()
    attn('a', exact=False)
    tick(k)
    I('v_mov_b32', v(MX), f32bits(2.0 ** -80))
    I('v_cmp_nge_f32', 'vcc', v(OA + 8), v(MX))
    if OPT.get('k2force'):
        I('s_mov_b64', 'vcc', -1)
    I('s_cbranch_vccz', 'L_k2_fin')
    attn('x', exact=True)
    k.label('L_k2_fin')
    I('v_rcp_f32', v(MX), v(OA + 8))
    for r in range(8):
        I('v_mul_f32', v(OA + r), v(OA + r), v(MX))
    pack8(k, PB, OA)
    I('s_lshl_b32', 's12', 's6', 15)
    I('s_lshl_b32', 's13', 's4', 10)
    I('s_add_u32', 's12', 's12', 's13')
    I('s_add_u32', 's12', 's12', OB)
    I('buffer_store_dwordx4', v(PB, 4), 'v2', s(R_WS, 4), 's12', mods=f'offen {ST_POL}')
    k.waitcnt(vm=1)
    tick(k)
    I('s_cmp_eq_u32', 's64', 0)
    I('s_cbranch_scc1', 'L_k2_gu')
    I('s_mov_b32', 's60', 1024)
    I('s_mov_b32', 's61', 512)
    I('s_cmp_eq_u32', 's3', 7)
    I('s_cselect_b32', 's12', 512, 's60')
    I('s_cselect_b32', 's13', 1024, 's61')
    I('v_mul_lo_u32', 'v8', 'v3', 's12')
    I('v_lshl_add_u32', 'v8', 'v5', 7, 'v8')
    I('v_lshl_add_u32', 'v8', 'v4', 5, 'v8')
    I('v_lshl_add_u32', 'v8', 'v6', 3, 'v8')
    I('v_add_u32', 'v8', 's69', 'v8')
    I('v_add_u32', 'v9', 's13', 'v8')
    RU = KF
    for u in range(2):
        I('ds_read_b64_tr_b16', v(RU + 4 * u, 2), 'v8', mods=f'offset:{u * 64}')
        I('ds_read_b64_tr_b16', v(RU + 4 * u + 2, 2), 'v9', mods=f'offset:{u * 64}')
    I('s_mov_b32', 's60', 114688)
    I('s_cselect_b32', 's60', 32768, 's60')
    I('s_mov_b32', 's61', WD)
    I('s_cselect_b32', 's61', WO, 's61')
    I('s_and_b32', 's12', 's57', 7)
    I('s_lshl_b32', 's12', 's12', 1)
    I('s_mul_i32', 's12', 's12', 's60')
    I('s_add_u32', 's61', 's61', 's12')
    I('s_lshr_b32', 's12', 's57', 3)
    I('s_lshl_b32', 's12', 's12', 10)
    I('s_add_u32', 's61', 's61', 's12')
    I('s_add_u32', 's62', 's61', 's60')
    k.waitcnt(lgkm=0)
    I('buffer_store_dwordx4', v(RU, 4), 'v2', s(R_WS, 4), 's61', mods=f'offen {ST_POL}')
    I('buffer_store_dwordx4', v(RU + 4, 4), 'v2', s(R_WS, 4), 's62', mods=f'offen {ST_POL}')
    I('s_branch', 'L_k2_sw1')
    k.label('L_k2_gu')
    I('v_lshlrev_b32', 'v10', 11, 'v4')
    I('v_lshl_add_u32', 'v11', 'v3', 3, 'v5')
    I('v_lshl_add_u32', 'v10', 'v11', 7, 'v10')
    I('v_lshl_add_u32', 'v10', 'v6', 3, 'v10')
    I('v_add_u32', 'v10', 's69', 'v10')
    RW = KF
    for u in range(4):
        I('ds_read_b64_tr_b16', v(RW + 4 * u, 2), 'v10', mods=f'offset:{u * 32}')
        I('ds_read_b64_tr_b16', v(RW + 4 * u + 2, 2), 'v10', mods=f'offset:{u * 32 + 512}')
    I('s_lshl_b32', 's60', 's65', 2)
    I('s_mul_i32', 's15', 's66', 7168)
    I('s_add_u32', 's15', 's15', W4)
    for u in range(4):
        I('s_add_u32', 's12', 's60', u)
        I('s_mul_i32', 's13', 's12', 147)
        I('s_lshr_b32', 's13', 's13', 10)
        I('s_mul_i32', 's61', 's13', 7)
        I('s_sub_u32', 's12', 's12', 's61')
        I('s_mul_i32', 's13', 's13', W4_NB)
        I('s_lshl_b32', 's12', 's12', 10)
        I('s_add_u32', 's12', 's12', 's13')
        I('s_add_u32', s(48 + u), 's12', 's15')
    for j in range(4):
        I('v_mov_b32', v(240 + j), 0x3f803f80)
    I('s_mul_i32', 's62', 's66', 28672)
    I('s_lshl_b32', 's63', 's60', 7)
    I('s_add_u32', 's62', 's62', 's63')
    I('s_add_u32', 's62', 's62', CSP)
    I('v_mul_u32_u24', 'v8', 14336, 'v3')
    I('v_add_u32', 'v8', 'v8', 'v12')
    I('v_cmp_eq_u32', 'vcc', 0, 'v3')
    BS = [96, 112, SB_, SB_ + 16]
    CS = [SB_ + 32, PB, OA, NM]
    T = MK
    for u in range(4):
        k.waitcnt(lgkm=6 - 2 * u)
        I('v_mfma_f32_32x32x16_bf16', v(BS[u], 16), v(SBR, 4), v(RW + 4 * u, 4), 0)
        unpack8(k, T + 8 * (u & 1), RW + 4 * u)
        for j in range(8):
            I('v_mul_f32', v(T + 8 * (u & 1) + j), v(T + 8 * (u & 1) + j), v(G2R + j))
        pack8(k, RW + 16 + 4 * u, T + 8 * (u & 1))
        I('buffer_store_dwordx4', v(RW + 16 + 4 * u, 4), 'v2', s(R_WS, 4), s(48 + u), mods=f'offen {ST_POL}')
        I('v_mfma_f32_32x32x16_bf16', v(CS[u], 16), v(240, 4), v(RW + 16 + 4 * u, 4), 0)
    for u in range(4):
        I('v_cndmask_b32', v(244 + u), v(BS[u]), v(CS[u]), 'vcc')
        I('buffer_store_dword', v(244 + u), 'v8', s(R_WS, 4), 's62', mods=f'offen offset:{128 * u}')
    k.label('L_k2_sw1')
    epilogue(k, 2, vtmp=4)
    return k, 256, 512, LDS


def gen_gemm64(name, idx, NS, A_BASE, A_TB, B_BASE, B_NF, is_k3):
    k = Kernel(name)
    I = k.I
    LDS = 4 * 3 * 4096
    prologue(k, 256, need_lo=is_k3)
    xcd_map(k, 3, 4, 5, OPT.get('x3' if is_k3 else 'x5', 2))
    I('v_lshlrev_b32', 'v2', 4, 'v1')
    I('v_lshrrev_b32', 'v3', 5, 'v1')
    I('v_and_b32', 'v4', 31, 'v1')
    NT = 4 * NS
    ROT = OPT.get('rot64', 0)
    I('s_lshr_b32', 's6', 's2', 3)
    I('s_mul_i32', 's6', 's6', NT * ROT)
    I('s_lshr_b32', 's6', 's6', 5)
    I('s_mul_i32', 's61', 's3', NS)
    I('s_add_u32', 's6', 's6', 's61')
    I('s_cmp_ge_u32', 's6', NT)
    I('s_cselect_b32', 's61', NT, 0)
    I('s_sub_u32', 's6', 's6', 's61')
    I('s_lshl_b32', 's6', 's6', 10)
    I('s_mul_i32', 's7', 's4', 2 * A_TB)
    I('s_add_u32', 's7', 's7', A_BASE)
    I('s_add_u32', 's8', 's7', A_TB)
    I('s_mul_i32', 's9', 's5', 2 * B_NF)
    I('s_add_u32', 's9', 's9', B_BASE)
    I('s_add_u32', 's10', 's9', B_NF)
    I('s_and_b32', 's11', 's3', 1)
    I('s_lshr_b32', 's12', 's3', 1)
    I('s_lshl_b32', 's13', 's4', 1)
    I('s_add_u32', 's13', 's13', 's12')
    I('s_lshl_b32', 's14', 's5', 1)
    I('s_add_u32', 's14', 's14', 's11')
    k.waitcnt(lgkm=0)
    tick(k)
    srd(k, R_WS, S_WS, WS_SIZE)
    ACC = 16
    GV = 80
    XR = 96
    RING = 104
    DEPTH = min(NS, OPT.get('gdepth', 8))
    LOG = []

    def ld(st):
        b = RING + 16 * (st % DEPTH)
        va = 'v11' if st & 1 else 'v12'
        I('v_add_u32', va, 's6', 'v2')
        I('s_add_u32', 's6', 's6', 1024)
        I('s_cmp_eq_u32', 's6', NT * 1024)
        I('s_cselect_b32', 's6', 0, 's6')
        for j, r in enumerate((9, 7, 10, 8)):
            I('buffer_load_dwordx4', v(b + 4 * j, 4), va, s(R_WS, 4), s(r), mods='offen')
            LOG.append(('k', st))

    def side_loads():
        I('s_lshl_b32', 's15', 's14', 7)
        I('s_add_u32', 's15', 's15', MODF + (MF_GA if is_k3 else MF_GB))
        I('v_lshlrev_b32', 'v5', 5, 'v3')
        for sp in range(2):
            for q in range(2):
                I('buffer_load_dwordx4', v(GV + 8 * sp + 4 * q, 4), 'v5', s(R_WS, 4), 's15', mods=f'offen offset:{64 * sp + 16 * q}')
                LOG.append(('s', 0))
        if is_k3:
            srd(k, 44, S_X, 2048 * 1024)
            I('s_lshl_b32', 's15', 's13', 15)
            I('s_lshl_b32', 's60', 's14', 6)
            I('s_add_u32', 's15', 's15', 's60')
            I('v_lshlrev_b32', 'v6', 10, 'v4')
            I('v_lshl_add_u32', 'v6', 'v3', 4, 'v6')
            for sp in range(2):
                I('buffer_load_dwordx4', v(XR + 4 * sp, 4), 'v6', s(44, 4), 's15', mods=f'offen offset:{32 * sp}')
                LOG.append(('s', 0))
        else:
            I('s_lshl_b32', 's15', 's13', 15)
            I('s_lshl_b32', 's60', 's14', 11)
            I('s_add_u32', 's15', 's15', 's60')
            I('s_add_u32', 's15', 's15', X1)
            for sp in range(2):
                I('buffer_load_dwordx4', v(XR + 4 * sp, 4), 'v2', s(R_WS, 4), 's15', mods=f'offen offset:{1024 * sp}')
                LOG.append(('s', 0))

    PRE = min(DEPTH, OPT.get('gpre', 4))
    CSL = [False]
    CPF = [0]
    nxt = 0
    for st in range(PRE):
        ld(st)
        nxt += 1
    side_done = False
    for st in range(NS):
        tgt = min(NS, st + DEPTH)
        n_issue = 0
        while nxt < tgt and n_issue < 2:
            ld(nxt)
            nxt += 1
            n_issue += 1
        if nxt == NS and not side_done:
            side_loads()
            if is_k3:
                I('v_mul_u32_u24', 'v8', 14336, 'v3')
                I('v_lshl_add_u32', 'v8', 'v4', 2, 'v8')
                I('s_min_u32', 's15', 's2', 111)
                I('s_lshl_b32', 's15', 's15', 7)
                I('s_add_u32', 's15', 's15', CSP)
                I('s_cmp_lg_u32', 's3', 0)
                I('s_cbranch_scc1', f'L_{name}_nocs')
                for p in range(32):
                    I('s_add_u32', 's60', 's15', p * 28672)
                    I('buffer_load_dword', a(p), 'v8', s(R_WS, 4), 's60', mods='offen')
                k.label(f'L_{name}_nocs', flush=False)
                CSL[0] = True
            if code_prefetch(k, 13, 14, 48, 4):
                LOG.append(('s', 0))
                CPF[0] = 1
            side_done = True
        last = max(i for i, e in enumerate(LOG) if e == ('k', st))
        if CSL[0]:
            I('s_cmp_lg_u32', 's3', 0)
            I('s_cbranch_scc1', f'L_{name}_w{st}')
            k.waitcnt(vm=min(63, len(LOG) - 1 - last + 32))
            I('s_branch', f'L_{name}_x{st}')
            k.label(f'L_{name}_w{st}', flush=False)
            k.waitcnt(vm=len(LOG) - 1 - last)
            k.label(f'L_{name}_x{st}', flush=False)
        else:
            k.waitcnt(vm=len(LOG) - 1 - last)
        b = RING + 16 * (st % DEPTH)
        B0, A0, B1, A1 = (v(b + 4 * j, 4) for j in range(4))
        for nfl, Bf in ((0, B0), (1, B1)):
            for tbl, Af in ((0, A0), (1, A1)):
                a_ = ACC + 16 * (2 * nfl + tbl)
                I('v_mfma_f32_32x32x16_bf16', v(a_, 16), Bf, Af, 0 if st == 0 else v(a_, 16))
    tick(k)
    k.flush()
    for o in range(4):
        q = 2 * (o & 1) + (o >> 1)
        lab = f'L_{name}_skip{o}'
        I('s_cmp_eq_u32', 's3', o)
        I('s_cbranch_scc1', lab)
        I('s_sub_u32', 's15', 's3', o + 1)
        I('s_and_b32', 's15', 's15', 3)
        I('s_lshl_b32', 's15', 's15', 12)
        I('v_add_u32', 'v7', 's15', 'v2')
        for j in range(4):
            I('ds_write_b128', 'v7', v(ACC + 16 * q + 4 * j, 4), mods=f'offset:{o * 12288 + j * 1024}')
        k.label(lab)
    OWN = RING
    for o in range(4):
        q = 2 * (o & 1) + (o >> 1)
        lab = f'L_{name}_own{o}'
        I('s_cmp_lg_u32', 's3', o)
        I('s_cbranch_scc1', lab)
        for r in range(16):
            I('v_mov_b32', v(OWN + r), v(ACC + 16 * q + r))
        k.label(lab)
    k.waitcnt(lgkm=0)
    k.barrier()
    tick(k)
    I('s_mul_i32', 's15', 's3', 12288)
    I('v_add_u32', 'v7', 's15', 'v2')
    for p in range(3):
        for j in range(4):
            I('ds_read_b128', v(ACC + 16 * p + 4 * j, 4), 'v7', mods=f'offset:{p * 4096 + j * 1024}')
    for p in range(3):
        k.waitcnt(lgkm=8 - 4 * p)
        for r in range(16):
            I('v_add_f32', v(OWN + r), v(OWN + r), v(ACC + 16 * p + r))
    k.waitcnt(vm=CPF[0])
    T = ACC
    unpack8(k, T, XR)
    unpack8(k, T + 8, XR + 4)
    for r in range(16):
        I('v_fmac_f32', v(T + r), v(OWN + r), v(GV + r))
    P = ACC + 16
    pack8(k, P, T)
    pack8(k, P + 4, T + 8)
    if is_k3:
        I('s_lshl_b32', 's15', 's13', 15)
        I('s_lshl_b32', 's60', 's14', 11)
        I('s_add_u32', 's15', 's15', 's60')
        I('s_add_u32', 's15', 's15', X1)
        for sp in range(2):
            I('buffer_store_dwordx4', v(P + 4 * sp, 4), 'v2', s(R_WS, 4), 's15', mods=f'offen offset:{1024 * sp} {ST_POL}')
        unpack8(k, T, P)
        unpack8(k, T + 8, P + 4)
        I('v_add_f32', 'v8', v(T), v(T + 1))
        I('v_add_f32', 'v9', v(T + 2), v(T + 3))
        for r in range(4, 16, 2):
            I('v_add_f32', 'v8', 'v8', v(T + r))
            I('v_add_f32', 'v9', 'v9', v(T + r + 1))
        I('v_add_f32', 'v8', 'v8', 'v9')
        I('v_mov_b32', 'v9', 'v8')
        I('v_permlane32_swap_b32', 'v8', 'v9')
        I('v_add_f32', 'v8', 'v8', 'v9')
        I('v_mul_f32', 'v8', f32bits(1.0 / 32), 'v8')
        for r in range(16):
            I('v_sub_f32', v(T + r), v(T + r), 'v8')
        I('v_mul_f32', 'v9', v(T), v(T))
        I('v_mul_f32', 'v10', v(T + 1), v(T + 1))
        for r in range(2, 16, 2):
            I('v_fmac_f32', 'v9', v(T + r), v(T + r))
            I('v_fmac_f32', 'v10', v(T + r + 1), v(T + r + 1))
        I('v_add_f32', 'v9', 'v9', 'v10')
        I('v_mov_b32', 'v10', 'v9')
        I('v_permlane32_swap_b32', 'v9', 'v10')
        I('v_add_f32', 'v9', 'v9', 'v10')
        I('s_lshl_b32', 's15', 's13', 12)
        I('s_lshl_b32', 's60', 's5', 9)
        I('s_add_u32', 's15', 's15', 's60')
        I('s_lshl_b32', 's60', 's11', 3)
        I('s_add_u32', 's15', 's15', 's60')
        I('s_add_u32', 's15', 's15', ST2)
        I('v_lshlrev_b32', 'v10', 4, 'v4')
        I('s_mov_b32', 'exec_hi', 0)
        I('buffer_store_dwordx2', v(8, 2), 'v10', s(R_WS, 4), 's15', mods='offen')
        I('s_mov_b64', 'exec', -1)
        I('s_cmp_ge_u32', 's2', 112)
        I('s_cbranch_scc1', f'L_{name}_noside')
        I('s_cmp_lg_u32', 's3', 0)
        I('s_cbranch_scc1', f'L_{name}_noside')
        T = RING + 16
        for p in range(32):
            I('v_accvgpr_read_b32', v(T + p), a(p))
        for st_ in (16, 8, 4, 2, 1):
            for r in range(st_):
                I('v_add_f32', v(T + r), v(T + r), v(T + r + st_))
        I('v_cvt_pk_bf16_f32', v(P), v(T), v(T))
        I('v_and_b32', 'v9', 0xffff0000, v(P))
        I('v_sub_f32', 'v9', v(T), 'v9')
        I('v_cvt_pk_bf16_f32', v(P + 1), 'v9', 'v9')
        I('v_mov_b32', v(P + 2), 0)
        I('v_mov_b32', v(P + 3), 0)
        I('s_mul_i32', 's60', 's2', 147)
        I('s_lshr_b32', 's60', 's60', 10)
        I('s_mul_i32', 's61', 's60', 7)
        I('s_sub_u32', 's61', 's2', 's61')
        I('s_mul_i32', 's60', 's60', W4_NB)
        I('s_lshl_b32', 's61', 's61', 10)
        I('s_add_u32', 's60', 's60', 's61')
        I('s_add_u32', 's60', 's60', W4 + 32 * 7168)
        I('buffer_store_dwordx4', v(P, 4), 'v2', s(R_WS, 4), 's60', mods='offen')
        k.label(f'L_{name}_noside')
    else:
        srd(k, 44, S_OUT, 2048 * 1024)
        I('s_lshl_b32', 's15', 's13', 15)
        I('s_lshl_b32', 's60', 's14', 6)
        I('s_add_u32', 's15', 's15', 's60')
        I('v_lshlrev_b32', 'v6', 10, 'v4')
        I('v_lshl_add_u32', 'v6', 'v3', 4, 'v6')
        for sp in range(2):
            I('buffer_store_dwordx4', v(P + 4 * sp, 4), 'v6', s(44, 4), 's15',
              mods=f'offen offset:{32 * sp}' + (' sc1' if OPT.get('outsc1') else ''))
    epilogue(k, idx, vtmp=4)
    return k, 256, 256, LDS


def gen_k3():
    return gen_gemm64('k3_wo_kernel', 3, 8, OB, 32768, WO, 32768, True)


def gen_k5():
    return gen_gemm64('k5_down_kernel', 5, 28, ACT, 112 * 1024, WD, 112 * 1024, False)


def gen_k4():
    k = Kernel('k4_ffn1_kernel')
    I = k.I
    RES = {2: 131072, 3: 32768, 6: 0}
    LDS = 163840
    NR = 16
    D = OPT.get('k4d', 8)
    assert D <= 16 - OPT.get('k4bi', 2)
    prologue(k, 256, need_lo=False)
    xcd_map(k, 2, 4, 5, OPT.get('x4', 2))
    I('s_and_b32', 's61', 's3', 3)
    I('s_lshr_b32', 's63', 's3', 2)
    I('s_lshl_b32', 's6', 's4', 2)
    I('s_add_u32', 's6', 's6', 's61')
    I('v_lshlrev_b32', 'v2', 4, 'v1')
    I('v_lshrrev_b32', 'v3', 5, 'v1')
    I('v_and_b32', 'v4', 31, 'v1')
    I('s_mul_i32', 's7', 's5', W4_NB)
    I('s_add_u32', 's7', 's7', W4)
    I('s_lshl_b32', 's8', 's3', 10)
    I('s_lshl_b32', 's9', 's6', 15)
    I('s_add_u32', 's9', 's9', X1)
    I('s_and_b32', 's10', 's3', 1)
    I('s_and_b32', 's11', 's3', 2)
    I('s_lshl_b32', 's11', 's11', 1)
    I('s_add_u32', 's10', 's10', 's11')
    I('s_lshl_b32', 's10', 's10', 10)
    I('s_add_u32', 's10', 's10', 's7')
    I('s_mov_b32', 's11', 7168)
    I('s_cmp_eq_u32', 's63', 0)
    I('s_cselect_b32', 's9', 's9', 's10')
    I('s_cselect_b32', 's11', 1024, 's11')
    I('s_mul_i32', 's12', 's3', 7168)
    I('s_add_u32', 's12', 's12', 's7')
    I('s_lshl_b32', 's13', 's61', 10)
    I('v_add_u32', 'v5', 's13', 'v2')
    I('s_lshl_b32', 's13', 's63', 11)
    I('s_add_u32', 's13', 's13', 4096)
    I('v_add_u32', 'v6', 's13', 'v2')
    I('v_add_u32', 'v7', RES[2], 'v2')
    I('s_xor_b32', 's13', 's63', 1)
    I('s_lshl_b32', 's13', 's13', 15)
    I('v_add_u32', 'v15', 's13', 'v2')
    I('v_add_u32', 'v0', 65536, 'v5')
    I('v_add_u32', 'v1', 65536, 'v6')
    k.waitcnt(lgkm=0)
    tick(k)
    srd(k, R_WS, S_WS, WS_SIZE)
    ACC, WF, EXT, T, PK, EXB = 16, 80, 104, 108, 116, 124
    STT = ACC + 48
    EXA = T
    I('s_cmp_eq_u32', 's63', 0)
    I('s_cbranch_scc0', 'L_k4_g1')
    nt0 = getattr(k, 'nticks', 0)
    for grp in range(2):
        k.nticks = nt0
        FA = [0, 1, 2] if grp == 0 else [4, 5]
        FB = 3 if grp == 0 else 6
        NA = len(FA)
        LOG = []

        def ring(s_):
            if s_ >= 32:
                batch(6 if s_ < 36 else 3, (s_ - 32) % 4)
                return
            I('s_add_u32', 'm0', 's8', (s_ % NR) * 8192)
            I('buffer_load_dwordx4', 'v2', s(R_WS, 4), 's9', mods='offen lds')
            I('s_add_u32', 's9', 's9', 's11')
            LOG.append(('r', s_))

        def batch(fr, i):
            I('s_add_u32', 'm0', 's8', RES[fr] + i * 8192)
            I('s_add_u32', 's13', 's12', i * 8 * 7168 + fr * 1024)
            I('buffer_load_dwordx4', 'v2', s(R_WS, 4), 's13', mods='offen lds')
            LOG.append(('b', fr, i))

        def stat_loads():
            I('s_lshl_b32', 's13', 's6', 12)
            I('s_add_u32', 's13', 's13', ST2)
            I('v_lshlrev_b32', 'v8', 11, 'v3')
            I('v_lshl_add_u32', 'v8', 'v4', 4, 'v8')
            for q in range(4):
                I('buffer_load_dwordx4', v(STT + 4 * q, 4), 'v8', s(R_WS, 4), 's13', mods=f'offen offset:{q * 512}')
                LOG.append(('st',))

        def ext_loads():
            I('s_add_u32', 's13', 's7', 32 * 7168)
            for j, f in enumerate(FA):
                I('s_add_u32', 's14', 's13', f * 1024)
                I('buffer_load_dwordx4', v(EXA + 4 * j, 4), 'v2', s(R_WS, 4), 's14', mods='offen')
                LOG.append(('x',))
            I('s_add_u32', 's14', 's13', FB * 1024)
            I('buffer_load_dwordx4', v(EXB, 4), 'v2', s(R_WS, 4), 's14', mods='offen')
            LOG.append(('x',))
            if grp == 1:
                pass

        def wait_tags(tags):
            last = max(i for i, e in enumerate(LOG) if e in tags)
            k.waitcnt(vm=len(LOG) - 1 - last)

        def rd(s_):
            so = (s_ % 8) * 8192
            hi = (s_ % NR) >= 8
            b = WF + 12 * (s_ & 1)
            I('ds_read_b128', a(4 * s_, 4), 'v0' if hi else 'v5', mods=f'offset:{so}')
            for j in range(2):
                I('ds_read_b128', v(b + 4 * j, 4), 'v1' if hi else 'v6', mods=f'offset:{so + j * 1024}')
            if grp == 0:
                I('ds_read_b128', v(b + 8, 4), 'v7', mods=f'offset:{s_ * 1024}')
        NRD = 1 + NA

        def stats_ops():
            c0 = -2.0 * 1.4426950408889634 * math.sqrt(2.0 / math.pi)
            c1 = c0 * 0.044715
            L = []
            A_ = lambda *a_, **kw: L.append(lambda: I(*a_, **kw))
            A_('v_add_f32', 'v8', v(STT), v(STT + 2))
            for r in range(4, 16, 2):
                A_('v_add_f32', 'v8', 'v8', v(STT + r))
            A_('v_mov_b32', 'v9', 'v8')
            A_('v_permlane32_swap_b32', 'v8', 'v9')
            A_('v_add_f32', 'v8', 'v8', 'v9')
            A_('v_mul_f32', 'v8', f32bits(1.0 / 16), 'v8')
            A_('v_add_f32', 'v9', v(STT + 1), v(STT + 3))
            for r in range(5, 16, 2):
                A_('v_add_f32', 'v9', 'v9', v(STT + r))
            A_('v_mov_b32', 'v10', 0)
            for r in range(0, 16, 2):
                A_('v_sub_f32', v(STT + r), v(STT + r), 'v8')
                A_('v_fmac_f32', 'v10', v(STT + r), v(STT + r))
            A_('v_fmac_f32', 'v9', f32bits(32.0), 'v10')
            A_('v_mov_b32', 'v10', 'v9')
            A_('v_permlane32_swap_b32', 'v9', 'v10')
            A_('v_add_f32', 'v9', 'v9', 'v10')
            A_('v_mov_b32', 'v10', f32bits(1e-5))
            A_('v_fmac_f32', 'v10', f32bits(1.0 / 512), 'v9')
            A_('v_rsq_f32', 'v11', 'v10')
            A_('v_mul_f32', 'v12', 'v10', 'v11')
            A_('v_sub_f32', 'v13', 0, 'v8')
            A_('v_cmp_eq_u32', 'vcc', 0, 'v3')
            A_('v_cndmask_b32', 'v13', 'v12', 'v13', 'vcc')
            A_('v_cvt_pk_bf16_f32', 'v14', 'v13', 'v13')
            A_('v_and_b32', 'v14', 0xffff0000, 'v14')
            A_('v_sub_f32', 'v9', 'v13', 'v14')
            A_('v_cvt_pk_bf16_f32', v(EXT), 'v14', 'v9')
            A_('v_mov_b32', v(EXT + 1), v(EXT))
            A_('v_mov_b32', v(EXT + 2), 0)
            A_('v_mov_b32', v(EXT + 3), 0)
            A_('v_mul_f32', 'v12', f32bits(c0), 'v11')
            A_('v_mul_f32', 'v13', 'v11', 'v11')
            A_('v_mul_f32', 'v13', 'v13', 'v11')
            A_('v_mul_f32', 'v13', f32bits(c1), 'v13')
            A_('s_mul_i32', 's60', 's6', 112 * 1024)
            A_('s_mul_i32', 's62', 's5', 7 * 1024)
            A_('s_add_u32', 's60', 's60', 's62')
            A_('s_add_u32', 's60', 's60', ACT + grp * 4096)
            return L

        def epi(ai, f):
            g_ = ACC + 16 * ai
            u_ = g_ + 8
            for e in range(8):
                I('v_mul_f32', v(T + e), v(g_ + e), v(g_ + e))
            for e in range(8):
                I('v_fma_f32', v(T + e), v(T + e), 'v13', 'v12')
            for e in range(8):
                I('v_mul_f32', v(T + e), v(T + e), v(g_ + e))
            for e in range(8):
                I('v_exp_f32', v(T + e), v(T + e))
            for e in range(8):
                I('v_mul_f32', v(u_ + e), v(u_ + e), v(g_ + e))
            for e in range(8):
                I('v_fma_f32', v(T + e), v(T + e), 'v10', 'v10')
            for e in range(8):
                I('v_rcp_f32', v(T + e), v(T + e))
            for e in range(8):
                I('v_mul_f32', v(T + e), v(T + e), v(u_ + e))
            P = PK + 4 * (ai & 1)
            pack8(k, P, T)
            I('buffer_store_dwordx4', v(P, 4), 'v2', s(R_WS, 4), 's60', mods=f'offen offset:{(f % 4) * 1024} {ST_POL}')
            LOG.append(('store',))

        def fragB():
            ai = 3 if grp == 0 else 2
            acc = v(ACC + 16 * ai, 16)
            NB_ = 6
            for u in range(NB_ - 1):
                I('ds_read_b128', v(WF + 4 * u, 4), 'v15', mods=f'offset:{u * 1024}')
            I('v_mfma_f32_32x32x16_bf16', acc, v(EXB, 4), v(EXT, 4), 0)
            for u in range(32):
                n = u + NB_ - 1
                if n < 32:
                    I('ds_read_b128', v(WF + 4 * (n % NB_), 4), 'v15', mods=f'offset:{n * 1024}')
                k.waitcnt(lgkm=min(31, n) - u)
                I('v_mfma_f32_32x32x16_bf16', acc, v(WF + 4 * (u % NB_), 4), a(4 * u, 4), acc)

        extra = {}
        bsched = [(2, 1, 1), (2, 2, 5), (2, 3, 10)]
        for fr, i, at in bsched:
            extra.setdefault(at, []).append(lambda fr=fr, i=i: batch(fr, i))
        extra.setdefault(0, []).append(stat_loads)
        extra.setdefault(16, []).append(ext_loads)
        ring(0)
        batch(2, 0)
        PRE = OPT.get('k4pre', 8)
        for s_ in range(1, PRE):
            ring(s_)
        rn = [PRE]
        if OPT.get('prio', 0):
            I('s_setprio', 0)
        BI = OPT.get('k4bi', 2)
        wait_tags([('r', 0), ('r', 1), ('b', 2, 0)])
        k.barrier()
        tick(k)
        rd(0)
        VQ = []
        for s_ in range(32):
            n = s_ + 1
            if n < 32:
                if n % BI == 0 or n == 2:
                    tags = [('r', x) for x in range(n, n + (BI if n % BI == 0 else BI - 2))]
                    if n % 8 == 0:
                        tags.append(('b', 2, n // 8))
                    wait_tags(tags)
                    k.barrier()
                    if n % 8 == 0:
                        tick(k)
                rd(n)
                k.waitcnt(lgkm=NRD)
            else:
                k.waitcnt(lgkm=0)
            b = WF + 12 * (s_ & 1)
            for j in range(NA):
                I('v_mfma_f32_32x32x16_bf16', v(ACC + 16 * j, 16), v(b + 4 * j, 4), a(4 * s_, 4),
                  0 if s_ == 0 else v(ACC + 16 * j, 16))
                lead = D if rn[0] < 32 else OPT.get('k4db', 6)
                if j < (2 if s_ < OPT.get('k4ramp', 12) or rn[0] >= 32 else 1) and rn[0] <= s_ + lead and rn[0] < 36:
                    ring(rn[0])
                    rn[0] += 1
                if j == 1:
                    for f_ in extra.get(s_, []):
                        f_()
                for _ in range(4):
                    if VQ:
                        VQ.pop(0)()
            if s_ == 10:
                VQ.extend(stats_ops())
        assert not VQ
        tick(k)
        wait_tags([('x',)])
        for j in range(NA):
            I('v_mfma_f32_32x32x16_bf16', v(ACC + 16 * j, 16), v(EXA + 4 * j, 4), v(EXT, 4), v(ACC + 16 * j, 16))
        assert rn[0] == 36
        for i in range(4):
            batch(3, i)
        if grp == 0:
            I('v_lshrrev_b32', 'v1', 4, 'v2')
            if code_prefetch(k, 8, 9, 44, 8):
                LOG.append(('code',))
        wait_tags([('b', 6, 3)])
        k.barrier()
        tick(k)
        if OPT.get('k4wd', 0):
            I('s_lshr_b32', 's13', 's2', 3)
            I('s_lshl_b32', 's13', 's13', 3)
            I('s_add_u32', 's13', 's13', 's3')
            I('s_mul_i32', 's13', 's13', 3584)
            I('s_and_b32', 's14', 's2', 1)
            I('s_mul_i32', 's14', 's14', 8 * 114688)
            I('s_add_u32', 's13', 's13', 's14')
            I('s_add_u32', 's13', 's13', WD)
            I('s_lshl_b32', 's14', 's3', 12)
            I('s_add_u32', 'm0', 's14', RES[2])
            for q in range(4):
                I('buffer_load_dwordx4', 'v2', s(R_WS, 4), 's13', mods=f'offen offset:{min(q * 1024, 2560)} lds')
                LOG.append(('pf',))
        if grp == 0:
            for j, f in enumerate(FA):
                epi(j, f)
            wait_tags([('b', 3, 3)])
            k.barrier()
            tick(k)
            fragB()
            tick(k)
            epi(3, FB)
            I('s_branch', 'L_k4_done')
            k.label('L_k4_g1')
        else:
            fragB()
            wait_tags([('b', 3, 3)])
            k.barrier()
            tick(k)
            for j, f in enumerate(FA):
                epi(j, f)
            tick(k)
            epi(2, FB)
    k.label('L_k4_done')
    epilogue(k, 4, vtmp=4)
    return k, 256, 512, LDS


HEADER = """; adaLN_cond + sliding-window attention + GEGLU FFN block, gfx950 (MI355X).
"""


def build(gens, path):
    hdr, bodies, descs = [], [], []
    global ST_POL
    base_pol = ST_POL
    for gi, g in enumerate(gens):
        ST_POL = '' if (OPT.get('plain', 0) >> gi) & 1 else base_pol
        k, grid, block, lds = g()
        if OPT.get('biglds', 0):
            lds = max(lds, 90112)
        b, d = kernel_text(k)
        bodies.append(b)
        descs.append(d)
        hdr.append(f'; @launch kernel={k.name} grid=({grid},1,1) block=({block},1,1) lds={lds}')
        print(f'{k.name}: {k.n_ins} instr, vgpr {k.max_v + 1}, agpr {k.max_a + 1}, sgpr {k.max_s + 1}, nops {k.nops_inserted}, lds {lds}',
              file=sys.stderr)
    if OPT.get('dup'):
        d_ = OPT['dup'] - 1
        hdr.insert(d_ + 1, hdr[d_])
    out = HEADER + '\n'.join(hdr) + '\n.amdgcn_target "amdgcn-amd-amdhsa--gfx950"\n.text\n' + '\n'.join(bodies) + \
        '\nL_code_end:\n.section .rodata,"a"\n' + '\n'.join(descs)
    open(path, 'w').write(out)


if __name__ == '__main__':
    import argparse
    ap = argparse.ArgumentParser()
    ap.add_argument('-o', default='adaLN_cond__sliding_block__geglu_ffn__prompt.s')
    ap.add_argument('--stamp', action='store_true')
    ap.add_argument('-n', type=int, default=6)
    ap.add_argument('--stpol', default='sc1')
    ap.add_argument('--opt', default='')
    args = ap.parse_args()
    STAMP = args.stamp
    ST_POL = args.stpol
    for kv in args.opt.split(','):
        if kv:
            a_, b_ = kv.split('=')
            OPT[a_] = int(b_)
    allg = [gen_k0, gen_k1]
    for nm in ('gen_k2', 'gen_k3', 'gen_k4', 'gen_k5'):
        if nm in globals():
            allg.append(globals()[nm])
    build(allg[:args.n], args.o)
```

```python
import sys
import struct
import math
from asmlib import *

XN = 0x0000000
W1 = 0x0200000
W1_NB = 32 * 3072
MODP = 0x0400000
MODP_P = 3072 * 4
MODF = 0x0420000
MF_GA, MF_G2, MF_GB, MF_SB = 0, 2048, 4096, 6144
NRM = 0x0440000
TMX = 0x04C0000
QB = 0x0500000
KB = 0x0700000
VB = 0x0900000
OB = 0x0B00000
X1 = 0x0D00000
ST2 = 0x0F00000
CSP = 0x1F00000
W4 = 0x1000000
W4_NB = 33 * 7168
WO = 0x1400000
WD = 0x1500000
ACT = 0x1800000
STAMPS = 0x2000000
WS_SIZE = 0x2100000

STAMP = False
ST_POL = 'sc1'
OPT = {}


def f32bits(x):
    return struct.unpack('<I', struct.pack('<f', x))[0]


S_X, S_WQKV, S_WO, S_BX, S_WG, S_WU, S_WD, S_C = 16, 18, 20, 22, 24, 26, 28, 30
S_WMOD, S_OUT, S_DBG, S_WS = 32, 34, 36, 38
R_WS = 40


def srd(k, d, base, nbytes):
    k.I('s_mov_b32', s(d), s(base))
    k.I('s_mov_b32', s(d + 1), s(base + 1))
    k.I('s_mov_b32', s(d + 2), nbytes)
    k.I('s_mov_b32', s(d + 3), 0x20000)


def prologue(k, nwg, need_lo=True):
    I = k.I
    if STAMP:
        I('s_memrealtime', s(96, 2))
    I('s_cmp_ge_u32', 's2', nwg)
    I('s_cbranch_scc1', f'L_end_{k.name}')
    if OPT.get('prio', 0) and k.name[1] in '124':
        I('s_setprio', 3)
    if need_lo:
        I('s_load_dwordx16', s(16, 16), s(0, 2), 0)
    I('s_load_dwordx8', s(32, 8), s(0, 2), 64)
    I('v_and_b32', 'v1', 63, 'v0')
    I('v_lshrrev_b32', 'v2', 6, 'v0')
    I('v_readfirstlane_b32', 's3', 'v2')


def xcd_map(k, mbits, dm, dn, xmb=2):
    I = k.I
    mtot = mbits + 2
    jm = mtot - xmb
    if xmb > 0:
        I('s_bfe_u32', s(dm), 's2', (xmb << 16) | (3 - xmb))
        I('s_lshl_b32', s(dm), s(dm), jm)
    else:
        I('s_mov_b32', s(dm), 0)
    I('s_bfe_u32', s(dn), 's2', (jm << 16) | 3)
    I('s_add_u32', s(dm), s(dm), s(dn))
    I('s_and_b32', s(dn), 's2', (1 << (3 - xmb)) - 1)
    I('s_lshl_b32', s(dn), s(dn), 5 - jm)
    I('s_lshr_b32', 's62', 's2', 3 + jm)
    I('s_add_u32', s(dn), s(dn), 's62')


NEXT = {'k0_mod_kernel': ('k1_qkv_kernel', 'k2_attn_kernel'), 'k1_qkv_kernel': ('k2_attn_kernel', 'k3_wo_kernel'),
        'k2_attn_kernel': ('k3_wo_kernel', 'k4_ffn1_kernel'), 'k3_wo_kernel': ('k4_ffn1_kernel', 'k5_down_kernel'),
        'k4_ffn1_kernel': ('k5_down_kernel', 'L_code_end')}


def code_prefetch(k, vt, vdst, sa, nwaves):
    if not OPT.get('codepf', 1) or k.name not in NEXT:
        return False
    I = k.I
    beg, end = NEXT[k.name]
    I('s_getpc_b64', s(sa, 2))
    k.raw(f'L_pc_{k.name}:')
    I('s_lshr_b32', s(sa + 2), 's2', 3)
    I('s_mul_i32', s(sa + 2), s(sa + 2), nwaves)
    I('s_add_u32', s(sa + 2), s(sa + 2), 's3')
    I('s_lshl_b32', s(sa + 2), s(sa + 2), 13)
    I('v_lshlrev_b32', v(vt), 7, 'v1')
    I('v_add_u32', v(vt), s(sa + 2), v(vt))
    I('v_min_u32', v(vt), f'{end}-{beg}-4', v(vt))
    I('v_add_u32', v(vt), f'{beg}-L_pc_{k.name}', v(vt))
    I('global_load_dword', v(vdst), v(vt), s(sa, 2))
    return True


def tick(k):
    if STAMP:
        n = getattr(k, 'nticks', 0)
        assert n < 12
        k.I('s_memrealtime', s(94, 2))
        k.I('s_memtime', s(100, 2))
        k.waitcnt(lgkm=0)
        k.I('s_mov_b32', s(70 + n), 's94')
        k.I('s_mov_b32', s(82 + n), 's100')
        k.nticks = n + 1


def epilogue(k, idx, vtmp=2):
    I = k.I
    if STAMP:
        k.flush()
        tick(k)
        k.waitcnt(vm=0, lgkm=0)
        I('s_memrealtime', s(98, 2))
        k.waitcnt(lgkm=0)
        I('s_cmp_lg_u32', 's3', OPT.get('stw', 0) if k.name[1] in '124' else min(3, OPT.get('stw', 0)))
        I('s_cbranch_scc1', f'L_end_{k.name}')
        I('v_mov_b32', v(vtmp), 's96')
        I('v_mov_b32', v(vtmp + 1), 's98')
        I('s_lshl_b32', 's96', 's2', 3)
        I('s_add_u32', 's96', 's96', STAMPS + idx * 4096)
        I('v_mov_b32', v(vtmp + 2), 's96')
        I('s_mov_b64', 'exec', 1)
        I('buffer_store_dwordx2', v(vtmp, 2), v(vtmp + 2), s(R_WS, 4), 0, mods='offen')
        I('s_lshl_b32', 's96', 's2', 7)
        I('s_add_u32', 's96', 's96', STAMPS + 0x10000 + idx * 0x8000)
        I('v_mov_b32', v(vtmp + 2), 's96')
        for n in range(24):
            I('v_mov_b32', v(vtmp), s(70 + n) if (n % 12) < k.nticks else 0)
            I('buffer_store_dword', v(vtmp), v(vtmp + 2), s(R_WS, 4), 0, mods=f'offen offset:{4 * n}')
    k.label(f'L_end_{k.name}')
    I('s_endpgm')


def wave_sum_to_sgpr(k, regs, sdst):
    I = k.I
    for sh in ('row_shr:1', 'row_shr:2', 'row_shr:4', 'row_shr:8'):
        for r in regs:
            I('v_add_f32', v(r), v(r), v(r), mods=f'{sh} row_mask:0xf bank_mask:0xf')
    for r in regs:
        I('v_add_f32', v(r), v(r), v(r), mods='row_bcast:15 row_mask:0xa bank_mask:0xf')
    for r in regs:
        I('v_add_f32', v(r), v(r), v(r), mods='row_bcast:31 row_mask:0xc bank_mask:0xf')
    for r, sd in zip(regs, sdst):
        I('v_readlane_b32', s(sd), v(r), 63)


def unpack8(k, dst, src):
    for j in range(4):
        k.I('v_lshlrev_b32', v(dst + 2 * j), 16, v(src + j))
        k.I('v_and_b32', v(dst + 2 * j + 1), 0xffff0000, v(src + j))


def pack8(k, dst, src):
    for j in range(4):
        k.I('v_cvt_pk_bf16_f32', v(dst + j), v(src + 2 * j), v(src + 2 * j + 1))


def gen_k0():
    k = Kernel('k0_mod_kernel')
    I = k.I
    L_A = 0
    L_W = 16384
    L_X = 24576
    L_S = 32768
    L_P = 33024
    LDS = 34048
    prologue(k, 256)
    I('s_and_b32', 's4', 's2', 7)
    I('v_lshrrev_b32', 'v2', 3, 'v1')
    I('v_and_b32', 'v3', 7, 'v1')
    I('v_lshlrev_b32', 'v3', 4, 'v3')
    I('v_mul_u32_u24', 'v4', 6144, 'v2')
    I('v_add_u32', 'v4', 'v4', 'v3')
    I('v_mul_u32_u24', 'v5', 3072, 'v2')
    I('v_add_u32', 'v5', 'v5', 'v3')
    I('v_lshlrev_b32', 'v7', 4, 'v1')
    I('s_lshl_b32', 's10', 's4', 5)
    I('s_lshr_b32', 's11', 's2', 3)
    I('s_add_u32', 's10', 's10', 's11')
    I('s_lshl_b32', 's10', 's10', 3)
    I('s_lshl_b32', 's12', 's3', 1)
    I('s_add_u32', 's12', 's10', 's12')
    I('s_lshl_b32', 's12', 's12', 10)
    I('s_min_u32', 's5', 's2', 191)
    I('s_lshr_b32', 's5', 's5', 2)
    I('s_and_b32', 's6', 's2', 3)
    I('s_lshl_b32', 's13', 's6', 7)
    I('s_lshl_b32', 's14', 's3', 5)
    I('s_add_u32', 's13', 's13', 's14')
    I('v_and_b32', 'v6', 15, 'v1')
    I('v_lshlrev_b32', 'v6', 2, 'v6')
    I('s_lshl_b32', 's15', 's13', 1)
    k.waitcnt(lgkm=0)
    tick(k)
    srd(k, R_WS, S_WS, WS_SIZE)
    srd(k, 44, S_WMOD, 512 * 6144)
    srd(k, 48, S_WQKV, 512 * 3072)
    srd(k, 52, S_X, 2048 * 1024)
    srd(k, 56, S_C, 1024)
    LOG = []
    I('buffer_load_dword', 'v8', 'v6', s(56, 4), 's15', mods='offen'); LOG.append('c')
    I('buffer_load_dwordx4', v(12, 4), 'v7', s(52, 4), 's12', mods='offen'); LOG.append('x')
    I('buffer_load_dwordx4', v(16, 4), 'v7', s(52, 4), 's12', mods='offen offset:1024'); LOG.append('x')
    I('s_mul_i32', 's7', 's13', 6144)
    I('s_lshl_b32', 's8', 's5', 7)
    I('s_add_u32', 's7', 's7', 's8')
    I('s_lshl_b32', 's8', 's3', 12)
    for j in range(4):
        I('s_add_u32', 'm0', 's8', L_A + j * 1024)
        I('s_add_u32', 's9', 's7', j * 8 * 6144)
        I('buffer_load_dwordx4', 'v4', s(44, 4), 's9', mods='offen lds'); LOG.append('g')
    I('s_min_u32', 's14', 's3', 2)
    I('s_lshl_b32', 's14', 's14', 10)
    I('s_mul_i32', 's15', 's11', 16 * 3072)
    I('s_add_u32', 's14', 's14', 's15')
    I('s_lshl_b32', 's15', 's4', 7)
    I('s_add_u32', 's14', 's14', 's15')
    I('s_lshl_b32', 's60', 's3', 11)
    for j in range(2):
        I('s_add_u32', 'm0', 's60', L_W + j * 1024)
        I('s_add_u32', 's9', 's14', j * 8 * 3072)
        I('buffer_load_dwordx4', 'v5', s(48, 4), 's9', mods='offen lds'); LOG.append('w')
    if code_prefetch(k, 21, 27, 64, 4):
        LOG.append('code')
    if OPT.get('k0tlb', 0):
        I('s_cmp_eq_u32', 's3', 0)
        I('s_cselect_b32', 's64', s(S_WG), s(S_WU))
        I('s_cselect_b32', 's65', s(S_WG + 1), s(S_WU + 1))
        I('s_cmp_eq_u32', 's3', 2)
        I('s_cselect_b32', 's64', s(S_WD), 's64')
        I('s_cselect_b32', 's65', s(S_WD + 1), 's65')
        I('s_cmp_eq_u32', 's3', 3)
        I('s_cselect_b32', 's64', s(S_WO), 's64')
        I('s_cselect_b32', 's65', s(S_WO + 1), 's65')
        I('s_mov_b32', 's9', 1792 * 1024)
        I('s_cselect_b32', 's66', 512 * 1024, 's9')
        I('s_cmp_lt_u32', 's2', 16)
        I('s_cselect_b32', 's66', 's66', 0)
        I('s_mov_b32', 's67', 0x20000)
        I('v_lshlrev_b32', 'v21', 15, 'v1')
        I('buffer_load_dword', 'v27', 'v21', s(64, 4), 0, mods='offen'); LOG.append('tlb')
    tick(k)

    def wait_for(tag):
        last = max(i for i, e in enumerate(LOG) if e == tag)
        k.waitcnt(vm=len(LOG) - 1 - last)
    I('v_lshrrev_b32', 'v2', 4, 'v1')
    I('v_bfe_u32', 'v3', 'v1', 2, 2)
    I('v_and_b32', 'v9', 3, 'v1')
    I('v_lshl_add_u32', 'v20', 'v2', 3, 'v3')
    I('v_lshlrev_b32', 'v20', 7, 'v20')
    I('v_lshl_add_u32', 'v20', 'v9', 3, 'v20')
    I('v_add_u32', 'v20', 's8', 'v20')
    I('s_lshl_b32', 's9', 's3', 6)
    I('s_add_u32', 's9', 's9', L_S)
    I('v_lshl_add_u32', 'v22', 'v2', 4, 's9')
    I('v_add_u32', 'v23', 's9', 'v6')
    I('v_lshrrev_b32', 'v24', 5, 'v1')
    I('v_lshl_add_u32', 'v25', 'v24', 3, 'v3')
    I('v_lshlrev_b32', 'v25', 7, 'v25')
    I('v_bfe_u32', 'v26', 'v1', 4, 1)
    I('v_lshl_add_u32', 'v25', 'v26', 5, 'v25')
    I('v_lshl_add_u32', 'v25', 'v9', 3, 'v25')
    I('s_add_u32', 's9', 's60', L_W)
    I('v_add_u32', 'v25', 's9', 'v25')
    wait_for('c')
    I('v_lshlrev_b32', 'v9', 16, 'v8')
    I('v_and_b32', 'v10', 0xffff0000, 'v8')
    I('s_mov_b32', 's14', f32bits(-1.4426950408889634))
    for r, t_ in ((9, 28), (10, 29)):
        I('v_mul_f32', v(t_), 's14', v(r))
    for t_ in (28, 29):
        I('v_exp_f32', v(t_), v(t_))
    for t_ in (28, 29):
        I('v_add_f32', v(t_), 1.0, v(t_))
    for t_ in (28, 29):
        I('v_rcp_f32', v(t_), v(t_))
    for r, t_ in ((9, 28), (10, 29)):
        I('v_mul_f32', v(r), v(r), v(t_))
    I('v_cvt_pk_bf16_f32', 'v9', 'v9', 'v10')
    I('ds_write_b32', 'v23', 'v9')
    wait_for('x')
    tick(k)
    unpack8(k, 64, 12)
    unpack8(k, 72, 16)
    k.waitcnt(lgkm=0)
    I('ds_read_b128', v(48, 4), 'v22')
    for b, t_ in ((64, 40), (72, 41)):
        I('v_add_f32', v(t_), v(b), v(b + 1))
        for j in range(2, 8):
            I('v_add_f32', v(t_), v(t_), v(b + j))
    wave_sum_to_sgpr(k, [40, 41], [62, 63])
    I('s_mov_b32', 's14', f32bits(1.0 / 512))
    for t_, sd in ((40, 62), (41, 63)):
        I('v_mov_b32', v(t_), s(sd))
        I('v_mul_f32', v(t_), 's14', v(t_))
    for b, t_ in ((64, 40), (72, 41)):
        for j in range(8):
            I('v_sub_f32', v(b + j), v(b + j), v(t_))
    for b, t_ in ((64, 42), (72, 43)):
        I('v_mul_f32', v(t_), v(b), v(b))
        for j in range(1, 8):
            I('v_fmac_f32', v(t_), v(b + j), v(b + j))
    wave_sum_to_sgpr(k, [42, 43], [62, 63])
    I('s_mov_b32', 's15', f32bits(1e-5))
    for t_, sd in ((42, 62), (43, 63)):
        I('v_mov_b32', v(t_), s(sd))
        I('v_mov_b32', v(44), 's15')
        I('v_fma_f32', v(t_), v(t_), 's14', v(44))
        I('v_rsq_f32', v(t_), v(t_))
    for b, t_ in ((64, 42), (72, 43)):
        for j in range(8):
            I('v_mul_f32', v(b + j), v(b + j), v(t_))
    pack8(k, 12, 64)
    pack8(k, 16, 72)
    I('v_lshlrev_b32', 'v11', 7, 'v1')
    I('s_lshl_b32', 's9', 's3', 5)
    I('s_add_u32', 's9', 's9', L_X)
    I('v_add_u32', 'v11', 's9', 'v11')
    I('ds_write_b128', 'v11', v(12, 4))
    I('ds_write_b128', 'v11', v(16, 4), mods='offset:16')
    wait_for('g')
    tick(k)
    for cg in range(4):
        I('ds_read_b64_tr_b16', v(80 + 4 * cg, 2), 'v20', mods=f'offset:{cg * 32}')
        I('ds_read_b64_tr_b16', v(82 + 4 * cg, 2), 'v20', mods=f'offset:{cg * 32 + 512}')
    for cg in range(4):
        k.waitcnt(lgkm=6 - 2 * cg)
        I('v_mfma_f32_16x16x32_bf16', v(100 + 4 * cg, 4), v(48, 4), v(80 + 4 * cg, 4), 0)
    wait_for('w')
    for u in range(2):
        I('ds_read_b64_tr_b16', v(52 + 4 * u, 2), 'v25', mods=f'offset:{u * 64}')
        I('ds_read_b64_tr_b16', v(54 + 4 * u, 2), 'v25', mods=f'offset:{u * 64 + 512}')
    I('s_lshl_b32', 's9', 's3', 8)
    I('s_add_u32', 's9', 's9', L_P)
    I('v_add_u32', 'v28', 's9', 'v6')
    for cg in range(4):
        I('ds_write_b32', 'v28', v(100 + 4 * cg), mods=f'offset:{cg * 64}')
    I('s_mul_i32', 's9', 's4', 2 * W1_NB)
    I('s_mul_i32', 's14', 's11', 3072)
    I('s_add_u32', 's9', 's9', 's14')
    I('s_lshl_b32', 's14', 's3', 10)
    I('s_add_u32', 's9', 's9', 's14')
    I('s_add_u32', 's9', 's9', W1)
    I('s_add_u32', 's14', 's9', W1_NB)
    k.waitcnt(lgkm=0)
    I('s_cmp_eq_u32', 's3', 3)
    I('s_cbranch_scc1', 'L_k0_now')
    I('buffer_store_dwordx4', v(52, 4), 'v7', s(R_WS, 4), 's9', mods=f'offen {ST_POL}')
    I('buffer_store_dwordx4', v(56, 4), 'v7', s(R_WS, 4), 's14', mods=f'offen {ST_POL}')
    k.label('L_k0_now')
    tick(k)
    k.barrier()
    tick(k)
    I('s_add_u32', 's9', 's60', L_X)
    I('v_add_u32', 'v11', 's9', 'v7')
    I('ds_read_b128', v(12, 4), 'v11')
    I('ds_read_b128', v(16, 4), 'v11', mods='offset:1024')
    I('v_lshlrev_b32', 'v29', 2, 'v1')
    for w in range(4):
        I('ds_read_b32', v(30 + w), 'v29', mods=f'offset:{L_P + w * 256}')
    I('s_lshr_b32', 's12', 's10', 5)
    I('s_lshl_b32', 's12', 's12', 15)
    I('s_and_b32', 's14', 's10', 31)
    I('s_lshl_b32', 's14', 's14', 4)
    I('s_add_u32', 's12', 's12', 's14')
    I('s_lshl_b32', 's14', 's3', 13)
    I('s_add_u32', 's12', 's12', 's14')
    I('s_add_u32', 's12', 's12', XN)
    I('s_add_u32', 's14', 's12', 4096)
    I('v_lshrrev_b32', 'v11', 3, 'v1')
    I('v_lshlrev_b32', 'v11', 9, 'v11')
    I('v_and_b32', 'v10', 7, 'v1')
    I('v_lshl_add_u32', 'v11', 'v10', 4, 'v11')
    k.waitcnt(lgkm=4)
    I('buffer_store_dwordx4', v(12, 4), 'v11', s(R_WS, 4), 's12', mods=f'offen {ST_POL}')
    I('buffer_store_dwordx4', v(16, 4), 'v11', s(R_WS, 4), 's14', mods=f'offen {ST_POL}')
    I('s_cmp_lg_u32', 's3', 3)
    I('s_cbranch_scc1', 'L_k0_done')
    I('s_cmp_ge_u32', 's2', 192)
    I('s_cbranch_scc1', 'L_k0_done')
    k.waitcnt(lgkm=0)
    I('v_add_f32', 'v30', 'v30', 'v31')
    I('v_add_f32', 'v32', 'v32', 'v33')
    I('v_add_f32', 'v30', 'v30', 'v32')
    I('s_mul_i32', 's9', 's6', MODP_P)
    I('s_lshl_b32', 's14', 's5', 8)
    I('s_add_u32', 's9', 's9', 's14')
    I('s_add_u32', 's9', 's9', MODP)
    I('buffer_store_dword', 'v30', 'v29', s(R_WS, 4), 's9', mods='offen')
    k.label('L_k0_done')
    epilogue(k, 0)
    return k, 256, 256, LDS


QSCALE = 0.25 * 1.4426950408889634


def gen_k1():
    k = Kernel('k1_qkv_kernel')
    I = k.I
    L_G = 98304
    L_E = L_G + 4096
    L_PF = L_E + 49152
    LDS = L_PF + 8192
    prologue(k, 256, need_lo=True)
    xcd_map(k, 2, 4, 5, OPT.get('x1', 2))
    I('s_and_b32', 's61', 's3', 3)
    I('s_lshr_b32', 's63', 's3', 2)
    I('s_lshl_b32', 's6', 's4', 2)
    I('s_add_u32', 's6', 's6', 's61')
    I('v_lshlrev_b32', 'v2', 4, 'v1')
    I('v_lshlrev_b32', 'v4', 3, 'v0')
    I('s_lshl_b32', 's8', 's63', 4)
    I('s_add_u32', 's8', 's8', 's61')
    I('s_mul_i32', 's8', 's8', 3072)
    I('s_mul_i32', 's7', 's5', W1_NB)
    I('s_add_u32', 's7', 's7', 's8')
    I('s_add_u32', 's7', 's7', W1)
    I('s_lshl_b32', 's9', 's6', 15)
    I('s_lshl_b32', 's10', 's63', 14)
    I('s_add_u32', 's9', 's9', 's10')
    I('s_add_u32', 's9', 's9', XN)
    k.waitcnt(lgkm=0)
    tick(k)
    srd(k, R_WS, S_WS, WS_SIZE)
    ACC = 16
    TOK = 64
    WF = 128
    GS = 152
    TM = 184
    LOG = []
    FILL = []
    SJ = 192
    I('s_cmp_ge_u32', 's2', 4)
    I('s_cbranch_scc1', 'L_k1_nosj')
    I('s_lshl_b32', 's10', 's2', 11)
    I('s_add_u32', 's10', 's10', MODP + 4096)
    I('v_lshlrev_b32', 'v3', 2, 'v0')
    for p in range(4):
        I('s_add_u32', 's11', 's10', p * MODP_P)
        I('buffer_load_dword', v(SJ + p), 'v3', s(R_WS, 4), 's11', mods='offen')
    k.label('L_k1_nosj')
    for p in range(4):
        I('s_mov_b32', 's10', MODP + p * MODP_P)
        I('buffer_load_dwordx2', v(ACC + 2 * p, 2), 'v4', s(R_WS, 4), 's10', mods='offen')
        LOG.append('m')

    def w_op(c, q):
        def f():
            if q == 0:
                I('s_add_u32', 's10', 's7', c * 12288)
            I('s_add_u32', 'm0', 's8', c * 12288)
            I('buffer_load_dwordx4', 'v2', s(R_WS, 4), 's10', mods=f'offen offset:{q * 1024} lds')
            LOG.append(('w', c))
        return f

    def t_op(i):
        def f():
            if i % 4 == 0:
                I('s_add_u32', 's11', 's9', i * 1024)
            I('buffer_load_dwordx4', v(TOK + 4 * i, 4), 'v2', s(R_WS, 4), 's11', mods=f'offen offset:{(i % 4) * 1024}')
            LOG.append(('t', i))
        return f
    for c in range(4):
        FILL += [w_op(c, q) for q in range(3)] + [t_op(4 * c + q) for q in range(4)]

    def pf_op(ptr, nbytes):
        def f():
            srd(k, 44, ptr, nbytes)
            I('s_lshl_b32', 's12', 's2', 13)
            I('s_lshl_b32', 's13', 's3', 10)
            I('s_add_u32', 's12', 's12', 's13')
            I('s_add_u32', 'm0', 's13', L_PF)
            I('buffer_load_dwordx4', 'v2', s(44, 4), 's12', mods='offen lds')
            LOG.append(('pf',))
        return f
    def cp_op():
        if code_prefetch(k, 7, 196, 44, 8):
            LOG.append(('code',))
    FILL.append(cp_op)
    if OPT.get('k1pf', 0):
        FILL += [pf_op(S_WG, 512 * 3584), pf_op(S_WU, 512 * 3584), pf_op(S_WD, 1792 * 1024), pf_op(S_WO, 512 * 1024)]
    for _ in range(OPT.get('k1pre', 5)):
        FILL.pop(0)()
    if OPT.get('prio', 0):
        I('s_setprio', 0)
    I('s_mul_i32', 's10', 's63', 16 * 3072)
    I('v_add_u32', 'v3', 's10', 'v2')
    I('v_lshrrev_b32', 'v5', 5, 'v1')
    I('v_lshlrev_b32', 'v5', 5, 'v5')
    I('s_lshl_b32', 's10', 's63', 10)
    I('s_add_u32', 's10', 's10', L_G)
    I('v_add_u32', 'v5', 's10', 'v5')
    I('v_add_u32', 'v6', L_G, 'v4')
    k.waitcnt(vm=len(LOG) - 4)
    for e in range(2):
        I('v_add_f32', v(ACC + e), v(ACC + e), v(ACC + 2 + e))
        I('v_add_f32', v(ACC + 4 + e), v(ACC + 4 + e), v(ACC + 6 + e))
    for e in range(2):
        I('v_add_f32', v(ACC + e), v(ACC + e), v(ACC + 4 + e))
    I('v_cvt_pk_bf16_f32', v(ACC + 2), v(ACC), v(ACC + 1))
    I('v_lshlrev_b32', v(ACC), 16, v(ACC + 2))
    I('v_and_b32', v(ACC + 1), 0xffff0000, v(ACC + 2))
    I('s_cmp_eq_u32', 's63', 0)
    I('s_cbranch_scc1', 'L_k1_issa')
    for e in range(2):
        I('v_add_f32', v(ACC + e), 1.0, v(ACC + e))
    I('v_cvt_pk_bf16_f32', v(ACC + 2), v(ACC), v(ACC + 1))
    I('v_lshlrev_b32', v(ACC), 16, v(ACC + 2))
    I('v_and_b32', v(ACC + 1), 0xffff0000, v(ACC + 2))
    k.label('L_k1_issa')
    I('ds_write_b64', 'v6', v(ACC, 2))
    for _ in range(OPT.get('k1pre2', 5)):
        FILL.pop(0)()
    k.waitcnt(lgkm=0)

    def rdw(i):
        st = WF + 12 * (i & 1)
        for f in range(3):
            I('ds_read_b128', v(st + 4 * f, 4), 'v3', mods=f'offset:{i * 3072 + f * 1024}')

    def rdg(i):
        g = GS + 16 * (i & 1)
        for q in range(2):
            I('ds_read_b128', v(g + 4 * q, 4), 'v5', mods=f'offset:{i * 64 + 16 * q}')
        for q in range(2):
            I('ds_read_b128', v(g + 8 + 4 * q, 4), 'v5', mods=f'offset:{2048 + i * 64 + 16 * q}')

    def mod_ops(i):
        g = GS + 16 * (i & 1)
        tk = TOK + 4 * i
        L = []
        A_ = lambda *a_, **kw: L.append(lambda: I(*a_, **kw))
        for j in range(4):
            A_('v_lshlrev_b32', v(TM + 2 * j), 16, v(tk + j))
            A_('v_and_b32', v(TM + 2 * j + 1), 0xffff0000, v(tk + j))
        if OPT.get('k1pk', 0):
            for j in range(4):
                A_('v_pk_fma_f32', v(TM + 2 * j, 2), v(TM + 2 * j, 2), v(g + 8 + 2 * j, 2), v(g + 2 * j, 2))
        else:
            for j in range(8):
                A_('v_fma_f32', v(TM + j), v(TM + j), v(g + 8 + j), v(g + j))
        for j in range(4):
            A_('v_cvt_pk_bf16_f32', v(tk + j), v(TM + 2 * j), v(TM + 2 * j + 1))
        return L

    def need(tags):
        for tg in tags:
            while tg not in LOG or (tg[0] == 'w' and LOG.count(tg) < 3):
                FILL.pop(0)()
        last = max(i for i, e in enumerate(LOG) if e in tags)
        k.waitcnt(vm=len(LOG) - 1 - last)
    need([('w', 0), ('t', 0)])
    k.barrier()
    tick(k)
    rdw(0)
    rdg(0)
    rdg(1)
    k.waitcnt(lgkm=4)
    for f in mod_ops(0):
        f()
    NSTEP = 16
    for i in range(NSTEP):
        nxt = i + 1
        VQ = []
        if nxt < NSTEP:
            if nxt % 4 == 0:
                need([('w', nxt // 4), ('t', nxt)])
                k.barrier()
                tick(k)
            else:
                need([('t', nxt)])
            rdw(nxt)
            if i + 2 < NSTEP:
                rdg(i + 2)
                k.waitcnt(lgkm=7)
            else:
                k.waitcnt(lgkm=3)
            VQ = mod_ops(nxt)
        else:
            k.waitcnt(lgkm=0)
        st = WF + 12 * (i & 1)
        tok = v(TOK + 4 * i, 4)
        n3 = (len(VQ) + 2) // 3
        for f in range(3):
            c = 0 if i == 0 else v(ACC + 16 * f, 16)
            if f < 2:
                I('v_mfma_f32_32x32x16_bf16', v(ACC + 16 * f, 16), v(st + 4 * f, 4), tok, c)
            else:
                I('v_mfma_f32_32x32x16_bf16', v(ACC + 16 * f, 16), tok, v(st + 4 * f, 4), c)
            for _ in range(OPT.get('k1rate', 1) if f < 2 else OPT.get('k1rate', 1) - 1):
                if FILL:
                    FILL.pop(0)()
            for _ in range(n3):
                if VQ:
                    VQ.pop(0)()
    assert not FILL
    tick(k)
    I('s_mul_i32', 's10', 's3', 6144)
    I('s_add_u32', 's10', 's10', L_E)
    I('v_add_u32', 'v6', 's10', 'v2')
    I('s_xor_b32', 's11', 's3', 4)
    I('s_mul_i32', 's11', 's11', 6144)
    I('s_add_u32', 's11', 's11', L_E)
    I('v_add_u32', 'v7', 's11', 'v2')
    I('s_lshl_b32', 's11', 's5', 17)
    I('s_lshl_b32', 's12', 's6', 10)
    I('s_add_u32', 's11', 's11', 's12')
    I('s_mul_i32', 's12', 's63', KB - QB)
    I('s_add_u32', 's12', 's12', 's11')
    I('s_add_u32', 's12', 's12', QB)
    I('s_add_u32', 's13', 's12', 65536)
    I('s_lshl_b32', 's14', 's63', 9)
    I('s_add_u32', 's14', 's14', 's11')
    I('s_add_u32', 's14', 's14', VB)
    I('v_bfe_u32', 'v4', 'v1', 4, 1)
    I('v_lshlrev_b32', 'v4', 16, 'v4')
    I('v_lshrrev_b32', 'v5', 5, 'v1')
    I('v_lshl_add_u32', 'v4', 'v5', 8, 'v4')
    I('v_and_b32', 'v5', 15, 'v1')
    I('v_lshl_add_u32', 'v4', 'v5', 4, 'v4')
    k.flush()
    KEEP = TOK
    I('s_cmp_eq_u32', 's63', 0)
    I('s_cbranch_scc0', 'L_k1_x1')
    for kh in range(2):
        keep = [ACC + 16 * kh + r for r in range(16)] + [ACC + 32 + 8 * kh + r for r in range(8)]
        send = [ACC + 16 * (1 - kh) + 4 * j for j in range(4)] + [ACC + 32 + 8 * (1 - kh) + 4 * j for j in range(2)]
        for j, r in enumerate(send):
            I('ds_write_b128', 'v6', v(r, 4), mods=f'offset:{j * 1024}')
        if kh == 0:
            I('s_mov_b32', 's15', f32bits(QSCALE))
        else:
            I('s_mov_b32', 's15', f32bits(1.0))
        for j, r in enumerate(keep):
            I('v_mov_b32', v(KEEP + j), v(r))
        if kh == 0:
            I('s_branch', 'L_k1_x2')
            k.label('L_k1_x1')
    k.label('L_k1_x2')
    k.waitcnt(lgkm=0)
    k.barrier()
    for j in range(6):
        I('ds_read_b128', v(ACC + 4 * j, 4), 'v7', mods=f'offset:{j * 1024}')
    P = WF
    dst = [('v2', 's12'), ('v2', 's13'), ('v4', 's14')]
    for g in range(3):
        k.waitcnt(lgkm=4 - 2 * g)
        for r in range(8):
            I('v_add_f32', v(KEEP + 8 * g + r), v(KEEP + 8 * g + r), v(ACC + 8 * g + r))
        if g < 2:
            for r in range(8):
                I('v_mul_f32', v(KEEP + 8 * g + r), 's15', v(KEEP + 8 * g + r))
        pack8(k, P + 4 * g, KEEP + 8 * g)
        I('buffer_store_dwordx4', v(P + 4 * g, 4), dst[g][0], s(R_WS, 4), dst[g][1], mods=f'offen {ST_POL}')
    for g in range(2):
        I('v_dot2_f32_bf16', v(8 + g), v(P + 4 * g), v(P + 4 * g), 0)
        I('v_dot2_f32_bf16', v(10 + g), v(P + 4 * g + 1), v(P + 4 * g + 1), 0)
    for g in range(2):
        I('v_dot2_f32_bf16', v(8 + g), v(P + 4 * g + 2), v(P + 4 * g + 2), v(8 + g))
        I('v_dot2_f32_bf16', v(10 + g), v(P + 4 * g + 3), v(P + 4 * g + 3), v(10 + g))
    for g in range(2):
        I('v_add_f32', v(8 + g), v(8 + g), v(10 + g))
    I('v_permlane32_swap_b32', 'v8', 'v9')
    I('v_add_f32', 'v8', 'v8', 'v9')
    I('v_mov_b32', 'v9', 'v8')
    for sh in ('row_shr:1', 'row_shr:2', 'row_shr:4', 'row_shr:8'):
        I('v_max_f32', 'v9', 'v9', 'v9', mods=f'{sh} row_mask:0xf bank_mask:0xf')
    I('v_max_f32', 'v9', 'v9', 'v9', mods='row_bcast:15 row_mask:0xa bank_mask:0xf')
    I('s_lshl_b32', 's10', 's63', 18)
    I('s_lshl_b32', 's11', 's5', 14)
    I('s_add_u32', 's10', 's10', 's11')
    I('s_lshl_b32', 's11', 's6', 7)
    I('s_add_u32', 's10', 's10', 's11')
    I('s_add_u32', 's10', 's10', NRM)
    I('v_lshrrev_b32', 'v10', 5, 'v1')
    I('v_lshlrev_b32', 'v11', 13, 'v10')
    I('v_and_b32', 'v12', 31, 'v1')
    I('v_lshl_add_u32', 'v11', 'v12', 2, 'v11')
    I('buffer_store_dword', 'v8', 'v11', s(R_WS, 4), 's10', mods='offen')
    I('s_lshl_b32', 's10', 's63', 13)
    I('s_lshl_b32', 's11', 's5', 9)
    I('s_add_u32', 's10', 's10', 's11')
    I('s_lshl_b32', 's11', 's6', 2)
    I('s_add_u32', 's10', 's10', 's11')
    I('s_add_u32', 's10', 's10', TMX)
    I('v_lshlrev_b32', 'v11', 8, 'v10')
    I('s_mov_b32', 'exec_lo', 0x80000000)
    I('s_mov_b32', 'exec_hi', 0x80000000)
    I('buffer_store_dword', 'v9', 'v11', s(R_WS, 4), 's10', mods='offen')
    I('s_mov_b64', 'exec', -1)
    I('s_cmp_ge_u32', 's2', 4)
    I('s_cbranch_scc1', 'L_k1_nomod')
    I('v_lshlrev_b32', 'v3', 2, 'v0')
    I('v_add_f32', 'v16', v(SJ), v(SJ + 1))
    I('v_add_f32', 'v18', v(SJ + 2), v(SJ + 3))
    I('v_add_f32', 'v16', 'v16', 'v18')
    I('v_cvt_pk_bf16_f32', 'v17', 'v16', 'v16')
    I('v_and_b32', 'v18', 0xffff0000, 'v17')
    I('v_add_f32', 'v19', 1.0, 'v18')
    I('v_cvt_pk_bf16_f32', 'v19', 'v19', 'v19')
    I('v_and_b32', 'v19', 0xffff0000, 'v19')
    I('s_cmp_eq_u32', 's2', 1)
    I('s_cbranch_scc1', 'L_k1_sb')
    I('s_mov_b32', 's13', MF_GB)
    I('s_cmp_eq_u32', 's2', 2)
    I('s_cselect_b64', 'vcc', -1, 0)
    I('v_cndmask_b32', 'v18', 'v18', 'v19', 'vcc')
    I('s_cselect_b32', 's13', MF_G2, 's13')
    I('s_cmp_eq_u32', 's2', 0)
    I('s_cselect_b32', 's13', MF_GA, 's13')
    I('s_add_u32', 's13', 's13', MODF)
    I('buffer_store_dword', 'v18', 'v3', s(R_WS, 4), 's13', mods='offen')
    I('s_branch', 'L_k1_nomod')
    k.label('L_k1_sb')
    I('s_mov_b32', 's13', MODF + MF_SB)
    I('v_lshlrev_b32', 'v3', 1, 'v0')
    I('buffer_store_short', 'v17', 'v3', s(R_WS, 4), 's13', mods='offen')
    k.label('L_k1_nomod')
    epilogue(k, 1, vtmp=4)
    return k, 256, 512, LDS


BIG = 1e30


def gen_k2():
    k = Kernel('k2_attn_kernel')
    I = k.I
    L_K, L_V, L_SIDE = 0, 16384, 32768
    LDS = L_SIDE + 32768
    Q, KF, VF, SB_, PB, OA, NM, MK = 16, 20, 56, 128, 176, 192, 208, 224
    MX = 244
    G2R, SBR = 80, 88
    Vb = lambda t: VF + 8 * (t % 3)
    prologue(k, 256)
    xcd_map(k, 1, 5, 4)
    I('s_lshl_b32', 's6', 's5', 3)
    I('s_add_u32', 's6', 's6', 's3')
    I('v_lshlrev_b32', 'v2', 4, 'v1')
    I('s_lshl_b32', 's9', 's4', 16)
    I('s_lshl_b32', 's10', 's6', 10)
    I('s_add_u32', 's10', 's10', 's9')
    I('s_add_u32', 's10', 's10', QB)
    I('s_lshl_b32', 's8', 's3', 11)
    I('v_lshrrev_b32', 'v3', 5, 'v1')
    I('v_bfe_u32', 'v4', 'v1', 4, 1)
    I('v_bfe_u32', 'v5', 'v1', 2, 2)
    I('v_and_b32', 'v6', 1, 'v1')
    I('v_bfe_u32', 'v7', 'v1', 1, 1)
    I('v_lshl_add_u32', 'v6', 'v6', 1, 'v7')
    I('v_lshlrev_b32', 'v13', 8, 'v3')
    I('v_and_b32', 'v14', 15, 'v1')
    I('v_lshl_add_u32', 'v13', 'v14', 4, 'v13')
    I('v_and_b32', 'v12', 31, 'v1')
    I('v_lshlrev_b32', 'v12', 2, 'v12')
    I('v_lshlrev_b32', 'v14', 5, 'v3')
    I('v_lshlrev_b32', 'v15', 4, 'v3')
    I('s_and_b32', 's12', 's3', 3)
    I('s_mul_i32', 's13', 's2', 3)
    I('s_add_u32', 's13', 's13', 's12')
    I('s_lshr_b32', 's15', 's2', 1)
    I('s_add_u32', 's15', 's15', 768)
    I('s_cmp_eq_u32', 's3', 3)
    I('s_cselect_b32', 's57', 's15', 's13')
    I('s_and_b32', 's15', 's2', 1)
    I('s_lshr_b32', 's13', 's3', 2)
    I('s_cmp_eq_u32', 's3', 3)
    I('s_cselect_b32', 's64', 's15', 's13')
    I('s_cmp_eq_u32', 's3', 7)
    I('s_cselect_b32', 's57', 's2', 's57')
    I('s_mul_i32', 's66', 's57', 2341)
    I('s_lshr_b32', 's66', 's66', 16)
    I('s_min_u32', 's66', 's66', 31)
    I('s_mul_i32', 's65', 's66', 28)
    I('s_sub_u32', 's65', 's57', 's65')
    I('s_lshl_b32', 's67', 's66', 6)
    I('s_add_u32', 's67', 's67', MODF + MF_G2)
    I('s_lshl_b32', 's68', 's66', 5)
    I('s_add_u32', 's68', 's68', MODF + MF_SB)
    I('s_lshl_b32', 's11', 's4', 13)
    I('s_lshl_b32', 's12', 's6', 7)
    I('s_add_u32', 's11', 's11', 's12')
    I('s_add_u32', 's11', 's11', NRM)
    I('s_lshl_b32', 's12', 's4', 8)
    I('s_lshl_b32', 's13', 's6', 2)
    I('s_add_u32', 's12', 's12', 's13')
    I('s_add_u32', 's12', 's12', TMX + 8192 - 32)
    I('s_sub_i32', 's14', 8, 's6')
    I('s_max_i32', 's14', 's14', 0)
    I('s_mov_b32', 's58', 0xffff)
    I('s_mov_b32', 's59', 0xffff)
    k.waitcnt(lgkm=0)
    tick(k)
    srd(k, R_WS, S_WS, WS_SIZE)
    I('s_buffer_load_dwordx8', s(48, 8), s(R_WS, 4), 's12')
    I('s_add_u32', 's12', 's12', 32)
    I('s_buffer_load_dword', 's56', s(R_WS, 4), 's12')
    Sb = lambda t: SB_ + 16 * (t % 3)

    def qk(t, C):
        I('v_mfma_f32_32x32x16_bf16', v(Sb(t), 16), v(KF + 4 * t, 4), v(Q, 4), C)

    def consts():
        I('v_and_b32', 'v10', 31, 'v1')
        I('v_lshlrev_b32', 'v11', 2, 'v3')
        I('v_sub_u32', 'v10', 'v10', 'v11')
        I('v_mov_b32', 'v11', f32bits(-BIG))
        for r in range(0, 16, 2):
            for q in range(2):
                kk = ((r + q) & 3) + 8 * ((r + q) >> 2)
                I('v_cmp_le_i32', s(60 + 2 * q, 2), kk, 'v10')
            for q in range(2):
                I('v_cndmask_b32', v(MK + r + q), 'v11', 0, s(60 + 2 * q, 2))

    def rdv(t):
        I('s_mov_b64', 'exec', s(58, 2))
        for j in range(2):
            I('ds_read_b128', v(Vb(t) + 4 * j, 4), 'v247', mods=f'offset:{L_V + t * 1024 + j * 512}')
        I('s_mov_b64', 'exec', -1)

    def lds_reads():
        for t in range(8, -1, -1):
            I('ds_read_b128', v(KF + 4 * t, 4), 'v246', mods=f'offset:{L_K + t * 1024}')

    def attn(tag, exact):
        rdv(8)
        rdv(7)
        if exact:
            qk(8, v(MK, 16))
            qk(7, 0)
            for t in range(8, -1, -1):
                if t - 2 > 0:
                    qk(t - 2, 0)
                elif t - 2 == 0:
                    for r in range(16):
                        I('v_sub_f32', v(Sb(0) + r), 'v11', v(MK + r))
                    qk(0, v(Sb(0), 16))
                b = Sb(t)
                if t == 8:
                    I('v_max3_f32', v(MX), v(b), v(b + 1), v(b + 2))
                    I('v_max3_f32', v(MX + 1), v(b + 3), v(b + 4), v(b + 5))
                    rest = list(range(6, 16))
                else:
                    rest = list(range(16))
                for i in range(0, len(rest), 2):
                    m = MX + ((i // 2) & 1)
                    I('v_max3_f32', v(m), v(m), v(b + rest[i]), v(b + rest[i + 1]))
                if t > 0:
                    I('s_cmp_eq_u32', 's14', t)
                    I('s_cbranch_scc1', f'L_k2_p1{tag}')
            k.label(f'L_k2_p1{tag}')
            k.nop(12)
            I('v_max_f32', v(MX), v(MX), v(MX + 1))
            I('v_mov_b32', v(MX + 1), v(MX))
            I('v_permlane32_swap_b32', v(MX), v(MX + 1))
            I('v_max_f32', v(MX), v(MX), v(MX + 1))
            for r in range(16):
                I('v_sub_f32', v(NM + r), 0, v(MX))
            for r in range(16):
                I('v_add_f32', v(Sb(8) + r), v(MK + r), v(NM))
        else:
            k.waitcnt(lgkm=11)
        qk(8, v(Sb(8), 16))
        qk(7, v(NM, 16))
        if not exact:
            k.waitcnt(lgkm=4)
        qk(6, v(NM, 16))
        for t in range(8, -1, -1):
            b = Sb(t)
            P = PB + 8 * (t & 1)
            E = lambda r: I('v_exp_f32', v(b + r), v(b + r))
            C = lambda j: I('v_cvt_pk_bf16_f32', v(P + j), v(b + 2 * j), v(b + 2 * j + 1))
            if t - 2 >= 0:
                rdv(t - 2)
            for r in range(9):
                E(r)
            for j in range(4):
                C(j)
                E(9 + j)
            E(13)
            k.waitcnt(lgkm=4 if t - 2 >= 0 else (2 if t == 1 else 0))
            I('v_mfma_f32_32x32x16_bf16', v(OA, 16), v(Vb(t), 4), v(P, 4), 0 if t == 8 else v(OA, 16))
            E(14)
            E(15)
            for j in range(4, 8):
                C(j)
            if t - 3 > 0:
                qk(t - 3, v(NM, 16))
            elif t - 3 == 0:
                for r in range(16):
                    I('v_sub_f32', v(Sb(0) + r), 'v11', v(MK + r))
                for r in range(16):
                    I('v_add_f32', v(Sb(0) + r), v(Sb(0) + r), v(NM))
                qk(0, v(Sb(0), 16))
            if t > 0:
                I('s_cmp_eq_u32', 's14', t)
            I('v_mfma_f32_32x32x16_bf16', v(OA, 16), v(Vb(t) + 4, 4), v(P + 4, 4), v(OA, 16))
            if t > 0:
                I('s_cbranch_scc1', f'L_k2_p2{tag}')
        k.label(f'L_k2_p2{tag}')
        k.nop(12)
        k.waitcnt(lgkm=0)

    def side_loads():
        I('v_lshrrev_b32', 'v8', 3, 'v1')
        I('v_and_b32', 'v9', 7, 'v1')
        I('v_lshlrev_b32', 'v9', 4, 'v9')
        I('v_lshl_add_u32', 'v248', 'v8', 10, 'v9')
        I('v_mul_u32_u24', 'v8', 3584, 'v8')
        I('v_add_u32', 'v8', 'v8', 'v9')
        I('s_lshl_b32', 's69', 's3', 12)
        I('s_add_u32', 's69', 's69', L_SIDE)
        I('s_cmp_eq_u32', 's64', 0)
        I('s_cbranch_scc0', 'L_k2_sl1')
        I('s_mul_i32', 's15', 's66', 16 * 3584)
        I('s_lshl_b32', 's60', 's65', 7)
        I('s_add_u32', 's15', 's15', 's60')
        I('s_add_u32', 's60', 's15', 8 * 3584)
        for m_, ptr in enumerate((S_WG, S_WU)):
            srd(k, 44, ptr, 512 * 3584)
            I('s_add_u32', 'm0', 's69', m_ * 2048)
            I('buffer_load_dwordx4', 'v8', s(44, 4), 's15', mods='offen lds')
            I('s_add_u32', 'm0', 's69', m_ * 2048 + 1024)
            I('buffer_load_dwordx4', 'v8', s(44, 4), 's60', mods='offen lds')
        I('s_branch', 'L_k2_sl2')
        k.label('L_k2_sl1')
        I('s_cmp_eq_u32', 's3', 7)
        I('s_cselect_b32', 's44', s(S_WO), s(S_WD))
        I('s_cselect_b32', 's45', s(S_WO + 1), s(S_WD + 1))
        I('s_mov_b32', 's13', 1792 * 1024)
        I('s_cselect_b32', 's46', 512 * 1024, 's13')
        I('s_mov_b32', 's47', 0x20000)
        I('s_lshr_b32', 's12', 's57', 3)
        I('s_lshl_b32', 's12', 's12', 14)
        I('s_and_b32', 's13', 's57', 7)
        I('s_lshl_b32', 's13', 's13', 7)
        I('s_add_u32', 's12', 's12', 's13')
        I('s_mov_b32', 'm0', 's69')
        I('buffer_load_dwordx4', 'v248', s(44, 4), 's12', mods='offen lds')
        I('s_add_u32', 'm0', 's69', 1024)
        I('s_add_u32', 's12', 's12', 8192)
        I('buffer_load_dwordx4', 'v248', s(44, 4), 's12', mods='offen lds')
        k.label('L_k2_sl2')

    I('s_lshl_b32', 's7', 's5', 3)
    I('s_lshl_b32', 's13', 's3', 1)
    I('s_add_i32', 's7', 's7', 's13')
    I('s_add_i32', 's7', 's7', -8)
    I('s_max_i32', 's7', 's7', 0)
    I('s_lshl_b32', 's7', 's7', 10)
    I('s_add_u32', 's7', 's7', 's9')
    I('s_add_u32', 'm0', 's8', L_K)
    I('s_add_u32', 's13', 's7', KB)
    I('buffer_load_dwordx4', 'v2', s(R_WS, 4), 's13', mods='offen lds')
    I('buffer_load_dwordx4', 'v2', s(R_WS, 4), 's13', mods='offen offset:1024 lds')
    I('buffer_load_dwordx4', v(Q, 4), 'v2', s(R_WS, 4), 's10', mods='offen')
    I('buffer_load_dword', v(MX), 'v12', s(R_WS, 4), 's11', mods='offen')
    I('s_add_u32', 'm0', 's8', L_V)
    I('s_add_u32', 's13', 's7', VB)
    I('buffer_load_dwordx4', 'v2', s(R_WS, 4), 's13', mods='offen lds')
    I('buffer_load_dwordx4', 'v2', s(R_WS, 4), 's13', mods='offen offset:1024 lds')
    I('buffer_load_dwordx4', v(G2R, 4), 'v14', s(R_WS, 4), 's67', mods='offen')
    I('buffer_load_dwordx4', v(G2R + 4, 4), 'v14', s(R_WS, 4), 's67', mods='offen offset:16')
    I('buffer_load_dwordx4', v(SBR, 4), 'v15', s(R_WS, 4), 's68', mods='offen')
    if OPT.get('prio', 0):
        I('s_setprio', 0)
    consts()
    for r in range(24):
        I('v_mov_b32', v(VF + r), 0x3f803f80)
    I('s_lshl_b32', 's13', 's3', 10)
    I('v_add_u32', 'v246', 's13', 'v2')
    I('v_add_u32', 'v247', 's13', 'v13')
    k.waitcnt(lgkm=0)
    for i in range(1, 9):
        I('s_max_u32', 's48', 's48', s(48 + i))
    k.waitcnt(vm=5)
    I('v_mul_f32', v(MX), 's48', v(MX))
    I('v_sqrt_f32', v(MX), v(MX))
    for r in range(16):
        I('v_sub_f32', v(NM + r), 0, v(MX))
    for r in range(16):
        I('v_add_f32', v(Sb(8) + r), v(MK + r), v(NM))
    k.waitcnt(vm=3)
    tick(k)
    k.barrier()
    tick(k)
    lds_reads()
    code_prefetch(k, 8, 249, 44, 8)
    side_loads()
    attn('a', exact=False)
    tick(k)
    I('v_mov_b32', v(MX), f32bits(2.0 ** -80))
    I('v_cmp_nge_f32', 'vcc', v(OA + 8), v(MX))
    if OPT.get('k2force'):
        I('s_mov_b64', 'vcc', -1)
    I('s_cbranch_vccz', 'L_k2_fin')
    attn('x', exact=True)
    k.label('L_k2_fin')
    I('v_rcp_f32', v(MX), v(OA + 8))
    for r in range(8):
        I('v_mul_f32', v(OA + r), v(OA + r), v(MX))
    pack8(k, PB, OA)
    I('s_lshl_b32', 's12', 's6', 15)
    I('s_lshl_b32', 's13', 's4', 10)
    I('s_add_u32', 's12', 's12', 's13')
    I('s_add_u32', 's12', 's12', OB)
    I('buffer_store_dwordx4', v(PB, 4), 'v2', s(R_WS, 4), 's12', mods=f'offen {ST_POL}')
    k.waitcnt(vm=1)
    tick(k)
    I('s_cmp_eq_u32', 's64', 0)
    I('s_cbranch_scc1', 'L_k2_gu')
    I('s_mov_b32', 's60', 1024)
    I('s_mov_b32', 's61', 512)
    I('s_cmp_eq_u32', 's3', 7)
    I('s_cselect_b32', 's12', 512, 's60')
    I('s_cselect_b32', 's13', 1024, 's61')
    I('v_mul_lo_u32', 'v8', 'v3', 's12')
    I('v_lshl_add_u32', 'v8', 'v5', 7, 'v8')
    I('v_lshl_add_u32', 'v8', 'v4', 5, 'v8')
    I('v_lshl_add_u32', 'v8', 'v6', 3, 'v8')
    I('v_add_u32', 'v8', 's69', 'v8')
    I('v_add_u32', 'v9', 's13', 'v8')
    RU = KF
    for u in range(2):
        I('ds_read_b64_tr_b16', v(RU + 4 * u, 2), 'v8', mods=f'offset:{u * 64}')
        I('ds_read_b64_tr_b16', v(RU + 4 * u + 2, 2), 'v9', mods=f'offset:{u * 64}')
    I('s_mov_b32', 's60', 114688)
    I('s_cselect_b32', 's60', 32768, 's60')
    I('s_mov_b32', 's61', WD)
    I('s_cselect_b32', 's61', WO, 's61')
    I('s_and_b32', 's12', 's57', 7)
    I('s_lshl_b32', 's12', 's12', 1)
    I('s_mul_i32', 's12', 's12', 's60')
    I('s_add_u32', 's61', 's61', 's12')
    I('s_lshr_b32', 's12', 's57', 3)
    I('s_lshl_b32', 's12', 's12', 10)
    I('s_add_u32', 's61', 's61', 's12')
    I('s_add_u32', 's62', 's61', 's60')
    k.waitcnt(lgkm=0)
    I('buffer_store_dwordx4', v(RU, 4), 'v2', s(R_WS, 4), 's61', mods=f'offen {ST_POL}')
    I('buffer_store_dwordx4', v(RU + 4, 4), 'v2', s(R_WS, 4), 's62', mods=f'offen {ST_POL}')
    I('s_branch', 'L_k2_sw1')
    k.label('L_k2_gu')
    I('v_lshlrev_b32', 'v10', 11, 'v4')
    I('v_lshl_add_u32', 'v11', 'v3', 3, 'v5')
    I('v_lshl_add_u32', 'v10', 'v11', 7, 'v10')
    I('v_lshl_add_u32', 'v10', 'v6', 3, 'v10')
    I('v_add_u32', 'v10', 's69', 'v10')
    RW = KF
    for u in range(4):
        I('ds_read_b64_tr_b16', v(RW + 4 * u, 2), 'v10', mods=f'offset:{u * 32}')
        I('ds_read_b64_tr_b16', v(RW + 4 * u + 2, 2), 'v10', mods=f'offset:{u * 32 + 512}')
    I('s_lshl_b32', 's60', 's65', 2)
    I('s_mul_i32', 's15', 's66', 7168)
    I('s_add_u32', 's15', 's15', W4)
    for u in range(4):
        I('s_add_u32', 's12', 's60', u)
        I('s_mul_i32', 's13', 's12', 147)
        I('s_lshr_b32', 's13', 's13', 10)
        I('s_mul_i32', 's61', 's13', 7)
        I('s_sub_u32', 's12', 's12', 's61')
        I('s_mul_i32', 's13', 's13', W4_NB)
        I('s_lshl_b32', 's12', 's12', 10)
        I('s_add_u32', 's12', 's12', 's13')
        I('s_add_u32', s(48 + u), 's12', 's15')
    for j in range(4):
        I('v_mov_b32', v(240 + j), 0x3f803f80)
    I('s_mul_i32', 's62', 's66', 28672)
    I('s_lshl_b32', 's63', 's60', 7)
    I('s_add_u32', 's62', 's62', 's63')
    I('s_add_u32', 's62', 's62', CSP)
    I('v_mul_u32_u24', 'v8', 14336, 'v3')
    I('v_add_u32', 'v8', 'v8', 'v12')
    I('v_cmp_eq_u32', 'vcc', 0, 'v3')
    BS = [96, 112, SB_, SB_ + 16]
    CS = [SB_ + 32, PB, OA, NM]
    T = MK
    for u in range(4):
        k.waitcnt(lgkm=6 - 2 * u)
        I('v_mfma_f32_32x32x16_bf16', v(BS[u], 16), v(SBR, 4), v(RW + 4 * u, 4), 0)
        unpack8(k, T + 8 * (u & 1), RW + 4 * u)
        for j in range(8):
            I('v_mul_f32', v(T + 8 * (u & 1) + j), v(T + 8 * (u & 1) + j), v(G2R + j))
        pack8(k, RW + 16 + 4 * u, T + 8 * (u & 1))
        I('buffer_store_dwordx4', v(RW + 16 + 4 * u, 4), 'v2', s(R_WS, 4), s(48 + u), mods=f'offen {ST_POL}')
        I('v_mfma_f32_32x32x16_bf16', v(CS[u], 16), v(240, 4), v(RW + 16 + 4 * u, 4), 0)
    for u in range(4):
        I('v_cndmask_b32', v(244 + u), v(BS[u]), v(CS[u]), 'vcc')
        I('buffer_store_dword', v(244 + u), 'v8', s(R_WS, 4), 's62', mods=f'offen offset:{128 * u}')
    k.label('L_k2_sw1')
    epilogue(k, 2, vtmp=4)
    return k, 256, 512, LDS


def gen_gemm64(name, idx, NS, A_BASE, A_TB, B_BASE, B_NF, is_k3):
    k = Kernel(name)
    I = k.I
    LDS = 4 * 3 * 4096 + 1024
    prologue(k, 256, need_lo=is_k3)
    xcd_map(k, 3, 4, 5, OPT.get('x3' if is_k3 else 'x5', 2))
    I('v_lshlrev_b32', 'v2', 4, 'v1')
    I('v_lshrrev_b32', 'v3', 5, 'v1')
    I('v_and_b32', 'v4', 31, 'v1')
    NT = 4 * NS
    ROT = OPT.get('rot64', 0)
    I('s_lshr_b32', 's6', 's2', 3)
    I('s_mul_i32', 's6', 's6', NT * ROT)
    I('s_lshr_b32', 's6', 's6', 5)
    I('s_mul_i32', 's61', 's3', NS)
    I('s_add_u32', 's6', 's6', 's61')
    I('s_cmp_ge_u32', 's6', NT)
    I('s_cselect_b32', 's61', NT, 0)
    I('s_sub_u32', 's6', 's6', 's61')
    I('s_lshl_b32', 's6', 's6', 10)
    I('s_and_b32', 's11', 's3', 1)
    I('s_lshr_b32', 's12', 's3', 1)
    I('s_lshl_b32', 's13', 's4', 1)
    I('s_add_u32', 's13', 's13', 's12')
    I('s_lshl_b32', 's14', 's5', 1)
    I('s_add_u32', 's14', 's14', 's11')
    I('s_mul_i32', 's7', 's13', A_TB)
    I('s_add_u32', 's7', 's7', A_BASE)
    I('s_xor_b32', 's8', 's13', 1)
    I('s_mul_i32', 's8', 's8', A_TB)
    I('s_add_u32', 's8', 's8', A_BASE)
    I('s_mul_i32', 's9', 's14', B_NF)
    I('s_add_u32', 's9', 's9', B_BASE)
    I('s_xor_b32', 's10', 's14', 1)
    I('s_mul_i32', 's10', 's10', B_NF)
    I('s_add_u32', 's10', 's10', B_BASE)
    k.waitcnt(lgkm=0)
    tick(k)
    srd(k, R_WS, S_WS, WS_SIZE)
    ACC = 16
    GV = 80
    XR = 96
    RING = 104
    DEPTH = min(NS, OPT.get('gdepth', 8))
    LOG = []

    def ld(st):
        b = RING + 16 * (st % DEPTH)
        va = 'v11' if st & 1 else 'v12'
        I('v_add_u32', va, 's6', 'v2')
        I('s_add_u32', 's6', 's6', 1024)
        I('s_cmp_eq_u32', 's6', NT * 1024)
        I('s_cselect_b32', 's6', 0, 's6')
        for j, r in enumerate((9, 7, 10, 8)):
            I('buffer_load_dwordx4', v(b + 4 * j, 4), va, s(R_WS, 4), s(r), mods='offen')
            LOG.append(('k', st))

    def side_loads():
        I('s_lshl_b32', 's15', 's14', 7)
        I('s_add_u32', 's15', 's15', MODF + (MF_GA if is_k3 else MF_GB))
        I('v_lshlrev_b32', 'v5', 5, 'v3')
        for sp in range(2):
            for q in range(2):
                I('buffer_load_dwordx4', v(GV + 8 * sp + 4 * q, 4), 'v5', s(R_WS, 4), 's15', mods=f'offen offset:{64 * sp + 16 * q}')
                LOG.append(('s', 0))
        if is_k3:
            srd(k, 44, S_X, 2048 * 1024)
            I('s_lshl_b32', 's15', 's13', 15)
            I('s_lshl_b32', 's60', 's14', 6)
            I('s_add_u32', 's15', 's15', 's60')
            I('v_lshlrev_b32', 'v6', 10, 'v4')
            I('v_lshl_add_u32', 'v6', 'v3', 4, 'v6')
            for sp in range(2):
                I('buffer_load_dwordx4', v(XR + 4 * sp, 4), 'v6', s(44, 4), 's15', mods=f'offen offset:{32 * sp}')
                LOG.append(('s', 0))
        else:
            I('s_lshl_b32', 's15', 's13', 15)
            I('s_lshl_b32', 's60', 's14', 11)
            I('s_add_u32', 's15', 's15', 's60')
            I('s_add_u32', 's15', 's15', X1)
            for sp in range(2):
                I('buffer_load_dwordx4', v(XR + 4 * sp, 4), 'v2', s(R_WS, 4), 's15', mods=f'offen offset:{1024 * sp}')
                LOG.append(('s', 0))

    PRE = min(DEPTH, OPT.get('gpre', 4))
    CSL = [False]
    CPF = [0]
    nxt = 0
    for st in range(PRE):
        ld(st)
        nxt += 1
    side_done = False
    for st in range(NS):
        tgt = min(NS, st + DEPTH)
        n_issue = 0
        while nxt < tgt and n_issue < 2:
            ld(nxt)
            nxt += 1
            n_issue += 1
        if nxt == NS and not side_done:
            side_loads()
            if is_k3:
                I('v_mul_u32_u24', 'v8', 14336, 'v3')
                I('v_lshl_add_u32', 'v8', 'v4', 2, 'v8')
                I('s_min_u32', 's15', 's2', 111)
                I('s_lshl_b32', 's15', 's15', 7)
                I('s_mul_i32', 's60', 's3', 8 * 28672)
                I('s_add_u32', 's15', 's15', 's60')
                I('s_add_u32', 's15', 's15', CSP)
                for p in range(8):
                    I('s_add_u32', 's60', 's15', p * 28672)
                    I('buffer_load_dword', v(232 + p), 'v8', s(R_WS, 4), 's60', mods='offen')
                    LOG.append(('s', 0))
            if code_prefetch(k, 13, 14, 48, 4):
                LOG.append(('s', 0))
                CPF[0] = 1
            side_done = True
        last = max(i for i, e in enumerate(LOG) if e == ('k', st))
        if CSL[0]:
            I('s_cmp_lg_u32', 's3', 0)
            I('s_cbranch_scc1', f'L_{name}_w{st}')
            k.waitcnt(vm=min(63, len(LOG) - 1 - last + 32))
            I('s_branch', f'L_{name}_x{st}')
            k.label(f'L_{name}_w{st}', flush=False)
            k.waitcnt(vm=len(LOG) - 1 - last)
            k.label(f'L_{name}_x{st}', flush=False)
        else:
            k.waitcnt(vm=len(LOG) - 1 - last)
        b = RING + 16 * (st % DEPTH)
        B0, A0, B1, A1 = (v(b + 4 * j, 4) for j in range(4))
        for nfl, tbl in ((0, 1), (1, 0), (1, 1), (0, 0)):
            a_ = ACC + 16 * (2 * nfl + tbl)
            I('v_mfma_f32_32x32x16_bf16', v(a_, 16), (B0, B1)[nfl], (A0, A1)[tbl], 0 if st == 0 else v(a_, 16))
    tick(k)
    for a_ in (1, 2, 3):
        x_ = (a_ >> 1) | ((a_ & 1) << 1)
        I('s_xor_b32', 's15', 's3', x_)
        I('s_mul_i32', 's15', 's15', 12288)
        I('v_add_u32', v(7 + a_), 's15', 'v2')
    for a_ in (1, 2, 3):
        for j in range(4):
            I('ds_write_b128', v(7 + a_), v(ACC + 16 * a_ + 4 * j, 4), mods=f'offset:{(a_ - 1) * 4096 + j * 1024}')
    OWN = ACC
    I('s_mul_i32', 's15', 's3', 12288)
    I('v_add_u32', 'v7', 's15', 'v2')
    if is_k3:
        k.waitcnt(vm=CPF[0])
        for st_ in (4, 2, 1):
            for r in range(st_):
                I('v_add_f32', v(232 + r), v(232 + r), v(232 + r + st_))
        I('v_lshlrev_b32', 'v15', 2, 'v0')
        I('ds_write_b32', 'v15', 'v232', mods='offset:49152')
    k.waitcnt(lgkm=0)
    k.barrier()
    tick(k)
    for p in range(3):
        for j in range(4):
            I('ds_read_b128', v(ACC + 16 + 16 * p + 4 * j, 4), 'v7', mods=f'offset:{p * 4096 + j * 1024}')
    for p in range(3):
        k.waitcnt(lgkm=8 - 4 * p)
        for r in range(16):
            I('v_add_f32', v(OWN + r), v(OWN + r), v(ACC + 16 + 16 * p + r))
    k.waitcnt(vm=CPF[0])
    T = ACC + 32
    unpack8(k, T, XR)
    unpack8(k, T + 8, XR + 4)
    for r in range(16):
        I('v_fmac_f32', v(T + r), v(OWN + r), v(GV + r))
    P = ACC + 16
    pack8(k, P, T)
    pack8(k, P + 4, T + 8)
    if is_k3:
        I('s_lshl_b32', 's15', 's13', 15)
        I('s_lshl_b32', 's60', 's14', 11)
        I('s_add_u32', 's15', 's15', 's60')
        I('s_add_u32', 's15', 's15', X1)
        for sp in range(2):
            I('buffer_store_dwordx4', v(P + 4 * sp, 4), 'v2', s(R_WS, 4), 's15', mods=f'offen offset:{1024 * sp} {ST_POL}')
        unpack8(k, T, P)
        unpack8(k, T + 8, P + 4)
        I('v_add_f32', 'v8', v(T), v(T + 1))
        I('v_add_f32', 'v9', v(T + 2), v(T + 3))
        for r in range(4, 16, 2):
            I('v_add_f32', 'v8', 'v8', v(T + r))
            I('v_add_f32', 'v9', 'v9', v(T + r + 1))
        I('v_add_f32', 'v8', 'v8', 'v9')
        I('v_mov_b32', 'v9', 'v8')
        I('v_permlane32_swap_b32', 'v8', 'v9')
        I('v_add_f32', 'v8', 'v8', 'v9')
        I('v_mul_f32', 'v8', f32bits(1.0 / 32), 'v8')
        for r in range(16):
            I('v_sub_f32', v(T + r), v(T + r), 'v8')
        I('v_mul_f32', 'v9', v(T), v(T))
        I('v_mul_f32', 'v10', v(T + 1), v(T + 1))
        for r in range(2, 16, 2):
            I('v_fmac_f32', 'v9', v(T + r), v(T + r))
            I('v_fmac_f32', 'v10', v(T + r + 1), v(T + r + 1))
        I('v_add_f32', 'v9', 'v9', 'v10')
        I('v_mov_b32', 'v10', 'v9')
        I('v_permlane32_swap_b32', 'v9', 'v10')
        I('v_add_f32', 'v9', 'v9', 'v10')
        I('s_lshl_b32', 's15', 's13', 12)
        I('s_lshl_b32', 's60', 's5', 9)
        I('s_add_u32', 's15', 's15', 's60')
        I('s_lshl_b32', 's60', 's11', 3)
        I('s_add_u32', 's15', 's15', 's60')
        I('s_add_u32', 's15', 's15', ST2)
        I('v_lshlrev_b32', 'v10', 4, 'v4')
        I('s_mov_b32', 'exec_hi', 0)
        I('buffer_store_dwordx2', v(8, 2), 'v10', s(R_WS, 4), 's15', mods='offen')
        I('s_mov_b64', 'exec', -1)
        I('s_cmp_ge_u32', 's2', 112)
        I('s_cbranch_scc1', f'L_{name}_noside')
        I('s_cmp_lg_u32', 's3', 0)
        I('s_cbranch_scc1', f'L_{name}_noside')
        T = RING + 16
        I('v_lshlrev_b32', 'v15', 2, 'v1')
        for p in range(4):
            I('ds_read_b32', v(T + p), 'v15', mods=f'offset:{49152 + 256 * p}')
        k.waitcnt(lgkm=0)
        for st_ in (2, 1):
            for r in range(st_):
                I('v_add_f32', v(T + r), v(T + r), v(T + r + st_))
        I('v_cvt_pk_bf16_f32', v(P), v(T), v(T))
        I('v_and_b32', 'v9', 0xffff0000, v(P))
        I('v_sub_f32', 'v9', v(T), 'v9')
        I('v_cvt_pk_bf16_f32', v(P + 1), 'v9', 'v9')
        I('v_mov_b32', v(P + 2), 0)
        I('v_mov_b32', v(P + 3), 0)
        I('s_mul_i32', 's60', 's2', 147)
        I('s_lshr_b32', 's60', 's60', 10)
        I('s_mul_i32', 's61', 's60', 7)
        I('s_sub_u32', 's61', 's2', 's61')
        I('s_mul_i32', 's60', 's60', W4_NB)
        I('s_lshl_b32', 's61', 's61', 10)
        I('s_add_u32', 's60', 's60', 's61')
        I('s_add_u32', 's60', 's60', W4 + 32 * 7168)
        I('buffer_store_dwordx4', v(P, 4), 'v2', s(R_WS, 4), 's60', mods='offen')
        k.label(f'L_{name}_noside')
    else:
        srd(k, 44, S_OUT, 2048 * 1024)
        I('s_lshl_b32', 's15', 's13', 15)
        I('s_lshl_b32', 's60', 's14', 6)
        I('s_add_u32', 's15', 's15', 's60')
        I('v_lshlrev_b32', 'v6', 10, 'v4')
        I('v_lshl_add_u32', 'v6', 'v3', 4, 'v6')
        for sp in range(2):
            I('buffer_store_dwordx4', v(P + 4 * sp, 4), 'v6', s(44, 4), 's15',
              mods=f'offen offset:{32 * sp}' + (' sc1' if OPT.get('outsc1') else ''))
    epilogue(k, idx, vtmp=4)
    return k, 256, 256, LDS


def gen_k3():
    return gen_gemm64('k3_wo_kernel', 3, 8, OB, 32768, WO, 32768, True)


def gen_k5():
    return gen_gemm64('k5_down_kernel', 5, 28, ACT, 112 * 1024, WD, 112 * 1024, False)


def gen_k4():
    k = Kernel('k4_ffn1_kernel')
    I = k.I
    RES = {2: 131072, 3: 32768, 6: 0}
    LDS = 163840
    NR = 16
    D = OPT.get('k4d', 8)
    assert D <= 16 - OPT.get('k4bi', 2)
    prologue(k, 256, need_lo=False)
    xcd_map(k, 2, 4, 5, OPT.get('x4', 2))
    I('s_and_b32', 's61', 's3', 3)
    I('s_lshr_b32', 's63', 's3', 2)
    I('s_lshl_b32', 's6', 's4', 2)
    I('s_add_u32', 's6', 's6', 's61')
    I('v_lshlrev_b32', 'v2', 4, 'v1')
    I('v_lshrrev_b32', 'v3', 5, 'v1')
    I('v_and_b32', 'v4', 31, 'v1')
    I('s_mul_i32', 's7', 's5', W4_NB)
    I('s_add_u32', 's7', 's7', W4)
    I('s_lshl_b32', 's8', 's3', 10)
    I('s_lshl_b32', 's9', 's6', 15)
    I('s_add_u32', 's9', 's9', X1)
    I('s_and_b32', 's10', 's3', 1)
    I('s_and_b32', 's11', 's3', 2)
    I('s_lshl_b32', 's11', 's11', 1)
    I('s_add_u32', 's10', 's10', 's11')
    I('s_lshl_b32', 's10', 's10', 10)
    I('s_add_u32', 's10', 's10', 's7')
    I('s_mov_b32', 's11', 7168)
    I('s_cmp_eq_u32', 's63', 0)
    I('s_cselect_b32', 's9', 's9', 's10')
    I('s_cselect_b32', 's11', 1024, 's11')
    I('s_mul_i32', 's12', 's3', 7168)
    I('s_add_u32', 's12', 's12', 's7')
    I('s_lshl_b32', 's13', 's61', 10)
    I('v_add_u32', 'v5', 's13', 'v2')
    I('s_lshl_b32', 's13', 's63', 11)
    I('s_add_u32', 's13', 's13', 4096)
    I('v_add_u32', 'v6', 's13', 'v2')
    I('v_add_u32', 'v7', RES[2], 'v2')
    I('s_xor_b32', 's13', 's63', 1)
    I('s_lshl_b32', 's13', 's13', 15)
    I('v_add_u32', 'v15', 's13', 'v2')
    I('v_add_u32', 'v0', 65536, 'v5')
    I('v_add_u32', 'v1', 65536, 'v6')
    k.waitcnt(lgkm=0)
    tick(k)
    srd(k, R_WS, S_WS, WS_SIZE)
    ACC, WF, EXT, T, PK, EXB = 16, 80, 104, 108, 116, 124
    STT = ACC + 48
    EXA = T
    I('s_cmp_eq_u32', 's63', 0)
    I('s_cbranch_scc0', 'L_k4_g1')
    nt0 = getattr(k, 'nticks', 0)
    for grp in range(2):
        k.nticks = nt0
        FA = [0, 1, 2] if grp == 0 else [4, 5]
        FB = 3 if grp == 0 else 6
        NA = len(FA)
        LOG = []

        def ring(s_):
            if s_ >= 32:
                batch(6 if s_ < 36 else 3, (s_ - 32) % 4)
                return
            I('s_add_u32', 'm0', 's8', (s_ % NR) * 8192)
            I('buffer_load_dwordx4', 'v2', s(R_WS, 4), 's9', mods='offen lds')
            I('s_add_u32', 's9', 's9', 's11')
            LOG.append(('r', s_))

        def batch(fr, i):
            I('s_add_u32', 'm0', 's8', RES[fr] + i * 8192)
            I('s_add_u32', 's13', 's12', i * 8 * 7168 + fr * 1024)
            I('buffer_load_dwordx4', 'v2', s(R_WS, 4), 's13', mods='offen lds')
            LOG.append(('b', fr, i))

        def stat_loads():
            I('s_lshl_b32', 's13', 's6', 12)
            I('s_add_u32', 's13', 's13', ST2)
            I('v_lshlrev_b32', 'v8', 11, 'v3')
            I('v_lshl_add_u32', 'v8', 'v4', 4, 'v8')
            for q in range(4):
                I('buffer_load_dwordx4', v(STT + 4 * q, 4), 'v8', s(R_WS, 4), 's13', mods=f'offen offset:{q * 512}')
                LOG.append(('st',))

        def ext_loads():
            I('s_add_u32', 's13', 's7', 32 * 7168)
            for j, f in enumerate(FA):
                I('s_add_u32', 's14', 's13', f * 1024)
                I('buffer_load_dwordx4', v(EXA + 4 * j, 4), 'v2', s(R_WS, 4), 's14', mods='offen')
                LOG.append(('x',))
            I('s_add_u32', 's14', 's13', FB * 1024)
            I('buffer_load_dwordx4', v(EXB, 4), 'v2', s(R_WS, 4), 's14', mods='offen')
            LOG.append(('x',))
            if grp == 1:
                pass

        def wait_tags(tags):
            last = max(i for i, e in enumerate(LOG) if e in tags)
            k.waitcnt(vm=len(LOG) - 1 - last)

        def rd(s_):
            so = (s_ % 8) * 8192
            hi = (s_ % NR) >= 8
            b = WF + 12 * (s_ & 1)
            I('ds_read_b128', a(4 * s_, 4), 'v0' if hi else 'v5', mods=f'offset:{so}')
            for j in range(2):
                I('ds_read_b128', v(b + 4 * j, 4), 'v1' if hi else 'v6', mods=f'offset:{so + j * 1024}')
            if grp == 0:
                I('ds_read_b128', v(b + 8, 4), 'v7', mods=f'offset:{s_ * 1024}')
        NRD = 1 + NA

        def stats_ops():
            c0 = -2.0 * 1.4426950408889634 * math.sqrt(2.0 / math.pi)
            c1 = c0 * 0.044715
            L = []
            A_ = lambda *a_, **kw: L.append(lambda: I(*a_, **kw))
            A_('v_add_f32', 'v8', v(STT), v(STT + 2))
            for r in range(4, 16, 2):
                A_('v_add_f32', 'v8', 'v8', v(STT + r))
            A_('v_mov_b32', 'v9', 'v8')
            A_('v_permlane32_swap_b32', 'v8', 'v9')
            A_('v_add_f32', 'v8', 'v8', 'v9')
            A_('v_mul_f32', 'v8', f32bits(1.0 / 16), 'v8')
            A_('v_add_f32', 'v9', v(STT + 1), v(STT + 3))
            for r in range(5, 16, 2):
                A_('v_add_f32', 'v9', 'v9', v(STT + r))
            A_('v_mov_b32', 'v10', 0)
            for r in range(0, 16, 2):
                A_('v_sub_f32', v(STT + r), v(STT + r), 'v8')
                A_('v_fmac_f32', 'v10', v(STT + r), v(STT + r))
            A_('v_fmac_f32', 'v9', f32bits(32.0), 'v10')
            A_('v_mov_b32', 'v10', 'v9')
            A_('v_permlane32_swap_b32', 'v9', 'v10')
            A_('v_add_f32', 'v9', 'v9', 'v10')
            A_('v_mov_b32', 'v10', f32bits(1e-5))
            A_('v_fmac_f32', 'v10', f32bits(1.0 / 512), 'v9')
            A_('v_rsq_f32', 'v11', 'v10')
            A_('v_mul_f32', 'v12', 'v10', 'v11')
            A_('v_sub_f32', 'v13', 0, 'v8')
            A_('v_cmp_eq_u32', 'vcc', 0, 'v3')
            A_('v_cndmask_b32', 'v13', 'v12', 'v13', 'vcc')
            A_('v_cvt_pk_bf16_f32', 'v14', 'v13', 'v13')
            A_('v_and_b32', 'v14', 0xffff0000, 'v14')
            A_('v_sub_f32', 'v9', 'v13', 'v14')
            A_('v_cvt_pk_bf16_f32', v(EXT), 'v14', 'v9')
            A_('v_mov_b32', v(EXT + 1), v(EXT))
            A_('v_mov_b32', v(EXT + 2), 0)
            A_('v_mov_b32', v(EXT + 3), 0)
            A_('v_mul_f32', 'v12', f32bits(c0), 'v11')
            A_('v_mul_f32', 'v13', 'v11', 'v11')
            A_('v_mul_f32', 'v13', 'v13', 'v11')
            A_('v_mul_f32', 'v13', f32bits(c1), 'v13')
            A_('s_mul_i32', 's60', 's6', 112 * 1024)
            A_('s_mul_i32', 's62', 's5', 7 * 1024)
            A_('s_add_u32', 's60', 's60', 's62')
            A_('s_add_u32', 's60', 's60', ACT + grp * 4096)
            return L

        def epi(ai, f):
            g_ = ACC + 16 * ai
            u_ = g_ + 8
            for e in range(8):
                I('v_mul_f32', v(T + e), v(g_ + e), v(g_ + e))
            for e in range(8):
                I('v_fma_f32', v(T + e), v(T + e), 'v13', 'v12')
            for e in range(8):
                I('v_mul_f32', v(T + e), v(T + e), v(g_ + e))
            for e in range(8):
                I('v_exp_f32', v(T + e), v(T + e))
            for e in range(8):
                I('v_mul_f32', v(u_ + e), v(u_ + e), v(g_ + e))
            for e in range(8):
                I('v_fma_f32', v(T + e), v(T + e), 'v10', 'v10')
            for e in range(8):
                I('v_rcp_f32', v(T + e), v(T + e))
            for e in range(8):
                I('v_mul_f32', v(T + e), v(T + e), v(u_ + e))
            P = PK + 4 * (ai & 1)
            pack8(k, P, T)
            I('buffer_store_dwordx4', v(P, 4), 'v2', s(R_WS, 4), 's60', mods=f'offen offset:{(f % 4) * 1024} {ST_POL}')
            LOG.append(('store',))

        def fragB():
            ai = 3 if grp == 0 else 2
            acc = v(ACC + 16 * ai, 16)
            NB_ = 6
            for u in range(NB_ - 1):
                I('ds_read_b128', v(WF + 4 * u, 4), 'v15', mods=f'offset:{u * 1024}')
            I('v_mfma_f32_32x32x16_bf16', acc, v(EXB, 4), v(EXT, 4), 0)
            for u in range(32):
                n = u + NB_ - 1
                if n < 32:
                    I('ds_read_b128', v(WF + 4 * (n % NB_), 4), 'v15', mods=f'offset:{n * 1024}')
                k.waitcnt(lgkm=min(31, n) - u)
                I('v_mfma_f32_32x32x16_bf16', acc, v(WF + 4 * (u % NB_), 4), a(4 * u, 4), acc)

        extra = {}
        bsched = [(2, 1, 1), (2, 2, 5), (2, 3, 10)]
        for fr, i, at in bsched:
            extra.setdefault(at, []).append(lambda fr=fr, i=i: batch(fr, i))
        extra.setdefault(0, []).append(stat_loads)
        extra.setdefault(16, []).append(ext_loads)
        ring(0)
        batch(2, 0)
        PRE = OPT.get('k4pre', 8)
        for s_ in range(1, PRE):
            ring(s_)
        rn = [PRE]
        if OPT.get('prio', 0):
            I('s_setprio', 0)
        BI = OPT.get('k4bi', 2)
        wait_tags([('r', 0), ('r', 1), ('b', 2, 0)])
        k.barrier()
        tick(k)
        rd(0)
        VQ = []
        for s_ in range(32):
            n = s_ + 1
            if n < 32:
                if n % BI == 0 or n == 2:
                    tags = [('r', x) for x in range(n, n + (BI if n % BI == 0 else BI - 2))]
                    if n % 8 == 0:
                        tags.append(('b', 2, n // 8))
                    wait_tags(tags)
                    k.barrier()
                    if n % 8 == 0:
                        tick(k)
                rd(n)
                k.waitcnt(lgkm=NRD)
            else:
                k.waitcnt(lgkm=0)
            b = WF + 12 * (s_ & 1)
            for j in range(NA):
                I('v_mfma_f32_32x32x16_bf16', v(ACC + 16 * j, 16), v(b + 4 * j, 4), a(4 * s_, 4),
                  0 if s_ == 0 else v(ACC + 16 * j, 16))
                lead = D if rn[0] < 32 else OPT.get('k4db', 6)
                if j < (2 if s_ < OPT.get('k4ramp', 12) or rn[0] >= 32 else 1) and rn[0] <= s_ + lead and rn[0] < 36:
                    ring(rn[0])
                    rn[0] += 1
                if j == 1:
                    for f_ in extra.get(s_, []):
                        f_()
                for _ in range(4):
                    if VQ:
                        VQ.pop(0)()
            if s_ == 10:
                VQ.extend(stats_ops())
        assert not VQ
        tick(k)
        wait_tags([('x',)])
        for j in range(NA):
            I('v_mfma_f32_32x32x16_bf16', v(ACC + 16 * j, 16), v(EXA + 4 * j, 4), v(EXT, 4), v(ACC + 16 * j, 16))
        assert rn[0] == 36
        for i in range(4):
            batch(3, i)
        if grp == 0:
            I('v_lshrrev_b32', 'v1', 4, 'v2')
            if code_prefetch(k, 8, 9, 44, 8):
                LOG.append(('code',))
        wait_tags([('b', 6, 3)])
        k.barrier()
        tick(k)
        if OPT.get('k4wd', 0):
            I('s_lshr_b32', 's13', 's2', 3)
            I('s_lshl_b32', 's13', 's13', 3)
            I('s_add_u32', 's13', 's13', 's3')
            I('s_mul_i32', 's13', 's13', 3584)
            I('s_and_b32', 's14', 's2', 1)
            I('s_mul_i32', 's14', 's14', 8 * 114688)
            I('s_add_u32', 's13', 's13', 's14')
            I('s_add_u32', 's13', 's13', WD)
            I('s_lshl_b32', 's14', 's3', 12)
            I('s_add_u32', 'm0', 's14', RES[2])
            for q in range(4):
                I('buffer_load_dwordx4', 'v2', s(R_WS, 4), 's13', mods=f'offen offset:{min(q * 1024, 2560)} lds')
                LOG.append(('pf',))
        if grp == 0:
            for j, f in enumerate(FA):
                epi(j, f)
            wait_tags([('b', 3, 3)])
            k.barrier()
            tick(k)
            fragB()
            tick(k)
            epi(3, FB)
            I('s_branch', 'L_k4_done')
            k.label('L_k4_g1')
        else:
            fragB()
            wait_tags([('b', 3, 3)])
            k.barrier()
            tick(k)
            for j, f in enumerate(FA):
                epi(j, f)
            tick(k)
            epi(2, FB)
    k.label('L_k4_done')
    epilogue(k, 4, vtmp=4)
    return k, 256, 512, LDS


HEADER = """; adaLN_cond + sliding-window attention + GEGLU FFN block, gfx950 (MI355X).
"""


def build(gens, path):
    hdr, bodies, descs = [], [], []
    global ST_POL
    base_pol = ST_POL
    for gi, g in enumerate(gens):
        ST_POL = '' if (OPT.get('plain', 0) >> gi) & 1 else base_pol
        k, grid, block, lds = g()
        if OPT.get('biglds', 0):
            lds = max(lds, 90112)
        b, d = kernel_text(k)
        bodies.append(b)
        descs.append(d)
        hdr.append(f'; @launch kernel={k.name} grid=({grid},1,1) block=({block},1,1) lds={lds}')
        print(f'{k.name}: {k.n_ins} instr, vgpr {k.max_v + 1}, agpr {k.max_a + 1}, sgpr {k.max_s + 1}, nops {k.nops_inserted}, lds {lds}',
              file=sys.stderr)
    if OPT.get('dup'):
        d_ = OPT['dup'] - 1
        hdr.insert(d_ + 1, hdr[d_])
    out = HEADER + '\n'.join(hdr) + '\n.amdgcn_target "amdgcn-amd-amdhsa--gfx950"\n.text\n' + '\n'.join(bodies) + \
        '\nL_code_end:\n.section .rodata,"a"\n' + '\n'.join(descs)
    open(path, 'w').write(out)


if __name__ == '__main__':
    import argparse
    ap = argparse.ArgumentParser()
    ap.add_argument('-o', default='adaLN_cond__sliding_block__geglu_ffn__prompt.s')
    ap.add_argument('--stamp', action='store_true')
    ap.add_argument('-n', type=int, default=6)
    ap.add_argument('--stpol', default='sc1')
    ap.add_argument('--opt', default='')
    args = ap.parse_args()
    STAMP = args.stamp
    ST_POL = args.stpol
    for kv in args.opt.split(','):
        if kv:
            a_, b_ = kv.split('=')
            OPT[a_] = int(b_)
    allg = [gen_k0, gen_k1]
    for nm in ('gen_k2', 'gen_k3', 'gen_k4', 'gen_k5'):
        if nm in globals():
            allg.append(globals()[nm])
    build(allg[:args.n], args.o)
```

```python
import sys
import struct
import math
from asmlib import *

import os
OVERLAY = os.environ.get('NO_OVERLAY') is None
XN = 0x0000000
W1 = 0x0200000
W1_NB = 32 * 3072
KB = 0x0380000
VB = 0x0580000
QB = 0x0780000
MODP = 0x0980000
MODP_P = 3072 * 4
MODF = 0x09A0000
MF_GA, MF_G2, MF_GB, MF_SB = 0, 2048, 4096, 6144
NRM = 0x09C0000
TMX = 0x0A40000
ST2 = 0x0A80000
CSP = 0x0B00000
W4 = 0x0C00000
W4_NB = 33 * 7168
WO = 0x1000000
WD = 0x1080000
OB = XN if OVERLAY else 0x1300000
X1 = QB if OVERLAY else 0x1500000
ACT = 0 if OVERLAY else 0x1800000
STAMPS = 0x2000000
WS_SIZE = 0x2100000

STAMP = False
ST_POL = 'sc1'
OPT = {}


def f32bits(x):
    return struct.unpack('<I', struct.pack('<f', x))[0]


S_X, S_WQKV, S_WO, S_BX, S_WG, S_WU, S_WD, S_C = 16, 18, 20, 22, 24, 26, 28, 30
S_WMOD, S_OUT, S_DBG, S_WS = 32, 34, 36, 38
R_WS = 40


def srd(k, d, base, nbytes):
    k.I('s_mov_b32', s(d), s(base))
    k.I('s_mov_b32', s(d + 1), s(base + 1))
    k.I('s_mov_b32', s(d + 2), nbytes)
    k.I('s_mov_b32', s(d + 3), 0x20000)


def prologue(k, nwg, need_lo=True):
    I = k.I
    if STAMP:
        I('s_memrealtime', s(96, 2))
    I('s_cmp_ge_u32', 's2', nwg)
    I('s_cbranch_scc1', f'L_end_{k.name}')
    if OPT.get('prio', 0) and k.name[1] in '124':
        I('s_setprio', 3)
    if need_lo:
        I('s_load_dwordx16', s(16, 16), s(0, 2), 0)
    I('s_load_dwordx8', s(32, 8), s(0, 2), 64)
    I('v_and_b32', 'v1', 63, 'v0')
    I('v_lshrrev_b32', 'v2', 6, 'v0')
    I('v_readfirstlane_b32', 's3', 'v2')


def xcd_map(k, mbits, dm, dn, xmb=2):
    I = k.I
    mtot = mbits + 2
    jm = mtot - xmb
    if xmb > 0:
        I('s_bfe_u32', s(dm), 's2', (xmb << 16) | (3 - xmb))
        I('s_lshl_b32', s(dm), s(dm), jm)
    else:
        I('s_mov_b32', s(dm), 0)
    I('s_bfe_u32', s(dn), 's2', (jm << 16) | 3)
    I('s_add_u32', s(dm), s(dm), s(dn))
    I('s_and_b32', s(dn), 's2', (1 << (3 - xmb)) - 1)
    I('s_lshl_b32', s(dn), s(dn), 5 - jm)
    I('s_lshr_b32', 's62', 's2', 3 + jm)
    I('s_add_u32', s(dn), s(dn), 's62')


NEXT = {'k0_mod_kernel': ('k1_qkv_kernel', 'k2_attn_kernel'), 'k1_qkv_kernel': ('k2_attn_kernel', 'k3_wo_kernel'),
        'k2_attn_kernel': ('k3_wo_kernel', 'k4_ffn1_kernel'), 'k3_wo_kernel': ('k4_ffn1_kernel', 'k5_down_kernel'),
        'k4_ffn1_kernel': ('k5_down_kernel', 'L_code_end')}


def code_prefetch(k, vt, vdst, sa, nwaves):
    if not OPT.get('codepf', 1) or k.name not in NEXT:
        return False
    I = k.I
    beg, end = NEXT[k.name]
    I('s_getpc_b64', s(sa, 2))
    k.raw(f'L_pc_{k.name}:')
    I('s_lshr_b32', s(sa + 2), 's2', 3)
    I('s_mul_i32', s(sa + 2), s(sa + 2), nwaves)
    I('s_add_u32', s(sa + 2), s(sa + 2), 's3')
    I('s_lshl_b32', s(sa + 2), s(sa + 2), 13)
    I('v_lshlrev_b32', v(vt), 7, 'v1')
    I('v_add_u32', v(vt), s(sa + 2), v(vt))
    I('v_min_u32', v(vt), f'{end}-{beg}-4', v(vt))
    I('v_add_u32', v(vt), f'{beg}-L_pc_{k.name}', v(vt))
    I('global_load_dword', v(vdst), v(vt), s(sa, 2))
    return True


def tick(k):
    if STAMP:
        n = getattr(k, 'nticks', 0)
        assert n < 12
        k.I('s_memrealtime', s(94, 2))
        k.I('s_memtime', s(100, 2))
        k.waitcnt(lgkm=0)
        k.I('s_mov_b32', s(70 + n), 's94')
        k.I('s_mov_b32', s(82 + n), 's100')
        k.nticks = n + 1


def epilogue(k, idx, vtmp=2):
    I = k.I
    if STAMP:
        k.flush()
        tick(k)
        k.waitcnt(vm=0, lgkm=0)
        I('s_memrealtime', s(98, 2))
        k.waitcnt(lgkm=0)
        I('s_cmp_lg_u32', 's3', OPT.get('stw', 0) if k.name[1] in '124' else min(3, OPT.get('stw', 0)))
        I('s_cbranch_scc1', f'L_end_{k.name}')
        I('v_mov_b32', v(vtmp), 's96')
        I('v_mov_b32', v(vtmp + 1), 's98')
        I('s_lshl_b32', 's96', 's2', 3)
        I('s_add_u32', 's96', 's96', STAMPS + idx * 4096)
        I('v_mov_b32', v(vtmp + 2), 's96')
        I('s_mov_b64', 'exec', 1)
        I('buffer_store_dwordx2', v(vtmp, 2), v(vtmp + 2), s(R_WS, 4), 0, mods='offen')
        I('s_lshl_b32', 's96', 's2', 7)
        I('s_add_u32', 's96', 's96', STAMPS + 0x10000 + idx * 0x8000)
        I('v_mov_b32', v(vtmp + 2), 's96')
        for n in range(24):
            I('v_mov_b32', v(vtmp), s(70 + n) if (n % 12) < k.nticks else 0)
            I('buffer_store_dword', v(vtmp), v(vtmp + 2), s(R_WS, 4), 0, mods=f'offen offset:{4 * n}')
    k.label(f'L_end_{k.name}')
    I('s_endpgm')


def wave_sum_to_sgpr(k, regs, sdst):
    I = k.I
    for sh in ('row_shr:1', 'row_shr:2', 'row_shr:4', 'row_shr:8'):
        for r in regs:
            I('v_add_f32', v(r), v(r), v(r), mods=f'{sh} row_mask:0xf bank_mask:0xf')
    for r in regs:
        I('v_add_f32', v(r), v(r), v(r), mods='row_bcast:15 row_mask:0xa bank_mask:0xf')
    for r in regs:
        I('v_add_f32', v(r), v(r), v(r), mods='row_bcast:31 row_mask:0xc bank_mask:0xf')
    for r, sd in zip(regs, sdst):
        I('v_readlane_b32', s(sd), v(r), 63)


def unpack8(k, dst, src):
    for j in range(4):
        k.I('v_lshlrev_b32', v(dst + 2 * j), 16, v(src + j))
        k.I('v_and_b32', v(dst + 2 * j + 1), 0xffff0000, v(src + j))


def pack8(k, dst, src):
    for j in range(4):
        k.I('v_cvt_pk_bf16_f32', v(dst + j), v(src + 2 * j), v(src + 2 * j + 1))


def gen_k0():
    k = Kernel('k0_mod_kernel')
    I = k.I
    L_A = 0
    L_W = 16384
    L_X = 24576
    L_S = 32768
    L_P = 33024
    LDS = 34048
    prologue(k, 256)
    I('s_and_b32', 's4', 's2', 7)
    I('v_lshrrev_b32', 'v2', 3, 'v1')
    I('v_and_b32', 'v3', 7, 'v1')
    I('v_lshlrev_b32', 'v3', 4, 'v3')
    I('v_mul_u32_u24', 'v4', 6144, 'v2')
    I('v_add_u32', 'v4', 'v4', 'v3')
    I('v_mul_u32_u24', 'v5', 3072, 'v2')
    I('v_add_u32', 'v5', 'v5', 'v3')
    I('v_lshlrev_b32', 'v7', 4, 'v1')
    I('s_lshl_b32', 's10', 's4', 5)
    I('s_lshr_b32', 's11', 's2', 3)
    I('s_add_u32', 's10', 's10', 's11')
    I('s_lshl_b32', 's10', 's10', 3)
    I('s_lshl_b32', 's12', 's3', 1)
    I('s_add_u32', 's12', 's10', 's12')
    I('s_lshl_b32', 's12', 's12', 10)
    I('s_min_u32', 's5', 's2', 191)
    I('s_lshr_b32', 's5', 's5', 2)
    I('s_and_b32', 's6', 's2', 3)
    I('s_lshl_b32', 's13', 's6', 7)
    I('s_lshl_b32', 's14', 's3', 5)
    I('s_add_u32', 's13', 's13', 's14')
    I('v_and_b32', 'v6', 15, 'v1')
    I('v_lshlrev_b32', 'v6', 2, 'v6')
    I('s_lshl_b32', 's15', 's13', 1)
    k.waitcnt(lgkm=0)
    tick(k)
    srd(k, R_WS, S_WS, WS_SIZE)
    srd(k, 44, S_WMOD, 512 * 6144)
    srd(k, 48, S_WQKV, 512 * 3072)
    srd(k, 52, S_X, 2048 * 1024)
    srd(k, 56, S_C, 1024)
    LOG = []
    I('buffer_load_dword', 'v8', 'v6', s(56, 4), 's15', mods='offen'); LOG.append('c')
    I('buffer_load_dwordx4', v(12, 4), 'v7', s(52, 4), 's12', mods='offen'); LOG.append('x')
    I('buffer_load_dwordx4', v(16, 4), 'v7', s(52, 4), 's12', mods='offen offset:1024'); LOG.append('x')
    I('s_mul_i32', 's7', 's13', 6144)
    I('s_lshl_b32', 's8', 's5', 7)
    I('s_add_u32', 's7', 's7', 's8')
    I('s_lshl_b32', 's8', 's3', 12)
    for j in range(4):
        I('s_add_u32', 'm0', 's8', L_A + j * 1024)
        I('s_add_u32', 's9', 's7', j * 8 * 6144)
        I('buffer_load_dwordx4', 'v4', s(44, 4), 's9', mods='offen lds'); LOG.append('g')
    I('s_min_u32', 's14', 's3', 2)
    I('s_lshl_b32', 's14', 's14', 10)
    I('s_mul_i32', 's15', 's11', 16 * 3072)
    I('s_add_u32', 's14', 's14', 's15')
    I('s_lshl_b32', 's15', 's4', 7)
    I('s_add_u32', 's14', 's14', 's15')
    I('s_lshl_b32', 's60', 's3', 11)
    for j in range(2):
        I('s_add_u32', 'm0', 's60', L_W + j * 1024)
        I('s_add_u32', 's9', 's14', j * 8 * 3072)
        I('buffer_load_dwordx4', 'v5', s(48, 4), 's9', mods='offen lds'); LOG.append('w')
    if code_prefetch(k, 21, 27, 64, 4):
        LOG.append('code')
    if OPT.get('k0tlb', 0):
        I('s_cmp_eq_u32', 's3', 0)
        I('s_cselect_b32', 's64', s(S_WG), s(S_WU))
        I('s_cselect_b32', 's65', s(S_WG + 1), s(S_WU + 1))
        I('s_cmp_eq_u32', 's3', 2)
        I('s_cselect_b32', 's64', s(S_WD), 's64')
        I('s_cselect_b32', 's65', s(S_WD + 1), 's65')
        I('s_cmp_eq_u32', 's3', 3)
        I('s_cselect_b32', 's64', s(S_WO), 's64')
        I('s_cselect_b32', 's65', s(S_WO + 1), 's65')
        I('s_mov_b32', 's9', 1792 * 1024)
        I('s_cselect_b32', 's66', 512 * 1024, 's9')
        I('s_cmp_lt_u32', 's2', 16)
        I('s_cselect_b32', 's66', 's66', 0)
        I('s_mov_b32', 's67', 0x20000)
        I('v_lshlrev_b32', 'v21', 15, 'v1')
        I('buffer_load_dword', 'v27', 'v21', s(64, 4), 0, mods='offen'); LOG.append('tlb')
    tick(k)

    def wait_for(tag):
        last = max(i for i, e in enumerate(LOG) if e == tag)
        k.waitcnt(vm=len(LOG) - 1 - last)
    I('v_lshrrev_b32', 'v2', 4, 'v1')
    I('v_bfe_u32', 'v3', 'v1', 2, 2)
    I('v_and_b32', 'v9', 3, 'v1')
    I('v_lshl_add_u32', 'v20', 'v2', 3, 'v3')
    I('v_lshlrev_b32', 'v20', 7, 'v20')
    I('v_lshl_add_u32', 'v20', 'v9', 3, 'v20')
    I('v_add_u32', 'v20', 's8', 'v20')
    I('s_lshl_b32', 's9', 's3', 6)
    I('s_add_u32', 's9', 's9', L_S)
    I('v_lshl_add_u32', 'v22', 'v2', 4, 's9')
    I('v_add_u32', 'v23', 's9', 'v6')
    I('v_lshrrev_b32', 'v24', 5, 'v1')
    I('v_lshl_add_u32', 'v25', 'v24', 3, 'v3')
    I('v_lshlrev_b32', 'v25', 7, 'v25')
    I('v_bfe_u32', 'v26', 'v1', 4, 1)
    I('v_lshl_add_u32', 'v25', 'v26', 5, 'v25')
    I('v_lshl_add_u32', 'v25', 'v9', 3, 'v25')
    I('s_add_u32', 's9', 's60', L_W)
    I('v_add_u32', 'v25', 's9', 'v25')
    wait_for('c')
    I('v_lshlrev_b32', 'v9', 16, 'v8')
    I('v_and_b32', 'v10', 0xffff0000, 'v8')
    I('s_mov_b32', 's14', f32bits(-1.4426950408889634))
    for r, t_ in ((9, 28), (10, 29)):
        I('v_mul_f32', v(t_), 's14', v(r))
    for t_ in (28, 29):
        I('v_exp_f32', v(t_), v(t_))
    for t_ in (28, 29):
        I('v_add_f32', v(t_), 1.0, v(t_))
    for t_ in (28, 29):
        I('v_rcp_f32', v(t_), v(t_))
    for r, t_ in ((9, 28), (10, 29)):
        I('v_mul_f32', v(r), v(r), v(t_))
    I('v_cvt_pk_bf16_f32', 'v9', 'v9', 'v10')
    I('ds_write_b32', 'v23', 'v9')
    wait_for('x')
    tick(k)
    unpack8(k, 64, 12)
    unpack8(k, 72, 16)
    k.waitcnt(lgkm=0)
    I('ds_read_b128', v(48, 4), 'v22')
    for b, t_ in ((64, 40), (72, 41)):
        I('v_add_f32', v(t_), v(b), v(b + 1))
        for j in range(2, 8):
            I('v_add_f32', v(t_), v(t_), v(b + j))
    wave_sum_to_sgpr(k, [40, 41], [62, 63])
    I('s_mov_b32', 's14', f32bits(1.0 / 512))
    for t_, sd in ((40, 62), (41, 63)):
        I('v_mov_b32', v(t_), s(sd))
        I('v_mul_f32', v(t_), 's14', v(t_))
    for b, t_ in ((64, 40), (72, 41)):
        for j in range(8):
            I('v_sub_f32', v(b + j), v(b + j), v(t_))
    for b, t_ in ((64, 42), (72, 43)):
        I('v_mul_f32', v(t_), v(b), v(b))
        for j in range(1, 8):
            I('v_fmac_f32', v(t_), v(b + j), v(b + j))
    wave_sum_to_sgpr(k, [42, 43], [62, 63])
    I('s_mov_b32', 's15', f32bits(1e-5))
    for t_, sd in ((42, 62), (43, 63)):
        I('v_mov_b32', v(t_), s(sd))
        I('v_mov_b32', v(44), 's15')
        I('v_fma_f32', v(t_), v(t_), 's14', v(44))
        I('v_rsq_f32', v(t_), v(t_))
    for b, t_ in ((64, 42), (72, 43)):
        for j in range(8):
            I('v_mul_f32', v(b + j), v(b + j), v(t_))
    pack8(k, 12, 64)
    pack8(k, 16, 72)
    I('v_lshlrev_b32', 'v11', 7, 'v1')
    I('s_lshl_b32', 's9', 's3', 5)
    I('s_add_u32', 's9', 's9', L_X)
    I('v_add_u32', 'v11', 's9', 'v11')
    I('ds_write_b128', 'v11', v(12, 4))
    I('ds_write_b128', 'v11', v(16, 4), mods='offset:16')
    wait_for('g')
    tick(k)
    for cg in range(4):
        I('ds_read_b64_tr_b16', v(80 + 4 * cg, 2), 'v20', mods=f'offset:{cg * 32}')
        I('ds_read_b64_tr_b16', v(82 + 4 * cg, 2), 'v20', mods=f'offset:{cg * 32 + 512}')
    for cg in range(4):
        k.waitcnt(lgkm=6 - 2 * cg)
        I('v_mfma_f32_16x16x32_bf16', v(100 + 4 * cg, 4), v(48, 4), v(80 + 4 * cg, 4), 0)
    wait_for('w')
    for u in range(2):
        I('ds_read_b64_tr_b16', v(52 + 4 * u, 2), 'v25', mods=f'offset:{u * 64}')
        I('ds_read_b64_tr_b16', v(54 + 4 * u, 2), 'v25', mods=f'offset:{u * 64 + 512}')
    I('s_lshl_b32', 's9', 's3', 8)
    I('s_add_u32', 's9', 's9', L_P)
    I('v_add_u32', 'v28', 's9', 'v6')
    for cg in range(4):
        I('ds_write_b32', 'v28', v(100 + 4 * cg), mods=f'offset:{cg * 64}')
    I('s_mul_i32', 's9', 's4', 2 * W1_NB)
    I('s_mul_i32', 's14', 's11', 3072)
    I('s_add_u32', 's9', 's9', 's14')
    I('s_lshl_b32', 's14', 's3', 10)
    I('s_add_u32', 's9', 's9', 's14')
    I('s_add_u32', 's9', 's9', W1)
    I('s_add_u32', 's14', 's9', W1_NB)
    k.waitcnt(lgkm=0)
    I('s_cmp_eq_u32', 's3', 3)
    I('s_cbranch_scc1', 'L_k0_now')
    I('buffer_store_dwordx4', v(52, 4), 'v7', s(R_WS, 4), 's9', mods=f'offen {ST_POL}')
    I('buffer_store_dwordx4', v(56, 4), 'v7', s(R_WS, 4), 's14', mods=f'offen {ST_POL}')
    k.label('L_k0_now')
    tick(k)
    k.barrier()
    tick(k)
    I('s_add_u32', 's9', 's60', L_X)
    I('v_add_u32', 'v11', 's9', 'v7')
    I('ds_read_b128', v(12, 4), 'v11')
    I('ds_read_b128', v(16, 4), 'v11', mods='offset:1024')
    I('v_lshlrev_b32', 'v29', 2, 'v1')
    for w in range(4):
        I('ds_read_b32', v(30 + w), 'v29', mods=f'offset:{L_P + w * 256}')
    I('s_lshr_b32', 's12', 's10', 5)
    I('s_lshl_b32', 's12', 's12', 15)
    I('s_and_b32', 's14', 's10', 31)
    I('s_lshl_b32', 's14', 's14', 4)
    I('s_add_u32', 's12', 's12', 's14')
    I('s_lshl_b32', 's14', 's3', 13)
    I('s_add_u32', 's12', 's12', 's14')
    I('s_add_u32', 's12', 's12', XN)
    I('s_add_u32', 's14', 's12', 4096)
    I('v_lshrrev_b32', 'v11', 3, 'v1')
    I('v_lshlrev_b32', 'v11', 9, 'v11')
    I('v_and_b32', 'v10', 7, 'v1')
    I('v_lshl_add_u32', 'v11', 'v10', 4, 'v11')
    k.waitcnt(lgkm=4)
    I('buffer_store_dwordx4', v(12, 4), 'v11', s(R_WS, 4), 's12', mods=f'offen {ST_POL}')
    I('buffer_store_dwordx4', v(16, 4), 'v11', s(R_WS, 4), 's14', mods=f'offen {ST_POL}')
    I('s_cmp_lg_u32', 's3', 3)
    I('s_cbranch_scc1', 'L_k0_done')
    I('s_cmp_ge_u32', 's2', 192)
    I('s_cbranch_scc1', 'L_k0_done')
    k.waitcnt(lgkm=0)
    I('v_add_f32', 'v30', 'v30', 'v31')
    I('v_add_f32', 'v32', 'v32', 'v33')
    I('v_add_f32', 'v30', 'v30', 'v32')
    I('s_mul_i32', 's9', 's6', MODP_P)
    I('s_lshl_b32', 's14', 's5', 8)
    I('s_add_u32', 's9', 's9', 's14')
    I('s_add_u32', 's9', 's9', MODP)
    I('buffer_store_dword', 'v30', 'v29', s(R_WS, 4), 's9', mods='offen')
    k.label('L_k0_done')
    epilogue(k, 0)
    return k, 256, 256, LDS


QSCALE = 0.25 * 1.4426950408889634


def gen_k1():
    k = Kernel('k1_qkv_kernel')
    I = k.I
    L_G = 98304
    L_E = L_G + 4096
    L_PF = L_E + 49152
    LDS = L_PF + 8192
    prologue(k, 256, need_lo=True)
    xcd_map(k, 2, 4, 5, OPT.get('x1', 2))
    I('s_and_b32', 's61', 's3', 3)
    I('s_lshr_b32', 's63', 's3', 2)
    I('s_lshl_b32', 's6', 's4', 2)
    I('s_add_u32', 's6', 's6', 's61')
    I('v_lshlrev_b32', 'v2', 4, 'v1')
    I('v_lshlrev_b32', 'v4', 3, 'v0')
    I('s_lshl_b32', 's8', 's63', 4)
    I('s_add_u32', 's8', 's8', 's61')
    I('s_mul_i32', 's8', 's8', 3072)
    I('s_mul_i32', 's7', 's5', W1_NB)
    I('s_add_u32', 's7', 's7', 's8')
    I('s_add_u32', 's7', 's7', W1)
    I('s_lshl_b32', 's9', 's6', 15)
    I('s_lshl_b32', 's10', 's63', 14)
    I('s_add_u32', 's9', 's9', 's10')
    I('s_add_u32', 's9', 's9', XN)
    k.waitcnt(lgkm=0)
    tick(k)
    srd(k, R_WS, S_WS, WS_SIZE)
    ACC = 16
    TOK = 64
    WF = 128
    GS = 152
    TM = 184
    LOG = []
    FILL = []
    SJ = 192
    I('s_cmp_ge_u32', 's2', 4)
    I('s_cbranch_scc1', 'L_k1_nosj')
    I('s_lshl_b32', 's10', 's2', 11)
    I('s_add_u32', 's10', 's10', MODP + 4096)
    I('v_lshlrev_b32', 'v3', 2, 'v0')
    for p in range(4):
        I('s_add_u32', 's11', 's10', p * MODP_P)
        I('buffer_load_dword', v(SJ + p), 'v3', s(R_WS, 4), 's11', mods='offen')
    k.label('L_k1_nosj')
    for p in range(4):
        I('s_mov_b32', 's10', MODP + p * MODP_P)
        I('buffer_load_dwordx2', v(ACC + 2 * p, 2), 'v4', s(R_WS, 4), 's10', mods='offen')
        LOG.append('m')

    def w_op(c, q):
        def f():
            if q == 0:
                I('s_add_u32', 's10', 's7', c * 12288)
            I('s_add_u32', 'm0', 's8', c * 12288)
            I('buffer_load_dwordx4', 'v2', s(R_WS, 4), 's10', mods=f'offen offset:{q * 1024} lds')
            LOG.append(('w', c))
        return f

    def t_op(i):
        def f():
            if i % 4 == 0:
                I('s_add_u32', 's11', 's9', i * 1024)
            I('buffer_load_dwordx4', v(TOK + 4 * i, 4), 'v2', s(R_WS, 4), 's11', mods=f'offen offset:{(i % 4) * 1024}')
            LOG.append(('t', i))
        return f
    for c in range(4):
        FILL += [w_op(c, q) for q in range(3)] + [t_op(4 * c + q) for q in range(4)]

    def pf_op(ptr, nbytes):
        def f():
            srd(k, 44, ptr, nbytes)
            I('s_lshl_b32', 's12', 's2', 13)
            I('s_lshl_b32', 's13', 's3', 10)
            I('s_add_u32', 's12', 's12', 's13')
            I('s_add_u32', 'm0', 's13', L_PF)
            I('buffer_load_dwordx4', 'v2', s(44, 4), 's12', mods='offen lds')
            LOG.append(('pf',))
        return f
    def cp_op():
        if code_prefetch(k, 7, 196, 44, 8):
            LOG.append(('code',))
    FILL.append(cp_op)
    if OPT.get('k1pf', 0):
        FILL += [pf_op(S_WG, 512 * 3584), pf_op(S_WU, 512 * 3584), pf_op(S_WD, 1792 * 1024), pf_op(S_WO, 512 * 1024)]
    for _ in range(OPT.get('k1pre', 5)):
        FILL.pop(0)()
    if OPT.get('prio', 0):
        I('s_setprio', 0)
    I('s_mul_i32', 's10', 's63', 16 * 3072)
    I('v_add_u32', 'v3', 's10', 'v2')
    I('v_lshrrev_b32', 'v5', 5, 'v1')
    I('v_lshlrev_b32', 'v5', 5, 'v5')
    I('s_lshl_b32', 's10', 's63', 10)
    I('s_add_u32', 's10', 's10', L_G)
    I('v_add_u32', 'v5', 's10', 'v5')
    I('v_add_u32', 'v6', L_G, 'v4')
    k.waitcnt(vm=len(LOG) - 4)
    for e in range(2):
        I('v_add_f32', v(ACC + e), v(ACC + e), v(ACC + 2 + e))
        I('v_add_f32', v(ACC + 4 + e), v(ACC + 4 + e), v(ACC + 6 + e))
    for e in range(2):
        I('v_add_f32', v(ACC + e), v(ACC + e), v(ACC + 4 + e))
    I('v_cvt_pk_bf16_f32', v(ACC + 2), v(ACC), v(ACC + 1))
    I('v_lshlrev_b32', v(ACC), 16, v(ACC + 2))
    I('v_and_b32', v(ACC + 1), 0xffff0000, v(ACC + 2))
    I('s_cmp_eq_u32', 's63', 0)
    I('s_cbranch_scc1', 'L_k1_issa')
    for e in range(2):
        I('v_add_f32', v(ACC + e), 1.0, v(ACC + e))
    I('v_cvt_pk_bf16_f32', v(ACC + 2), v(ACC), v(ACC + 1))
    I('v_lshlrev_b32', v(ACC), 16, v(ACC + 2))
    I('v_and_b32', v(ACC + 1), 0xffff0000, v(ACC + 2))
    k.label('L_k1_issa')
    I('ds_write_b64', 'v6', v(ACC, 2))
    for _ in range(OPT.get('k1pre2', 5)):
        FILL.pop(0)()
    k.waitcnt(lgkm=0)

    def rdw(i):
        st = WF + 12 * (i & 1)
        for f in range(3):
            I('ds_read_b128', v(st + 4 * f, 4), 'v3', mods=f'offset:{i * 3072 + f * 1024}')

    def rdg(i):
        g = GS + 16 * (i & 1)
        for q in range(2):
            I('ds_read_b128', v(g + 4 * q, 4), 'v5', mods=f'offset:{i * 64 + 16 * q}')
        for q in range(2):
            I('ds_read_b128', v(g + 8 + 4 * q, 4), 'v5', mods=f'offset:{2048 + i * 64 + 16 * q}')

    def mod_ops(i):
        g = GS + 16 * (i & 1)
        tk = TOK + 4 * i
        L = []
        A_ = lambda *a_, **kw: L.append(lambda: I(*a_, **kw))
        for j in range(4):
            A_('v_lshlrev_b32', v(TM + 2 * j), 16, v(tk + j))
            A_('v_and_b32', v(TM + 2 * j + 1), 0xffff0000, v(tk + j))
        if OPT.get('k1pk', 0):
            for j in range(4):
                A_('v_pk_fma_f32', v(TM + 2 * j, 2), v(TM + 2 * j, 2), v(g + 8 + 2 * j, 2), v(g + 2 * j, 2))
        else:
            for j in range(8):
                A_('v_fma_f32', v(TM + j), v(TM + j), v(g + 8 + j), v(g + j))
        for j in range(4):
            A_('v_cvt_pk_bf16_f32', v(tk + j), v(TM + 2 * j), v(TM + 2 * j + 1))
        return L

    def need(tags):
        for tg in tags:
            while tg not in LOG or (tg[0] == 'w' and LOG.count(tg) < 3):
                FILL.pop(0)()
        last = max(i for i, e in enumerate(LOG) if e in tags)
        k.waitcnt(vm=len(LOG) - 1 - last)
    need([('w', 0), ('t', 0)])
    k.barrier()
    tick(k)
    rdw(0)
    rdg(0)
    rdg(1)
    k.waitcnt(lgkm=4)
    for f in mod_ops(0):
        f()
    NSTEP = 16
    for i in range(NSTEP):
        nxt = i + 1
        VQ = []
        if nxt < NSTEP:
            if nxt % 4 == 0:
                need([('w', nxt // 4), ('t', nxt)])
                k.barrier()
                tick(k)
            else:
                need([('t', nxt)])
            rdw(nxt)
            if i + 2 < NSTEP:
                rdg(i + 2)
                k.waitcnt(lgkm=7)
            else:
                k.waitcnt(lgkm=3)
            VQ = mod_ops(nxt)
        else:
            k.waitcnt(lgkm=0)
        st = WF + 12 * (i & 1)
        tok = v(TOK + 4 * i, 4)
        n3 = (len(VQ) + 2) // 3
        for f in range(3):
            c = 0 if i == 0 else v(ACC + 16 * f, 16)
            if f < 2:
                I('v_mfma_f32_32x32x16_bf16', v(ACC + 16 * f, 16), v(st + 4 * f, 4), tok, c)
            else:
                I('v_mfma_f32_32x32x16_bf16', v(ACC + 16 * f, 16), tok, v(st + 4 * f, 4), c)
            for _ in range(OPT.get('k1rate', 1) if f < 2 else OPT.get('k1rate', 1) - 1):
                if FILL:
                    FILL.pop(0)()
            for _ in range(n3):
                if VQ:
                    VQ.pop(0)()
    assert not FILL
    tick(k)
    I('s_mul_i32', 's10', 's3', 6144)
    I('s_add_u32', 's10', 's10', L_E)
    I('v_add_u32', 'v6', 's10', 'v2')
    I('s_xor_b32', 's11', 's3', 4)
    I('s_mul_i32', 's11', 's11', 6144)
    I('s_add_u32', 's11', 's11', L_E)
    I('v_add_u32', 'v7', 's11', 'v2')
    I('s_lshl_b32', 's11', 's5', 17)
    I('s_lshl_b32', 's12', 's6', 10)
    I('s_add_u32', 's11', 's11', 's12')
    I('s_mul_i32', 's12', 's63', KB - QB)
    I('s_add_u32', 's12', 's12', 's11')
    I('s_add_u32', 's12', 's12', QB)
    I('s_add_u32', 's13', 's12', 65536)
    I('s_lshl_b32', 's14', 's63', 9)
    I('s_add_u32', 's14', 's14', 's11')
    I('s_add_u32', 's14', 's14', VB)
    I('v_bfe_u32', 'v4', 'v1', 4, 1)
    I('v_lshlrev_b32', 'v4', 16, 'v4')
    I('v_lshrrev_b32', 'v5', 5, 'v1')
    I('v_lshl_add_u32', 'v4', 'v5', 8, 'v4')
    I('v_and_b32', 'v5', 15, 'v1')
    I('v_lshl_add_u32', 'v4', 'v5', 4, 'v4')
    k.flush()
    KEEP = TOK
    I('s_cmp_eq_u32', 's63', 0)
    I('s_cbranch_scc0', 'L_k1_x1')
    for kh in range(2):
        keep = [ACC + 16 * kh + r for r in range(16)] + [ACC + 32 + 8 * kh + r for r in range(8)]
        send = [ACC + 16 * (1 - kh) + 4 * j for j in range(4)] + [ACC + 32 + 8 * (1 - kh) + 4 * j for j in range(2)]
        for j, r in enumerate(send):
            I('ds_write_b128', 'v6', v(r, 4), mods=f'offset:{j * 1024}')
        if kh == 0:
            I('s_mov_b32', 's15', f32bits(QSCALE))
        else:
            I('s_mov_b32', 's15', f32bits(1.0))
        for j, r in enumerate(keep):
            I('v_mov_b32', v(KEEP + j), v(r))
        if kh == 0:
            I('s_branch', 'L_k1_x2')
            k.label('L_k1_x1')
    k.label('L_k1_x2')
    k.waitcnt(lgkm=0)
    k.barrier()
    for j in range(6):
        I('ds_read_b128', v(ACC + 4 * j, 4), 'v7', mods=f'offset:{j * 1024}')
    P = WF
    dst = [('v2', 's12'), ('v2', 's13'), ('v4', 's14')]
    for g in range(3):
        k.waitcnt(lgkm=4 - 2 * g)
        for r in range(8):
            I('v_add_f32', v(KEEP + 8 * g + r), v(KEEP + 8 * g + r), v(ACC + 8 * g + r))
        if g < 2:
            for r in range(8):
                I('v_mul_f32', v(KEEP + 8 * g + r), 's15', v(KEEP + 8 * g + r))
        pack8(k, P + 4 * g, KEEP + 8 * g)
        I('buffer_store_dwordx4', v(P + 4 * g, 4), dst[g][0], s(R_WS, 4), dst[g][1], mods=f'offen {ST_POL}')
    for g in range(2):
        I('v_dot2_f32_bf16', v(8 + g), v(P + 4 * g), v(P + 4 * g), 0)
        I('v_dot2_f32_bf16', v(10 + g), v(P + 4 * g + 1), v(P + 4 * g + 1), 0)
    for g in range(2):
        I('v_dot2_f32_bf16', v(8 + g), v(P + 4 * g + 2), v(P + 4 * g + 2), v(8 + g))
        I('v_dot2_f32_bf16', v(10 + g), v(P + 4 * g + 3), v(P + 4 * g + 3), v(10 + g))
    for g in range(2):
        I('v_add_f32', v(8 + g), v(8 + g), v(10 + g))
    I('v_permlane32_swap_b32', 'v8', 'v9')
    I('v_add_f32', 'v8', 'v8', 'v9')
    I('v_mov_b32', 'v9', 'v8')
    for sh in ('row_shr:1', 'row_shr:2', 'row_shr:4', 'row_shr:8'):
        I('v_max_f32', 'v9', 'v9', 'v9', mods=f'{sh} row_mask:0xf bank_mask:0xf')
    I('v_max_f32', 'v9', 'v9', 'v9', mods='row_bcast:15 row_mask:0xa bank_mask:0xf')
    I('s_lshl_b32', 's10', 's63', 18)
    I('s_lshl_b32', 's11', 's5', 14)
    I('s_add_u32', 's10', 's10', 's11')
    I('s_lshl_b32', 's11', 's6', 7)
    I('s_add_u32', 's10', 's10', 's11')
    I('s_add_u32', 's10', 's10', NRM)
    I('v_lshrrev_b32', 'v10', 5, 'v1')
    I('v_lshlrev_b32', 'v11', 13, 'v10')
    I('v_and_b32', 'v12', 31, 'v1')
    I('v_lshl_add_u32', 'v11', 'v12', 2, 'v11')
    I('buffer_store_dword', 'v8', 'v11', s(R_WS, 4), 's10', mods='offen')
    I('s_lshl_b32', 's10', 's63', 13)
    I('s_lshl_b32', 's11', 's5', 9)
    I('s_add_u32', 's10', 's10', 's11')
    I('s_lshl_b32', 's11', 's6', 2)
    I('s_add_u32', 's10', 's10', 's11')
    I('s_add_u32', 's10', 's10', TMX)
    I('v_lshlrev_b32', 'v11', 8, 'v10')
    I('s_mov_b32', 'exec_lo', 0x80000000)
    I('s_mov_b32', 'exec_hi', 0x80000000)
    I('buffer_store_dword', 'v9', 'v11', s(R_WS, 4), 's10', mods='offen')
    I('s_mov_b64', 'exec', -1)
    I('s_cmp_ge_u32', 's2', 4)
    I('s_cbranch_scc1', 'L_k1_nomod')
    I('v_lshlrev_b32', 'v3', 2, 'v0')
    I('v_add_f32', 'v16', v(SJ), v(SJ + 1))
    I('v_add_f32', 'v18', v(SJ + 2), v(SJ + 3))
    I('v_add_f32', 'v16', 'v16', 'v18')
    I('v_cvt_pk_bf16_f32', 'v17', 'v16', 'v16')
    I('v_and_b32', 'v18', 0xffff0000, 'v17')
    I('v_add_f32', 'v19', 1.0, 'v18')
    I('v_cvt_pk_bf16_f32', 'v19', 'v19', 'v19')
    I('v_and_b32', 'v19', 0xffff0000, 'v19')
    I('s_cmp_eq_u32', 's2', 1)
    I('s_cbranch_scc1', 'L_k1_sb')
    I('s_mov_b32', 's13', MF_GB)
    I('s_cmp_eq_u32', 's2', 2)
    I('s_cselect_b64', 'vcc', -1, 0)
    I('v_cndmask_b32', 'v18', 'v18', 'v19', 'vcc')
    I('s_cselect_b32', 's13', MF_G2, 's13')
    I('s_cmp_eq_u32', 's2', 0)
    I('s_cselect_b32', 's13', MF_GA, 's13')
    I('s_add_u32', 's13', 's13', MODF)
    I('buffer_store_dword', 'v18', 'v3', s(R_WS, 4), 's13', mods='offen')
    I('s_branch', 'L_k1_nomod')
    k.label('L_k1_sb')
    I('s_mov_b32', 's13', MODF + MF_SB)
    I('v_lshlrev_b32', 'v3', 1, 'v0')
    I('buffer_store_short', 'v17', 'v3', s(R_WS, 4), 's13', mods='offen')
    k.label('L_k1_nomod')
    epilogue(k, 1, vtmp=4)
    return k, 256, 512, LDS


BIG = 1e30


def gen_k2():
    k = Kernel('k2_attn_kernel')
    I = k.I
    L_K, L_V, L_SIDE = 0, 16384, 32768
    LDS = L_SIDE + 32768
    Q, KF, VF, SB_, PB, OA, NM, MK = 16, 20, 56, 128, 176, 192, 208, 224
    MX = 244
    G2R, SBR = 80, 88
    Vb = lambda t: VF + 8 * (t % 3)
    prologue(k, 256)
    xcd_map(k, 1, 5, 4)
    I('s_lshl_b32', 's6', 's5', 3)
    I('s_add_u32', 's6', 's6', 's3')
    I('v_lshlrev_b32', 'v2', 4, 'v1')
    I('s_lshl_b32', 's9', 's4', 16)
    I('s_lshl_b32', 's10', 's6', 10)
    I('s_add_u32', 's10', 's10', 's9')
    I('s_add_u32', 's10', 's10', QB)
    I('s_lshl_b32', 's8', 's3', 11)
    I('v_lshrrev_b32', 'v3', 5, 'v1')
    I('v_bfe_u32', 'v4', 'v1', 4, 1)
    I('v_bfe_u32', 'v5', 'v1', 2, 2)
    I('v_and_b32', 'v6', 1, 'v1')
    I('v_bfe_u32', 'v7', 'v1', 1, 1)
    I('v_lshl_add_u32', 'v6', 'v6', 1, 'v7')
    I('v_lshlrev_b32', 'v13', 8, 'v3')
    I('v_and_b32', 'v14', 15, 'v1')
    I('v_lshl_add_u32', 'v13', 'v14', 4, 'v13')
    I('v_and_b32', 'v12', 31, 'v1')
    I('v_lshlrev_b32', 'v12', 2, 'v12')
    I('v_lshlrev_b32', 'v14', 5, 'v3')
    I('v_lshlrev_b32', 'v15', 4, 'v3')
    I('s_and_b32', 's12', 's3', 3)
    I('s_mul_i32', 's13', 's2', 3)
    I('s_add_u32', 's13', 's13', 's12')
    I('s_lshr_b32', 's15', 's2', 1)
    I('s_add_u32', 's15', 's15', 768)
    I('s_cmp_eq_u32', 's3', 3)
    I('s_cselect_b32', 's57', 's15', 's13')
    I('s_and_b32', 's15', 's2', 1)
    I('s_lshr_b32', 's13', 's3', 2)
    I('s_cmp_eq_u32', 's3', 3)
    I('s_cselect_b32', 's64', 's15', 's13')
    I('s_cmp_eq_u32', 's3', 7)
    I('s_cselect_b32', 's57', 's2', 's57')
    I('s_mul_i32', 's66', 's57', 2341)
    I('s_lshr_b32', 's66', 's66', 16)
    I('s_min_u32', 's66', 's66', 31)
    I('s_mul_i32', 's65', 's66', 28)
    I('s_sub_u32', 's65', 's57', 's65')
    I('s_lshl_b32', 's67', 's66', 6)
    I('s_add_u32', 's67', 's67', MODF + MF_G2)
    I('s_lshl_b32', 's68', 's66', 5)
    I('s_add_u32', 's68', 's68', MODF + MF_SB)
    I('s_lshl_b32', 's11', 's4', 13)
    I('s_lshl_b32', 's12', 's6', 7)
    I('s_add_u32', 's11', 's11', 's12')
    I('s_add_u32', 's11', 's11', NRM)
    I('s_lshl_b32', 's12', 's4', 8)
    I('s_lshl_b32', 's13', 's6', 2)
    I('s_add_u32', 's12', 's12', 's13')
    I('s_add_u32', 's12', 's12', TMX + 8192 - 32)
    I('s_sub_i32', 's14', 8, 's6')
    I('s_max_i32', 's14', 's14', 0)
    I('s_mov_b32', 's58', 0xffff)
    I('s_mov_b32', 's59', 0xffff)
    k.waitcnt(lgkm=0)
    tick(k)
    srd(k, R_WS, S_WS, WS_SIZE)
    I('s_buffer_load_dwordx8', s(48, 8), s(R_WS, 4), 's12')
    I('s_add_u32', 's12', 's12', 32)
    I('s_buffer_load_dword', 's56', s(R_WS, 4), 's12')
    Sb = lambda t: SB_ + 16 * (t % 3)

    def qk(t, C):
        I('v_mfma_f32_32x32x16_bf16', v(Sb(t), 16), v(KF + 4 * t, 4), v(Q, 4), C)

    def consts():
        I('v_and_b32', 'v10', 31, 'v1')
        I('v_lshlrev_b32', 'v11', 2, 'v3')
        I('v_sub_u32', 'v10', 'v10', 'v11')
        I('v_mov_b32', 'v11', f32bits(-BIG))
        for r in range(0, 16, 2):
            for q in range(2):
                kk = ((r + q) & 3) + 8 * ((r + q) >> 2)
                I('v_cmp_le_i32', s(60 + 2 * q, 2), kk, 'v10')
            for q in range(2):
                I('v_cndmask_b32', v(MK + r + q), 'v11', 0, s(60 + 2 * q, 2))

    def rdv(t):
        I('s_mov_b64', 'exec', s(58, 2))
        for j in range(2):
            I('ds_read_b128', v(Vb(t) + 4 * j, 4), 'v247', mods=f'offset:{L_V + t * 1024 + j * 512}')
        I('s_mov_b64', 'exec', -1)

    def lds_reads():
        for t in range(8, -1, -1):
            I('ds_read_b128', v(KF + 4 * t, 4), 'v246', mods=f'offset:{L_K + t * 1024}')

    def attn(tag, exact):
        rdv(8)
        rdv(7)
        if exact:
            qk(8, v(MK, 16))
            qk(7, 0)
            for t in range(8, -1, -1):
                if t - 2 > 0:
                    qk(t - 2, 0)
                elif t - 2 == 0:
                    for r in range(16):
                        I('v_sub_f32', v(Sb(0) + r), 'v11', v(MK + r))
                    qk(0, v(Sb(0), 16))
                b = Sb(t)
                if t == 8:
                    I('v_max3_f32', v(MX), v(b), v(b + 1), v(b + 2))
                    I('v_max3_f32', v(MX + 1), v(b + 3), v(b + 4), v(b + 5))
                    rest = list(range(6, 16))
                else:
                    rest = list(range(16))
                for i in range(0, len(rest), 2):
                    m = MX + ((i // 2) & 1)
                    I('v_max3_f32', v(m), v(m), v(b + rest[i]), v(b + rest[i + 1]))
                if t > 0:
                    I('s_cmp_eq_u32', 's14', t)
                    I('s_cbranch_scc1', f'L_k2_p1{tag}')
            k.label(f'L_k2_p1{tag}')
            k.nop(12)
            I('v_max_f32', v(MX), v(MX), v(MX + 1))
            I('v_mov_b32', v(MX + 1), v(MX))
            I('v_permlane32_swap_b32', v(MX), v(MX + 1))
            I('v_max_f32', v(MX), v(MX), v(MX + 1))
            for r in range(16):
                I('v_sub_f32', v(NM + r), 0, v(MX))
            for r in range(16):
                I('v_add_f32', v(Sb(8) + r), v(MK + r), v(NM))
        else:
            k.waitcnt(lgkm=11)
        qk(8, v(Sb(8), 16))
        qk(7, v(NM, 16))
        if not exact:
            k.waitcnt(lgkm=4)
        qk(6, v(NM, 16))
        for t in range(8, -1, -1):
            b = Sb(t)
            P = PB + 8 * (t & 1)
            E = lambda r: I('v_exp_f32', v(b + r), v(b + r))
            C = lambda j: I('v_cvt_pk_bf16_f32', v(P + j), v(b + 2 * j), v(b + 2 * j + 1))
            if t - 2 >= 0:
                rdv(t - 2)
            for r in range(9):
                E(r)
            for j in range(4):
                C(j)
                E(9 + j)
            E(13)
            k.waitcnt(lgkm=4 if t - 2 >= 0 else (2 if t == 1 else 0))
            I('v_mfma_f32_32x32x16_bf16', v(OA, 16), v(Vb(t), 4), v(P, 4), 0 if t == 8 else v(OA, 16))
            E(14)
            E(15)
            for j in range(4, 8):
                C(j)
            if t - 3 > 0:
                qk(t - 3, v(NM, 16))
            elif t - 3 == 0:
                for r in range(16):
                    I('v_sub_f32', v(Sb(0) + r), 'v11', v(MK + r))
                for r in range(16):
                    I('v_add_f32', v(Sb(0) + r), v(Sb(0) + r), v(NM))
                qk(0, v(Sb(0), 16))
            if t > 0:
                I('s_cmp_eq_u32', 's14', t)
            I('v_mfma_f32_32x32x16_bf16', v(OA, 16), v(Vb(t) + 4, 4), v(P + 4, 4), v(OA, 16))
            if t > 0:
                I('s_cbranch_scc1', f'L_k2_p2{tag}')
        k.label(f'L_k2_p2{tag}')
        k.nop(12)
        k.waitcnt(lgkm=0)

    def side_loads():
        I('v_lshrrev_b32', 'v8', 3, 'v1')
        I('v_and_b32', 'v9', 7, 'v1')
        I('v_lshlrev_b32', 'v9', 4, 'v9')
        I('v_lshl_add_u32', 'v248', 'v8', 10, 'v9')
        I('v_mul_u32_u24', 'v8', 3584, 'v8')
        I('v_add_u32', 'v8', 'v8', 'v9')
        I('s_lshl_b32', 's69', 's3', 12)
        I('s_add_u32', 's69', 's69', L_SIDE)
        I('s_cmp_eq_u32', 's64', 0)
        I('s_cbranch_scc0', 'L_k2_sl1')
        I('s_mul_i32', 's15', 's66', 16 * 3584)
        I('s_lshl_b32', 's60', 's65', 7)
        I('s_add_u32', 's15', 's15', 's60')
        I('s_add_u32', 's60', 's15', 8 * 3584)
        for m_, ptr in enumerate((S_WG, S_WU)):
            srd(k, 44, ptr, 512 * 3584)
            I('s_add_u32', 'm0', 's69', m_ * 2048)
            I('buffer_load_dwordx4', 'v8', s(44, 4), 's15', mods='offen lds')
            I('s_add_u32', 'm0', 's69', m_ * 2048 + 1024)
            I('buffer_load_dwordx4', 'v8', s(44, 4), 's60', mods='offen lds')
        I('s_branch', 'L_k2_sl2')
        k.label('L_k2_sl1')
        I('s_cmp_eq_u32', 's3', 7)
        I('s_cselect_b32', 's44', s(S_WO), s(S_WD))
        I('s_cselect_b32', 's45', s(S_WO + 1), s(S_WD + 1))
        I('s_mov_b32', 's13', 1792 * 1024)
        I('s_cselect_b32', 's46', 512 * 1024, 's13')
        I('s_mov_b32', 's47', 0x20000)
        I('s_lshr_b32', 's12', 's57', 3)
        I('s_lshl_b32', 's12', 's12', 14)
        I('s_and_b32', 's13', 's57', 7)
        I('s_lshl_b32', 's13', 's13', 7)
        I('s_add_u32', 's12', 's12', 's13')
        I('s_mov_b32', 'm0', 's69')
        I('buffer_load_dwordx4', 'v248', s(44, 4), 's12', mods='offen lds')
        I('s_add_u32', 'm0', 's69', 1024)
        I('s_add_u32', 's12', 's12', 8192)
        I('buffer_load_dwordx4', 'v248', s(44, 4), 's12', mods='offen lds')
        k.label('L_k2_sl2')

    I('s_lshl_b32', 's7', 's5', 3)
    I('s_lshl_b32', 's13', 's3', 1)
    I('s_add_i32', 's7', 's7', 's13')
    I('s_add_i32', 's7', 's7', -8)
    I('s_max_i32', 's7', 's7', 0)
    I('s_lshl_b32', 's7', 's7', 10)
    I('s_add_u32', 's7', 's7', 's9')
    I('s_add_u32', 'm0', 's8', L_K)
    I('s_add_u32', 's13', 's7', KB)
    I('buffer_load_dwordx4', 'v2', s(R_WS, 4), 's13', mods='offen lds')
    I('buffer_load_dwordx4', 'v2', s(R_WS, 4), 's13', mods='offen offset:1024 lds')
    I('buffer_load_dwordx4', v(Q, 4), 'v2', s(R_WS, 4), 's10', mods='offen')
    I('buffer_load_dword', v(MX), 'v12', s(R_WS, 4), 's11', mods='offen')
    I('s_add_u32', 'm0', 's8', L_V)
    I('s_add_u32', 's13', 's7', VB)
    I('buffer_load_dwordx4', 'v2', s(R_WS, 4), 's13', mods='offen lds')
    I('buffer_load_dwordx4', 'v2', s(R_WS, 4), 's13', mods='offen offset:1024 lds')
    I('buffer_load_dwordx4', v(G2R, 4), 'v14', s(R_WS, 4), 's67', mods='offen')
    I('buffer_load_dwordx4', v(G2R + 4, 4), 'v14', s(R_WS, 4), 's67', mods='offen offset:16')
    I('buffer_load_dwordx4', v(SBR, 4), 'v15', s(R_WS, 4), 's68', mods='offen')
    if OPT.get('prio', 0):
        I('s_setprio', 0)
    EARLY = OPT.get('k2early', 0)
    if EARLY:
        k.barrier()
        side_loads()
    consts()
    for r in range(24):
        I('v_mov_b32', v(VF + r), 0x3f803f80)
    I('s_lshl_b32', 's13', 's3', 10)
    I('v_add_u32', 'v246', 's13', 'v2')
    I('v_add_u32', 'v247', 's13', 'v13')
    k.waitcnt(lgkm=0)
    for i in range(1, 9):
        I('s_max_u32', 's48', 's48', s(48 + i))
    k.waitcnt(vm=5 + (2 if EARLY else 0))
    I('v_mul_f32', v(MX), 's48', v(MX))
    I('v_sqrt_f32', v(MX), v(MX))
    for r in range(16):
        I('v_sub_f32', v(NM + r), 0, v(MX))
    for r in range(16):
        I('v_add_f32', v(Sb(8) + r), v(MK + r), v(NM))
    if EARLY:
        I('s_cmp_eq_u32', 's64', 0)
        I('s_cbranch_scc1', 'L_k2_wa')
        k.waitcnt(vm=5)
        I('s_branch', 'L_k2_wb')
        k.label('L_k2_wa', flush=False)
        k.waitcnt(vm=7)
        k.label('L_k2_wb', flush=False)
    else:
        k.waitcnt(vm=3)
    tick(k)
    k.barrier()
    tick(k)
    lds_reads()
    code_prefetch(k, 8, 249, 44, 8)
    if not EARLY:
        side_loads()
    attn('a', exact=False)
    tick(k)
    I('v_mov_b32', v(MX), f32bits(2.0 ** -80))
    I('v_cmp_nge_f32', 'vcc', v(OA + 8), v(MX))
    if OPT.get('k2force'):
        I('s_mov_b64', 'vcc', -1)
    I('s_cbranch_vccz', 'L_k2_fin')
    attn('x', exact=True)
    k.label('L_k2_fin')
    I('v_rcp_f32', v(MX), v(OA + 8))
    for r in range(8):
        I('v_mul_f32', v(OA + r), v(OA + r), v(MX))
    pack8(k, PB, OA)
    I('s_lshl_b32', 's12', 's6', 15)
    I('s_lshl_b32', 's13', 's4', 10)
    I('s_add_u32', 's12', 's12', 's13')
    I('s_add_u32', 's12', 's12', OB)
    I('buffer_store_dwordx4', v(PB, 4), 'v2', s(R_WS, 4), 's12', mods=f'offen {ST_POL}')
    k.waitcnt(vm=1)
    tick(k)
    I('s_cmp_eq_u32', 's64', 0)
    I('s_cbranch_scc1', 'L_k2_gu')
    I('s_mov_b32', 's60', 1024)
    I('s_mov_b32', 's61', 512)
    I('s_cmp_eq_u32', 's3', 7)
    I('s_cselect_b32', 's12', 512, 's60')
    I('s_cselect_b32', 's13', 1024, 's61')
    I('v_mul_lo_u32', 'v8', 'v3', 's12')
    I('v_lshl_add_u32', 'v8', 'v5', 7, 'v8')
    I('v_lshl_add_u32', 'v8', 'v4', 5, 'v8')
    I('v_lshl_add_u32', 'v8', 'v6', 3, 'v8')
    I('v_add_u32', 'v8', 's69', 'v8')
    I('v_add_u32', 'v9', 's13', 'v8')
    RU = KF
    for u in range(2):
        I('ds_read_b64_tr_b16', v(RU + 4 * u, 2), 'v8', mods=f'offset:{u * 64}')
        I('ds_read_b64_tr_b16', v(RU + 4 * u + 2, 2), 'v9', mods=f'offset:{u * 64}')
    I('s_mov_b32', 's60', 114688)
    I('s_cselect_b32', 's60', 32768, 's60')
    I('s_mov_b32', 's61', WD)
    I('s_cselect_b32', 's61', WO, 's61')
    I('s_and_b32', 's12', 's57', 7)
    I('s_lshl_b32', 's12', 's12', 1)
    I('s_mul_i32', 's12', 's12', 's60')
    I('s_add_u32', 's61', 's61', 's12')
    I('s_lshr_b32', 's12', 's57', 3)
    I('s_lshl_b32', 's12', 's12', 10)
    I('s_add_u32', 's61', 's61', 's12')
    I('s_add_u32', 's62', 's61', 's60')
    k.waitcnt(lgkm=0)
    I('buffer_store_dwordx4', v(RU, 4), 'v2', s(R_WS, 4), 's61', mods=f'offen {ST_POL}')
    I('buffer_store_dwordx4', v(RU + 4, 4), 'v2', s(R_WS, 4), 's62', mods=f'offen {ST_POL}')
    I('s_branch', 'L_k2_sw1')
    k.label('L_k2_gu')
    I('v_lshlrev_b32', 'v10', 11, 'v4')
    I('v_lshl_add_u32', 'v11', 'v3', 3, 'v5')
    I('v_lshl_add_u32', 'v10', 'v11', 7, 'v10')
    I('v_lshl_add_u32', 'v10', 'v6', 3, 'v10')
    I('v_add_u32', 'v10', 's69', 'v10')
    RW = KF
    for u in range(4):
        I('ds_read_b64_tr_b16', v(RW + 4 * u, 2), 'v10', mods=f'offset:{u * 32}')
        I('ds_read_b64_tr_b16', v(RW + 4 * u + 2, 2), 'v10', mods=f'offset:{u * 32 + 512}')
    I('s_lshl_b32', 's60', 's65', 2)
    I('s_mul_i32', 's15', 's66', 7168)
    I('s_add_u32', 's15', 's15', W4)
    for u in range(4):
        I('s_add_u32', 's12', 's60', u)
        I('s_mul_i32', 's13', 's12', 147)
        I('s_lshr_b32', 's13', 's13', 10)
        I('s_mul_i32', 's61', 's13', 7)
        I('s_sub_u32', 's12', 's12', 's61')
        I('s_mul_i32', 's13', 's13', W4_NB)
        I('s_lshl_b32', 's12', 's12', 10)
        I('s_add_u32', 's12', 's12', 's13')
        I('s_add_u32', s(48 + u), 's12', 's15')
    for j in range(4):
        I('v_mov_b32', v(240 + j), 0x3f803f80)
    I('s_mul_i32', 's62', 's66', 28672)
    I('s_lshl_b32', 's63', 's60', 7)
    I('s_add_u32', 's62', 's62', 's63')
    I('s_add_u32', 's62', 's62', CSP)
    I('v_mul_u32_u24', 'v8', 14336, 'v3')
    I('v_add_u32', 'v8', 'v8', 'v12')
    I('v_cmp_eq_u32', 'vcc', 0, 'v3')
    BS = [96, 112, SB_, SB_ + 16]
    CS = [SB_ + 32, PB, OA, NM]
    T = MK
    for u in range(4):
        k.waitcnt(lgkm=6 - 2 * u)
        I('v_mfma_f32_32x32x16_bf16', v(BS[u], 16), v(SBR, 4), v(RW + 4 * u, 4), 0)
        unpack8(k, T + 8 * (u & 1), RW + 4 * u)
        for j in range(8):
            I('v_mul_f32', v(T + 8 * (u & 1) + j), v(T + 8 * (u & 1) + j), v(G2R + j))
        pack8(k, RW + 16 + 4 * u, T + 8 * (u & 1))
        I('buffer_store_dwordx4', v(RW + 16 + 4 * u, 4), 'v2', s(R_WS, 4), s(48 + u), mods=f'offen {ST_POL}')
        I('v_mfma_f32_32x32x16_bf16', v(CS[u], 16), v(240, 4), v(RW + 16 + 4 * u, 4), 0)
    for u in range(4):
        I('v_cndmask_b32', v(244 + u), v(BS[u]), v(CS[u]), 'vcc')
        I('buffer_store_dword', v(244 + u), 'v8', s(R_WS, 4), 's62', mods=f'offen offset:{128 * u}')
    k.label('L_k2_sw1')
    epilogue(k, 2, vtmp=4)
    return k, 256, 512, LDS


def gen_gemm64(name, idx, NS, A_BASE, A_TB, B_BASE, B_NF, is_k3):
    k = Kernel(name)
    I = k.I
    LDS = 4 * 3 * 4096 + 1024
    prologue(k, 256, need_lo=is_k3)
    xcd_map(k, 3, 4, 5, OPT.get('x3' if is_k3 else 'x5', 2))
    I('v_lshlrev_b32', 'v2', 4, 'v1')
    I('v_lshrrev_b32', 'v3', 5, 'v1')
    I('v_and_b32', 'v4', 31, 'v1')
    NT = 4 * NS
    ROT = OPT.get('rot64', 0)
    I('s_lshr_b32', 's6', 's2', 3)
    I('s_mul_i32', 's6', 's6', NT * ROT)
    I('s_lshr_b32', 's6', 's6', 5)
    I('s_mul_i32', 's61', 's3', NS)
    I('s_add_u32', 's6', 's6', 's61')
    I('s_cmp_ge_u32', 's6', NT)
    I('s_cselect_b32', 's61', NT, 0)
    I('s_sub_u32', 's6', 's6', 's61')
    I('s_lshl_b32', 's6', 's6', 10)
    I('s_and_b32', 's11', 's3', 1)
    I('s_lshr_b32', 's12', 's3', 1)
    I('s_lshl_b32', 's13', 's4', 1)
    I('s_add_u32', 's13', 's13', 's12')
    I('s_lshl_b32', 's14', 's5', 1)
    I('s_add_u32', 's14', 's14', 's11')
    I('s_mul_i32', 's7', 's13', A_TB)
    I('s_add_u32', 's7', 's7', A_BASE)
    I('s_xor_b32', 's8', 's13', 1)
    I('s_mul_i32', 's8', 's8', A_TB)
    I('s_add_u32', 's8', 's8', A_BASE)
    I('s_mul_i32', 's9', 's14', B_NF)
    I('s_add_u32', 's9', 's9', B_BASE)
    I('s_xor_b32', 's10', 's14', 1)
    I('s_mul_i32', 's10', 's10', B_NF)
    I('s_add_u32', 's10', 's10', B_BASE)
    k.waitcnt(lgkm=0)
    tick(k)
    srd(k, R_WS, S_WS, WS_SIZE)
    ACC = 16
    GV = 80
    XR = 96
    RING = 104
    DEPTH = min(NS, OPT.get('gdepth', 8))
    LOG = []

    def ld(st):
        b = RING + 16 * (st % DEPTH)
        va = 'v11' if st & 1 else 'v12'
        I('v_add_u32', va, 's6', 'v2')
        I('s_add_u32', 's6', 's6', 1024)
        I('s_cmp_eq_u32', 's6', NT * 1024)
        I('s_cselect_b32', 's6', 0, 's6')
        for j, r in enumerate((9, 7, 10, 8)):
            I('buffer_load_dwordx4', v(b + 4 * j, 4), va, s(R_WS, 4), s(r), mods='offen')
            LOG.append(('k', st))

    def side_loads():
        I('s_lshl_b32', 's15', 's14', 7)
        I('s_add_u32', 's15', 's15', MODF + (MF_GA if is_k3 else MF_GB))
        I('v_lshlrev_b32', 'v5', 5, 'v3')
        for sp in range(2):
            for q in range(2):
                I('buffer_load_dwordx4', v(GV + 8 * sp + 4 * q, 4), 'v5', s(R_WS, 4), 's15', mods=f'offen offset:{64 * sp + 16 * q}')
                LOG.append(('s', 0))
        if is_k3:
            srd(k, 44, S_X, 2048 * 1024)
            I('s_lshl_b32', 's15', 's13', 15)
            I('s_lshl_b32', 's60', 's14', 6)
            I('s_add_u32', 's15', 's15', 's60')
            I('v_lshlrev_b32', 'v6', 10, 'v4')
            I('v_lshl_add_u32', 'v6', 'v3', 4, 'v6')
            for sp in range(2):
                I('buffer_load_dwordx4', v(XR + 4 * sp, 4), 'v6', s(44, 4), 's15', mods=f'offen offset:{32 * sp}')
                LOG.append(('s', 0))
        else:
            I('s_lshl_b32', 's15', 's13', 15)
            I('s_lshl_b32', 's60', 's14', 11)
            I('s_add_u32', 's15', 's15', 's60')
            I('s_add_u32', 's15', 's15', X1)
            for sp in range(2):
                I('buffer_load_dwordx4', v(XR + 4 * sp, 4), 'v2', s(R_WS, 4), 's15', mods=f'offen offset:{1024 * sp}')
                LOG.append(('s', 0))

    PRE = min(DEPTH, OPT.get('gpre', 4))
    CSL = [False]
    CPF = [0]
    nxt = 0
    for st in range(PRE):
        ld(st)
        nxt += 1
    side_done = False
    for st in range(NS):
        tgt = min(NS, st + DEPTH)
        n_issue = 0
        while nxt < tgt and n_issue < 2:
            ld(nxt)
            nxt += 1
            n_issue += 1
        if nxt == NS and not side_done:
            side_loads()
            if is_k3:
                I('v_mul_u32_u24', 'v8', 14336, 'v3')
                I('v_lshl_add_u32', 'v8', 'v4', 2, 'v8')
                I('s_min_u32', 's15', 's2', 111)
                I('s_lshl_b32', 's15', 's15', 7)
                I('s_mul_i32', 's60', 's3', 8 * 28672)
                I('s_add_u32', 's15', 's15', 's60')
                I('s_add_u32', 's15', 's15', CSP)
                for p in range(8):
                    I('s_add_u32', 's60', 's15', p * 28672)
                    I('buffer_load_dword', v(232 + p), 'v8', s(R_WS, 4), 's60', mods='offen')
                    LOG.append(('s', 0))
            if code_prefetch(k, 13, 14, 48, 4):
                LOG.append(('s', 0))
                CPF[0] = 1
            side_done = True
        last = max(i for i, e in enumerate(LOG) if e == ('k', st))
        if CSL[0]:
            I('s_cmp_lg_u32', 's3', 0)
            I('s_cbranch_scc1', f'L_{name}_w{st}')
            k.waitcnt(vm=min(63, len(LOG) - 1 - last + 32))
            I('s_branch', f'L_{name}_x{st}')
            k.label(f'L_{name}_w{st}', flush=False)
            k.waitcnt(vm=len(LOG) - 1 - last)
            k.label(f'L_{name}_x{st}', flush=False)
        else:
            k.waitcnt(vm=len(LOG) - 1 - last)
        b = RING + 16 * (st % DEPTH)
        B0, A0, B1, A1 = (v(b + 4 * j, 4) for j in range(4))
        for nfl, tbl in ((0, 1), (1, 0), (1, 1), (0, 0)):
            a_ = ACC + 16 * (2 * nfl + tbl)
            I('v_mfma_f32_32x32x16_bf16', v(a_, 16), (B0, B1)[nfl], (A0, A1)[tbl], 0 if st == 0 else v(a_, 16))
    tick(k)
    for a_ in (1, 2, 3):
        x_ = (a_ >> 1) | ((a_ & 1) << 1)
        I('s_xor_b32', 's15', 's3', x_)
        I('s_mul_i32', 's15', 's15', 12288)
        I('v_add_u32', v(7 + a_), 's15', 'v2')
    for a_ in (1, 2, 3):
        for j in range(4):
            I('ds_write_b128', v(7 + a_), v(ACC + 16 * a_ + 4 * j, 4), mods=f'offset:{(a_ - 1) * 4096 + j * 1024}')
    OWN = ACC
    I('s_mul_i32', 's15', 's3', 12288)
    I('v_add_u32', 'v7', 's15', 'v2')
    if is_k3:
        k.waitcnt(vm=CPF[0])
        for st_ in (4, 2, 1):
            for r in range(st_):
                I('v_add_f32', v(232 + r), v(232 + r), v(232 + r + st_))
        I('v_lshlrev_b32', 'v15', 2, 'v0')
        I('ds_write_b32', 'v15', 'v232', mods='offset:49152')
    k.waitcnt(lgkm=0)
    k.barrier()
    tick(k)
    for p in range(3):
        for j in range(4):
            I('ds_read_b128', v(ACC + 16 + 16 * p + 4 * j, 4), 'v7', mods=f'offset:{p * 4096 + j * 1024}')
    for p in range(3):
        k.waitcnt(lgkm=8 - 4 * p)
        for r in range(16):
            I('v_add_f32', v(OWN + r), v(OWN + r), v(ACC + 16 + 16 * p + r))
    k.waitcnt(vm=CPF[0])
    T = ACC + 32
    unpack8(k, T, XR)
    unpack8(k, T + 8, XR + 4)
    for r in range(16):
        I('v_fmac_f32', v(T + r), v(OWN + r), v(GV + r))
    P = ACC + 16
    pack8(k, P, T)
    pack8(k, P + 4, T + 8)
    if is_k3:
        I('s_lshl_b32', 's15', 's13', 15)
        I('s_lshl_b32', 's60', 's14', 11)
        I('s_add_u32', 's15', 's15', 's60')
        I('s_add_u32', 's15', 's15', X1)
        for sp in range(2):
            I('buffer_store_dwordx4', v(P + 4 * sp, 4), 'v2', s(R_WS, 4), 's15', mods=f'offen offset:{1024 * sp} {ST_POL}')
        unpack8(k, T, P)
        unpack8(k, T + 8, P + 4)
        I('v_add_f32', 'v8', v(T), v(T + 1))
        I('v_add_f32', 'v9', v(T + 2), v(T + 3))
        for r in range(4, 16, 2):
            I('v_add_f32', 'v8', 'v8', v(T + r))
            I('v_add_f32', 'v9', 'v9', v(T + r + 1))
        I('v_add_f32', 'v8', 'v8', 'v9')
        I('v_mov_b32', 'v9', 'v8')
        I('v_permlane32_swap_b32', 'v8', 'v9')
        I('v_add_f32', 'v8', 'v8', 'v9')
        I('v_mul_f32', 'v8', f32bits(1.0 / 32), 'v8')
        for r in range(16):
            I('v_sub_f32', v(T + r), v(T + r), 'v8')
        I('v_mul_f32', 'v9', v(T), v(T))
        I('v_mul_f32', 'v10', v(T + 1), v(T + 1))
        for r in range(2, 16, 2):
            I('v_fmac_f32', 'v9', v(T + r), v(T + r))
            I('v_fmac_f32', 'v10', v(T + r + 1), v(T + r + 1))
        I('v_add_f32', 'v9', 'v9', 'v10')
        I('v_mov_b32', 'v10', 'v9')
        I('v_permlane32_swap_b32', 'v9', 'v10')
        I('v_add_f32', 'v9', 'v9', 'v10')
        I('s_lshl_b32', 's15', 's13', 12)
        I('s_lshl_b32', 's60', 's5', 9)
        I('s_add_u32', 's15', 's15', 's60')
        I('s_lshl_b32', 's60', 's11', 3)
        I('s_add_u32', 's15', 's15', 's60')
        I('s_add_u32', 's15', 's15', ST2)
        I('v_lshlrev_b32', 'v10', 4, 'v4')
        I('s_mov_b32', 'exec_hi', 0)
        I('buffer_store_dwordx2', v(8, 2), 'v10', s(R_WS, 4), 's15', mods='offen')
        I('s_mov_b64', 'exec', -1)
        I('s_cmp_ge_u32', 's2', 112)
        I('s_cbranch_scc1', f'L_{name}_noside')
        I('s_cmp_lg_u32', 's3', 0)
        I('s_cbranch_scc1', f'L_{name}_noside')
        T = RING + 16
        I('v_lshlrev_b32', 'v15', 2, 'v1')
        for p in range(4):
            I('ds_read_b32', v(T + p), 'v15', mods=f'offset:{49152 + 256 * p}')
        k.waitcnt(lgkm=0)
        for st_ in (2, 1):
            for r in range(st_):
                I('v_add_f32', v(T + r), v(T + r), v(T + r + st_))
        I('v_cvt_pk_bf16_f32', v(P), v(T), v(T))
        I('v_and_b32', 'v9', 0xffff0000, v(P))
        I('v_sub_f32', 'v9', v(T), 'v9')
        I('v_cvt_pk_bf16_f32', v(P + 1), 'v9', 'v9')
        I('v_mov_b32', v(P + 2), 0)
        I('v_mov_b32', v(P + 3), 0)
        I('s_mul_i32', 's60', 's2', 147)
        I('s_lshr_b32', 's60', 's60', 10)
        I('s_mul_i32', 's61', 's60', 7)
        I('s_sub_u32', 's61', 's2', 's61')
        I('s_mul_i32', 's60', 's60', W4_NB)
        I('s_lshl_b32', 's61', 's61', 10)
        I('s_add_u32', 's60', 's60', 's61')
        I('s_add_u32', 's60', 's60', W4 + 32 * 7168)
        I('buffer_store_dwordx4', v(P, 4), 'v2', s(R_WS, 4), 's60', mods='offen')
        k.label(f'L_{name}_noside')
    else:
        srd(k, 44, S_OUT, 2048 * 1024)
        I('s_lshl_b32', 's15', 's13', 15)
        I('s_lshl_b32', 's60', 's14', 6)
        I('s_add_u32', 's15', 's15', 's60')
        I('v_lshlrev_b32', 'v6', 10, 'v4')
        I('v_lshl_add_u32', 'v6', 'v3', 4, 'v6')
        for sp in range(2):
            I('buffer_store_dwordx4', v(P + 4 * sp, 4), 'v6', s(44, 4), 's15',
              mods=f'offen offset:{32 * sp}' + (' sc1' if OPT.get('outsc1') else ''))
    epilogue(k, idx, vtmp=4)
    return k, 256, 256, LDS


def gen_k3():
    return gen_gemm64('k3_wo_kernel', 3, 8, OB, 32768, WO, 32768, True)


def gen_k5():
    return gen_gemm64('k5_down_kernel', 5, 28, ACT, 112 * 1024, WD, 112 * 1024, False)


def gen_k4():
    k = Kernel('k4_ffn1_kernel')
    I = k.I
    RES = {2: 131072, 3: 32768, 6: 0}
    LDS = 163840
    NR = 16
    D = OPT.get('k4d', 8)
    assert D <= 16 - OPT.get('k4bi', 2)
    prologue(k, 256, need_lo=False)
    xcd_map(k, 2, 4, 5, OPT.get('x4', 2))
    I('s_and_b32', 's61', 's3', 3)
    I('s_lshr_b32', 's63', 's3', 2)
    I('s_lshl_b32', 's6', 's4', 2)
    I('s_add_u32', 's6', 's6', 's61')
    I('v_lshlrev_b32', 'v2', 4, 'v1')
    I('v_lshrrev_b32', 'v3', 5, 'v1')
    I('v_and_b32', 'v4', 31, 'v1')
    I('s_mul_i32', 's7', 's5', W4_NB)
    I('s_add_u32', 's7', 's7', W4)
    I('s_lshl_b32', 's8', 's3', 10)
    I('s_lshl_b32', 's9', 's6', 15)
    I('s_add_u32', 's9', 's9', X1)
    I('s_and_b32', 's10', 's3', 1)
    I('s_and_b32', 's11', 's3', 2)
    I('s_lshl_b32', 's11', 's11', 1)
    I('s_add_u32', 's10', 's10', 's11')
    I('s_lshl_b32', 's10', 's10', 10)
    I('s_add_u32', 's10', 's10', 's7')
    I('s_mov_b32', 's11', 7168)
    I('s_cmp_eq_u32', 's63', 0)
    I('s_cselect_b32', 's9', 's9', 's10')
    I('s_cselect_b32', 's11', 1024, 's11')
    I('s_mul_i32', 's12', 's3', 7168)
    I('s_add_u32', 's12', 's12', 's7')
    I('s_lshl_b32', 's13', 's61', 10)
    I('v_add_u32', 'v5', 's13', 'v2')
    I('s_lshl_b32', 's13', 's63', 11)
    I('s_add_u32', 's13', 's13', 4096)
    I('v_add_u32', 'v6', 's13', 'v2')
    I('v_add_u32', 'v7', RES[2], 'v2')
    I('s_xor_b32', 's13', 's63', 1)
    I('s_lshl_b32', 's13', 's13', 15)
    I('v_add_u32', 'v15', 's13', 'v2')
    I('v_add_u32', 'v0', 65536, 'v5')
    I('v_add_u32', 'v1', 65536, 'v6')
    k.waitcnt(lgkm=0)
    tick(k)
    srd(k, R_WS, S_WS, WS_SIZE)
    ACC, WF, EXT, T, PK, EXB = 16, 80, 104, 108, 116, 124
    STT = ACC + 48
    EXA = T
    I('s_cmp_eq_u32', 's63', 0)
    I('s_cbranch_scc0', 'L_k4_g1')
    nt0 = getattr(k, 'nticks', 0)
    for grp in range(2):
        k.nticks = nt0
        FA = [0, 1, 2] if grp == 0 else [4, 5]
        FB = 3 if grp == 0 else 6
        NA = len(FA)
        LOG = []

        def ring(s_):
            if s_ >= 32:
                batch(6 if s_ < 36 else 3, (s_ - 32) % 4)
                return
            I('s_add_u32', 'm0', 's8', (s_ % NR) * 8192)
            I('buffer_load_dwordx4', 'v2', s(R_WS, 4), 's9', mods='offen lds')
            I('s_add_u32', 's9', 's9', 's11')
            LOG.append(('r', s_))

        def batch(fr, i):
            I('s_add_u32', 'm0', 's8', RES[fr] + i * 8192)
            I('s_add_u32', 's13', 's12', i * 8 * 7168 + fr * 1024)
            I('buffer_load_dwordx4', 'v2', s(R_WS, 4), 's13', mods='offen lds')
            LOG.append(('b', fr, i))

        def stat_loads():
            I('s_lshl_b32', 's13', 's6', 12)
            I('s_add_u32', 's13', 's13', ST2)
            I('v_lshlrev_b32', 'v8', 11, 'v3')
            I('v_lshl_add_u32', 'v8', 'v4', 4, 'v8')
            for q in range(4):
                I('buffer_load_dwordx4', v(STT + 4 * q, 4), 'v8', s(R_WS, 4), 's13', mods=f'offen offset:{q * 512}')
                LOG.append(('st',))

        def ext_loads():
            I('s_add_u32', 's13', 's7', 32 * 7168)
            for j, f in enumerate(FA):
                I('s_add_u32', 's14', 's13', f * 1024)
                I('buffer_load_dwordx4', v(EXA + 4 * j, 4), 'v2', s(R_WS, 4), 's14', mods='offen')
                LOG.append(('x',))
            I('s_add_u32', 's14', 's13', FB * 1024)
            I('buffer_load_dwordx4', v(EXB, 4), 'v2', s(R_WS, 4), 's14', mods='offen')
            LOG.append(('x',))
            if grp == 1:
                pass

        def wait_tags(tags):
            last = max(i for i, e in enumerate(LOG) if e in tags)
            k.waitcnt(vm=len(LOG) - 1 - last)

        def rd(s_):
            so = (s_ % 8) * 8192
            hi = (s_ % NR) >= 8
            b = WF + 12 * (s_ & 1)
            I('ds_read_b128', a(4 * s_, 4), 'v0' if hi else 'v5', mods=f'offset:{so}')
            for j in range(2):
                I('ds_read_b128', v(b + 4 * j, 4), 'v1' if hi else 'v6', mods=f'offset:{so + j * 1024}')
            if grp == 0:
                I('ds_read_b128', v(b + 8, 4), 'v7', mods=f'offset:{s_ * 1024}')
        NRD = 1 + NA

        def stats_ops():
            c0 = -2.0 * 1.4426950408889634 * math.sqrt(2.0 / math.pi)
            c1 = c0 * 0.044715
            L = []
            A_ = lambda *a_, **kw: L.append(lambda: I(*a_, **kw))
            A_('v_add_f32', 'v8', v(STT), v(STT + 2))
            for r in range(4, 16, 2):
                A_('v_add_f32', 'v8', 'v8', v(STT + r))
            A_('v_mov_b32', 'v9', 'v8')
            A_('v_permlane32_swap_b32', 'v8', 'v9')
            A_('v_add_f32', 'v8', 'v8', 'v9')
            A_('v_mul_f32', 'v8', f32bits(1.0 / 16), 'v8')
            A_('v_add_f32', 'v9', v(STT + 1), v(STT + 3))
            for r in range(5, 16, 2):
                A_('v_add_f32', 'v9', 'v9', v(STT + r))
            A_('v_mov_b32', 'v10', 0)
            for r in range(0, 16, 2):
                A_('v_sub_f32', v(STT + r), v(STT + r), 'v8')
                A_('v_fmac_f32', 'v10', v(STT + r), v(STT + r))
            A_('v_fmac_f32', 'v9', f32bits(32.0), 'v10')
            A_('v_mov_b32', 'v10', 'v9')
            A_('v_permlane32_swap_b32', 'v9', 'v10')
            A_('v_add_f32', 'v9', 'v9', 'v10')
            A_('v_mov_b32', 'v10', f32bits(1e-5))
            A_('v_fmac_f32', 'v10', f32bits(1.0 / 512), 'v9')
            A_('v_rsq_f32', 'v11', 'v10')
            A_('v_mul_f32', 'v12', 'v10', 'v11')
            A_('v_sub_f32', 'v13', 0, 'v8')
            A_('v_cmp_eq_u32', 'vcc', 0, 'v3')
            A_('v_cndmask_b32', 'v13', 'v12', 'v13', 'vcc')
            A_('v_cvt_pk_bf16_f32', 'v14', 'v13', 'v13')
            A_('v_and_b32', 'v14', 0xffff0000, 'v14')
            A_('v_sub_f32', 'v9', 'v13', 'v14')
            A_('v_cvt_pk_bf16_f32', v(EXT), 'v14', 'v9')
            A_('v_mov_b32', v(EXT + 1), v(EXT))
            A_('v_mov_b32', v(EXT + 2), 0)
            A_('v_mov_b32', v(EXT + 3), 0)
            A_('v_mul_f32', 'v12', f32bits(c0), 'v11')
            A_('v_mul_f32', 'v13', 'v11', 'v11')
            A_('v_mul_f32', 'v13', 'v13', 'v11')
            A_('v_mul_f32', 'v13', f32bits(c1), 'v13')
            A_('s_mul_i32', 's60', 's6', 112 * 1024)
            A_('s_mul_i32', 's62', 's5', 7 * 1024)
            A_('s_add_u32', 's60', 's60', 's62')
            A_('s_add_u32', 's60', 's60', ACT + grp * 4096)
            return L

        def epi(ai, f):
            g_ = ACC + 16 * ai
            u_ = g_ + 8
            for e in range(8):
                I('v_mul_f32', v(T + e), v(g_ + e), v(g_ + e))
            for e in range(8):
                I('v_fma_f32', v(T + e), v(T + e), 'v13', 'v12')
            for e in range(8):
                I('v_mul_f32', v(T + e), v(T + e), v(g_ + e))
            for e in range(8):
                I('v_exp_f32', v(T + e), v(T + e))
            for e in range(8):
                I('v_mul_f32', v(u_ + e), v(u_ + e), v(g_ + e))
            for e in range(8):
                I('v_fma_f32', v(T + e), v(T + e), 'v10', 'v10')
            for e in range(8):
                I('v_rcp_f32', v(T + e), v(T + e))
            for e in range(8):
                I('v_mul_f32', v(T + e), v(T + e), v(u_ + e))
            P = PK + 4 * (ai & 1)
            pack8(k, P, T)
            I('buffer_store_dwordx4', v(P, 4), 'v2', s(R_WS, 4), 's60', mods=f'offen offset:{(f % 4) * 1024} {ST_POL}')
            LOG.append(('store',))

        def fragB():
            ai = 3 if grp == 0 else 2
            acc = v(ACC + 16 * ai, 16)
            NB_ = 6
            for u in range(NB_ - 1):
                I('ds_read_b128', v(WF + 4 * u, 4), 'v15', mods=f'offset:{u * 1024}')
            I('v_mfma_f32_32x32x16_bf16', acc, v(EXB, 4), v(EXT, 4), 0)
            for u in range(32):
                n = u + NB_ - 1
                if n < 32:
                    I('ds_read_b128', v(WF + 4 * (n % NB_), 4), 'v15', mods=f'offset:{n * 1024}')
                k.waitcnt(lgkm=min(31, n) - u)
                I('v_mfma_f32_32x32x16_bf16', acc, v(WF + 4 * (u % NB_), 4), a(4 * u, 4), acc)

        extra = {}
        bsched = [(2, 1, 1), (2, 2, 5), (2, 3, 10)]
        for fr, i, at in bsched:
            extra.setdefault(at, []).append(lambda fr=fr, i=i: batch(fr, i))
        extra.setdefault(0, []).append(stat_loads)
        extra.setdefault(16, []).append(ext_loads)
        ring(0)
        batch(2, 0)
        PRE = OPT.get('k4pre', 8)
        for s_ in range(1, PRE):
            ring(s_)
        rn = [PRE]
        if OPT.get('prio', 0):
            I('s_setprio', 0)
        BI = OPT.get('k4bi', 2)
        wait_tags([('r', 0), ('r', 1), ('b', 2, 0)])
        k.barrier()
        tick(k)
        rd(0)
        VQ = []
        for s_ in range(32):
            n = s_ + 1
            if n < 32:
                if n % BI == 0 or n == 2:
                    tags = [('r', x) for x in range(n, n + (BI if n % BI == 0 else BI - 2))]
                    if n % 8 == 0:
                        tags.append(('b', 2, n // 8))
                    wait_tags(tags)
                    k.barrier()
                    if n % 8 == 0:
                        tick(k)
                rd(n)
                k.waitcnt(lgkm=NRD)
            else:
                k.waitcnt(lgkm=0)
            b = WF + 12 * (s_ & 1)
            for j in range(NA):
                I('v_mfma_f32_32x32x16_bf16', v(ACC + 16 * j, 16), v(b + 4 * j, 4), a(4 * s_, 4),
                  0 if s_ == 0 else v(ACC + 16 * j, 16))
                lead = D if rn[0] < 32 else OPT.get('k4db', 6)
                if j < (2 if s_ < OPT.get('k4ramp', 12) or rn[0] >= 32 else 1) and rn[0] <= s_ + lead and rn[0] < 36:
                    ring(rn[0])
                    rn[0] += 1
                if j == 1:
                    for f_ in extra.get(s_, []):
                        f_()
                for _ in range(4):
                    if VQ:
                        VQ.pop(0)()
            if s_ == 10:
                VQ.extend(stats_ops())
        assert not VQ
        tick(k)
        wait_tags([('x',)])
        for j in range(NA):
            I('v_mfma_f32_32x32x16_bf16', v(ACC + 16 * j, 16), v(EXA + 4 * j, 4), v(EXT, 4), v(ACC + 16 * j, 16))
        assert rn[0] == 36
        for i in range(4):
            batch(3, i)
        if grp == 0:
            I('v_lshrrev_b32', 'v1', 4, 'v2')
            if code_prefetch(k, 8, 9, 44, 8):
                LOG.append(('code',))
        wait_tags([('b', 6, 3)])
        k.barrier()
        tick(k)
        if OPT.get('k4wd', 0):
            I('s_lshr_b32', 's13', 's2', 3)
            I('s_lshl_b32', 's13', 's13', 3)
            I('s_add_u32', 's13', 's13', 's3')
            I('s_mul_i32', 's13', 's13', 3584)
            I('s_and_b32', 's14', 's2', 1)
            I('s_mul_i32', 's14', 's14', 8 * 114688)
            I('s_add_u32', 's13', 's13', 's14')
            I('s_add_u32', 's13', 's13', WD)
            I('s_lshl_b32', 's14', 's3', 12)
            I('s_add_u32', 'm0', 's14', RES[2])
            for q in range(4):
                I('buffer_load_dwordx4', 'v2', s(R_WS, 4), 's13', mods=f'offen offset:{min(q * 1024, 2560)} lds')
                LOG.append(('pf',))
        if grp == 0:
            for j, f in enumerate(FA):
                epi(j, f)
            wait_tags([('b', 3, 3)])
            k.barrier()
            tick(k)
            fragB()
            tick(k)
            epi(3, FB)
            I('s_branch', 'L_k4_done')
            k.label('L_k4_g1')
        else:
            fragB()
            wait_tags([('b', 3, 3)])
            k.barrier()
            tick(k)
            for j, f in enumerate(FA):
                epi(j, f)
            tick(k)
            epi(2, FB)
    k.label('L_k4_done')
    epilogue(k, 4, vtmp=4)
    return k, 256, 512, LDS


HEADER = """; adaLN_cond + sliding-window attention + GEGLU FFN block, gfx950 (MI355X).
"""


def build(gens, path):
    hdr, bodies, descs = [], [], []
    global ST_POL
    base_pol = ST_POL
    for gi, g in enumerate(gens):
        ST_POL = '' if (OPT.get('plain', 0) >> gi) & 1 else base_pol
        k, grid, block, lds = g()
        if OPT.get('biglds', 0):
            lds = max(lds, 90112)
        b, d = kernel_text(k)
        bodies.append(b)
        descs.append(d)
        hdr.append(f'; @launch kernel={k.name} grid=({grid},1,1) block=({block},1,1) lds={lds}')
        print(f'{k.name}: {k.n_ins} instr, vgpr {k.max_v + 1}, agpr {k.max_a + 1}, sgpr {k.max_s + 1}, nops {k.nops_inserted}, lds {lds}',
              file=sys.stderr)
    if OPT.get('dup'):
        d_ = OPT['dup'] - 1
        hdr.insert(d_ + 1, hdr[d_])
    out = HEADER + '\n'.join(hdr) + '\n.amdgcn_target "amdgcn-amd-amdhsa--gfx950"\n.text\n' + '\n'.join(bodies) + \
        '\nL_code_end:\n.section .rodata,"a"\n' + '\n'.join(descs)
    open(path, 'w').write(out)


if __name__ == '__main__':
    import argparse
    ap = argparse.ArgumentParser()
    ap.add_argument('-o', default='adaLN_cond__sliding_block__geglu_ffn__prompt.s')
    ap.add_argument('--stamp', action='store_true')
    ap.add_argument('-n', type=int, default=6)
    ap.add_argument('--stpol', default='sc1')
    ap.add_argument('--opt', default='')
    args = ap.parse_args()
    STAMP = args.stamp
    ST_POL = args.stpol
    for kv in args.opt.split(','):
        if kv:
            a_, b_ = kv.split('=')
            OPT[a_] = int(b_)
    allg = [gen_k0, gen_k1]
    for nm in ('gen_k2', 'gen_k3', 'gen_k4', 'gen_k5'):
        if nm in globals():
            allg.append(globals()[nm])
    build(allg[:args.n], args.o)
```

```python
import sys
import struct
import math
from asmlib import *

import os
OVERLAY = os.environ.get('OVERLAY') is not None
XN = 0x0000000
W1 = 0x0200000
W1_NB = 32 * 3072
KB = 0x0380000
VB = 0x0580000
QB = 0x0780000
MODP = 0x0980000
MODP_P = 3072 * 4
MODF = 0x09A0000
MF_GA, MF_G2, MF_GB, MF_SB = 0, 2048, 4096, 6144
NRM = 0x09C0000
TMX = 0x0A40000
ST2 = 0x0A80000
CSP = 0x0B00000
W4 = 0x0C00000
W4_NB = 33 * 7168
WO = 0x1000000
WD = 0x1080000
OB = XN if OVERLAY else 0x1300000
X1 = QB if OVERLAY else 0x1500000
ACT = 0 if OVERLAY else 0x1800000
STAMPS = 0x2000000
WS_SIZE = 0x2100000

STAMP = False
ST_POL = 'sc1'
OPT = {}


def f32bits(x):
    return struct.unpack('<I', struct.pack('<f', x))[0]


S_X, S_WQKV, S_WO, S_BX, S_WG, S_WU, S_WD, S_C = 16, 18, 20, 22, 24, 26, 28, 30
S_WMOD, S_OUT, S_DBG, S_WS = 32, 34, 36, 38
R_WS = 40


def srd(k, d, base, nbytes):
    if base == S_WS and OPT.get('wsoff', 0):
        k.I('s_add_u32', s(d), s(base), OPT['wsoff'] << 20)
        k.I('s_addc_u32', s(d + 1), s(base + 1), 0)
    else:
        k.I('s_mov_b32', s(d), s(base))
        k.I('s_mov_b32', s(d + 1), s(base + 1))
    k.I('s_mov_b32', s(d + 2), nbytes)
    k.I('s_mov_b32', s(d + 3), 0x20000)


def prologue(k, nwg, need_lo=True):
    I = k.I
    if STAMP:
        I('s_memrealtime', s(96, 2))
    I('s_cmp_ge_u32', 's2', nwg)
    I('s_cbranch_scc1', f'L_end_{k.name}')
    if OPT.get('prio', 0) and k.name[1] in '124':
        I('s_setprio', 3)
    if need_lo:
        I('s_load_dwordx16', s(16, 16), s(0, 2), 0)
    I('s_load_dwordx8', s(32, 8), s(0, 2), 64)
    I('v_and_b32', 'v1', 63, 'v0')
    I('v_lshrrev_b32', 'v2', 6, 'v0')
    I('v_readfirstlane_b32', 's3', 'v2')


def xcd_map(k, mbits, dm, dn, xmb=2):
    I = k.I
    mtot = mbits + 2
    jm = mtot - xmb
    if xmb > 0:
        I('s_bfe_u32', s(dm), 's2', (xmb << 16) | (3 - xmb))
        I('s_lshl_b32', s(dm), s(dm), jm)
    else:
        I('s_mov_b32', s(dm), 0)
    I('s_bfe_u32', s(dn), 's2', (jm << 16) | 3)
    I('s_add_u32', s(dm), s(dm), s(dn))
    I('s_and_b32', s(dn), 's2', (1 << (3 - xmb)) - 1)
    I('s_lshl_b32', s(dn), s(dn), 5 - jm)
    I('s_lshr_b32', 's62', 's2', 3 + jm)
    I('s_add_u32', s(dn), s(dn), 's62')


NEXT = {'k0_mod_kernel': ('k1_qkv_kernel', 'k2_attn_kernel'), 'k1_qkv_kernel': ('k2_attn_kernel', 'k3_wo_kernel'),
        'k2_attn_kernel': ('k3_wo_kernel', 'k4_ffn1_kernel'), 'k3_wo_kernel': ('k4_ffn1_kernel', 'k5_down_kernel'),
        'k4_ffn1_kernel': ('k5_down_kernel', 'L_code_end')}


def code_prefetch(k, vt, vdst, sa, nwaves):
    if not OPT.get('codepf', 1) or k.name not in NEXT:
        return False
    I = k.I
    beg, end = NEXT[k.name]
    I('s_getpc_b64', s(sa, 2))
    k.raw(f'L_pc_{k.name}:')
    I('s_lshr_b32', s(sa + 2), 's2', 3)
    I('s_mul_i32', s(sa + 2), s(sa + 2), nwaves)
    I('s_add_u32', s(sa + 2), s(sa + 2), 's3')
    I('s_lshl_b32', s(sa + 2), s(sa + 2), 13)
    I('v_lshlrev_b32', v(vt), 7, 'v1')
    I('v_add_u32', v(vt), s(sa + 2), v(vt))
    I('v_min_u32', v(vt), f'{end}-{beg}-4', v(vt))
    I('v_add_u32', v(vt), f'{beg}-L_pc_{k.name}', v(vt))
    I('global_load_dword', v(vdst), v(vt), s(sa, 2))
    return True


def tick(k):
    if STAMP:
        n = getattr(k, 'nticks', 0)
        assert n < 12
        k.I('s_memrealtime', s(94, 2))
        k.I('s_memtime', s(100, 2))
        k.waitcnt(lgkm=0)
        k.I('s_mov_b32', s(70 + n), 's94')
        k.I('s_mov_b32', s(82 + n), 's100')
        k.nticks = n + 1


def epilogue(k, idx, vtmp=2):
    I = k.I
    if STAMP:
        k.flush()
        tick(k)
        k.waitcnt(vm=0, lgkm=0)
        I('s_memrealtime', s(98, 2))
        k.waitcnt(lgkm=0)
        I('s_cmp_lg_u32', 's3', OPT.get('stw', 0) if k.name[1] in '124' else min(3, OPT.get('stw', 0)))
        I('s_cbranch_scc1', f'L_end_{k.name}')
        I('v_mov_b32', v(vtmp), 's96')
        I('v_mov_b32', v(vtmp + 1), 's98')
        I('s_lshl_b32', 's96', 's2', 3)
        I('s_add_u32', 's96', 's96', STAMPS + idx * 4096)
        I('v_mov_b32', v(vtmp + 2), 's96')
        I('s_mov_b64', 'exec', 1)
        I('buffer_store_dwordx2', v(vtmp, 2), v(vtmp + 2), s(R_WS, 4), 0, mods='offen')
        I('s_lshl_b32', 's96', 's2', 7)
        I('s_add_u32', 's96', 's96', STAMPS + 0x10000 + idx * 0x8000)
        I('v_mov_b32', v(vtmp + 2), 's96')
        for n in range(24):
            I('v_mov_b32', v(vtmp), s(70 + n) if (n % 12) < k.nticks else 0)
            I('buffer_store_dword', v(vtmp), v(vtmp + 2), s(R_WS, 4), 0, mods=f'offen offset:{4 * n}')
    k.label(f'L_end_{k.name}')
    I('s_endpgm')


def wave_sum_to_sgpr(k, regs, sdst):
    I = k.I
    for sh in ('row_shr:1', 'row_shr:2', 'row_shr:4', 'row_shr:8'):
        for r in regs:
            I('v_add_f32', v(r), v(r), v(r), mods=f'{sh} row_mask:0xf bank_mask:0xf')
    for r in regs:
        I('v_add_f32', v(r), v(r), v(r), mods='row_bcast:15 row_mask:0xa bank_mask:0xf')
    for r in regs:
        I('v_add_f32', v(r), v(r), v(r), mods='row_bcast:31 row_mask:0xc bank_mask:0xf')
    for r, sd in zip(regs, sdst):
        I('v_readlane_b32', s(sd), v(r), 63)


def unpack8(k, dst, src):
    for j in range(4):
        k.I('v_lshlrev_b32', v(dst + 2 * j), 16, v(src + j))
        k.I('v_and_b32', v(dst + 2 * j + 1), 0xffff0000, v(src + j))


def pack8(k, dst, src):
    for j in range(4):
        k.I('v_cvt_pk_bf16_f32', v(dst + j), v(src + 2 * j), v(src + 2 * j + 1))


def gen_k0():
    k = Kernel('k0_mod_kernel')
    I = k.I
    L_A = 0
    L_W = 16384
    L_X = 24576
    L_S = 32768
    L_P = 33024
    LDS = 34048
    prologue(k, 256)
    I('s_and_b32', 's4', 's2', 7)
    I('v_lshrrev_b32', 'v2', 3, 'v1')
    I('v_and_b32', 'v3', 7, 'v1')
    I('v_lshlrev_b32', 'v3', 4, 'v3')
    I('v_mul_u32_u24', 'v4', 6144, 'v2')
    I('v_add_u32', 'v4', 'v4', 'v3')
    I('v_mul_u32_u24', 'v5', 3072, 'v2')
    I('v_add_u32', 'v5', 'v5', 'v3')
    I('v_lshlrev_b32', 'v7', 4, 'v1')
    I('s_lshl_b32', 's10', 's4', 5)
    I('s_lshr_b32', 's11', 's2', 3)
    I('s_add_u32', 's10', 's10', 's11')
    I('s_lshl_b32', 's10', 's10', 3)
    I('s_lshl_b32', 's12', 's3', 1)
    I('s_add_u32', 's12', 's10', 's12')
    I('s_lshl_b32', 's12', 's12', 10)
    I('s_min_u32', 's5', 's2', 191)
    I('s_lshr_b32', 's5', 's5', 2)
    I('s_and_b32', 's6', 's2', 3)
    I('s_lshl_b32', 's13', 's6', 7)
    I('s_lshl_b32', 's14', 's3', 5)
    I('s_add_u32', 's13', 's13', 's14')
    I('v_and_b32', 'v6', 15, 'v1')
    I('v_lshlrev_b32', 'v6', 2, 'v6')
    I('s_lshl_b32', 's15', 's13', 1)
    k.waitcnt(lgkm=0)
    tick(k)
    srd(k, R_WS, S_WS, WS_SIZE)
    srd(k, 44, S_WMOD, 512 * 6144)
    srd(k, 48, S_WQKV, 512 * 3072)
    srd(k, 52, S_X, 2048 * 1024)
    srd(k, 56, S_C, 1024)
    LOG = []
    I('buffer_load_dword', 'v8', 'v6', s(56, 4), 's15', mods='offen'); LOG.append('c')
    I('buffer_load_dwordx4', v(12, 4), 'v7', s(52, 4), 's12', mods='offen'); LOG.append('x')
    I('buffer_load_dwordx4', v(16, 4), 'v7', s(52, 4), 's12', mods='offen offset:1024'); LOG.append('x')
    I('s_mul_i32', 's7', 's13', 6144)
    I('s_lshl_b32', 's8', 's5', 7)
    I('s_add_u32', 's7', 's7', 's8')
    I('s_lshl_b32', 's8', 's3', 12)
    for j in range(4):
        I('s_add_u32', 'm0', 's8', L_A + j * 1024)
        I('s_add_u32', 's9', 's7', j * 8 * 6144)
        I('buffer_load_dwordx4', 'v4', s(44, 4), 's9', mods='offen lds'); LOG.append('g')
    I('s_min_u32', 's14', 's3', 2)
    I('s_lshl_b32', 's14', 's14', 10)
    I('s_mul_i32', 's15', 's11', 16 * 3072)
    I('s_add_u32', 's14', 's14', 's15')
    I('s_lshl_b32', 's15', 's4', 7)
    I('s_add_u32', 's14', 's14', 's15')
    I('s_lshl_b32', 's60', 's3', 11)
    for j in range(2):
        I('s_add_u32', 'm0', 's60', L_W + j * 1024)
        I('s_add_u32', 's9', 's14', j * 8 * 3072)
        I('buffer_load_dwordx4', 'v5', s(48, 4), 's9', mods='offen lds'); LOG.append('w')
    if code_prefetch(k, 21, 27, 64, 4):
        LOG.append('code')
    if OPT.get('k0tlb', 0):
        I('s_cmp_eq_u32', 's3', 0)
        I('s_cselect_b32', 's64', s(S_WG), s(S_WU))
        I('s_cselect_b32', 's65', s(S_WG + 1), s(S_WU + 1))
        I('s_cmp_eq_u32', 's3', 2)
        I('s_cselect_b32', 's64', s(S_WD), 's64')
        I('s_cselect_b32', 's65', s(S_WD + 1), 's65')
        I('s_cmp_eq_u32', 's3', 3)
        I('s_cselect_b32', 's64', s(S_WO), 's64')
        I('s_cselect_b32', 's65', s(S_WO + 1), 's65')
        I('s_mov_b32', 's9', 1792 * 1024)
        I('s_cselect_b32', 's66', 512 * 1024, 's9')
        I('s_cmp_lt_u32', 's2', 16)
        I('s_cselect_b32', 's66', 's66', 0)
        I('s_mov_b32', 's67', 0x20000)
        I('v_lshlrev_b32', 'v21', 15, 'v1')
        I('buffer_load_dword', 'v27', 'v21', s(64, 4), 0, mods='offen'); LOG.append('tlb')
    tick(k)

    def wait_for(tag):
        last = max(i for i, e in enumerate(LOG) if e == tag)
        k.waitcnt(vm=len(LOG) - 1 - last)
    I('v_lshrrev_b32', 'v2', 4, 'v1')
    I('v_bfe_u32', 'v3', 'v1', 2, 2)
    I('v_and_b32', 'v9', 3, 'v1')
    I('v_lshl_add_u32', 'v20', 'v2', 3, 'v3')
    I('v_lshlrev_b32', 'v20', 7, 'v20')
    I('v_lshl_add_u32', 'v20', 'v9', 3, 'v20')
    I('v_add_u32', 'v20', 's8', 'v20')
    I('s_lshl_b32', 's9', 's3', 6)
    I('s_add_u32', 's9', 's9', L_S)
    I('v_lshl_add_u32', 'v22', 'v2', 4, 's9')
    I('v_add_u32', 'v23', 's9', 'v6')
    I('v_lshrrev_b32', 'v24', 5, 'v1')
    I('v_lshl_add_u32', 'v25', 'v24', 3, 'v3')
    I('v_lshlrev_b32', 'v25', 7, 'v25')
    I('v_bfe_u32', 'v26', 'v1', 4, 1)
    I('v_lshl_add_u32', 'v25', 'v26', 5, 'v25')
    I('v_lshl_add_u32', 'v25', 'v9', 3, 'v25')
    I('s_add_u32', 's9', 's60', L_W)
    I('v_add_u32', 'v25', 's9', 'v25')
    wait_for('c')
    I('v_lshlrev_b32', 'v9', 16, 'v8')
    I('v_and_b32', 'v10', 0xffff0000, 'v8')
    I('s_mov_b32', 's14', f32bits(-1.4426950408889634))
    for r, t_ in ((9, 28), (10, 29)):
        I('v_mul_f32', v(t_), 's14', v(r))
    for t_ in (28, 29):
        I('v_exp_f32', v(t_), v(t_))
    for t_ in (28, 29):
        I('v_add_f32', v(t_), 1.0, v(t_))
    for t_ in (28, 29):
        I('v_rcp_f32', v(t_), v(t_))
    for r, t_ in ((9, 28), (10, 29)):
        I('v_mul_f32', v(r), v(r), v(t_))
    I('v_cvt_pk_bf16_f32', 'v9', 'v9', 'v10')
    I('ds_write_b32', 'v23', 'v9')
    wait_for('x')
    tick(k)
    unpack8(k, 64, 12)
    unpack8(k, 72, 16)
    k.waitcnt(lgkm=0)
    I('ds_read_b128', v(48, 4), 'v22')
    for b, t_ in ((64, 40), (72, 41)):
        I('v_add_f32', v(t_), v(b), v(b + 1))
        for j in range(2, 8):
            I('v_add_f32', v(t_), v(t_), v(b + j))
    wave_sum_to_sgpr(k, [40, 41], [62, 63])
    I('s_mov_b32', 's14', f32bits(1.0 / 512))
    for t_, sd in ((40, 62), (41, 63)):
        I('v_mov_b32', v(t_), s(sd))
        I('v_mul_f32', v(t_), 's14', v(t_))
    for b, t_ in ((64, 40), (72, 41)):
        for j in range(8):
            I('v_sub_f32', v(b + j), v(b + j), v(t_))
    for b, t_ in ((64, 42), (72, 43)):
        I('v_mul_f32', v(t_), v(b), v(b))
        for j in range(1, 8):
            I('v_fmac_f32', v(t_), v(b + j), v(b + j))
    wave_sum_to_sgpr(k, [42, 43], [62, 63])
    I('s_mov_b32', 's15', f32bits(1e-5))
    for t_, sd in ((42, 62), (43, 63)):
        I('v_mov_b32', v(t_), s(sd))
        I('v_mov_b32', v(44), 's15')
        I('v_fma_f32', v(t_), v(t_), 's14', v(44))
        I('v_rsq_f32', v(t_), v(t_))
    for b, t_ in ((64, 42), (72, 43)):
        for j in range(8):
            I('v_mul_f32', v(b + j), v(b + j), v(t_))
    pack8(k, 12, 64)
    pack8(k, 16, 72)
    I('v_lshlrev_b32', 'v11', 7, 'v1')
    I('s_lshl_b32', 's9', 's3', 5)
    I('s_add_u32', 's9', 's9', L_X)
    I('v_add_u32', 'v11', 's9', 'v11')
    I('ds_write_b128', 'v11', v(12, 4))
    I('ds_write_b128', 'v11', v(16, 4), mods='offset:16')
    wait_for('g')
    tick(k)
    for cg in range(4):
        I('ds_read_b64_tr_b16', v(80 + 4 * cg, 2), 'v20', mods=f'offset:{cg * 32}')
        I('ds_read_b64_tr_b16', v(82 + 4 * cg, 2), 'v20', mods=f'offset:{cg * 32 + 512}')
    for cg in range(4):
        k.waitcnt(lgkm=6 - 2 * cg)
        I('v_mfma_f32_16x16x32_bf16', v(100 + 4 * cg, 4), v(48, 4), v(80 + 4 * cg, 4), 0)
    wait_for('w')
    for u in range(2):
        I('ds_read_b64_tr_b16', v(52 + 4 * u, 2), 'v25', mods=f'offset:{u * 64}')
        I('ds_read_b64_tr_b16', v(54 + 4 * u, 2), 'v25', mods=f'offset:{u * 64 + 512}')
    I('s_lshl_b32', 's9', 's3', 8)
    I('s_add_u32', 's9', 's9', L_P)
    I('v_add_u32', 'v28', 's9', 'v6')
    for cg in range(4):
        I('ds_write_b32', 'v28', v(100 + 4 * cg), mods=f'offset:{cg * 64}')
    I('s_mul_i32', 's9', 's4', 2 * W1_NB)
    I('s_mul_i32', 's14', 's11', 3072)
    I('s_add_u32', 's9', 's9', 's14')
    I('s_lshl_b32', 's14', 's3', 10)
    I('s_add_u32', 's9', 's9', 's14')
    I('s_add_u32', 's9', 's9', W1)
    I('s_add_u32', 's14', 's9', W1_NB)
    k.waitcnt(lgkm=0)
    I('s_cmp_eq_u32', 's3', 3)
    I('s_cbranch_scc1', 'L_k0_now')
    I('buffer_store_dwordx4', v(52, 4), 'v7', s(R_WS, 4), 's9', mods=f'offen {ST_POL}')
    I('buffer_store_dwordx4', v(56, 4), 'v7', s(R_WS, 4), 's14', mods=f'offen {ST_POL}')
    k.label('L_k0_now')
    tick(k)
    k.barrier()
    tick(k)
    I('s_add_u32', 's9', 's60', L_X)
    I('v_add_u32', 'v11', 's9', 'v7')
    I('ds_read_b128', v(12, 4), 'v11')
    I('ds_read_b128', v(16, 4), 'v11', mods='offset:1024')
    I('v_lshlrev_b32', 'v29', 2, 'v1')
    for w in range(4):
        I('ds_read_b32', v(30 + w), 'v29', mods=f'offset:{L_P + w * 256}')
    I('s_lshr_b32', 's12', 's10', 5)
    I('s_lshl_b32', 's12', 's12', 15)
    I('s_and_b32', 's14', 's10', 31)
    I('s_lshl_b32', 's14', 's14', 4)
    I('s_add_u32', 's12', 's12', 's14')
    I('s_lshl_b32', 's14', 's3', 13)
    I('s_add_u32', 's12', 's12', 's14')
    I('s_add_u32', 's12', 's12', XN)
    I('s_add_u32', 's14', 's12', 4096)
    I('v_lshrrev_b32', 'v11', 3, 'v1')
    I('v_lshlrev_b32', 'v11', 9, 'v11')
    I('v_and_b32', 'v10', 7, 'v1')
    I('v_lshl_add_u32', 'v11', 'v10', 4, 'v11')
    k.waitcnt(lgkm=4)
    I('buffer_store_dwordx4', v(12, 4), 'v11', s(R_WS, 4), 's12', mods=f'offen {ST_POL}')
    I('buffer_store_dwordx4', v(16, 4), 'v11', s(R_WS, 4), 's14', mods=f'offen {ST_POL}')
    I('s_cmp_lg_u32', 's3', 3)
    I('s_cbranch_scc1', 'L_k0_done')
    I('s_cmp_ge_u32', 's2', 192)
    I('s_cbranch_scc1', 'L_k0_done')
    k.waitcnt(lgkm=0)
    I('v_add_f32', 'v30', 'v30', 'v31')
    I('v_add_f32', 'v32', 'v32', 'v33')
    I('v_add_f32', 'v30', 'v30', 'v32')
    I('s_mul_i32', 's9', 's6', MODP_P)
    I('s_lshl_b32', 's14', 's5', 8)
    I('s_add_u32', 's9', 's9', 's14')
    I('s_add_u32', 's9', 's9', MODP)
    I('buffer_store_dword', 'v30', 'v29', s(R_WS, 4), 's9', mods='offen')
    k.label('L_k0_done')
    epilogue(k, 0)
    return k, 256, 256, LDS


QSCALE = 0.25 * 1.4426950408889634


def gen_k1():
    k = Kernel('k1_qkv_kernel')
    I = k.I
    L_G = 98304
    L_E = L_G + 4096
    L_PF = L_E + 49152
    LDS = L_PF + 8192
    prologue(k, 256, need_lo=True)
    xcd_map(k, 2, 4, 5, OPT.get('x1', 2))
    I('s_and_b32', 's61', 's3', 3)
    I('s_lshr_b32', 's63', 's3', 2)
    I('s_lshl_b32', 's6', 's4', 2)
    I('s_add_u32', 's6', 's6', 's61')
    I('v_lshlrev_b32', 'v2', 4, 'v1')
    I('v_lshlrev_b32', 'v4', 3, 'v0')
    I('s_lshl_b32', 's8', 's63', 4)
    I('s_add_u32', 's8', 's8', 's61')
    I('s_mul_i32', 's8', 's8', 3072)
    I('s_mul_i32', 's7', 's5', W1_NB)
    I('s_add_u32', 's7', 's7', 's8')
    I('s_add_u32', 's7', 's7', W1)
    I('s_lshl_b32', 's9', 's6', 15)
    I('s_lshl_b32', 's10', 's63', 14)
    I('s_add_u32', 's9', 's9', 's10')
    I('s_add_u32', 's9', 's9', XN)
    k.waitcnt(lgkm=0)
    tick(k)
    srd(k, R_WS, S_WS, WS_SIZE)
    ACC = 16
    TOK = 64
    WF = 128
    GS = 152
    TM = 184
    LOG = []
    FILL = []
    SJ = 192
    I('s_cmp_ge_u32', 's2', 4)
    I('s_cbranch_scc1', 'L_k1_nosj')
    I('s_lshl_b32', 's10', 's2', 11)
    I('s_add_u32', 's10', 's10', MODP + 4096)
    I('v_lshlrev_b32', 'v3', 2, 'v0')
    for p in range(4):
        I('s_add_u32', 's11', 's10', p * MODP_P)
        I('buffer_load_dword', v(SJ + p), 'v3', s(R_WS, 4), 's11', mods='offen')
    k.label('L_k1_nosj')
    for p in range(4):
        I('s_mov_b32', 's10', MODP + p * MODP_P)
        I('buffer_load_dwordx2', v(ACC + 2 * p, 2), 'v4', s(R_WS, 4), 's10', mods='offen')
        LOG.append('m')

    def w_op(c, q):
        def f():
            if q == 0:
                I('s_add_u32', 's10', 's7', c * 12288)
            I('s_add_u32', 'm0', 's8', c * 12288)
            I('buffer_load_dwordx4', 'v2', s(R_WS, 4), 's10', mods=f'offen offset:{q * 1024} lds')
            LOG.append(('w', c))
        return f

    def t_op(i):
        def f():
            if i % 4 == 0:
                I('s_add_u32', 's11', 's9', i * 1024)
            I('buffer_load_dwordx4', v(TOK + 4 * i, 4), 'v2', s(R_WS, 4), 's11', mods=f'offen offset:{(i % 4) * 1024}')
            LOG.append(('t', i))
        return f
    for c in range(4):
        FILL += [w_op(c, q) for q in range(3)] + [t_op(4 * c + q) for q in range(4)]

    def pf_op(ptr, nbytes):
        def f():
            srd(k, 44, ptr, nbytes)
            I('s_lshl_b32', 's12', 's2', 13)
            I('s_lshl_b32', 's13', 's3', 10)
            I('s_add_u32', 's12', 's12', 's13')
            I('s_add_u32', 'm0', 's13', L_PF)
            I('buffer_load_dwordx4', 'v2', s(44, 4), 's12', mods='offen lds')
            LOG.append(('pf',))
        return f
    def cp_op():
        if code_prefetch(k, 7, 196, 44, 8):
            LOG.append(('code',))
    FILL.append(cp_op)
    if OPT.get('k1pf', 0):
        FILL += [pf_op(S_WG, 512 * 3584), pf_op(S_WU, 512 * 3584), pf_op(S_WD, 1792 * 1024), pf_op(S_WO, 512 * 1024)]
    for _ in range(OPT.get('k1pre', 5)):
        FILL.pop(0)()
    if OPT.get('prio', 0):
        I('s_setprio', 0)
    I('s_mul_i32', 's10', 's63', 16 * 3072)
    I('v_add_u32', 'v3', 's10', 'v2')
    I('v_lshrrev_b32', 'v5', 5, 'v1')
    I('v_lshlrev_b32', 'v5', 5, 'v5')
    I('s_lshl_b32', 's10', 's63', 10)
    I('s_add_u32', 's10', 's10', L_G)
    I('v_add_u32', 'v5', 's10', 'v5')
    I('v_add_u32', 'v6', L_G, 'v4')
    k.waitcnt(vm=len(LOG) - 4)
    for e in range(2):
        I('v_add_f32', v(ACC + e), v(ACC + e), v(ACC + 2 + e))
        I('v_add_f32', v(ACC + 4 + e), v(ACC + 4 + e), v(ACC + 6 + e))
    for e in range(2):
        I('v_add_f32', v(ACC + e), v(ACC + e), v(ACC + 4 + e))
    I('v_cvt_pk_bf16_f32', v(ACC + 2), v(ACC), v(ACC + 1))
    I('v_lshlrev_b32', v(ACC), 16, v(ACC + 2))
    I('v_and_b32', v(ACC + 1), 0xffff0000, v(ACC + 2))
    I('s_cmp_eq_u32', 's63', 0)
    I('s_cbranch_scc1', 'L_k1_issa')
    for e in range(2):
        I('v_add_f32', v(ACC + e), 1.0, v(ACC + e))
    I('v_cvt_pk_bf16_f32', v(ACC + 2), v(ACC), v(ACC + 1))
    I('v_lshlrev_b32', v(ACC), 16, v(ACC + 2))
    I('v_and_b32', v(ACC + 1), 0xffff0000, v(ACC + 2))
    k.label('L_k1_issa')
    I('ds_write_b64', 'v6', v(ACC, 2))
    for _ in range(OPT.get('k1pre2', 5)):
        FILL.pop(0)()
    k.waitcnt(lgkm=0)

    def rdw(i):
        st = WF + 12 * (i & 1)
        for f in range(3):
            I('ds_read_b128', v(st + 4 * f, 4), 'v3', mods=f'offset:{i * 3072 + f * 1024}')

    def rdg(i):
        g = GS + 16 * (i & 1)
        for q in range(2):
            I('ds_read_b128', v(g + 4 * q, 4), 'v5', mods=f'offset:{i * 64 + 16 * q}')
        for q in range(2):
            I('ds_read_b128', v(g + 8 + 4 * q, 4), 'v5', mods=f'offset:{2048 + i * 64 + 16 * q}')

    def mod_ops(i):
        g = GS + 16 * (i & 1)
        tk = TOK + 4 * i
        L = []
        A_ = lambda *a_, **kw: L.append(lambda: I(*a_, **kw))
        for j in range(4):
            A_('v_lshlrev_b32', v(TM + 2 * j), 16, v(tk + j))
            A_('v_and_b32', v(TM + 2 * j + 1), 0xffff0000, v(tk + j))
        if OPT.get('k1pk', 0):
            for j in range(4):
                A_('v_pk_fma_f32', v(TM + 2 * j, 2), v(TM + 2 * j, 2), v(g + 8 + 2 * j, 2), v(g + 2 * j, 2))
        else:
            for j in range(8):
                A_('v_fma_f32', v(TM + j), v(TM + j), v(g + 8 + j), v(g + j))
        for j in range(4):
            A_('v_cvt_pk_bf16_f32', v(tk + j), v(TM + 2 * j), v(TM + 2 * j + 1))
        return L

    def need(tags):
        for tg in tags:
            while tg not in LOG or (tg[0] == 'w' and LOG.count(tg) < 3):
                FILL.pop(0)()
        last = max(i for i, e in enumerate(LOG) if e in tags)
        k.waitcnt(vm=len(LOG) - 1 - last)
    need([('w', 0), ('t', 0)])
    k.barrier()
    tick(k)
    rdw(0)
    rdg(0)
    rdg(1)
    k.waitcnt(lgkm=4)
    for f in mod_ops(0):
        f()
    NSTEP = 16
    for i in range(NSTEP):
        nxt = i + 1
        VQ = []
        if nxt < NSTEP:
            if nxt % 4 == 0:
                need([('w', nxt // 4), ('t', nxt)])
                k.barrier()
                tick(k)
            else:
                need([('t', nxt)])
            rdw(nxt)
            if i + 2 < NSTEP:
                rdg(i + 2)
                k.waitcnt(lgkm=7)
            else:
                k.waitcnt(lgkm=3)
            VQ = mod_ops(nxt)
        else:
            k.waitcnt(lgkm=0)
        st = WF + 12 * (i & 1)
        tok = v(TOK + 4 * i, 4)
        n3 = (len(VQ) + 2) // 3
        for f in range(3):
            c = 0 if i == 0 else v(ACC + 16 * f, 16)
            if f < 2:
                I('v_mfma_f32_32x32x16_bf16', v(ACC + 16 * f, 16), v(st + 4 * f, 4), tok, c)
            else:
                I('v_mfma_f32_32x32x16_bf16', v(ACC + 16 * f, 16), tok, v(st + 4 * f, 4), c)
            for _ in range(OPT.get('k1rate', 1) if f < 2 else OPT.get('k1rate', 1) - 1):
                if FILL:
                    FILL.pop(0)()
            for _ in range(n3):
                if VQ:
                    VQ.pop(0)()
    assert not FILL
    tick(k)
    I('s_mul_i32', 's10', 's3', 6144)
    I('s_add_u32', 's10', 's10', L_E)
    I('v_add_u32', 'v6', 's10', 'v2')
    I('s_xor_b32', 's11', 's3', 4)
    I('s_mul_i32', 's11', 's11', 6144)
    I('s_add_u32', 's11', 's11', L_E)
    I('v_add_u32', 'v7', 's11', 'v2')
    I('s_lshl_b32', 's11', 's5', 17)
    I('s_lshl_b32', 's12', 's6', 10)
    I('s_add_u32', 's11', 's11', 's12')
    I('s_mul_i32', 's12', 's63', KB - QB)
    I('s_add_u32', 's12', 's12', 's11')
    I('s_add_u32', 's12', 's12', QB)
    I('s_add_u32', 's13', 's12', 65536)
    I('s_lshl_b32', 's14', 's63', 9)
    I('s_add_u32', 's14', 's14', 's11')
    I('s_add_u32', 's14', 's14', VB)
    I('v_bfe_u32', 'v4', 'v1', 4, 1)
    I('v_lshlrev_b32', 'v4', 16, 'v4')
    I('v_lshrrev_b32', 'v5', 5, 'v1')
    I('v_lshl_add_u32', 'v4', 'v5', 8, 'v4')
    I('v_and_b32', 'v5', 15, 'v1')
    I('v_lshl_add_u32', 'v4', 'v5', 4, 'v4')
    k.flush()
    KEEP = TOK
    I('s_cmp_eq_u32', 's63', 0)
    I('s_cbranch_scc0', 'L_k1_x1')
    for kh in range(2):
        keep = [ACC + 16 * kh + r for r in range(16)] + [ACC + 32 + 8 * kh + r for r in range(8)]
        send = [ACC + 16 * (1 - kh) + 4 * j for j in range(4)] + [ACC + 32 + 8 * (1 - kh) + 4 * j for j in range(2)]
        for j, r in enumerate(send):
            I('ds_write_b128', 'v6', v(r, 4), mods=f'offset:{j * 1024}')
        if kh == 0:
            I('s_mov_b32', 's15', f32bits(QSCALE))
        else:
            I('s_mov_b32', 's15', f32bits(1.0))
        for j, r in enumerate(keep):
            I('v_mov_b32', v(KEEP + j), v(r))
        if kh == 0:
            I('s_branch', 'L_k1_x2')
            k.label('L_k1_x1')
    k.label('L_k1_x2')
    k.waitcnt(lgkm=0)
    k.barrier()
    for j in range(6):
        I('ds_read_b128', v(ACC + 4 * j, 4), 'v7', mods=f'offset:{j * 1024}')
    P = WF
    dst = [('v2', 's12'), ('v2', 's13'), ('v4', 's14')]
    for g in range(3):
        k.waitcnt(lgkm=4 - 2 * g)
        for r in range(8):
            I('v_add_f32', v(KEEP + 8 * g + r), v(KEEP + 8 * g + r), v(ACC + 8 * g + r))
        if g < 2:
            for r in range(8):
                I('v_mul_f32', v(KEEP + 8 * g + r), 's15', v(KEEP + 8 * g + r))
        pack8(k, P + 4 * g, KEEP + 8 * g)
        I('buffer_store_dwordx4', v(P + 4 * g, 4), dst[g][0], s(R_WS, 4), dst[g][1], mods=f'offen {ST_POL}')
    for g in range(2):
        I('v_dot2_f32_bf16', v(8 + g), v(P + 4 * g), v(P + 4 * g), 0)
        I('v_dot2_f32_bf16', v(10 + g), v(P + 4 * g + 1), v(P + 4 * g + 1), 0)
    for g in range(2):
        I('v_dot2_f32_bf16', v(8 + g), v(P + 4 * g + 2), v(P + 4 * g + 2), v(8 + g))
        I('v_dot2_f32_bf16', v(10 + g), v(P + 4 * g + 3), v(P + 4 * g + 3), v(10 + g))
    for g in range(2):
        I('v_add_f32', v(8 + g), v(8 + g), v(10 + g))
    I('v_permlane32_swap_b32', 'v8', 'v9')
    I('v_add_f32', 'v8', 'v8', 'v9')
    I('v_mov_b32', 'v9', 'v8')
    for sh in ('row_shr:1', 'row_shr:2', 'row_shr:4', 'row_shr:8'):
        I('v_max_f32', 'v9', 'v9', 'v9', mods=f'{sh} row_mask:0xf bank_mask:0xf')
    I('v_max_f32', 'v9', 'v9', 'v9', mods='row_bcast:15 row_mask:0xa bank_mask:0xf')
    I('s_lshl_b32', 's10', 's63', 18)
    I('s_lshl_b32', 's11', 's5', 14)
    I('s_add_u32', 's10', 's10', 's11')
    I('s_lshl_b32', 's11', 's6', 7)
    I('s_add_u32', 's10', 's10', 's11')
    I('s_add_u32', 's10', 's10', NRM)
    I('v_lshrrev_b32', 'v10', 5, 'v1')
    I('v_lshlrev_b32', 'v11', 13, 'v10')
    I('v_and_b32', 'v12', 31, 'v1')
    I('v_lshl_add_u32', 'v11', 'v12', 2, 'v11')
    I('buffer_store_dword', 'v8', 'v11', s(R_WS, 4), 's10', mods='offen')
    I('s_lshl_b32', 's10', 's63', 13)
    I('s_lshl_b32', 's11', 's5', 9)
    I('s_add_u32', 's10', 's10', 's11')
    I('s_lshl_b32', 's11', 's6', 2)
    I('s_add_u32', 's10', 's10', 's11')
    I('s_add_u32', 's10', 's10', TMX)
    I('v_lshlrev_b32', 'v11', 8, 'v10')
    I('s_mov_b32', 'exec_lo', 0x80000000)
    I('s_mov_b32', 'exec_hi', 0x80000000)
    I('buffer_store_dword', 'v9', 'v11', s(R_WS, 4), 's10', mods='offen')
    I('s_mov_b64', 'exec', -1)
    I('s_cmp_ge_u32', 's2', 4)
    I('s_cbranch_scc1', 'L_k1_nomod')
    I('v_lshlrev_b32', 'v3', 2, 'v0')
    I('v_add_f32', 'v16', v(SJ), v(SJ + 1))
    I('v_add_f32', 'v18', v(SJ + 2), v(SJ + 3))
    I('v_add_f32', 'v16', 'v16', 'v18')
    I('v_cvt_pk_bf16_f32', 'v17', 'v16', 'v16')
    I('v_and_b32', 'v18', 0xffff0000, 'v17')
    I('v_add_f32', 'v19', 1.0, 'v18')
    I('v_cvt_pk_bf16_f32', 'v19', 'v19', 'v19')
    I('v_and_b32', 'v19', 0xffff0000, 'v19')
    I('s_cmp_eq_u32', 's2', 1)
    I('s_cbranch_scc1', 'L_k1_sb')
    I('s_mov_b32', 's13', MF_GB)
    I('s_cmp_eq_u32', 's2', 2)
    I('s_cselect_b64', 'vcc', -1, 0)
    I('v_cndmask_b32', 'v18', 'v18', 'v19', 'vcc')
    I('s_cselect_b32', 's13', MF_G2, 's13')
    I('s_cmp_eq_u32', 's2', 0)
    I('s_cselect_b32', 's13', MF_GA, 's13')
    I('s_add_u32', 's13', 's13', MODF)
    I('buffer_store_dword', 'v18', 'v3', s(R_WS, 4), 's13', mods='offen')
    I('s_branch', 'L_k1_nomod')
    k.label('L_k1_sb')
    I('s_mov_b32', 's13', MODF + MF_SB)
    I('v_lshlrev_b32', 'v3', 1, 'v0')
    I('buffer_store_short', 'v17', 'v3', s(R_WS, 4), 's13', mods='offen')
    k.label('L_k1_nomod')
    epilogue(k, 1, vtmp=4)
    return k, 256, 512, LDS


BIG = 1e30


def gen_k2():
    k = Kernel('k2_attn_kernel')
    I = k.I
    L_K, L_V, L_SIDE = 0, 16384, 32768
    LDS = L_SIDE + 32768
    Q, KF, VF, SB_, PB, OA, NM, MK = 16, 20, 56, 128, 176, 192, 208, 224
    MX = 244
    G2R, SBR = 80, 88
    Vb = lambda t: VF + 8 * (t % 3)
    prologue(k, 256)
    xcd_map(k, 1, 5, 4)
    I('s_lshl_b32', 's6', 's5', 3)
    I('s_add_u32', 's6', 's6', 's3')
    I('v_lshlrev_b32', 'v2', 4, 'v1')
    I('s_lshl_b32', 's9', 's4', 16)
    I('s_lshl_b32', 's10', 's6', 10)
    I('s_add_u32', 's10', 's10', 's9')
    I('s_add_u32', 's10', 's10', QB)
    I('s_lshl_b32', 's8', 's3', 11)
    I('v_lshrrev_b32', 'v3', 5, 'v1')
    I('v_bfe_u32', 'v4', 'v1', 4, 1)
    I('v_bfe_u32', 'v5', 'v1', 2, 2)
    I('v_and_b32', 'v6', 1, 'v1')
    I('v_bfe_u32', 'v7', 'v1', 1, 1)
    I('v_lshl_add_u32', 'v6', 'v6', 1, 'v7')
    I('v_lshlrev_b32', 'v13', 8, 'v3')
    I('v_and_b32', 'v14', 15, 'v1')
    I('v_lshl_add_u32', 'v13', 'v14', 4, 'v13')
    I('v_and_b32', 'v12', 31, 'v1')
    I('v_lshlrev_b32', 'v12', 2, 'v12')
    I('v_lshlrev_b32', 'v14', 5, 'v3')
    I('v_lshlrev_b32', 'v15', 4, 'v3')
    I('s_and_b32', 's12', 's3', 3)
    I('s_mul_i32', 's13', 's2', 3)
    I('s_add_u32', 's13', 's13', 's12')
    I('s_lshr_b32', 's15', 's2', 1)
    I('s_add_u32', 's15', 's15', 768)
    I('s_cmp_eq_u32', 's3', 3)
    I('s_cselect_b32', 's57', 's15', 's13')
    I('s_and_b32', 's15', 's2', 1)
    I('s_lshr_b32', 's13', 's3', 2)
    I('s_cmp_eq_u32', 's3', 3)
    I('s_cselect_b32', 's64', 's15', 's13')
    I('s_cmp_eq_u32', 's3', 7)
    I('s_cselect_b32', 's57', 's2', 's57')
    I('s_mul_i32', 's66', 's57', 2341)
    I('s_lshr_b32', 's66', 's66', 16)
    I('s_min_u32', 's66', 's66', 31)
    I('s_mul_i32', 's65', 's66', 28)
    I('s_sub_u32', 's65', 's57', 's65')
    I('s_lshl_b32', 's67', 's66', 6)
    I('s_add_u32', 's67', 's67', MODF + MF_G2)
    I('s_lshl_b32', 's68', 's66', 5)
    I('s_add_u32', 's68', 's68', MODF + MF_SB)
    I('s_lshl_b32', 's11', 's4', 13)
    I('s_lshl_b32', 's12', 's6', 7)
    I('s_add_u32', 's11', 's11', 's12')
    I('s_add_u32', 's11', 's11', NRM)
    I('s_lshl_b32', 's12', 's4', 8)
    I('s_lshl_b32', 's13', 's6', 2)
    I('s_add_u32', 's12', 's12', 's13')
    I('s_add_u32', 's12', 's12', TMX + 8192 - 32)
    I('s_sub_i32', 's14', 8, 's6')
    I('s_max_i32', 's14', 's14', 0)
    I('s_mov_b32', 's58', 0xffff)
    I('s_mov_b32', 's59', 0xffff)
    k.waitcnt(lgkm=0)
    tick(k)
    srd(k, R_WS, S_WS, WS_SIZE)
    I('s_buffer_load_dwordx8', s(48, 8), s(R_WS, 4), 's12')
    I('s_add_u32', 's12', 's12', 32)
    I('s_buffer_load_dword', 's56', s(R_WS, 4), 's12')
    Sb = lambda t: SB_ + 16 * (t % 3)

    def qk(t, C):
        I('v_mfma_f32_32x32x16_bf16', v(Sb(t), 16), v(KF + 4 * t, 4), v(Q, 4), C)

    def consts():
        I('v_and_b32', 'v10', 31, 'v1')
        I('v_lshlrev_b32', 'v11', 2, 'v3')
        I('v_sub_u32', 'v10', 'v10', 'v11')
        I('v_mov_b32', 'v11', f32bits(-BIG))
        for r in range(0, 16, 2):
            for q in range(2):
                kk = ((r + q) & 3) + 8 * ((r + q) >> 2)
                I('v_cmp_le_i32', s(60 + 2 * q, 2), kk, 'v10')
            for q in range(2):
                I('v_cndmask_b32', v(MK + r + q), 'v11', 0, s(60 + 2 * q, 2))

    def rdv(t):
        I('s_mov_b64', 'exec', s(58, 2))
        for j in range(2):
            I('ds_read_b128', v(Vb(t) + 4 * j, 4), 'v247', mods=f'offset:{L_V + t * 1024 + j * 512}')
        I('s_mov_b64', 'exec', -1)

    def lds_reads():
        for t in range(8, -1, -1):
            I('ds_read_b128', v(KF + 4 * t, 4), 'v246', mods=f'offset:{L_K + t * 1024}')

    def attn(tag, exact):
        rdv(8)
        rdv(7)
        if exact:
            qk(8, v(MK, 16))
            qk(7, 0)
            for t in range(8, -1, -1):
                if t - 2 > 0:
                    qk(t - 2, 0)
                elif t - 2 == 0:
                    for r in range(16):
                        I('v_sub_f32', v(Sb(0) + r), 'v11', v(MK + r))
                    qk(0, v(Sb(0), 16))
                b = Sb(t)
                if t == 8:
                    I('v_max3_f32', v(MX), v(b), v(b + 1), v(b + 2))
                    I('v_max3_f32', v(MX + 1), v(b + 3), v(b + 4), v(b + 5))
                    rest = list(range(6, 16))
                else:
                    rest = list(range(16))
                for i in range(0, len(rest), 2):
                    m = MX + ((i // 2) & 1)
                    I('v_max3_f32', v(m), v(m), v(b + rest[i]), v(b + rest[i + 1]))
                if t > 0:
                    I('s_cmp_eq_u32', 's14', t)
                    I('s_cbranch_scc1', f'L_k2_p1{tag}')
            k.label(f'L_k2_p1{tag}')
            k.nop(12)
            I('v_max_f32', v(MX), v(MX), v(MX + 1))
            I('v_mov_b32', v(MX + 1), v(MX))
            I('v_permlane32_swap_b32', v(MX), v(MX + 1))
            I('v_max_f32', v(MX), v(MX), v(MX + 1))
            for r in range(16):
                I('v_sub_f32', v(NM + r), 0, v(MX))
            for r in range(16):
                I('v_add_f32', v(Sb(8) + r), v(MK + r), v(NM))
        else:
            k.waitcnt(lgkm=11)
        qk(8, v(Sb(8), 16))
        qk(7, v(NM, 16))
        if not exact:
            k.waitcnt(lgkm=4)
        qk(6, v(NM, 16))
        for t in range(8, -1, -1):
            b = Sb(t)
            P = PB + 8 * (t & 1)
            E = lambda r: I('v_exp_f32', v(b + r), v(b + r))
            C = lambda j: I('v_cvt_pk_bf16_f32', v(P + j), v(b + 2 * j), v(b + 2 * j + 1))
            if t - 2 >= 0:
                rdv(t - 2)
            for r in range(9):
                E(r)
            for j in range(4):
                C(j)
                E(9 + j)
            E(13)
            k.waitcnt(lgkm=4 if t - 2 >= 0 else (2 if t == 1 else 0))
            I('v_mfma_f32_32x32x16_bf16', v(OA, 16), v(Vb(t), 4), v(P, 4), 0 if t == 8 else v(OA, 16))
            E(14)
            E(15)
            for j in range(4, 8):
                C(j)
            if t - 3 > 0:
                qk(t - 3, v(NM, 16))
            elif t - 3 == 0:
                for r in range(16):
                    I('v_sub_f32', v(Sb(0) + r), 'v11', v(MK + r))
                for r in range(16):
                    I('v_add_f32', v(Sb(0) + r), v(Sb(0) + r), v(NM))
                qk(0, v(Sb(0), 16))
            if t > 0:
                I('s_cmp_eq_u32', 's14', t)
            I('v_mfma_f32_32x32x16_bf16', v(OA, 16), v(Vb(t) + 4, 4), v(P + 4, 4), v(OA, 16))
            if t > 0:
                I('s_cbranch_scc1', f'L_k2_p2{tag}')
        k.label(f'L_k2_p2{tag}')
        k.nop(12)
        k.waitcnt(lgkm=0)

    def side_loads():
        I('v_lshrrev_b32', 'v8', 3, 'v1')
        I('v_and_b32', 'v9', 7, 'v1')
        I('v_lshlrev_b32', 'v9', 4, 'v9')
        I('v_lshl_add_u32', 'v248', 'v8', 10, 'v9')
        I('v_mul_u32_u24', 'v8', 3584, 'v8')
        I('v_add_u32', 'v8', 'v8', 'v9')
        I('s_lshl_b32', 's69', 's3', 12)
        I('s_add_u32', 's69', 's69', L_SIDE)
        I('s_cmp_eq_u32', 's64', 0)
        I('s_cbranch_scc0', 'L_k2_sl1')
        I('s_mul_i32', 's15', 's66', 16 * 3584)
        I('s_lshl_b32', 's60', 's65', 7)
        I('s_add_u32', 's15', 's15', 's60')
        I('s_add_u32', 's60', 's15', 8 * 3584)
        for m_, ptr in enumerate((S_WG, S_WU)):
            srd(k, 44, ptr, 512 * 3584)
            I('s_add_u32', 'm0', 's69', m_ * 2048)
            I('buffer_load_dwordx4', 'v8', s(44, 4), 's15', mods='offen lds')
            I('s_add_u32', 'm0', 's69', m_ * 2048 + 1024)
            I('buffer_load_dwordx4', 'v8', s(44, 4), 's60', mods='offen lds')
        I('s_branch', 'L_k2_sl2')
        k.label('L_k2_sl1')
        I('s_cmp_eq_u32', 's3', 7)
        I('s_cselect_b32', 's44', s(S_WO), s(S_WD))
        I('s_cselect_b32', 's45', s(S_WO + 1), s(S_WD + 1))
        I('s_mov_b32', 's13', 1792 * 1024)
        I('s_cselect_b32', 's46', 512 * 1024, 's13')
        I('s_mov_b32', 's47', 0x20000)
        I('s_lshr_b32', 's12', 's57', 3)
        I('s_lshl_b32', 's12', 's12', 14)
        I('s_and_b32', 's13', 's57', 7)
        I('s_lshl_b32', 's13', 's13', 7)
        I('s_add_u32', 's12', 's12', 's13')
        I('s_mov_b32', 'm0', 's69')
        I('buffer_load_dwordx4', 'v248', s(44, 4), 's12', mods='offen lds')
        I('s_add_u32', 'm0', 's69', 1024)
        I('s_add_u32', 's12', 's12', 8192)
        I('buffer_load_dwordx4', 'v248', s(44, 4), 's12', mods='offen lds')
        k.label('L_k2_sl2')

    I('s_lshl_b32', 's7', 's5', 3)
    I('s_lshl_b32', 's13', 's3', 1)
    I('s_add_i32', 's7', 's7', 's13')
    I('s_add_i32', 's7', 's7', -8)
    I('s_max_i32', 's7', 's7', 0)
    I('s_lshl_b32', 's7', 's7', 10)
    I('s_add_u32', 's7', 's7', 's9')
    I('s_add_u32', 'm0', 's8', L_K)
    I('s_add_u32', 's13', 's7', KB)
    I('buffer_load_dwordx4', 'v2', s(R_WS, 4), 's13', mods='offen lds')
    I('buffer_load_dwordx4', 'v2', s(R_WS, 4), 's13', mods='offen offset:1024 lds')
    I('buffer_load_dwordx4', v(Q, 4), 'v2', s(R_WS, 4), 's10', mods='offen')
    I('buffer_load_dword', v(MX), 'v12', s(R_WS, 4), 's11', mods='offen')
    I('s_add_u32', 'm0', 's8', L_V)
    I('s_add_u32', 's13', 's7', VB)
    I('buffer_load_dwordx4', 'v2', s(R_WS, 4), 's13', mods='offen lds')
    I('buffer_load_dwordx4', 'v2', s(R_WS, 4), 's13', mods='offen offset:1024 lds')
    I('buffer_load_dwordx4', v(G2R, 4), 'v14', s(R_WS, 4), 's67', mods='offen')
    I('buffer_load_dwordx4', v(G2R + 4, 4), 'v14', s(R_WS, 4), 's67', mods='offen offset:16')
    I('buffer_load_dwordx4', v(SBR, 4), 'v15', s(R_WS, 4), 's68', mods='offen')
    if OPT.get('prio', 0):
        I('s_setprio', 0)
    EARLY = OPT.get('k2early', 0)
    if EARLY:
        k.barrier()
        side_loads()
    consts()
    for r in range(24):
        I('v_mov_b32', v(VF + r), 0x3f803f80)
    I('s_lshl_b32', 's13', 's3', 10)
    I('v_add_u32', 'v246', 's13', 'v2')
    I('v_add_u32', 'v247', 's13', 'v13')
    k.waitcnt(lgkm=0)
    for i in range(1, 9):
        I('s_max_u32', 's48', 's48', s(48 + i))
    k.waitcnt(vm=5 + (2 if EARLY else 0))
    I('v_mul_f32', v(MX), 's48', v(MX))
    I('v_sqrt_f32', v(MX), v(MX))
    for r in range(16):
        I('v_sub_f32', v(NM + r), 0, v(MX))
    for r in range(16):
        I('v_add_f32', v(Sb(8) + r), v(MK + r), v(NM))
    if EARLY:
        I('s_cmp_eq_u32', 's64', 0)
        I('s_cbranch_scc1', 'L_k2_wa')
        k.waitcnt(vm=5)
        I('s_branch', 'L_k2_wb')
        k.label('L_k2_wa', flush=False)
        k.waitcnt(vm=7)
        k.label('L_k2_wb', flush=False)
    else:
        k.waitcnt(vm=3)
    tick(k)
    k.barrier()
    tick(k)
    lds_reads()
    code_prefetch(k, 8, 249, 44, 8)
    if not EARLY:
        side_loads()
    attn('a', exact=False)
    tick(k)
    I('v_mov_b32', v(MX), f32bits(2.0 ** -80))
    I('v_cmp_nge_f32', 'vcc', v(OA + 8), v(MX))
    if OPT.get('k2force'):
        I('s_mov_b64', 'vcc', -1)
    I('s_cbranch_vccz', 'L_k2_fin')
    attn('x', exact=True)
    k.label('L_k2_fin')
    I('v_rcp_f32', v(MX), v(OA + 8))
    for r in range(8):
        I('v_mul_f32', v(OA + r), v(OA + r), v(MX))
    pack8(k, PB, OA)
    I('s_lshl_b32', 's12', 's6', 15)
    I('s_lshl_b32', 's13', 's4', 10)
    I('s_add_u32', 's12', 's12', 's13')
    I('s_add_u32', 's12', 's12', OB)
    I('buffer_store_dwordx4', v(PB, 4), 'v2', s(R_WS, 4), 's12', mods=f'offen {ST_POL}')
    k.waitcnt(vm=1)
    tick(k)
    I('s_cmp_eq_u32', 's64', 0)
    I('s_cbranch_scc1', 'L_k2_gu')
    I('s_mov_b32', 's60', 1024)
    I('s_mov_b32', 's61', 512)
    I('s_cmp_eq_u32', 's3', 7)
    I('s_cselect_b32', 's12', 512, 's60')
    I('s_cselect_b32', 's13', 1024, 's61')
    I('v_mul_lo_u32', 'v8', 'v3', 's12')
    I('v_lshl_add_u32', 'v8', 'v5', 7, 'v8')
    I('v_lshl_add_u32', 'v8', 'v4', 5, 'v8')
    I('v_lshl_add_u32', 'v8', 'v6', 3, 'v8')
    I('v_add_u32', 'v8', 's69', 'v8')
    I('v_add_u32', 'v9', 's13', 'v8')
    RU = KF
    for u in range(2):
        I('ds_read_b64_tr_b16', v(RU + 4 * u, 2), 'v8', mods=f'offset:{u * 64}')
        I('ds_read_b64_tr_b16', v(RU + 4 * u + 2, 2), 'v9', mods=f'offset:{u * 64}')
    I('s_mov_b32', 's60', 114688)
    I('s_cselect_b32', 's60', 32768, 's60')
    I('s_mov_b32', 's61', WD)
    I('s_cselect_b32', 's61', WO, 's61')
    I('s_and_b32', 's12', 's57', 7)
    I('s_lshl_b32', 's12', 's12', 1)
    I('s_mul_i32', 's12', 's12', 's60')
    I('s_add_u32', 's61', 's61', 's12')
    I('s_lshr_b32', 's12', 's57', 3)
    I('s_lshl_b32', 's12', 's12', 10)
    I('s_add_u32', 's61', 's61', 's12')
    I('s_add_u32', 's62', 's61', 's60')
    k.waitcnt(lgkm=0)
    I('buffer_store_dwordx4', v(RU, 4), 'v2', s(R_WS, 4), 's61', mods=f'offen {ST_POL}')
    I('buffer_store_dwordx4', v(RU + 4, 4), 'v2', s(R_WS, 4), 's62', mods=f'offen {ST_POL}')
    I('s_branch', 'L_k2_sw1')
    k.label('L_k2_gu')
    I('v_lshlrev_b32', 'v10', 11, 'v4')
    I('v_lshl_add_u32', 'v11', 'v3', 3, 'v5')
    I('v_lshl_add_u32', 'v10', 'v11', 7, 'v10')
    I('v_lshl_add_u32', 'v10', 'v6', 3, 'v10')
    I('v_add_u32', 'v10', 's69', 'v10')
    RW = KF
    for u in range(4):
        I('ds_read_b64_tr_b16', v(RW + 4 * u, 2), 'v10', mods=f'offset:{u * 32}')
        I('ds_read_b64_tr_b16', v(RW + 4 * u + 2, 2), 'v10', mods=f'offset:{u * 32 + 512}')
    I('s_lshl_b32', 's60', 's65', 2)
    I('s_mul_i32', 's15', 's66', 7168)
    I('s_add_u32', 's15', 's15', W4)
    for u in range(4):
        I('s_add_u32', 's12', 's60', u)
        I('s_mul_i32', 's13', 's12', 147)
        I('s_lshr_b32', 's13', 's13', 10)
        I('s_mul_i32', 's61', 's13', 7)
        I('s_sub_u32', 's12', 's12', 's61')
        I('s_mul_i32', 's13', 's13', W4_NB)
        I('s_lshl_b32', 's12', 's12', 10)
        I('s_add_u32', 's12', 's12', 's13')
        I('s_add_u32', s(48 + u), 's12', 's15')
    for j in range(4):
        I('v_mov_b32', v(240 + j), 0x3f803f80)
    I('s_mul_i32', 's62', 's66', 28672)
    I('s_lshl_b32', 's63', 's60', 7)
    I('s_add_u32', 's62', 's62', 's63')
    I('s_add_u32', 's62', 's62', CSP)
    I('v_mul_u32_u24', 'v8', 14336, 'v3')
    I('v_add_u32', 'v8', 'v8', 'v12')
    I('v_cmp_eq_u32', 'vcc', 0, 'v3')
    BS = [96, 112, SB_, SB_ + 16]
    CS = [SB_ + 32, PB, OA, NM]
    T = MK
    for u in range(4):
        k.waitcnt(lgkm=6 - 2 * u)
        I('v_mfma_f32_32x32x16_bf16', v(BS[u], 16), v(SBR, 4), v(RW + 4 * u, 4), 0)
        unpack8(k, T + 8 * (u & 1), RW + 4 * u)
        for j in range(8):
            I('v_mul_f32', v(T + 8 * (u & 1) + j), v(T + 8 * (u & 1) + j), v(G2R + j))
        pack8(k, RW + 16 + 4 * u, T + 8 * (u & 1))
        I('buffer_store_dwordx4', v(RW + 16 + 4 * u, 4), 'v2', s(R_WS, 4), s(48 + u), mods=f'offen {ST_POL}')
        I('v_mfma_f32_32x32x16_bf16', v(CS[u], 16), v(240, 4), v(RW + 16 + 4 * u, 4), 0)
    for u in range(4):
        I('v_cndmask_b32', v(244 + u), v(BS[u]), v(CS[u]), 'vcc')
        I('buffer_store_dword', v(244 + u), 'v8', s(R_WS, 4), 's62', mods=f'offen offset:{128 * u}')
    k.label('L_k2_sw1')
    epilogue(k, 2, vtmp=4)
    return k, 256, 512, LDS


def gen_gemm64(name, idx, NS, A_BASE, A_TB, B_BASE, B_NF, is_k3):
    k = Kernel(name)
    I = k.I
    LDS = 4 * 3 * 4096 + 1024
    prologue(k, 256, need_lo=is_k3)
    xcd_map(k, 3, 4, 5, OPT.get('x3' if is_k3 else 'x5', 2))
    I('v_lshlrev_b32', 'v2', 4, 'v1')
    I('v_lshrrev_b32', 'v3', 5, 'v1')
    I('v_and_b32', 'v4', 31, 'v1')
    NT = 4 * NS
    ROT = OPT.get('rot64', 0)
    I('s_lshr_b32', 's6', 's2', 3)
    I('s_mul_i32', 's6', 's6', NT * ROT)
    I('s_lshr_b32', 's6', 's6', 5)
    I('s_mul_i32', 's61', 's3', NS)
    I('s_add_u32', 's6', 's6', 's61')
    I('s_cmp_ge_u32', 's6', NT)
    I('s_cselect_b32', 's61', NT, 0)
    I('s_sub_u32', 's6', 's6', 's61')
    I('s_lshl_b32', 's6', 's6', 10)
    I('s_and_b32', 's11', 's3', 1)
    I('s_lshr_b32', 's12', 's3', 1)
    I('s_lshl_b32', 's13', 's4', 1)
    I('s_add_u32', 's13', 's13', 's12')
    I('s_lshl_b32', 's14', 's5', 1)
    I('s_add_u32', 's14', 's14', 's11')
    I('s_mul_i32', 's7', 's13', A_TB)
    I('s_add_u32', 's7', 's7', A_BASE)
    I('s_xor_b32', 's8', 's13', 1)
    I('s_mul_i32', 's8', 's8', A_TB)
    I('s_add_u32', 's8', 's8', A_BASE)
    I('s_mul_i32', 's9', 's14', B_NF)
    I('s_add_u32', 's9', 's9', B_BASE)
    I('s_xor_b32', 's10', 's14', 1)
    I('s_mul_i32', 's10', 's10', B_NF)
    I('s_add_u32', 's10', 's10', B_BASE)
    k.waitcnt(lgkm=0)
    tick(k)
    srd(k, R_WS, S_WS, WS_SIZE)
    ACC = 16
    GV = 80
    XR = 96
    RING = 104
    DEPTH = min(NS, OPT.get('gdepth', 8))
    LOG = []

    def ld(st):
        b = RING + 16 * (st % DEPTH)
        va = 'v11' if st & 1 else 'v12'
        I('v_add_u32', va, 's6', 'v2')
        I('s_add_u32', 's6', 's6', 1024)
        I('s_cmp_eq_u32', 's6', NT * 1024)
        I('s_cselect_b32', 's6', 0, 's6')
        for j, r in enumerate((9, 7, 10, 8)):
            I('buffer_load_dwordx4', v(b + 4 * j, 4), va, s(R_WS, 4), s(r), mods='offen')
            LOG.append(('k', st))

    def side_loads():
        I('s_lshl_b32', 's15', 's14', 7)
        I('s_add_u32', 's15', 's15', MODF + (MF_GA if is_k3 else MF_GB))
        I('v_lshlrev_b32', 'v5', 5, 'v3')
        for sp in range(2):
            for q in range(2):
                I('buffer_load_dwordx4', v(GV + 8 * sp + 4 * q, 4), 'v5', s(R_WS, 4), 's15', mods=f'offen offset:{64 * sp + 16 * q}')
                LOG.append(('s', 0))
        if is_k3:
            srd(k, 44, S_X, 2048 * 1024)
            I('s_lshl_b32', 's15', 's13', 15)
            I('s_lshl_b32', 's60', 's14', 6)
            I('s_add_u32', 's15', 's15', 's60')
            I('v_lshlrev_b32', 'v6', 10, 'v4')
            I('v_lshl_add_u32', 'v6', 'v3', 4, 'v6')
            for sp in range(2):
                I('buffer_load_dwordx4', v(XR + 4 * sp, 4), 'v6', s(44, 4), 's15', mods=f'offen offset:{32 * sp}')
                LOG.append(('s', 0))
        else:
            I('s_lshl_b32', 's15', 's13', 15)
            I('s_lshl_b32', 's60', 's14', 11)
            I('s_add_u32', 's15', 's15', 's60')
            I('s_add_u32', 's15', 's15', X1)
            for sp in range(2):
                I('buffer_load_dwordx4', v(XR + 4 * sp, 4), 'v2', s(R_WS, 4), 's15', mods=f'offen offset:{1024 * sp}')
                LOG.append(('s', 0))

    PRE = min(DEPTH, OPT.get('gpre', 4))
    CSL = [False]
    CPF = [0]
    nxt = 0
    for st in range(PRE):
        ld(st)
        nxt += 1
    side_done = False
    for st in range(NS):
        tgt = min(NS, st + DEPTH)
        n_issue = 0
        while nxt < tgt and n_issue < 2:
            ld(nxt)
            nxt += 1
            n_issue += 1
        if nxt == NS and not side_done:
            side_loads()
            if is_k3:
                I('v_mul_u32_u24', 'v8', 14336, 'v3')
                I('v_lshl_add_u32', 'v8', 'v4', 2, 'v8')
                I('s_min_u32', 's15', 's2', 111)
                I('s_lshl_b32', 's15', 's15', 7)
                I('s_mul_i32', 's60', 's3', 8 * 28672)
                I('s_add_u32', 's15', 's15', 's60')
                I('s_add_u32', 's15', 's15', CSP)
                for p in range(8):
                    I('s_add_u32', 's60', 's15', p * 28672)
                    I('buffer_load_dword', v(232 + p), 'v8', s(R_WS, 4), 's60', mods='offen')
                    LOG.append(('s', 0))
            if code_prefetch(k, 13, 14, 48, 4):
                LOG.append(('s', 0))
                CPF[0] = 1
            side_done = True
        last = max(i for i, e in enumerate(LOG) if e == ('k', st))
        if CSL[0]:
            I('s_cmp_lg_u32', 's3', 0)
            I('s_cbranch_scc1', f'L_{name}_w{st}')
            k.waitcnt(vm=min(63, len(LOG) - 1 - last + 32))
            I('s_branch', f'L_{name}_x{st}')
            k.label(f'L_{name}_w{st}', flush=False)
            k.waitcnt(vm=len(LOG) - 1 - last)
            k.label(f'L_{name}_x{st}', flush=False)
        else:
            k.waitcnt(vm=len(LOG) - 1 - last)
        b = RING + 16 * (st % DEPTH)
        B0, A0, B1, A1 = (v(b + 4 * j, 4) for j in range(4))
        for nfl, tbl in ((0, 1), (1, 0), (1, 1), (0, 0)):
            a_ = ACC + 16 * (2 * nfl + tbl)
            I('v_mfma_f32_32x32x16_bf16', v(a_, 16), (B0, B1)[nfl], (A0, A1)[tbl], 0 if st == 0 else v(a_, 16))
    tick(k)
    for a_ in (1, 2, 3):
        x_ = (a_ >> 1) | ((a_ & 1) << 1)
        I('s_xor_b32', 's15', 's3', x_)
        I('s_mul_i32', 's15', 's15', 12288)
        I('v_add_u32', v(7 + a_), 's15', 'v2')
    for a_ in (1, 2, 3):
        for j in range(4):
            I('ds_write_b128', v(7 + a_), v(ACC + 16 * a_ + 4 * j, 4), mods=f'offset:{(a_ - 1) * 4096 + j * 1024}')
    OWN = ACC
    I('s_mul_i32', 's15', 's3', 12288)
    I('v_add_u32', 'v7', 's15', 'v2')
    if is_k3:
        k.waitcnt(vm=CPF[0])
        for st_ in (4, 2, 1):
            for r in range(st_):
                I('v_add_f32', v(232 + r), v(232 + r), v(232 + r + st_))
        I('v_lshlrev_b32', 'v15', 2, 'v0')
        I('ds_write_b32', 'v15', 'v232', mods='offset:49152')
    k.waitcnt(lgkm=0)
    k.barrier()
    tick(k)
    for p in range(3):
        for j in range(4):
            I('ds_read_b128', v(ACC + 16 + 16 * p + 4 * j, 4), 'v7', mods=f'offset:{p * 4096 + j * 1024}')
    for p in range(3):
        k.waitcnt(lgkm=8 - 4 * p)
        for r in range(16):
            I('v_add_f32', v(OWN + r), v(OWN + r), v(ACC + 16 + 16 * p + r))
    k.waitcnt(vm=CPF[0])
    T = ACC + 32
    unpack8(k, T, XR)
    unpack8(k, T + 8, XR + 4)
    for r in range(16):
        I('v_fmac_f32', v(T + r), v(OWN + r), v(GV + r))
    P = ACC + 16
    pack8(k, P, T)
    pack8(k, P + 4, T + 8)
    if is_k3:
        I('s_lshl_b32', 's15', 's13', 15)
        I('s_lshl_b32', 's60', 's14', 11)
        I('s_add_u32', 's15', 's15', 's60')
        I('s_add_u32', 's15', 's15', X1)
        for sp in range(2):
            I('buffer_store_dwordx4', v(P + 4 * sp, 4), 'v2', s(R_WS, 4), 's15', mods=f'offen offset:{1024 * sp} {ST_POL}')
        unpack8(k, T, P)
        unpack8(k, T + 8, P + 4)
        I('v_add_f32', 'v8', v(T), v(T + 1))
        I('v_add_f32', 'v9', v(T + 2), v(T + 3))
        for r in range(4, 16, 2):
            I('v_add_f32', 'v8', 'v8', v(T + r))
            I('v_add_f32', 'v9', 'v9', v(T + r + 1))
        I('v_add_f32', 'v8', 'v8', 'v9')
        I('v_mov_b32', 'v9', 'v8')
        I('v_permlane32_swap_b32', 'v8', 'v9')
        I('v_add_f32', 'v8', 'v8', 'v9')
        I('v_mul_f32', 'v8', f32bits(1.0 / 32), 'v8')
        for r in range(16):
            I('v_sub_f32', v(T + r), v(T + r), 'v8')
        I('v_mul_f32', 'v9', v(T), v(T))
        I('v_mul_f32', 'v10', v(T + 1), v(T + 1))
        for r in range(2, 16, 2):
            I('v_fmac_f32', 'v9', v(T + r), v(T + r))
            I('v_fmac_f32', 'v10', v(T + r + 1), v(T + r + 1))
        I('v_add_f32', 'v9', 'v9', 'v10')
        I('v_mov_b32', 'v10', 'v9')
        I('v_permlane32_swap_b32', 'v9', 'v10')
        I('v_add_f32', 'v9', 'v9', 'v10')
        I('s_lshl_b32', 's15', 's13', 12)
        I('s_lshl_b32', 's60', 's5', 9)
        I('s_add_u32', 's15', 's15', 's60')
        I('s_lshl_b32', 's60', 's11', 3)
        I('s_add_u32', 's15', 's15', 's60')
        I('s_add_u32', 's15', 's15', ST2)
        I('v_lshlrev_b32', 'v10', 4, 'v4')
        I('s_mov_b32', 'exec_hi', 0)
        I('buffer_store_dwordx2', v(8, 2), 'v10', s(R_WS, 4), 's15', mods='offen')
        I('s_mov_b64', 'exec', -1)
        I('s_cmp_ge_u32', 's2', 112)
        I('s_cbranch_scc1', f'L_{name}_noside')
        I('s_cmp_lg_u32', 's3', 0)
        I('s_cbranch_scc1', f'L_{name}_noside')
        T = RING + 16
        I('v_lshlrev_b32', 'v15', 2, 'v1')
        for p in range(4):
            I('ds_read_b32', v(T + p), 'v15', mods=f'offset:{49152 + 256 * p}')
        k.waitcnt(lgkm=0)
        for st_ in (2, 1):
            for r in range(st_):
                I('v_add_f32', v(T + r), v(T + r), v(T + r + st_))
        I('v_cvt_pk_bf16_f32', v(P), v(T), v(T))
        I('v_and_b32', 'v9', 0xffff0000, v(P))
        I('v_sub_f32', 'v9', v(T), 'v9')
        I('v_cvt_pk_bf16_f32', v(P + 1), 'v9', 'v9')
        I('v_mov_b32', v(P + 2), 0)
        I('v_mov_b32', v(P + 3), 0)
        I('s_mul_i32', 's60', 's2', 147)
        I('s_lshr_b32', 's60', 's60', 10)
        I('s_mul_i32', 's61', 's60', 7)
        I('s_sub_u32', 's61', 's2', 's61')
        I('s_mul_i32', 's60', 's60', W4_NB)
        I('s_lshl_b32', 's61', 's61', 10)
        I('s_add_u32', 's60', 's60', 's61')
        I('s_add_u32', 's60', 's60', W4 + 32 * 7168)
        I('buffer_store_dwordx4', v(P, 4), 'v2', s(R_WS, 4), 's60', mods='offen')
        k.label(f'L_{name}_noside')
    else:
        srd(k, 44, S_OUT, 2048 * 1024)
        I('s_lshl_b32', 's15', 's13', 15)
        I('s_lshl_b32', 's60', 's14', 6)
        I('s_add_u32', 's15', 's15', 's60')
        I('v_lshlrev_b32', 'v6', 10, 'v4')
        I('v_lshl_add_u32', 'v6', 'v3', 4, 'v6')
        for sp in range(2):
            I('buffer_store_dwordx4', v(P + 4 * sp, 4), 'v6', s(44, 4), 's15',
              mods=f'offen offset:{32 * sp}' + (' sc1' if OPT.get('outsc1') else ''))
    epilogue(k, idx, vtmp=4)
    return k, 256, 256, LDS


def gen_k3():
    return gen_gemm64('k3_wo_kernel', 3, 8, OB, 32768, WO, 32768, True)


def gen_k5():
    return gen_gemm64('k5_down_kernel', 5, 28, ACT, 112 * 1024, WD, 112 * 1024, False)


def gen_k4():
    k = Kernel('k4_ffn1_kernel')
    I = k.I
    RES = {2: 131072, 3: 32768, 6: 0}
    LDS = 163840
    NR = 16
    D = OPT.get('k4d', 8)
    assert D <= 16 - OPT.get('k4bi', 2)
    prologue(k, 256, need_lo=False)
    xcd_map(k, 2, 4, 5, OPT.get('x4', 2))
    I('s_and_b32', 's61', 's3', 3)
    I('s_lshr_b32', 's63', 's3', 2)
    I('s_lshl_b32', 's6', 's4', 2)
    I('s_add_u32', 's6', 's6', 's61')
    I('v_lshlrev_b32', 'v2', 4, 'v1')
    I('v_lshrrev_b32', 'v3', 5, 'v1')
    I('v_and_b32', 'v4', 31, 'v1')
    I('s_mul_i32', 's7', 's5', W4_NB)
    I('s_add_u32', 's7', 's7', W4)
    I('s_lshl_b32', 's8', 's3', 10)
    I('s_lshl_b32', 's9', 's6', 15)
    I('s_add_u32', 's9', 's9', X1)
    I('s_and_b32', 's10', 's3', 1)
    I('s_and_b32', 's11', 's3', 2)
    I('s_lshl_b32', 's11', 's11', 1)
    I('s_add_u32', 's10', 's10', 's11')
    I('s_lshl_b32', 's10', 's10', 10)
    I('s_add_u32', 's10', 's10', 's7')
    I('s_mov_b32', 's11', 7168)
    I('s_cmp_eq_u32', 's63', 0)
    I('s_cselect_b32', 's9', 's9', 's10')
    I('s_cselect_b32', 's11', 1024, 's11')
    I('s_mul_i32', 's12', 's3', 7168)
    I('s_add_u32', 's12', 's12', 's7')
    I('s_lshl_b32', 's13', 's61', 10)
    I('v_add_u32', 'v5', 's13', 'v2')
    I('s_lshl_b32', 's13', 's63', 11)
    I('s_add_u32', 's13', 's13', 4096)
    I('v_add_u32', 'v6', 's13', 'v2')
    I('v_add_u32', 'v7', RES[2], 'v2')
    I('s_xor_b32', 's13', 's63', 1)
    I('s_lshl_b32', 's13', 's13', 15)
    I('v_add_u32', 'v15', 's13', 'v2')
    I('v_add_u32', 'v0', 65536, 'v5')
    I('v_add_u32', 'v1', 65536, 'v6')
    k.waitcnt(lgkm=0)
    tick(k)
    srd(k, R_WS, S_WS, WS_SIZE)
    ACC, WF, EXT, T, PK, EXB = 16, 80, 104, 108, 116, 124
    STT = ACC + 48
    EXA = T
    I('s_cmp_eq_u32', 's63', 0)
    I('s_cbranch_scc0', 'L_k4_g1')
    nt0 = getattr(k, 'nticks', 0)
    for grp in range(2):
        k.nticks = nt0
        FA = [0, 1, 2] if grp == 0 else [4, 5]
        FB = 3 if grp == 0 else 6
        NA = len(FA)
        LOG = []

        def ring(s_):
            if s_ >= 32:
                batch(6 if s_ < 36 else 3, (s_ - 32) % 4)
                return
            I('s_add_u32', 'm0', 's8', (s_ % NR) * 8192)
            I('buffer_load_dwordx4', 'v2', s(R_WS, 4), 's9', mods='offen lds')
            I('s_add_u32', 's9', 's9', 's11')
            LOG.append(('r', s_))

        def batch(fr, i):
            I('s_add_u32', 'm0', 's8', RES[fr] + i * 8192)
            I('s_add_u32', 's13', 's12', i * 8 * 7168 + fr * 1024)
            I('buffer_load_dwordx4', 'v2', s(R_WS, 4), 's13', mods='offen lds')
            LOG.append(('b', fr, i))

        def stat_loads():
            I('s_lshl_b32', 's13', 's6', 12)
            I('s_add_u32', 's13', 's13', ST2)
            I('v_lshlrev_b32', 'v8', 11, 'v3')
            I('v_lshl_add_u32', 'v8', 'v4', 4, 'v8')
            for q in range(4):
                I('buffer_load_dwordx4', v(STT + 4 * q, 4), 'v8', s(R_WS, 4), 's13', mods=f'offen offset:{q * 512}')
                LOG.append(('st',))

        def ext_loads():
            I('s_add_u32', 's13', 's7', 32 * 7168)
            for j, f in enumerate(FA):
                I('s_add_u32', 's14', 's13', f * 1024)
                I('buffer_load_dwordx4', v(EXA + 4 * j, 4), 'v2', s(R_WS, 4), 's14', mods='offen')
                LOG.append(('x',))
            I('s_add_u32', 's14', 's13', FB * 1024)
            I('buffer_load_dwordx4', v(EXB, 4), 'v2', s(R_WS, 4), 's14', mods='offen')
            LOG.append(('x',))
            if grp == 1:
                pass

        def wait_tags(tags):
            last = max(i for i, e in enumerate(LOG) if e in tags)
            k.waitcnt(vm=len(LOG) - 1 - last)

        def rd(s_):
            so = (s_ % 8) * 8192
            hi = (s_ % NR) >= 8
            b = WF + 12 * (s_ & 1)
            I('ds_read_b128', a(4 * s_, 4), 'v0' if hi else 'v5', mods=f'offset:{so}')
            for j in range(2):
                I('ds_read_b128', v(b + 4 * j, 4), 'v1' if hi else 'v6', mods=f'offset:{so + j * 1024}')
            if grp == 0:
                I('ds_read_b128', v(b + 8, 4), 'v7', mods=f'offset:{s_ * 1024}')
        NRD = 1 + NA

        def stats_ops():
            c0 = -2.0 * 1.4426950408889634 * math.sqrt(2.0 / math.pi)
            c1 = c0 * 0.044715
            L = []
            A_ = lambda *a_, **kw: L.append(lambda: I(*a_, **kw))
            A_('v_add_f32', 'v8', v(STT), v(STT + 2))
            for r in range(4, 16, 2):
                A_('v_add_f32', 'v8', 'v8', v(STT + r))
            A_('v_mov_b32', 'v9', 'v8')
            A_('v_permlane32_swap_b32', 'v8', 'v9')
            A_('v_add_f32', 'v8', 'v8', 'v9')
            A_('v_mul_f32', 'v8', f32bits(1.0 / 16), 'v8')
            A_('v_add_f32', 'v9', v(STT + 1), v(STT + 3))
            for r in range(5, 16, 2):
                A_('v_add_f32', 'v9', 'v9', v(STT + r))
            A_('v_mov_b32', 'v10', 0)
            for r in range(0, 16, 2):
                A_('v_sub_f32', v(STT + r), v(STT + r), 'v8')
                A_('v_fmac_f32', 'v10', v(STT + r), v(STT + r))
            A_('v_fmac_f32', 'v9', f32bits(32.0), 'v10')
            A_('v_mov_b32', 'v10', 'v9')
            A_('v_permlane32_swap_b32', 'v9', 'v10')
            A_('v_add_f32', 'v9', 'v9', 'v10')
            A_('v_mov_b32', 'v10', f32bits(1e-5))
            A_('v_fmac_f32', 'v10', f32bits(1.0 / 512), 'v9')
            A_('v_rsq_f32', 'v11', 'v10')
            A_('v_mul_f32', 'v12', 'v10', 'v11')
            A_('v_sub_f32', 'v13', 0, 'v8')
            A_('v_cmp_eq_u32', 'vcc', 0, 'v3')
            A_('v_cndmask_b32', 'v13', 'v12', 'v13', 'vcc')
            A_('v_cvt_pk_bf16_f32', 'v14', 'v13', 'v13')
            A_('v_and_b32', 'v14', 0xffff0000, 'v14')
            A_('v_sub_f32', 'v9', 'v13', 'v14')
            A_('v_cvt_pk_bf16_f32', v(EXT), 'v14', 'v9')
            A_('v_mov_b32', v(EXT + 1), v(EXT))
            A_('v_mov_b32', v(EXT + 2), 0)
            A_('v_mov_b32', v(EXT + 3), 0)
            A_('v_mul_f32', 'v12', f32bits(c0), 'v11')
            A_('v_mul_f32', 'v13', 'v11', 'v11')
            A_('v_mul_f32', 'v13', 'v13', 'v11')
            A_('v_mul_f32', 'v13', f32bits(c1), 'v13')
            A_('s_mul_i32', 's60', 's6', 112 * 1024)
            A_('s_mul_i32', 's62', 's5', 7 * 1024)
            A_('s_add_u32', 's60', 's60', 's62')
            A_('s_add_u32', 's60', 's60', ACT + grp * 4096)
            return L

        def epi(ai, f):
            g_ = ACC + 16 * ai
            u_ = g_ + 8
            for e in range(8):
                I('v_mul_f32', v(T + e), v(g_ + e), v(g_ + e))
            for e in range(8):
                I('v_fma_f32', v(T + e), v(T + e), 'v13', 'v12')
            for e in range(8):
                I('v_mul_f32', v(T + e), v(T + e), v(g_ + e))
            for e in range(8):
                I('v_exp_f32', v(T + e), v(T + e))
            for e in range(8):
                I('v_mul_f32', v(u_ + e), v(u_ + e), v(g_ + e))
            for e in range(8):
                I('v_fma_f32', v(T + e), v(T + e), 'v10', 'v10')
            for e in range(8):
                I('v_rcp_f32', v(T + e), v(T + e))
            for e in range(8):
                I('v_mul_f32', v(T + e), v(T + e), v(u_ + e))
            P = PK + 4 * (ai & 1)
            pack8(k, P, T)
            I('buffer_store_dwordx4', v(P, 4), 'v2', s(R_WS, 4), 's60', mods=f'offen offset:{(f % 4) * 1024} {ST_POL}')
            LOG.append(('store',))

        def fragB():
            ai = 3 if grp == 0 else 2
            acc = v(ACC + 16 * ai, 16)
            NB_ = 6
            for u in range(NB_ - 1):
                I('ds_read_b128', v(WF + 4 * u, 4), 'v15', mods=f'offset:{u * 1024}')
            I('v_mfma_f32_32x32x16_bf16', acc, v(EXB, 4), v(EXT, 4), 0)
            for u in range(32):
                n = u + NB_ - 1
                if n < 32:
                    I('ds_read_b128', v(WF + 4 * (n % NB_), 4), 'v15', mods=f'offset:{n * 1024}')
                k.waitcnt(lgkm=min(31, n) - u)
                I('v_mfma_f32_32x32x16_bf16', acc, v(WF + 4 * (u % NB_), 4), a(4 * u, 4), acc)

        extra = {}
        bsched = [(2, 1, 1), (2, 2, 5), (2, 3, 10)]
        for fr, i, at in bsched:
            extra.setdefault(at, []).append(lambda fr=fr, i=i: batch(fr, i))
        extra.setdefault(0, []).append(stat_loads)
        extra.setdefault(16, []).append(ext_loads)
        ring(0)
        batch(2, 0)
        PRE = OPT.get('k4pre', 8)
        for s_ in range(1, PRE):
            ring(s_)
        rn = [PRE]
        if OPT.get('prio', 0):
            I('s_setprio', 0)
        BI = OPT.get('k4bi', 2)
        wait_tags([('r', 0), ('r', 1), ('b', 2, 0)])
        k.barrier()
        tick(k)
        rd(0)
        VQ = []
        for s_ in range(32):
            n = s_ + 1
            if n < 32:
                if n % BI == 0 or n == 2:
                    tags = [('r', x) for x in range(n, n + (BI if n % BI == 0 else BI - 2))]
                    if n % 8 == 0:
                        tags.append(('b', 2, n // 8))
                    wait_tags(tags)
                    k.barrier()
                    if n % 8 == 0:
                        tick(k)
                rd(n)
                k.waitcnt(lgkm=NRD)
            else:
                k.waitcnt(lgkm=0)
            b = WF + 12 * (s_ & 1)
            for j in range(NA):
                I('v_mfma_f32_32x32x16_bf16', v(ACC + 16 * j, 16), v(b + 4 * j, 4), a(4 * s_, 4),
                  0 if s_ == 0 else v(ACC + 16 * j, 16))
                lead = D if rn[0] < 32 else OPT.get('k4db', 6)
                if j < (2 if s_ < OPT.get('k4ramp', 12) or rn[0] >= 32 else 1) and rn[0] <= s_ + lead and rn[0] < 36:
                    ring(rn[0])
                    rn[0] += 1
                if j == 1:
                    for f_ in extra.get(s_, []):
                        f_()
                for _ in range(4):
                    if VQ:
                        VQ.pop(0)()
            if s_ == 10:
                VQ.extend(stats_ops())
        assert not VQ
        tick(k)
        wait_tags([('x',)])
        for j in range(NA):
            I('v_mfma_f32_32x32x16_bf16', v(ACC + 16 * j, 16), v(EXA + 4 * j, 4), v(EXT, 4), v(ACC + 16 * j, 16))
        assert rn[0] == 36
        for i in range(4):
            batch(3, i)
        if grp == 0:
            I('v_lshrrev_b32', 'v1', 4, 'v2')
            if code_prefetch(k, 8, 9, 44, 8):
                LOG.append(('code',))
        wait_tags([('b', 6, 3)])
        k.barrier()
        tick(k)
        if OPT.get('k4wd', 0):
            I('s_lshr_b32', 's13', 's2', 3)
            I('s_lshl_b32', 's13', 's13', 3)
            I('s_add_u32', 's13', 's13', 's3')
            I('s_mul_i32', 's13', 's13', 3584)
            I('s_and_b32', 's14', 's2', 1)
            I('s_mul_i32', 's14', 's14', 8 * 114688)
            I('s_add_u32', 's13', 's13', 's14')
            I('s_add_u32', 's13', 's13', WD)
            I('s_lshl_b32', 's14', 's3', 12)
            I('s_add_u32', 'm0', 's14', RES[2])
            for q in range(4):
                I('buffer_load_dwordx4', 'v2', s(R_WS, 4), 's13', mods=f'offen offset:{min(q * 1024, 2560)} lds')
                LOG.append(('pf',))
        if grp == 0:
            for j, f in enumerate(FA):
                epi(j, f)
            wait_tags([('b', 3, 3)])
            k.barrier()
            tick(k)
            fragB()
            tick(k)
            epi(3, FB)
            I('s_branch', 'L_k4_done')
            k.label('L_k4_g1')
        else:
            fragB()
            wait_tags([('b', 3, 3)])
            k.barrier()
            tick(k)
            for j, f in enumerate(FA):
                epi(j, f)
            tick(k)
            epi(2, FB)
    k.label('L_k4_done')
    epilogue(k, 4, vtmp=4)
    return k, 256, 512, LDS


HEADER = """; adaLN_cond + sliding-window attention + GEGLU FFN block, gfx950 (MI355X).
"""


def build(gens, path):
    hdr, bodies, descs = [], [], []
    global ST_POL
    base_pol = ST_POL
    for gi, g in enumerate(gens):
        ST_POL = '' if (OPT.get('plain', 0) >> gi) & 1 else base_pol
        k, grid, block, lds = g()
        if OPT.get('biglds', 0):
            lds = max(lds, 90112)
        b, d = kernel_text(k)
        bodies.append(b)
        descs.append(d)
        hdr.append(f'; @launch kernel={k.name} grid=({grid},1,1) block=({block},1,1) lds={lds}')
        print(f'{k.name}: {k.n_ins} instr, vgpr {k.max_v + 1}, agpr {k.max_a + 1}, sgpr {k.max_s + 1}, nops {k.nops_inserted}, lds {lds}',
              file=sys.stderr)
    if OPT.get('dup'):
        d_ = OPT['dup'] - 1
        hdr.insert(d_ + 1, hdr[d_])
    out = HEADER + '\n'.join(hdr) + '\n.amdgcn_target "amdgcn-amd-amdhsa--gfx950"\n.text\n' + '\n'.join(bodies) + \
        '\nL_code_end:\n.section .rodata,"a"\n' + '\n'.join(descs)
    open(path, 'w').write(out)


if __name__ == '__main__':
    import argparse
    ap = argparse.ArgumentParser()
    ap.add_argument('-o', default='adaLN_cond__sliding_block__geglu_ffn__prompt.s')
    ap.add_argument('--stamp', action='store_true')
    ap.add_argument('-n', type=int, default=6)
    ap.add_argument('--stpol', default='sc1')
    ap.add_argument('--opt', default='')
    args = ap.parse_args()
    STAMP = args.stamp
    ST_POL = args.stpol
    for kv in args.opt.split(','):
        if kv:
            a_, b_ = kv.split('=')
            OPT[a_] = int(b_)
    allg = [gen_k0, gen_k1]
    for nm in ('gen_k2', 'gen_k3', 'gen_k4', 'gen_k5'):
        if nm in globals():
            allg.append(globals()[nm])
    build(allg[:args.n], args.o)
```

```python
import sys
import struct
import math
from asmlib import *

import os
OVERLAY = os.environ.get('OVERLAY') is not None
XN = 0x0000000
W1 = 0x0200000
W1_NB = 32 * 3072
KB = 0x0380000
VB = 0x0580000
QB = 0x0780000
MODP = 0x0980000
MODP_P = 3072 * 4
MODF = 0x09A0000
MF_GA, MF_G2, MF_GB, MF_SB = 0, 2048, 4096, 6144
NRM = 0x09C0000
TMX = 0x0A40000
ST2 = 0x0A80000
CSP = 0x0B00000
W4 = 0x0C00000
W4_NB = 33 * 7168
WO = 0x1000000
WD = 0x1080000
OB = XN if OVERLAY else 0x1300000
X1 = QB if OVERLAY else 0x1500000
ACT = 0 if OVERLAY else 0x1800000
STAMPS = 0x2000000
WS_SIZE = 0x2100000

STAMP = False
ST_POL = 'sc1'
OPT = {}


def f32bits(x):
    return struct.unpack('<I', struct.pack('<f', x))[0]


S_X, S_WQKV, S_WO, S_BX, S_WG, S_WU, S_WD, S_C = 16, 18, 20, 22, 24, 26, 28, 30
S_WMOD, S_OUT, S_DBG, S_WS = 32, 34, 36, 38
R_WS = 40


def srd(k, d, base, nbytes):
    if base == S_WS and OPT.get('wsoff', 0):
        k.I('s_add_u32', s(d), s(base), OPT['wsoff'] << 20)
        k.I('s_addc_u32', s(d + 1), s(base + 1), 0)
    else:
        k.I('s_mov_b32', s(d), s(base))
        k.I('s_mov_b32', s(d + 1), s(base + 1))
    k.I('s_mov_b32', s(d + 2), nbytes)
    k.I('s_mov_b32', s(d + 3), 0x20000)


def prologue(k, nwg, need_lo=True):
    I = k.I
    if STAMP:
        I('s_memrealtime', s(96, 2))
    I('s_cmp_ge_u32', 's2', nwg)
    I('s_cbranch_scc1', f'L_end_{k.name}')
    if OPT.get('prio', 0) and k.name[1] in '124':
        I('s_setprio', 3)
    if need_lo:
        I('s_load_dwordx16', s(16, 16), s(0, 2), 0)
    I('s_load_dwordx8', s(32, 8), s(0, 2), 64)
    I('v_and_b32', 'v1', 63, 'v0')
    I('v_lshrrev_b32', 'v2', 6, 'v0')
    I('v_readfirstlane_b32', 's3', 'v2')


def xcd_map(k, mbits, dm, dn, xmb=2):
    I = k.I
    mtot = mbits + 2
    jm = mtot - xmb
    if xmb > 0:
        I('s_bfe_u32', s(dm), 's2', (xmb << 16) | (3 - xmb))
        I('s_lshl_b32', s(dm), s(dm), jm)
    else:
        I('s_mov_b32', s(dm), 0)
    I('s_bfe_u32', s(dn), 's2', (jm << 16) | 3)
    I('s_add_u32', s(dm), s(dm), s(dn))
    I('s_and_b32', s(dn), 's2', (1 << (3 - xmb)) - 1)
    I('s_lshl_b32', s(dn), s(dn), 5 - jm)
    I('s_lshr_b32', 's62', 's2', 3 + jm)
    I('s_add_u32', s(dn), s(dn), 's62')


NEXT = {'k0_mod_kernel': ('k1_qkv_kernel', 'k2_attn_kernel'), 'k1_qkv_kernel': ('k2_attn_kernel', 'k3_wo_kernel'),
        'k2_attn_kernel': ('k3_wo_kernel', 'k4_ffn1_kernel'), 'k3_wo_kernel': ('k4_ffn1_kernel', 'k5_down_kernel'),
        'k4_ffn1_kernel': ('k5_down_kernel', 'L_code_end')}


def code_prefetch(k, vt, vdst, sa, nwaves):
    if not OPT.get('codepf', 1) or k.name not in NEXT:
        return False
    I = k.I
    beg, end = NEXT[k.name]
    I('s_getpc_b64', s(sa, 2))
    k.raw(f'L_pc_{k.name}:')
    I('s_lshr_b32', s(sa + 2), 's2', 3)
    I('s_mul_i32', s(sa + 2), s(sa + 2), nwaves)
    I('s_add_u32', s(sa + 2), s(sa + 2), 's3')
    I('s_lshl_b32', s(sa + 2), s(sa + 2), 13)
    I('v_lshlrev_b32', v(vt), 7, 'v1')
    I('v_add_u32', v(vt), s(sa + 2), v(vt))
    I('v_min_u32', v(vt), f'{end}-{beg}-4', v(vt))
    I('v_add_u32', v(vt), f'{beg}-L_pc_{k.name}', v(vt))
    I('global_load_dword', v(vdst), v(vt), s(sa, 2))
    return True


def tick(k):
    if STAMP:
        n = getattr(k, 'nticks', 0)
        assert n < 12
        k.I('s_memrealtime', s(94, 2))
        k.I('s_memtime', s(100, 2))
        k.waitcnt(lgkm=0)
        k.I('s_mov_b32', s(70 + n), 's94')
        k.I('s_mov_b32', s(82 + n), 's100')
        k.nticks = n + 1


def epilogue(k, idx, vtmp=2):
    I = k.I
    if STAMP:
        k.flush()
        tick(k)
        k.waitcnt(vm=0, lgkm=0)
        I('s_memrealtime', s(98, 2))
        k.waitcnt(lgkm=0)
        I('s_cmp_lg_u32', 's3', OPT.get('stw', 0) if k.name[1] in '124' else min(3, OPT.get('stw', 0)))
        I('s_cbranch_scc1', f'L_end_{k.name}')
        I('v_mov_b32', v(vtmp), 's96')
        I('v_mov_b32', v(vtmp + 1), 's98')
        I('s_lshl_b32', 's96', 's2', 3)
        I('s_add_u32', 's96', 's96', STAMPS + idx * 4096)
        I('v_mov_b32', v(vtmp + 2), 's96')
        I('s_mov_b64', 'exec', 1)
        I('buffer_store_dwordx2', v(vtmp, 2), v(vtmp + 2), s(R_WS, 4), 0, mods='offen')
        I('s_lshl_b32', 's96', 's2', 7)
        I('s_add_u32', 's96', 's96', STAMPS + 0x10000 + idx * 0x8000)
        I('v_mov_b32', v(vtmp + 2), 's96')
        for n in range(24):
            I('v_mov_b32', v(vtmp), s(70 + n) if (n % 12) < k.nticks else 0)
            I('buffer_store_dword', v(vtmp), v(vtmp + 2), s(R_WS, 4), 0, mods=f'offen offset:{4 * n}')
    k.label(f'L_end_{k.name}')
    I('s_endpgm')


def wave_sum_to_sgpr(k, regs, sdst):
    I = k.I
    for sh in ('row_shr:1', 'row_shr:2', 'row_shr:4', 'row_shr:8'):
        for r in regs:
            I('v_add_f32', v(r), v(r), v(r), mods=f'{sh} row_mask:0xf bank_mask:0xf')
    for r in regs:
        I('v_add_f32', v(r), v(r), v(r), mods='row_bcast:15 row_mask:0xa bank_mask:0xf')
    for r in regs:
        I('v_add_f32', v(r), v(r), v(r), mods='row_bcast:31 row_mask:0xc bank_mask:0xf')
    for r, sd in zip(regs, sdst):
        I('v_readlane_b32', s(sd), v(r), 63)


def unpack8(k, dst, src):
    for j in range(4):
        k.I('v_lshlrev_b32', v(dst + 2 * j), 16, v(src + j))
        k.I('v_and_b32', v(dst + 2 * j + 1), 0xffff0000, v(src + j))


def pack8(k, dst, src):
    for j in range(4):
        k.I('v_cvt_pk_bf16_f32', v(dst + j), v(src + 2 * j), v(src + 2 * j + 1))


def gen_k0():
    k = Kernel('k0_mod_kernel')
    I = k.I
    L_A = 0
    L_W = 16384
    L_X = 24576
    L_S = 32768
    L_P = 33024
    LDS = 34048
    prologue(k, 256)
    I('s_and_b32', 's4', 's2', 7)
    I('v_lshrrev_b32', 'v2', 3, 'v1')
    I('v_and_b32', 'v3', 7, 'v1')
    I('v_lshlrev_b32', 'v3', 4, 'v3')
    I('v_mul_u32_u24', 'v4', 6144, 'v2')
    I('v_add_u32', 'v4', 'v4', 'v3')
    I('v_mul_u32_u24', 'v5', 3072, 'v2')
    I('v_add_u32', 'v5', 'v5', 'v3')
    I('v_lshlrev_b32', 'v7', 4, 'v1')
    I('s_lshl_b32', 's10', 's4', 5)
    I('s_lshr_b32', 's11', 's2', 3)
    I('s_add_u32', 's10', 's10', 's11')
    I('s_lshl_b32', 's10', 's10', 3)
    I('s_lshl_b32', 's12', 's3', 1)
    I('s_add_u32', 's12', 's10', 's12')
    I('s_lshl_b32', 's12', 's12', 10)
    I('s_min_u32', 's5', 's2', 191)
    I('s_lshr_b32', 's5', 's5', 2)
    I('s_and_b32', 's6', 's2', 3)
    I('s_lshl_b32', 's13', 's6', 7)
    I('s_lshl_b32', 's14', 's3', 5)
    I('s_add_u32', 's13', 's13', 's14')
    I('v_and_b32', 'v6', 15, 'v1')
    I('v_lshlrev_b32', 'v6', 2, 'v6')
    I('s_lshl_b32', 's15', 's13', 1)
    k.waitcnt(lgkm=0)
    tick(k)
    srd(k, R_WS, S_WS, WS_SIZE)
    srd(k, 44, S_WMOD, 512 * 6144)
    srd(k, 48, S_WQKV, 512 * 3072)
    srd(k, 52, S_X, 2048 * 1024)
    srd(k, 56, S_C, 1024)
    LOG = []
    I('buffer_load_dword', 'v8', 'v6', s(56, 4), 's15', mods='offen'); LOG.append('c')
    I('buffer_load_dwordx4', v(12, 4), 'v7', s(52, 4), 's12', mods='offen'); LOG.append('x')
    I('buffer_load_dwordx4', v(16, 4), 'v7', s(52, 4), 's12', mods='offen offset:1024'); LOG.append('x')
    I('s_mul_i32', 's7', 's13', 6144)
    I('s_lshl_b32', 's8', 's5', 7)
    I('s_add_u32', 's7', 's7', 's8')
    I('s_lshl_b32', 's8', 's3', 12)
    for j in range(4):
        I('s_add_u32', 'm0', 's8', L_A + j * 1024)
        I('s_add_u32', 's9', 's7', j * 8 * 6144)
        I('buffer_load_dwordx4', 'v4', s(44, 4), 's9', mods='offen lds'); LOG.append('g')
    I('s_min_u32', 's14', 's3', 2)
    I('s_lshl_b32', 's14', 's14', 10)
    I('s_mul_i32', 's15', 's11', 16 * 3072)
    I('s_add_u32', 's14', 's14', 's15')
    I('s_lshl_b32', 's15', 's4', 7)
    I('s_add_u32', 's14', 's14', 's15')
    I('s_lshl_b32', 's60', 's3', 11)
    for j in range(2):
        I('s_add_u32', 'm0', 's60', L_W + j * 1024)
        I('s_add_u32', 's9', 's14', j * 8 * 3072)
        I('buffer_load_dwordx4', 'v5', s(48, 4), 's9', mods='offen lds'); LOG.append('w')
    if code_prefetch(k, 21, 27, 64, 4):
        LOG.append('code')
    if OPT.get('k0tlb', 0):
        I('s_cmp_eq_u32', 's3', 0)
        I('s_cselect_b32', 's64', s(S_WG), s(S_WU))
        I('s_cselect_b32', 's65', s(S_WG + 1), s(S_WU + 1))
        I('s_cmp_eq_u32', 's3', 2)
        I('s_cselect_b32', 's64', s(S_WD), 's64')
        I('s_cselect_b32', 's65', s(S_WD + 1), 's65')
        I('s_cmp_eq_u32', 's3', 3)
        I('s_cselect_b32', 's64', s(S_WO), 's64')
        I('s_cselect_b32', 's65', s(S_WO + 1), 's65')
        I('s_mov_b32', 's9', 1792 * 1024)
        I('s_cselect_b32', 's66', 512 * 1024, 's9')
        I('s_cmp_lt_u32', 's2', 16)
        I('s_cselect_b32', 's66', 's66', 0)
        I('s_mov_b32', 's67', 0x20000)
        I('v_lshlrev_b32', 'v21', 15, 'v1')
        I('buffer_load_dword', 'v27', 'v21', s(64, 4), 0, mods='offen'); LOG.append('tlb')
    tick(k)

    def wait_for(tag):
        last = max(i for i, e in enumerate(LOG) if e == tag)
        k.waitcnt(vm=len(LOG) - 1 - last)
    I('v_lshrrev_b32', 'v2', 4, 'v1')
    I('v_bfe_u32', 'v3', 'v1', 2, 2)
    I('v_and_b32', 'v9', 3, 'v1')
    I('v_lshl_add_u32', 'v20', 'v2', 3, 'v3')
    I('v_lshlrev_b32', 'v20', 7, 'v20')
    I('v_lshl_add_u32', 'v20', 'v9', 3, 'v20')
    I('v_add_u32', 'v20', 's8', 'v20')
    I('s_lshl_b32', 's9', 's3', 6)
    I('s_add_u32', 's9', 's9', L_S)
    I('v_lshl_add_u32', 'v22', 'v2', 4, 's9')
    I('v_add_u32', 'v23', 's9', 'v6')
    I('v_lshrrev_b32', 'v24', 5, 'v1')
    I('v_lshl_add_u32', 'v25', 'v24', 3, 'v3')
    I('v_lshlrev_b32', 'v25', 7, 'v25')
    I('v_bfe_u32', 'v26', 'v1', 4, 1)
    I('v_lshl_add_u32', 'v25', 'v26', 5, 'v25')
    I('v_lshl_add_u32', 'v25', 'v9', 3, 'v25')
    I('s_add_u32', 's9', 's60', L_W)
    I('v_add_u32', 'v25', 's9', 'v25')
    wait_for('c')
    I('v_lshlrev_b32', 'v9', 16, 'v8')
    I('v_and_b32', 'v10', 0xffff0000, 'v8')
    I('s_mov_b32', 's14', f32bits(-1.4426950408889634))
    for r, t_ in ((9, 28), (10, 29)):
        I('v_mul_f32', v(t_), 's14', v(r))
    for t_ in (28, 29):
        I('v_exp_f32', v(t_), v(t_))
    for t_ in (28, 29):
        I('v_add_f32', v(t_), 1.0, v(t_))
    for t_ in (28, 29):
        I('v_rcp_f32', v(t_), v(t_))
    for r, t_ in ((9, 28), (10, 29)):
        I('v_mul_f32', v(r), v(r), v(t_))
    I('v_cvt_pk_bf16_f32', 'v9', 'v9', 'v10')
    I('ds_write_b32', 'v23', 'v9')
    wait_for('x')
    tick(k)
    unpack8(k, 64, 12)
    unpack8(k, 72, 16)
    k.waitcnt(lgkm=0)
    I('ds_read_b128', v(48, 4), 'v22')
    for b, t_ in ((64, 40), (72, 41)):
        I('v_add_f32', v(t_), v(b), v(b + 1))
        for j in range(2, 8):
            I('v_add_f32', v(t_), v(t_), v(b + j))
    wave_sum_to_sgpr(k, [40, 41], [62, 63])
    I('s_mov_b32', 's14', f32bits(1.0 / 512))
    for t_, sd in ((40, 62), (41, 63)):
        I('v_mov_b32', v(t_), s(sd))
        I('v_mul_f32', v(t_), 's14', v(t_))
    for b, t_ in ((64, 40), (72, 41)):
        for j in range(8):
            I('v_sub_f32', v(b + j), v(b + j), v(t_))
    for b, t_ in ((64, 42), (72, 43)):
        I('v_mul_f32', v(t_), v(b), v(b))
        for j in range(1, 8):
            I('v_fmac_f32', v(t_), v(b + j), v(b + j))
    wave_sum_to_sgpr(k, [42, 43], [62, 63])
    I('s_mov_b32', 's15', f32bits(1e-5))
    for t_, sd in ((42, 62), (43, 63)):
        I('v_mov_b32', v(t_), s(sd))
        I('v_mov_b32', v(44), 's15')
        I('v_fma_f32', v(t_), v(t_), 's14', v(44))
        I('v_rsq_f32', v(t_), v(t_))
    for b, t_ in ((64, 42), (72, 43)):
        for j in range(8):
            I('v_mul_f32', v(b + j), v(b + j), v(t_))
    pack8(k, 12, 64)
    pack8(k, 16, 72)
    I('v_lshlrev_b32', 'v11', 7, 'v1')
    I('s_lshl_b32', 's9', 's3', 5)
    I('s_add_u32', 's9', 's9', L_X)
    I('v_add_u32', 'v11', 's9', 'v11')
    I('ds_write_b128', 'v11', v(12, 4))
    I('ds_write_b128', 'v11', v(16, 4), mods='offset:16')
    wait_for('g')
    tick(k)
    for cg in range(4):
        I('ds_read_b64_tr_b16', v(80 + 4 * cg, 2), 'v20', mods=f'offset:{cg * 32}')
        I('ds_read_b64_tr_b16', v(82 + 4 * cg, 2), 'v20', mods=f'offset:{cg * 32 + 512}')
    for cg in range(4):
        k.waitcnt(lgkm=6 - 2 * cg)
        I('v_mfma_f32_16x16x32_bf16', v(100 + 4 * cg, 4), v(48, 4), v(80 + 4 * cg, 4), 0)
    wait_for('w')
    for u in range(2):
        I('ds_read_b64_tr_b16', v(52 + 4 * u, 2), 'v25', mods=f'offset:{u * 64}')
        I('ds_read_b64_tr_b16', v(54 + 4 * u, 2), 'v25', mods=f'offset:{u * 64 + 512}')
    I('s_lshl_b32', 's9', 's3', 8)
    I('s_add_u32', 's9', 's9', L_P)
    I('v_add_u32', 'v28', 's9', 'v6')
    for cg in range(4):
        I('ds_write_b32', 'v28', v(100 + 4 * cg), mods=f'offset:{cg * 64}')
    I('s_mul_i32', 's9', 's4', 2 * W1_NB)
    I('s_mul_i32', 's14', 's11', 3072)
    I('s_add_u32', 's9', 's9', 's14')
    I('s_lshl_b32', 's14', 's3', 10)
    I('s_add_u32', 's9', 's9', 's14')
    I('s_add_u32', 's9', 's9', W1)
    I('s_add_u32', 's14', 's9', W1_NB)
    k.waitcnt(lgkm=0)
    I('s_cmp_eq_u32', 's3', 3)
    I('s_cbranch_scc1', 'L_k0_now')
    I('buffer_store_dwordx4', v(52, 4), 'v7', s(R_WS, 4), 's9', mods=f'offen {ST_POL}')
    I('buffer_store_dwordx4', v(56, 4), 'v7', s(R_WS, 4), 's14', mods=f'offen {ST_POL}')
    k.label('L_k0_now')
    tick(k)
    k.barrier()
    tick(k)
    I('s_add_u32', 's9', 's60', L_X)
    I('v_add_u32', 'v11', 's9', 'v7')
    I('ds_read_b128', v(12, 4), 'v11')
    I('ds_read_b128', v(16, 4), 'v11', mods='offset:1024')
    I('v_lshlrev_b32', 'v29', 2, 'v1')
    for w in range(4):
        I('ds_read_b32', v(30 + w), 'v29', mods=f'offset:{L_P + w * 256}')
    I('s_lshr_b32', 's12', 's10', 5)
    I('s_lshl_b32', 's12', 's12', 15)
    I('s_and_b32', 's14', 's10', 31)
    I('s_lshl_b32', 's14', 's14', 4)
    I('s_add_u32', 's12', 's12', 's14')
    I('s_lshl_b32', 's14', 's3', 13)
    I('s_add_u32', 's12', 's12', 's14')
    I('s_add_u32', 's12', 's12', XN)
    I('s_add_u32', 's14', 's12', 4096)
    I('v_lshrrev_b32', 'v11', 3, 'v1')
    I('v_lshlrev_b32', 'v11', 9, 'v11')
    I('v_and_b32', 'v10', 7, 'v1')
    I('v_lshl_add_u32', 'v11', 'v10', 4, 'v11')
    k.waitcnt(lgkm=4)
    I('buffer_store_dwordx4', v(12, 4), 'v11', s(R_WS, 4), 's12', mods=f'offen {ST_POL}')
    I('buffer_store_dwordx4', v(16, 4), 'v11', s(R_WS, 4), 's14', mods=f'offen {ST_POL}')
    I('s_cmp_lg_u32', 's3', 3)
    I('s_cbranch_scc1', 'L_k0_done')
    I('s_cmp_ge_u32', 's2', 192)
    I('s_cbranch_scc1', 'L_k0_done')
    k.waitcnt(lgkm=0)
    I('v_add_f32', 'v30', 'v30', 'v31')
    I('v_add_f32', 'v32', 'v32', 'v33')
    I('v_add_f32', 'v30', 'v30', 'v32')
    I('s_mul_i32', 's9', 's6', MODP_P)
    I('s_lshl_b32', 's14', 's5', 8)
    I('s_add_u32', 's9', 's9', 's14')
    I('s_add_u32', 's9', 's9', MODP)
    I('buffer_store_dword', 'v30', 'v29', s(R_WS, 4), 's9', mods='offen')
    k.label('L_k0_done')
    epilogue(k, 0)
    return k, 256, 256, LDS


QSCALE = 0.25 * 1.4426950408889634


def gen_k1():
    k = Kernel('k1_qkv_kernel')
    I = k.I
    L_G = 98304
    L_E = L_G + 4096
    L_PF = L_E + 49152
    LDS = L_PF + 8192
    prologue(k, 256, need_lo=True)
    xcd_map(k, 2, 4, 5, OPT.get('x1', 2))
    I('s_and_b32', 's61', 's3', 3)
    I('s_lshr_b32', 's63', 's3', 2)
    I('s_lshl_b32', 's6', 's4', 2)
    I('s_add_u32', 's6', 's6', 's61')
    I('v_lshlrev_b32', 'v2', 4, 'v1')
    I('v_lshlrev_b32', 'v4', 3, 'v0')
    I('s_lshl_b32', 's8', 's63', 4)
    I('s_add_u32', 's8', 's8', 's61')
    I('s_mul_i32', 's8', 's8', 3072)
    I('s_mul_i32', 's7', 's5', W1_NB)
    I('s_add_u32', 's7', 's7', 's8')
    I('s_add_u32', 's7', 's7', W1)
    I('s_lshl_b32', 's9', 's6', 15)
    I('s_lshl_b32', 's10', 's63', 14)
    I('s_add_u32', 's9', 's9', 's10')
    I('s_add_u32', 's9', 's9', XN)
    k.waitcnt(lgkm=0)
    tick(k)
    srd(k, R_WS, S_WS, WS_SIZE)
    ACC = 16
    TOK = 64
    WF = 128
    GS = 152
    TM = 184
    LOG = []
    FILL = []
    SJ = 192
    I('s_cmp_ge_u32', 's2', 4)
    I('s_cbranch_scc1', 'L_k1_nosj')
    I('s_lshl_b32', 's10', 's2', 11)
    I('s_add_u32', 's10', 's10', MODP + 4096)
    I('v_lshlrev_b32', 'v3', 2, 'v0')
    for p in range(4):
        I('s_add_u32', 's11', 's10', p * MODP_P)
        I('buffer_load_dword', v(SJ + p), 'v3', s(R_WS, 4), 's11', mods='offen')
    k.label('L_k1_nosj')
    for p in range(4):
        I('s_mov_b32', 's10', MODP + p * MODP_P)
        I('buffer_load_dwordx2', v(ACC + 2 * p, 2), 'v4', s(R_WS, 4), 's10', mods='offen')
        LOG.append('m')

    def w_op(c, q):
        def f():
            if q == 0:
                I('s_add_u32', 's10', 's7', c * 12288)
            I('s_add_u32', 'm0', 's8', c * 12288)
            I('buffer_load_dwordx4', 'v2', s(R_WS, 4), 's10', mods=f'offen offset:{q * 1024} lds')
            LOG.append(('w', c))
        return f

    def t_op(i):
        def f():
            if i % 4 == 0:
                I('s_add_u32', 's11', 's9', i * 1024)
            I('buffer_load_dwordx4', v(TOK + 4 * i, 4), 'v2', s(R_WS, 4), 's11', mods=f'offen offset:{(i % 4) * 1024}')
            LOG.append(('t', i))
        return f
    for c in range(4):
        FILL += [w_op(c, q) for q in range(3)] + [t_op(4 * c + q) for q in range(4)]

    def pf_op(ptr, nbytes):
        def f():
            srd(k, 44, ptr, nbytes)
            I('s_lshl_b32', 's12', 's2', 13)
            I('s_lshl_b32', 's13', 's3', 10)
            I('s_add_u32', 's12', 's12', 's13')
            I('s_add_u32', 'm0', 's13', L_PF)
            I('buffer_load_dwordx4', 'v2', s(44, 4), 's12', mods='offen lds')
            LOG.append(('pf',))
        return f
    def cp_op():
        if code_prefetch(k, 7, 196, 44, 8):
            LOG.append(('code',))
    FILL.append(cp_op)
    if OPT.get('k1pf', 0):
        FILL += [pf_op(S_WG, 512 * 3584), pf_op(S_WU, 512 * 3584), pf_op(S_WD, 1792 * 1024), pf_op(S_WO, 512 * 1024)]
    for _ in range(OPT.get('k1pre', 5)):
        FILL.pop(0)()
    if OPT.get('prio', 0):
        I('s_setprio', 0)
    I('s_mul_i32', 's10', 's63', 16 * 3072)
    I('v_add_u32', 'v3', 's10', 'v2')
    I('v_lshrrev_b32', 'v5', 5, 'v1')
    I('v_lshlrev_b32', 'v5', 5, 'v5')
    I('s_lshl_b32', 's10', 's63', 10)
    I('s_add_u32', 's10', 's10', L_G)
    I('v_add_u32', 'v5', 's10', 'v5')
    I('v_add_u32', 'v6', L_G, 'v4')
    k.waitcnt(vm=len(LOG) - 4)
    for e in range(2):
        I('v_add_f32', v(ACC + e), v(ACC + e), v(ACC + 2 + e))
        I('v_add_f32', v(ACC + 4 + e), v(ACC + 4 + e), v(ACC + 6 + e))
    for e in range(2):
        I('v_add_f32', v(ACC + e), v(ACC + e), v(ACC + 4 + e))
    I('v_cvt_pk_bf16_f32', v(ACC + 2), v(ACC), v(ACC + 1))
    I('v_lshlrev_b32', v(ACC), 16, v(ACC + 2))
    I('v_and_b32', v(ACC + 1), 0xffff0000, v(ACC + 2))
    I('s_cmp_eq_u32', 's63', 0)
    I('s_cbranch_scc1', 'L_k1_issa')
    for e in range(2):
        I('v_add_f32', v(ACC + e), 1.0, v(ACC + e))
    I('v_cvt_pk_bf16_f32', v(ACC + 2), v(ACC), v(ACC + 1))
    I('v_lshlrev_b32', v(ACC), 16, v(ACC + 2))
    I('v_and_b32', v(ACC + 1), 0xffff0000, v(ACC + 2))
    k.label('L_k1_issa')
    I('ds_write_b64', 'v6', v(ACC, 2))
    for _ in range(OPT.get('k1pre2', 5)):
        FILL.pop(0)()
    k.waitcnt(lgkm=0)

    def rdw(i):
        st = WF + 12 * (i & 1)
        for f in range(3):
            I('ds_read_b128', v(st + 4 * f, 4), 'v3', mods=f'offset:{i * 3072 + f * 1024}')

    def rdg(i):
        g = GS + 16 * (i & 1)
        for q in range(2):
            I('ds_read_b128', v(g + 4 * q, 4), 'v5', mods=f'offset:{i * 64 + 16 * q}')
        for q in range(2):
            I('ds_read_b128', v(g + 8 + 4 * q, 4), 'v5', mods=f'offset:{2048 + i * 64 + 16 * q}')

    def mod_ops(i):
        g = GS + 16 * (i & 1)
        tk = TOK + 4 * i
        L = []
        A_ = lambda *a_, **kw: L.append(lambda: I(*a_, **kw))
        for j in range(4):
            A_('v_lshlrev_b32', v(TM + 2 * j), 16, v(tk + j))
            A_('v_and_b32', v(TM + 2 * j + 1), 0xffff0000, v(tk + j))
        if OPT.get('k1pk', 0):
            for j in range(4):
                A_('v_pk_fma_f32', v(TM + 2 * j, 2), v(TM + 2 * j, 2), v(g + 8 + 2 * j, 2), v(g + 2 * j, 2))
        else:
            for j in range(8):
                A_('v_fma_f32', v(TM + j), v(TM + j), v(g + 8 + j), v(g + j))
        for j in range(4):
            A_('v_cvt_pk_bf16_f32', v(tk + j), v(TM + 2 * j), v(TM + 2 * j + 1))
        return L

    def need(tags):
        for tg in tags:
            while tg not in LOG or (tg[0] == 'w' and LOG.count(tg) < 3):
                FILL.pop(0)()
        last = max(i for i, e in enumerate(LOG) if e in tags)
        k.waitcnt(vm=len(LOG) - 1 - last)
    need([('w', 0), ('t', 0)])
    k.barrier()
    tick(k)
    rdw(0)
    rdg(0)
    rdg(1)
    k.waitcnt(lgkm=4)
    for f in mod_ops(0):
        f()
    NSTEP = 16
    for i in range(NSTEP):
        nxt = i + 1
        VQ = []
        if nxt < NSTEP:
            if nxt % 4 == 0:
                need([('w', nxt // 4), ('t', nxt)])
                k.barrier()
                tick(k)
            else:
                need([('t', nxt)])
            rdw(nxt)
            if i + 2 < NSTEP:
                rdg(i + 2)
                k.waitcnt(lgkm=7)
            else:
                k.waitcnt(lgkm=3)
            VQ = mod_ops(nxt)
        else:
            k.waitcnt(lgkm=0)
        st = WF + 12 * (i & 1)
        tok = v(TOK + 4 * i, 4)
        n3 = (len(VQ) + 2) // 3
        for f in range(3):
            c = 0 if i == 0 else v(ACC + 16 * f, 16)
            if f < 2:
                I('v_mfma_f32_32x32x16_bf16', v(ACC + 16 * f, 16), v(st + 4 * f, 4), tok, c)
            else:
                I('v_mfma_f32_32x32x16_bf16', v(ACC + 16 * f, 16), tok, v(st + 4 * f, 4), c)
            for _ in range(OPT.get('k1rate', 1) if f < 2 else OPT.get('k1rate', 1) - 1):
                if FILL:
                    FILL.pop(0)()
            for _ in range(n3):
                if VQ:
                    VQ.pop(0)()
    assert not FILL
    tick(k)
    I('s_mul_i32', 's10', 's3', 6144)
    I('s_add_u32', 's10', 's10', L_E)
    I('v_add_u32', 'v6', 's10', 'v2')
    I('s_xor_b32', 's11', 's3', 4)
    I('s_mul_i32', 's11', 's11', 6144)
    I('s_add_u32', 's11', 's11', L_E)
    I('v_add_u32', 'v7', 's11', 'v2')
    I('s_lshl_b32', 's11', 's5', 17)
    I('s_lshl_b32', 's12', 's6', 10)
    I('s_add_u32', 's11', 's11', 's12')
    I('s_mul_i32', 's12', 's63', KB - QB)
    I('s_add_u32', 's12', 's12', 's11')
    I('s_add_u32', 's12', 's12', QB)
    I('s_add_u32', 's13', 's12', 65536)
    I('s_lshl_b32', 's14', 's63', 9)
    I('s_add_u32', 's14', 's14', 's11')
    I('s_add_u32', 's14', 's14', VB)
    I('v_bfe_u32', 'v4', 'v1', 4, 1)
    I('v_lshlrev_b32', 'v4', 16, 'v4')
    I('v_lshrrev_b32', 'v5', 5, 'v1')
    I('v_lshl_add_u32', 'v4', 'v5', 8, 'v4')
    I('v_and_b32', 'v5', 15, 'v1')
    I('v_lshl_add_u32', 'v4', 'v5', 4, 'v4')
    k.flush()
    KEEP = TOK
    I('s_cmp_eq_u32', 's63', 0)
    I('s_cbranch_scc0', 'L_k1_x1')
    for kh in range(2):
        keep = [ACC + 16 * kh + r for r in range(16)] + [ACC + 32 + 8 * kh + r for r in range(8)]
        send = [ACC + 16 * (1 - kh) + 4 * j for j in range(4)] + [ACC + 32 + 8 * (1 - kh) + 4 * j for j in range(2)]
        for j, r in enumerate(send):
            I('ds_write_b128', 'v6', v(r, 4), mods=f'offset:{j * 1024}')
        if kh == 0:
            I('s_mov_b32', 's15', f32bits(QSCALE))
        else:
            I('s_mov_b32', 's15', f32bits(1.0))
        for j, r in enumerate(keep):
            I('v_mov_b32', v(KEEP + j), v(r))
        if kh == 0:
            I('s_branch', 'L_k1_x2')
            k.label('L_k1_x1')
    k.label('L_k1_x2')
    k.waitcnt(lgkm=0)
    k.barrier()
    for j in range(6):
        I('ds_read_b128', v(ACC + 4 * j, 4), 'v7', mods=f'offset:{j * 1024}')
    P = WF
    dst = [('v2', 's12'), ('v2', 's13'), ('v4', 's14')]
    for g in range(3):
        k.waitcnt(lgkm=4 - 2 * g)
        for r in range(8):
            I('v_add_f32', v(KEEP + 8 * g + r), v(KEEP + 8 * g + r), v(ACC + 8 * g + r))
        if g < 2:
            for r in range(8):
                I('v_mul_f32', v(KEEP + 8 * g + r), 's15', v(KEEP + 8 * g + r))
        pack8(k, P + 4 * g, KEEP + 8 * g)
        I('buffer_store_dwordx4', v(P + 4 * g, 4), dst[g][0], s(R_WS, 4), dst[g][1], mods=f'offen {ST_POL}')
    for g in range(2):
        I('v_dot2_f32_bf16', v(8 + g), v(P + 4 * g), v(P + 4 * g), 0)
        I('v_dot2_f32_bf16', v(10 + g), v(P + 4 * g + 1), v(P + 4 * g + 1), 0)
    for g in range(2):
        I('v_dot2_f32_bf16', v(8 + g), v(P + 4 * g + 2), v(P + 4 * g + 2), v(8 + g))
        I('v_dot2_f32_bf16', v(10 + g), v(P + 4 * g + 3), v(P + 4 * g + 3), v(10 + g))
    for g in range(2):
        I('v_add_f32', v(8 + g), v(8 + g), v(10 + g))
    I('v_permlane32_swap_b32', 'v8', 'v9')
    I('v_add_f32', 'v8', 'v8', 'v9')
    I('v_mov_b32', 'v9', 'v8')
    for sh in ('row_shr:1', 'row_shr:2', 'row_shr:4', 'row_shr:8'):
        I('v_max_f32', 'v9', 'v9', 'v9', mods=f'{sh} row_mask:0xf bank_mask:0xf')
    I('v_max_f32', 'v9', 'v9', 'v9', mods='row_bcast:15 row_mask:0xa bank_mask:0xf')
    I('s_lshl_b32', 's10', 's63', 18)
    I('s_lshl_b32', 's11', 's5', 14)
    I('s_add_u32', 's10', 's10', 's11')
    I('s_lshl_b32', 's11', 's6', 7)
    I('s_add_u32', 's10', 's10', 's11')
    I('s_add_u32', 's10', 's10', NRM)
    I('v_lshrrev_b32', 'v10', 5, 'v1')
    I('v_lshlrev_b32', 'v11', 13, 'v10')
    I('v_and_b32', 'v12', 31, 'v1')
    I('v_lshl_add_u32', 'v11', 'v12', 2, 'v11')
    I('buffer_store_dword', 'v8', 'v11', s(R_WS, 4), 's10', mods='offen')
    I('s_lshl_b32', 's10', 's63', 16)
    I('s_lshl_b32', 's11', 's5', 12)
    I('s_add_u32', 's10', 's10', 's11')
    I('s_lshl_b32', 's11', 's4', 7)
    I('s_add_u32', 's10', 's10', 's11')
    I('s_lshl_b32', 's11', 's61', 2)
    I('s_add_u32', 's10', 's10', 's11')
    I('s_add_u32', 's10', 's10', TMX)
    I('v_lshlrev_b32', 'v11', 11, 'v10')
    I('s_mov_b32', 'exec_lo', 0x80000000)
    I('s_mov_b32', 'exec_hi', 0x80000000)
    I('buffer_store_dword', 'v9', 'v11', s(R_WS, 4), 's10', mods='offen')
    I('s_mov_b64', 'exec', -1)
    I('s_cmp_ge_u32', 's2', 4)
    I('s_cbranch_scc1', 'L_k1_nomod')
    I('v_lshlrev_b32', 'v3', 2, 'v0')
    I('v_add_f32', 'v16', v(SJ), v(SJ + 1))
    I('v_add_f32', 'v18', v(SJ + 2), v(SJ + 3))
    I('v_add_f32', 'v16', 'v16', 'v18')
    I('v_cvt_pk_bf16_f32', 'v17', 'v16', 'v16')
    I('v_and_b32', 'v18', 0xffff0000, 'v17')
    I('v_add_f32', 'v19', 1.0, 'v18')
    I('v_cvt_pk_bf16_f32', 'v19', 'v19', 'v19')
    I('v_and_b32', 'v19', 0xffff0000, 'v19')
    I('s_cmp_eq_u32', 's2', 1)
    I('s_cbranch_scc1', 'L_k1_sb')
    I('s_mov_b32', 's13', MF_GB)
    I('s_cmp_eq_u32', 's2', 2)
    I('s_cselect_b64', 'vcc', -1, 0)
    I('v_cndmask_b32', 'v18', 'v18', 'v19', 'vcc')
    I('s_cselect_b32', 's13', MF_G2, 's13')
    I('s_cmp_eq_u32', 's2', 0)
    I('s_cselect_b32', 's13', MF_GA, 's13')
    I('s_add_u32', 's13', 's13', MODF)
    I('buffer_store_dword', 'v18', 'v3', s(R_WS, 4), 's13', mods='offen')
    I('s_branch', 'L_k1_nomod')
    k.label('L_k1_sb')
    I('s_mov_b32', 's13', MODF + MF_SB)
    I('v_lshlrev_b32', 'v3', 1, 'v0')
    I('buffer_store_short', 'v17', 'v3', s(R_WS, 4), 's13', mods='offen')
    k.label('L_k1_nomod')
    epilogue(k, 1, vtmp=4)
    return k, 256, 512, LDS


BIG = 1e30


def gen_k2():
    k = Kernel('k2_attn_kernel')
    I = k.I
    L_K, L_V, L_SIDE = 0, 16384, 32768
    LDS = L_SIDE + 32768
    Q, KF, VF, SB_, PB, OA, NM, MK = 16, 20, 56, 128, 176, 192, 208, 224
    MX = 244
    G2R, SBR = 80, 88
    Vb = lambda t: VF + 8 * (t % 3)
    prologue(k, 256)
    xcd_map(k, 1, 5, 4)
    I('s_lshl_b32', 's6', 's5', 3)
    I('s_add_u32', 's6', 's6', 's3')
    I('v_lshlrev_b32', 'v2', 4, 'v1')
    I('s_lshl_b32', 's9', 's4', 16)
    I('s_lshl_b32', 's10', 's6', 10)
    I('s_add_u32', 's10', 's10', 's9')
    I('s_add_u32', 's10', 's10', QB)
    I('s_lshl_b32', 's8', 's3', 11)
    I('v_lshrrev_b32', 'v3', 5, 'v1')
    I('v_bfe_u32', 'v4', 'v1', 4, 1)
    I('v_bfe_u32', 'v5', 'v1', 2, 2)
    I('v_and_b32', 'v6', 1, 'v1')
    I('v_bfe_u32', 'v7', 'v1', 1, 1)
    I('v_lshl_add_u32', 'v6', 'v6', 1, 'v7')
    I('v_lshlrev_b32', 'v13', 8, 'v3')
    I('v_and_b32', 'v14', 15, 'v1')
    I('v_lshl_add_u32', 'v13', 'v14', 4, 'v13')
    I('v_and_b32', 'v12', 31, 'v1')
    I('v_lshlrev_b32', 'v12', 2, 'v12')
    I('v_lshlrev_b32', 'v14', 5, 'v3')
    I('v_lshlrev_b32', 'v15', 4, 'v3')
    I('s_and_b32', 's12', 's3', 3)
    I('s_mul_i32', 's13', 's2', 3)
    I('s_add_u32', 's13', 's13', 's12')
    I('s_lshr_b32', 's15', 's2', 1)
    I('s_add_u32', 's15', 's15', 768)
    I('s_cmp_eq_u32', 's3', 3)
    I('s_cselect_b32', 's57', 's15', 's13')
    I('s_and_b32', 's15', 's2', 1)
    I('s_lshr_b32', 's13', 's3', 2)
    I('s_cmp_eq_u32', 's3', 3)
    I('s_cselect_b32', 's64', 's15', 's13')
    I('s_cmp_eq_u32', 's3', 7)
    I('s_cselect_b32', 's57', 's2', 's57')
    I('s_mul_i32', 's66', 's57', 2341)
    I('s_lshr_b32', 's66', 's66', 16)
    I('s_min_u32', 's66', 's66', 31)
    I('s_mul_i32', 's65', 's66', 28)
    I('s_sub_u32', 's65', 's57', 's65')
    I('s_lshl_b32', 's67', 's66', 6)
    I('s_add_u32', 's67', 's67', MODF + MF_G2)
    I('s_lshl_b32', 's68', 's66', 5)
    I('s_add_u32', 's68', 's68', MODF + MF_SB)
    I('s_lshl_b32', 's11', 's4', 13)
    I('s_lshl_b32', 's12', 's6', 7)
    I('s_add_u32', 's11', 's11', 's12')
    I('s_add_u32', 's11', 's11', NRM)
    I('s_lshl_b32', 's12', 's4', 11)
    I('s_add_u32', 's12', 's12', TMX + 65536)
    I('s_lshr_b32', 's13', 's6', 2)
    I('s_sub_i32', 's14', 8, 's6')
    I('s_max_i32', 's14', 's14', 0)
    I('s_mov_b32', 's58', 0xffff)
    I('s_mov_b32', 's59', 0xffff)
    k.waitcnt(lgkm=0)
    tick(k)
    srd(k, R_WS, S_WS, WS_SIZE)
    for i_ in range(3):
        I('s_sub_i32', 's15', 's13', i_)
        I('s_max_i32', 's15', 's15', 0)
        I('s_lshl_b32', 's15', 's15', 7)
        I('s_add_u32', 's15', 's15', 's12')
        I('s_buffer_load_dwordx4', s((48, 52, 16)[i_], 4), s(R_WS, 4), 's15')
    Sb = lambda t: SB_ + 16 * (t % 3)

    def qk(t, C):
        I('v_mfma_f32_32x32x16_bf16', v(Sb(t), 16), v(KF + 4 * t, 4), v(Q, 4), C)

    def consts():
        I('v_and_b32', 'v10', 31, 'v1')
        I('v_lshlrev_b32', 'v11', 2, 'v3')
        I('v_sub_u32', 'v10', 'v10', 'v11')
        I('v_mov_b32', 'v11', f32bits(-BIG))
        for r in range(0, 16, 2):
            for q in range(2):
                kk = ((r + q) & 3) + 8 * ((r + q) >> 2)
                I('v_cmp_le_i32', s(60 + 2 * q, 2), kk, 'v10')
            for q in range(2):
                I('v_cndmask_b32', v(MK + r + q), 'v11', 0, s(60 + 2 * q, 2))

    def rdv(t):
        I('s_mov_b64', 'exec', s(58, 2))
        for j in range(2):
            I('ds_read_b128', v(Vb(t) + 4 * j, 4), 'v247', mods=f'offset:{L_V + t * 1024 + j * 512}')
        I('s_mov_b64', 'exec', -1)

    def lds_reads():
        for t in range(8, -1, -1):
            I('ds_read_b128', v(KF + 4 * t, 4), 'v246', mods=f'offset:{L_K + t * 1024}')

    def attn(tag, exact):
        rdv(8)
        rdv(7)
        if exact:
            qk(8, v(MK, 16))
            qk(7, 0)
            for t in range(8, -1, -1):
                if t - 2 > 0:
                    qk(t - 2, 0)
                elif t - 2 == 0:
                    for r in range(16):
                        I('v_sub_f32', v(Sb(0) + r), 'v11', v(MK + r))
                    qk(0, v(Sb(0), 16))
                b = Sb(t)
                if t == 8:
                    I('v_max3_f32', v(MX), v(b), v(b + 1), v(b + 2))
                    I('v_max3_f32', v(MX + 1), v(b + 3), v(b + 4), v(b + 5))
                    rest = list(range(6, 16))
                else:
                    rest = list(range(16))
                for i in range(0, len(rest), 2):
                    m = MX + ((i // 2) & 1)
                    I('v_max3_f32', v(m), v(m), v(b + rest[i]), v(b + rest[i + 1]))
                if t > 0:
                    I('s_cmp_eq_u32', 's14', t)
                    I('s_cbranch_scc1', f'L_k2_p1{tag}')
            k.label(f'L_k2_p1{tag}')
            k.nop(12)
            I('v_max_f32', v(MX), v(MX), v(MX + 1))
            I('v_mov_b32', v(MX + 1), v(MX))
            I('v_permlane32_swap_b32', v(MX), v(MX + 1))
            I('v_max_f32', v(MX), v(MX), v(MX + 1))
            for r in range(16):
                I('v_sub_f32', v(NM + r), 0, v(MX))
            for r in range(16):
                I('v_add_f32', v(Sb(8) + r), v(MK + r), v(NM))
        else:
            k.waitcnt(lgkm=11)
        qk(8, v(Sb(8), 16))
        qk(7, v(NM, 16))
        if not exact:
            k.waitcnt(lgkm=4)
        qk(6, v(NM, 16))
        for t in range(8, -1, -1):
            b = Sb(t)
            P = PB + 8 * (t & 1)
            E = lambda r: I('v_exp_f32', v(b + r), v(b + r))
            C = lambda j: I('v_cvt_pk_bf16_f32', v(P + j), v(b + 2 * j), v(b + 2 * j + 1))
            if t - 2 >= 0:
                rdv(t - 2)
            for r in range(9):
                E(r)
            for j in range(4):
                C(j)
                E(9 + j)
            E(13)
            k.waitcnt(lgkm=4 if t - 2 >= 0 else (2 if t == 1 else 0))
            I('v_mfma_f32_32x32x16_bf16', v(OA, 16), v(Vb(t), 4), v(P, 4), 0 if t == 8 else v(OA, 16))
            E(14)
            E(15)
            for j in range(4, 8):
                C(j)
            if t - 3 > 0:
                qk(t - 3, v(NM, 16))
            elif t - 3 == 0:
                for r in range(16):
                    I('v_sub_f32', v(Sb(0) + r), 'v11', v(MK + r))
                for r in range(16):
                    I('v_add_f32', v(Sb(0) + r), v(Sb(0) + r), v(NM))
                qk(0, v(Sb(0), 16))
            if t > 0:
                I('s_cmp_eq_u32', 's14', t)
            I('v_mfma_f32_32x32x16_bf16', v(OA, 16), v(Vb(t) + 4, 4), v(P + 4, 4), v(OA, 16))
            if t > 0:
                I('s_cbranch_scc1', f'L_k2_p2{tag}')
        k.label(f'L_k2_p2{tag}')
        k.nop(12)
        k.waitcnt(lgkm=0)

    def side_loads():
        I('v_lshrrev_b32', 'v8', 3, 'v1')
        I('v_and_b32', 'v9', 7, 'v1')
        I('v_lshlrev_b32', 'v9', 4, 'v9')
        I('v_lshl_add_u32', 'v248', 'v8', 10, 'v9')
        I('v_mul_u32_u24', 'v8', 3584, 'v8')
        I('v_add_u32', 'v8', 'v8', 'v9')
        I('s_lshl_b32', 's69', 's3', 12)
        I('s_add_u32', 's69', 's69', L_SIDE)
        I('s_cmp_eq_u32', 's64', 0)
        I('s_cbranch_scc0', 'L_k2_sl1')
        I('s_mul_i32', 's15', 's66', 16 * 3584)
        I('s_lshl_b32', 's60', 's65', 7)
        I('s_add_u32', 's15', 's15', 's60')
        I('s_add_u32', 's60', 's15', 8 * 3584)
        for m_, ptr in enumerate((S_WG, S_WU)):
            srd(k, 44, ptr, 512 * 3584)
            I('s_add_u32', 'm0', 's69', m_ * 2048)
            I('buffer_load_dwordx4', 'v8', s(44, 4), 's15', mods='offen lds')
            I('s_add_u32', 'm0', 's69', m_ * 2048 + 1024)
            I('buffer_load_dwordx4', 'v8', s(44, 4), 's60', mods='offen lds')
        I('s_branch', 'L_k2_sl2')
        k.label('L_k2_sl1')
        I('s_cmp_eq_u32', 's3', 7)
        I('s_cselect_b32', 's44', s(S_WO), s(S_WD))
        I('s_cselect_b32', 's45', s(S_WO + 1), s(S_WD + 1))
        I('s_mov_b32', 's13', 1792 * 1024)
        I('s_cselect_b32', 's46', 512 * 1024, 's13')
        I('s_mov_b32', 's47', 0x20000)
        I('s_lshr_b32', 's12', 's57', 3)
        I('s_lshl_b32', 's12', 's12', 14)
        I('s_and_b32', 's13', 's57', 7)
        I('s_lshl_b32', 's13', 's13', 7)
        I('s_add_u32', 's12', 's12', 's13')
        I('s_mov_b32', 'm0', 's69')
        I('buffer_load_dwordx4', 'v248', s(44, 4), 's12', mods='offen lds')
        I('s_add_u32', 'm0', 's69', 1024)
        I('s_add_u32', 's12', 's12', 8192)
        I('buffer_load_dwordx4', 'v248', s(44, 4), 's12', mods='offen lds')
        k.label('L_k2_sl2')

    I('s_lshl_b32', 's7', 's5', 3)
    I('s_lshl_b32', 's13', 's3', 1)
    I('s_add_i32', 's7', 's7', 's13')
    I('s_add_i32', 's7', 's7', -8)
    I('s_max_i32', 's7', 's7', 0)
    I('s_lshl_b32', 's7', 's7', 10)
    I('s_add_u32', 's7', 's7', 's9')
    I('s_add_u32', 'm0', 's8', L_K)
    I('s_add_u32', 's13', 's7', KB)
    I('buffer_load_dwordx4', 'v2', s(R_WS, 4), 's13', mods='offen lds')
    I('buffer_load_dwordx4', 'v2', s(R_WS, 4), 's13', mods='offen offset:1024 lds')
    I('buffer_load_dwordx4', v(Q, 4), 'v2', s(R_WS, 4), 's10', mods='offen')
    I('buffer_load_dword', v(MX), 'v12', s(R_WS, 4), 's11', mods='offen')
    I('s_add_u32', 'm0', 's8', L_V)
    I('s_add_u32', 's13', 's7', VB)
    I('buffer_load_dwordx4', 'v2', s(R_WS, 4), 's13', mods='offen lds')
    I('buffer_load_dwordx4', 'v2', s(R_WS, 4), 's13', mods='offen offset:1024 lds')
    I('buffer_load_dwordx4', v(G2R, 4), 'v14', s(R_WS, 4), 's67', mods='offen')
    I('buffer_load_dwordx4', v(G2R + 4, 4), 'v14', s(R_WS, 4), 's67', mods='offen offset:16')
    I('buffer_load_dwordx4', v(SBR, 4), 'v15', s(R_WS, 4), 's68', mods='offen')
    if OPT.get('prio', 0):
        I('s_setprio', 0)
    EARLY = OPT.get('k2early', 0)
    if EARLY:
        k.barrier()
        side_loads()
    consts()
    for r in range(24):
        I('v_mov_b32', v(VF + r), 0x3f803f80)
    I('s_lshl_b32', 's13', 's3', 10)
    I('v_add_u32', 'v246', 's13', 'v2')
    I('v_add_u32', 'v247', 's13', 'v13')
    k.waitcnt(lgkm=0)
    for i in list(range(49, 56)) + [16, 17, 18, 19]:
        I('s_max_u32', 's48', 's48', s(i))
    k.waitcnt(vm=5 + (2 if EARLY else 0))
    I('v_mul_f32', v(MX), 's48', v(MX))
    I('v_sqrt_f32', v(MX), v(MX))
    for r in range(16):
        I('v_sub_f32', v(NM + r), 0, v(MX))
    for r in range(16):
        I('v_add_f32', v(Sb(8) + r), v(MK + r), v(NM))
    if EARLY:
        I('s_cmp_eq_u32', 's64', 0)
        I('s_cbranch_scc1', 'L_k2_wa')
        k.waitcnt(vm=5)
        I('s_branch', 'L_k2_wb')
        k.label('L_k2_wa', flush=False)
        k.waitcnt(vm=7)
        k.label('L_k2_wb', flush=False)
    else:
        k.waitcnt(vm=3)
    tick(k)
    k.barrier()
    tick(k)
    lds_reads()
    code_prefetch(k, 8, 249, 44, 8)
    if not EARLY:
        side_loads()
    attn('a', exact=False)
    tick(k)
    I('v_mov_b32', v(MX), f32bits(2.0 ** -80))
    I('v_cmp_nge_f32', 'vcc', v(OA + 8), v(MX))
    if OPT.get('k2force'):
        I('s_mov_b64', 'vcc', -1)
    I('s_cbranch_vccz', 'L_k2_fin')
    attn('x', exact=True)
    k.label('L_k2_fin')
    I('v_rcp_f32', v(MX), v(OA + 8))
    for r in range(8):
        I('v_mul_f32', v(OA + r), v(OA + r), v(MX))
    pack8(k, PB, OA)
    I('s_lshl_b32', 's12', 's6', 15)
    I('s_lshl_b32', 's13', 's4', 10)
    I('s_add_u32', 's12', 's12', 's13')
    I('s_add_u32', 's12', 's12', OB)
    I('buffer_store_dwordx4', v(PB, 4), 'v2', s(R_WS, 4), 's12', mods=f'offen {ST_POL}')
    k.waitcnt(vm=1)
    tick(k)
    I('s_cmp_eq_u32', 's64', 0)
    I('s_cbranch_scc1', 'L_k2_gu')
    I('s_mov_b32', 's60', 1024)
    I('s_mov_b32', 's61', 512)
    I('s_cmp_eq_u32', 's3', 7)
    I('s_cselect_b32', 's12', 512, 's60')
    I('s_cselect_b32', 's13', 1024, 's61')
    I('v_mul_lo_u32', 'v8', 'v3', 's12')
    I('v_lshl_add_u32', 'v8', 'v5', 7, 'v8')
    I('v_lshl_add_u32', 'v8', 'v4', 5, 'v8')
    I('v_lshl_add_u32', 'v8', 'v6', 3, 'v8')
    I('v_add_u32', 'v8', 's69', 'v8')
    I('v_add_u32', 'v9', 's13', 'v8')
    RU = KF
    for u in range(2):
        I('ds_read_b64_tr_b16', v(RU + 4 * u, 2), 'v8', mods=f'offset:{u * 64}')
        I('ds_read_b64_tr_b16', v(RU + 4 * u + 2, 2), 'v9', mods=f'offset:{u * 64}')
    I('s_mov_b32', 's60', 114688)
    I('s_cselect_b32', 's60', 32768, 's60')
    I('s_mov_b32', 's61', WD)
    I('s_cselect_b32', 's61', WO, 's61')
    I('s_and_b32', 's12', 's57', 7)
    I('s_lshl_b32', 's12', 's12', 1)
    I('s_mul_i32', 's12', 's12', 's60')
    I('s_add_u32', 's61', 's61', 's12')
    I('s_lshr_b32', 's12', 's57', 3)
    I('s_lshl_b32', 's12', 's12', 10)
    I('s_add_u32', 's61', 's61', 's12')
    I('s_add_u32', 's62', 's61', 's60')
    k.waitcnt(lgkm=0)
    I('buffer_store_dwordx4', v(RU, 4), 'v2', s(R_WS, 4), 's61', mods=f'offen {ST_POL}')
    I('buffer_store_dwordx4', v(RU + 4, 4), 'v2', s(R_WS, 4), 's62', mods=f'offen {ST_POL}')
    I('s_branch', 'L_k2_sw1')
    k.label('L_k2_gu')
    I('v_lshlrev_b32', 'v10', 11, 'v4')
    I('v_lshl_add_u32', 'v11', 'v3', 3, 'v5')
    I('v_lshl_add_u32', 'v10', 'v11', 7, 'v10')
    I('v_lshl_add_u32', 'v10', 'v6', 3, 'v10')
    I('v_add_u32', 'v10', 's69', 'v10')
    RW = KF
    for u in range(4):
        I('ds_read_b64_tr_b16', v(RW + 4 * u, 2), 'v10', mods=f'offset:{u * 32}')
        I('ds_read_b64_tr_b16', v(RW + 4 * u + 2, 2), 'v10', mods=f'offset:{u * 32 + 512}')
    I('s_lshl_b32', 's60', 's65', 2)
    I('s_mul_i32', 's15', 's66', 7168)
    I('s_add_u32', 's15', 's15', W4)
    for u in range(4):
        I('s_add_u32', 's12', 's60', u)
        I('s_mul_i32', 's13', 's12', 147)
        I('s_lshr_b32', 's13', 's13', 10)
        I('s_mul_i32', 's61', 's13', 7)
        I('s_sub_u32', 's12', 's12', 's61')
        I('s_mul_i32', 's13', 's13', W4_NB)
        I('s_lshl_b32', 's12', 's12', 10)
        I('s_add_u32', 's12', 's12', 's13')
        I('s_add_u32', s(48 + u), 's12', 's15')
    for j in range(4):
        I('v_mov_b32', v(240 + j), 0x3f803f80)
    I('s_mul_i32', 's62', 's66', 28672)
    I('s_lshl_b32', 's63', 's60', 7)
    I('s_add_u32', 's62', 's62', 's63')
    I('s_add_u32', 's62', 's62', CSP)
    I('v_mul_u32_u24', 'v8', 14336, 'v3')
    I('v_add_u32', 'v8', 'v8', 'v12')
    I('v_cmp_eq_u32', 'vcc', 0, 'v3')
    BS = [96, 112, SB_, SB_ + 16]
    CS = [SB_ + 32, PB, OA, NM]
    T = MK
    for u in range(4):
        k.waitcnt(lgkm=6 - 2 * u)
        I('v_mfma_f32_32x32x16_bf16', v(BS[u], 16), v(SBR, 4), v(RW + 4 * u, 4), 0)
        unpack8(k, T + 8 * (u & 1), RW + 4 * u)
        for j in range(8):
            I('v_mul_f32', v(T + 8 * (u & 1) + j), v(T + 8 * (u & 1) + j), v(G2R + j))
        pack8(k, RW + 16 + 4 * u, T + 8 * (u & 1))
        I('buffer_store_dwordx4', v(RW + 16 + 4 * u, 4), 'v2', s(R_WS, 4), s(48 + u), mods=f'offen {ST_POL}')
        I('v_mfma_f32_32x32x16_bf16', v(CS[u], 16), v(240, 4), v(RW + 16 + 4 * u, 4), 0)
    for u in range(4):
        I('v_cndmask_b32', v(244 + u), v(BS[u]), v(CS[u]), 'vcc')
        I('buffer_store_dword', v(244 + u), 'v8', s(R_WS, 4), 's62', mods=f'offen offset:{128 * u}')
    k.label('L_k2_sw1')
    epilogue(k, 2, vtmp=4)
    return k, 256, 512, LDS


def gen_gemm64(name, idx, NS, A_BASE, A_TB, B_BASE, B_NF, is_k3):
    k = Kernel(name)
    I = k.I
    LDS = 4 * 3 * 4096 + 1024
    prologue(k, 256, need_lo=is_k3)
    xcd_map(k, 3, 4, 5, OPT.get('x3' if is_k3 else 'x5', 2))
    I('v_lshlrev_b32', 'v2', 4, 'v1')
    I('v_lshrrev_b32', 'v3', 5, 'v1')
    I('v_and_b32', 'v4', 31, 'v1')
    NT = 4 * NS
    ROT = OPT.get('rot64', 0)
    I('s_lshr_b32', 's6', 's2', 3)
    I('s_mul_i32', 's6', 's6', NT * ROT)
    I('s_lshr_b32', 's6', 's6', 5)
    I('s_mul_i32', 's61', 's3', NS)
    I('s_add_u32', 's6', 's6', 's61')
    I('s_cmp_ge_u32', 's6', NT)
    I('s_cselect_b32', 's61', NT, 0)
    I('s_sub_u32', 's6', 's6', 's61')
    I('s_lshl_b32', 's6', 's6', 10)
    I('s_and_b32', 's11', 's3', 1)
    I('s_lshr_b32', 's12', 's3', 1)
    I('s_lshl_b32', 's13', 's4', 1)
    I('s_add_u32', 's13', 's13', 's12')
    I('s_lshl_b32', 's14', 's5', 1)
    I('s_add_u32', 's14', 's14', 's11')
    I('s_mul_i32', 's7', 's13', A_TB)
    I('s_add_u32', 's7', 's7', A_BASE)
    I('s_xor_b32', 's8', 's13', 1)
    I('s_mul_i32', 's8', 's8', A_TB)
    I('s_add_u32', 's8', 's8', A_BASE)
    I('s_mul_i32', 's9', 's14', B_NF)
    I('s_add_u32', 's9', 's9', B_BASE)
    I('s_xor_b32', 's10', 's14', 1)
    I('s_mul_i32', 's10', 's10', B_NF)
    I('s_add_u32', 's10', 's10', B_BASE)
    k.waitcnt(lgkm=0)
    tick(k)
    srd(k, R_WS, S_WS, WS_SIZE)
    ACC = 16
    GV = 80
    XR = 96
    RING = 104
    DEPTH = min(NS, OPT.get('gdepth', 8))
    LOG = []

    def ld(st):
        b = RING + 16 * (st % DEPTH)
        va = 'v11' if st & 1 else 'v12'
        I('v_add_u32', va, 's6', 'v2')
        I('s_add_u32', 's6', 's6', 1024)
        I('s_cmp_eq_u32', 's6', NT * 1024)
        I('s_cselect_b32', 's6', 0, 's6')
        for j, r in enumerate((9, 7, 10, 8)):
            I('buffer_load_dwordx4', v(b + 4 * j, 4), va, s(R_WS, 4), s(r), mods='offen')
            LOG.append(('k', st))

    def side_loads():
        I('s_lshl_b32', 's15', 's14', 7)
        I('s_add_u32', 's15', 's15', MODF + (MF_GA if is_k3 else MF_GB))
        I('v_lshlrev_b32', 'v5', 5, 'v3')
        for sp in range(2):
            for q in range(2):
                I('buffer_load_dwordx4', v(GV + 8 * sp + 4 * q, 4), 'v5', s(R_WS, 4), 's15', mods=f'offen offset:{64 * sp + 16 * q}')
                LOG.append(('s', 0))
        if is_k3:
            srd(k, 44, S_X, 2048 * 1024)
            I('s_lshl_b32', 's15', 's13', 15)
            I('s_lshl_b32', 's60', 's14', 6)
            I('s_add_u32', 's15', 's15', 's60')
            I('v_lshlrev_b32', 'v6', 10, 'v4')
            I('v_lshl_add_u32', 'v6', 'v3', 4, 'v6')
            for sp in range(2):
                I('buffer_load_dwordx4', v(XR + 4 * sp, 4), 'v6', s(44, 4), 's15', mods=f'offen offset:{32 * sp}')
                LOG.append(('s', 0))
        else:
            I('s_lshl_b32', 's15', 's13', 15)
            I('s_lshl_b32', 's60', 's14', 11)
            I('s_add_u32', 's15', 's15', 's60')
            I('s_add_u32', 's15', 's15', X1)
            for sp in range(2):
                I('buffer_load_dwordx4', v(XR + 4 * sp, 4), 'v2', s(R_WS, 4), 's15', mods=f'offen offset:{1024 * sp}')
                LOG.append(('s', 0))

    PRE = min(DEPTH, OPT.get('gpre', 4))
    CSL = [False]
    CPF = [0]
    nxt = 0
    for st in range(PRE):
        ld(st)
        nxt += 1
    side_done = False
    for st in range(NS):
        tgt = min(NS, st + DEPTH)
        n_issue = 0
        while nxt < tgt and n_issue < 2:
            ld(nxt)
            nxt += 1
            n_issue += 1
        if nxt == NS and not side_done:
            side_loads()
            if is_k3:
                I('v_mul_u32_u24', 'v8', 14336, 'v3')
                I('v_lshl_add_u32', 'v8', 'v4', 2, 'v8')
                I('s_min_u32', 's15', 's2', 111)
                I('s_lshl_b32', 's15', 's15', 7)
                I('s_mul_i32', 's60', 's3', 8 * 28672)
                I('s_add_u32', 's15', 's15', 's60')
                I('s_add_u32', 's15', 's15', CSP)
                for p in range(8):
                    I('s_add_u32', 's60', 's15', p * 28672)
                    I('buffer_load_dword', v(232 + p), 'v8', s(R_WS, 4), 's60', mods='offen')
                    LOG.append(('s', 0))
            if code_prefetch(k, 13, 14, 48, 4):
                LOG.append(('s', 0))
                CPF[0] = 1
            side_done = True
        last = max(i for i, e in enumerate(LOG) if e == ('k', st))
        if CSL[0]:
            I('s_cmp_lg_u32', 's3', 0)
            I('s_cbranch_scc1', f'L_{name}_w{st}')
            k.waitcnt(vm=min(63, len(LOG) - 1 - last + 32))
            I('s_branch', f'L_{name}_x{st}')
            k.label(f'L_{name}_w{st}', flush=False)
            k.waitcnt(vm=len(LOG) - 1 - last)
            k.label(f'L_{name}_x{st}', flush=False)
        else:
            k.waitcnt(vm=len(LOG) - 1 - last)
        b = RING + 16 * (st % DEPTH)
        B0, A0, B1, A1 = (v(b + 4 * j, 4) for j in range(4))
        for nfl, tbl in ((0, 1), (1, 0), (1, 1), (0, 0)):
            a_ = ACC + 16 * (2 * nfl + tbl)
            I('v_mfma_f32_32x32x16_bf16', v(a_, 16), (B0, B1)[nfl], (A0, A1)[tbl], 0 if st == 0 else v(a_, 16))
    tick(k)
    for a_ in (1, 2, 3):
        x_ = (a_ >> 1) | ((a_ & 1) << 1)
        I('s_xor_b32', 's15', 's3', x_)
        I('s_mul_i32', 's15', 's15', 12288)
        I('v_add_u32', v(7 + a_), 's15', 'v2')
    for a_ in (1, 2, 3):
        for j in range(4):
            I('ds_write_b128', v(7 + a_), v(ACC + 16 * a_ + 4 * j, 4), mods=f'offset:{(a_ - 1) * 4096 + j * 1024}')
    OWN = ACC
    I('s_mul_i32', 's15', 's3', 12288)
    I('v_add_u32', 'v7', 's15', 'v2')
    if is_k3:
        k.waitcnt(vm=CPF[0])
        for st_ in (4, 2, 1):
            for r in range(st_):
                I('v_add_f32', v(232 + r), v(232 + r), v(232 + r + st_))
        I('v_lshlrev_b32', 'v15', 2, 'v0')
        I('ds_write_b32', 'v15', 'v232', mods='offset:49152')
    k.waitcnt(lgkm=0)
    k.barrier()
    tick(k)
    for p in range(3):
        for j in range(4):
            I('ds_read_b128', v(ACC + 16 + 16 * p + 4 * j, 4), 'v7', mods=f'offset:{p * 4096 + j * 1024}')
    for p in range(3):
        k.waitcnt(lgkm=8 - 4 * p)
        for r in range(16):
            I('v_add_f32', v(OWN + r), v(OWN + r), v(ACC + 16 + 16 * p + r))
    k.waitcnt(vm=CPF[0])
    T = ACC + 32
    unpack8(k, T, XR)
    unpack8(k, T + 8, XR + 4)
    for r in range(16):
        I('v_fmac_f32', v(T + r), v(OWN + r), v(GV + r))
    P = ACC + 16
    pack8(k, P, T)
    pack8(k, P + 4, T + 8)
    if is_k3:
        I('s_lshl_b32', 's15', 's13', 15)
        I('s_lshl_b32', 's60', 's14', 11)
        I('s_add_u32', 's15', 's15', 's60')
        I('s_add_u32', 's15', 's15', X1)
        for sp in range(2):
            I('buffer_store_dwordx4', v(P + 4 * sp, 4), 'v2', s(R_WS, 4), 's15', mods=f'offen offset:{1024 * sp} {ST_POL}')
        unpack8(k, T, P)
        unpack8(k, T + 8, P + 4)
        I('v_add_f32', 'v8', v(T), v(T + 1))
        I('v_add_f32', 'v9', v(T + 2), v(T + 3))
        for r in range(4, 16, 2):
            I('v_add_f32', 'v8', 'v8', v(T + r))
            I('v_add_f32', 'v9', 'v9', v(T + r + 1))
        I('v_add_f32', 'v8', 'v8', 'v9')
        I('v_mov_b32', 'v9', 'v8')
        I('v_permlane32_swap_b32', 'v8', 'v9')
        I('v_add_f32', 'v8', 'v8', 'v9')
        I('v_mul_f32', 'v8', f32bits(1.0 / 32), 'v8')
        for r in range(16):
            I('v_sub_f32', v(T + r), v(T + r), 'v8')
        I('v_mul_f32', 'v9', v(T), v(T))
        I('v_mul_f32', 'v10', v(T + 1), v(T + 1))
        for r in range(2, 16, 2):
            I('v_fmac_f32', 'v9', v(T + r), v(T + r))
            I('v_fmac_f32', 'v10', v(T + r + 1), v(T + r + 1))
        I('v_add_f32', 'v9', 'v9', 'v10')
        I('v_mov_b32', 'v10', 'v9')
        I('v_permlane32_swap_b32', 'v9', 'v10')
        I('v_add_f32', 'v9', 'v9', 'v10')
        I('s_lshl_b32', 's15', 's13', 12)
        I('s_lshl_b32', 's60', 's5', 9)
        I('s_add_u32', 's15', 's15', 's60')
        I('s_lshl_b32', 's60', 's11', 3)
        I('s_add_u32', 's15', 's15', 's60')
        I('s_add_u32', 's15', 's15', ST2)
        I('v_lshlrev_b32', 'v10', 4, 'v4')
        I('s_mov_b32', 'exec_hi', 0)
        I('buffer_store_dwordx2', v(8, 2), 'v10', s(R_WS, 4), 's15', mods='offen')
        I('s_mov_b64', 'exec', -1)
        I('s_cmp_ge_u32', 's2', 112)
        I('s_cbranch_scc1', f'L_{name}_noside')
        I('s_cmp_lg_u32', 's3', 0)
        I('s_cbranch_scc1', f'L_{name}_noside')
        T = RING + 16
        I('v_lshlrev_b32', 'v15', 2, 'v1')
        for p in range(4):
            I('ds_read_b32', v(T + p), 'v15', mods=f'offset:{49152 + 256 * p}')
        k.waitcnt(lgkm=0)
        for st_ in (2, 1):
            for r in range(st_):
                I('v_add_f32', v(T + r), v(T + r), v(T + r + st_))
        I('v_cvt_pk_bf16_f32', v(P), v(T), v(T))
        I('v_and_b32', 'v9', 0xffff0000, v(P))
        I('v_sub_f32', 'v9', v(T), 'v9')
        I('v_cvt_pk_bf16_f32', v(P + 1), 'v9', 'v9')
        I('v_mov_b32', v(P + 2), 0)
        I('v_mov_b32', v(P + 3), 0)
        I('s_mul_i32', 's60', 's2', 147)
        I('s_lshr_b32', 's60', 's60', 10)
        I('s_mul_i32', 's61', 's60', 7)
        I('s_sub_u32', 's61', 's2', 's61')
        I('s_mul_i32', 's60', 's60', W4_NB)
        I('s_lshl_b32', 's61', 's61', 10)
        I('s_add_u32', 's60', 's60', 's61')
        I('s_add_u32', 's60', 's60', W4 + 32 * 7168)
        I('buffer_store_dwordx4', v(P, 4), 'v2', s(R_WS, 4), 's60', mods='offen')
        k.label(f'L_{name}_noside')
    else:
        srd(k, 44, S_OUT, 2048 * 1024)
        I('s_lshl_b32', 's15', 's13', 15)
        I('s_lshl_b32', 's60', 's14', 6)
        I('s_add_u32', 's15', 's15', 's60')
        I('v_lshlrev_b32', 'v6', 10, 'v4')
        I('v_lshl_add_u32', 'v6', 'v3', 4, 'v6')
        for sp in range(2):
            I('buffer_store_dwordx4', v(P + 4 * sp, 4), 'v6', s(44, 4), 's15',
              mods=f'offen offset:{32 * sp}' + (' sc1' if OPT.get('outsc1') else ''))
    epilogue(k, idx, vtmp=4)
    return k, 256, 256, LDS


def gen_k3():
    return gen_gemm64('k3_wo_kernel', 3, 8, OB, 32768, WO, 32768, True)


def gen_k5():
    return gen_gemm64('k5_down_kernel', 5, 28, ACT, 112 * 1024, WD, 112 * 1024, False)


def gen_k4():
    k = Kernel('k4_ffn1_kernel')
    I = k.I
    RES = {2: 131072, 3: 32768, 6: 0}
    LDS = 163840
    NR = 16
    D = OPT.get('k4d', 8)
    assert D <= 16 - OPT.get('k4bi', 2)
    prologue(k, 256, need_lo=False)
    xcd_map(k, 2, 4, 5, OPT.get('x4', 2))
    I('s_and_b32', 's61', 's3', 3)
    I('s_lshr_b32', 's63', 's3', 2)
    I('s_lshl_b32', 's6', 's4', 2)
    I('s_add_u32', 's6', 's6', 's61')
    I('v_lshlrev_b32', 'v2', 4, 'v1')
    I('v_lshrrev_b32', 'v3', 5, 'v1')
    I('v_and_b32', 'v4', 31, 'v1')
    I('s_mul_i32', 's7', 's5', W4_NB)
    I('s_add_u32', 's7', 's7', W4)
    I('s_lshl_b32', 's8', 's3', 10)
    I('s_lshl_b32', 's9', 's6', 15)
    I('s_add_u32', 's9', 's9', X1)
    I('s_and_b32', 's10', 's3', 1)
    I('s_and_b32', 's11', 's3', 2)
    I('s_lshl_b32', 's11', 's11', 1)
    I('s_add_u32', 's10', 's10', 's11')
    I('s_lshl_b32', 's10', 's10', 10)
    I('s_add_u32', 's10', 's10', 's7')
    I('s_mov_b32', 's11', 7168)
    I('s_cmp_eq_u32', 's63', 0)
    I('s_cselect_b32', 's9', 's9', 's10')
    I('s_cselect_b32', 's11', 1024, 's11')
    I('s_mul_i32', 's12', 's3', 7168)
    I('s_add_u32', 's12', 's12', 's7')
    I('s_lshl_b32', 's13', 's61', 10)
    I('v_add_u32', 'v5', 's13', 'v2')
    I('s_lshl_b32', 's13', 's63', 11)
    I('s_add_u32', 's13', 's13', 4096)
    I('v_add_u32', 'v6', 's13', 'v2')
    I('v_add_u32', 'v7', RES[2], 'v2')
    I('s_xor_b32', 's13', 's63', 1)
    I('s_lshl_b32', 's13', 's13', 15)
    I('v_add_u32', 'v15', 's13', 'v2')
    I('v_add_u32', 'v0', 65536, 'v5')
    I('v_add_u32', 'v1', 65536, 'v6')
    k.waitcnt(lgkm=0)
    tick(k)
    srd(k, R_WS, S_WS, WS_SIZE)
    ACC, WF, EXT, T, PK, EXB = 16, 80, 104, 108, 116, 124
    STT = ACC + 48
    EXA = T
    I('s_cmp_eq_u32', 's63', 0)
    I('s_cbranch_scc0', 'L_k4_g1')
    nt0 = getattr(k, 'nticks', 0)
    for grp in range(2):
        k.nticks = nt0
        FA = [0, 1, 2] if grp == 0 else [4, 5]
        FB = 3 if grp == 0 else 6
        NA = len(FA)
        LOG = []

        def ring(s_):
            if s_ >= 32:
                batch(6 if s_ < 36 else 3, (s_ - 32) % 4)
                return
            I('s_add_u32', 'm0', 's8', (s_ % NR) * 8192)
            I('buffer_load_dwordx4', 'v2', s(R_WS, 4), 's9', mods='offen lds')
            I('s_add_u32', 's9', 's9', 's11')
            LOG.append(('r', s_))

        def batch(fr, i):
            I('s_add_u32', 'm0', 's8', RES[fr] + i * 8192)
            I('s_add_u32', 's13', 's12', i * 8 * 7168 + fr * 1024)
            I('buffer_load_dwordx4', 'v2', s(R_WS, 4), 's13', mods='offen lds')
            LOG.append(('b', fr, i))

        def stat_loads():
            I('s_lshl_b32', 's13', 's6', 12)
            I('s_add_u32', 's13', 's13', ST2)
            I('v_lshlrev_b32', 'v8', 11, 'v3')
            I('v_lshl_add_u32', 'v8', 'v4', 4, 'v8')
            for q in range(4):
                I('buffer_load_dwordx4', v(STT + 4 * q, 4), 'v8', s(R_WS, 4), 's13', mods=f'offen offset:{q * 512}')
                LOG.append(('st',))

        def ext_loads():
            I('s_add_u32', 's13', 's7', 32 * 7168)
            for j, f in enumerate(FA):
                I('s_add_u32', 's14', 's13', f * 1024)
                I('buffer_load_dwordx4', v(EXA + 4 * j, 4), 'v2', s(R_WS, 4), 's14', mods='offen')
                LOG.append(('x',))
            I('s_add_u32', 's14', 's13', FB * 1024)
            I('buffer_load_dwordx4', v(EXB, 4), 'v2', s(R_WS, 4), 's14', mods='offen')
            LOG.append(('x',))
            if grp == 1:
                pass

        def wait_tags(tags):
            last = max(i for i, e in enumerate(LOG) if e in tags)
            k.waitcnt(vm=len(LOG) - 1 - last)

        def rd(s_):
            so = (s_ % 8) * 8192
            hi = (s_ % NR) >= 8
            b = WF + 12 * (s_ & 1)
            I('ds_read_b128', a(4 * s_, 4), 'v0' if hi else 'v5', mods=f'offset:{so}')
            for j in range(2):
                I('ds_read_b128', v(b + 4 * j, 4), 'v1' if hi else 'v6', mods=f'offset:{so + j * 1024}')
            if grp == 0:
                I('ds_read_b128', v(b + 8, 4), 'v7', mods=f'offset:{s_ * 1024}')
        NRD = 1 + NA

        def stats_ops():
            c0 = -2.0 * 1.4426950408889634 * math.sqrt(2.0 / math.pi)
            c1 = c0 * 0.044715
            L = []
            A_ = lambda *a_, **kw: L.append(lambda: I(*a_, **kw))
            A_('v_add_f32', 'v8', v(STT), v(STT + 2))
            for r in range(4, 16, 2):
                A_('v_add_f32', 'v8', 'v8', v(STT + r))
            A_('v_mov_b32', 'v9', 'v8')
            A_('v_permlane32_swap_b32', 'v8', 'v9')
            A_('v_add_f32', 'v8', 'v8', 'v9')
            A_('v_mul_f32', 'v8', f32bits(1.0 / 16), 'v8')
            A_('v_add_f32', 'v9', v(STT + 1), v(STT + 3))
            for r in range(5, 16, 2):
                A_('v_add_f32', 'v9', 'v9', v(STT + r))
            A_('v_mov_b32', 'v10', 0)
            for r in range(0, 16, 2):
                A_('v_sub_f32', v(STT + r), v(STT + r), 'v8')
                A_('v_fmac_f32', 'v10', v(STT + r), v(STT + r))
            A_('v_fmac_f32', 'v9', f32bits(32.0), 'v10')
            A_('v_mov_b32', 'v10', 'v9')
            A_('v_permlane32_swap_b32', 'v9', 'v10')
            A_('v_add_f32', 'v9', 'v9', 'v10')
            A_('v_mov_b32', 'v10', f32bits(1e-5))
            A_('v_fmac_f32', 'v10', f32bits(1.0 / 512), 'v9')
            A_('v_rsq_f32', 'v11', 'v10')
            A_('v_mul_f32', 'v12', 'v10', 'v11')
            A_('v_sub_f32', 'v13', 0, 'v8')
            A_('v_cmp_eq_u32', 'vcc', 0, 'v3')
            A_('v_cndmask_b32', 'v13', 'v12', 'v13', 'vcc')
            A_('v_cvt_pk_bf16_f32', 'v14', 'v13', 'v13')
            A_('v_and_b32', 'v14', 0xffff0000, 'v14')
            A_('v_sub_f32', 'v9', 'v13', 'v14')
            A_('v_cvt_pk_bf16_f32', v(EXT), 'v14', 'v9')
            A_('v_mov_b32', v(EXT + 1), v(EXT))
            A_('v_mov_b32', v(EXT + 2), 0)
            A_('v_mov_b32', v(EXT + 3), 0)
            A_('v_mul_f32', 'v12', f32bits(c0), 'v11')
            A_('v_mul_f32', 'v13', 'v11', 'v11')
            A_('v_mul_f32', 'v13', 'v13', 'v11')
            A_('v_mul_f32', 'v13', f32bits(c1), 'v13')
            A_('s_mul_i32', 's60', 's6', 112 * 1024)
            A_('s_mul_i32', 's62', 's5', 7 * 1024)
            A_('s_add_u32', 's60', 's60', 's62')
            A_('s_add_u32', 's60', 's60', ACT + grp * 4096)
            return L

        def epi(ai, f):
            g_ = ACC + 16 * ai
            u_ = g_ + 8
            for e in range(8):
                I('v_mul_f32', v(T + e), v(g_ + e), v(g_ + e))
            for e in range(8):
                I('v_fma_f32', v(T + e), v(T + e), 'v13', 'v12')
            for e in range(8):
                I('v_mul_f32', v(T + e), v(T + e), v(g_ + e))
            for e in range(8):
                I('v_exp_f32', v(T + e), v(T + e))
            for e in range(8):
                I('v_mul_f32', v(u_ + e), v(u_ + e), v(g_ + e))
            for e in range(8):
                I('v_fma_f32', v(T + e), v(T + e), 'v10', 'v10')
            for e in range(8):
                I('v_rcp_f32', v(T + e), v(T + e))
            for e in range(8):
                I('v_mul_f32', v(T + e), v(T + e), v(u_ + e))
            P = PK + 4 * (ai & 1)
            pack8(k, P, T)
            I('buffer_store_dwordx4', v(P, 4), 'v2', s(R_WS, 4), 's60', mods=f'offen offset:{(f % 4) * 1024} {ST_POL}')
            LOG.append(('store',))

        def fragB():
            ai = 3 if grp == 0 else 2
            acc = v(ACC + 16 * ai, 16)
            NB_ = 6
            for u in range(NB_ - 1):
                I('ds_read_b128', v(WF + 4 * u, 4), 'v15', mods=f'offset:{u * 1024}')
            I('v_mfma_f32_32x32x16_bf16', acc, v(EXB, 4), v(EXT, 4), 0)
            for u in range(32):
                n = u + NB_ - 1
                if n < 32:
                    I('ds_read_b128', v(WF + 4 * (n % NB_), 4), 'v15', mods=f'offset:{n * 1024}')
                k.waitcnt(lgkm=min(31, n) - u)
                I('v_mfma_f32_32x32x16_bf16', acc, v(WF + 4 * (u % NB_), 4), a(4 * u, 4), acc)

        extra = {}
        bsched = [(2, 1, 1), (2, 2, 5), (2, 3, 10)]
        for fr, i, at in bsched:
            extra.setdefault(at, []).append(lambda fr=fr, i=i: batch(fr, i))
        extra.setdefault(0, []).append(stat_loads)
        extra.setdefault(16, []).append(ext_loads)
        ring(0)
        batch(2, 0)
        PRE = OPT.get('k4pre', 8)
        for s_ in range(1, PRE):
            ring(s_)
        rn = [PRE]
        if OPT.get('prio', 0):
            I('s_setprio', 0)
        BI = OPT.get('k4bi', 2)
        wait_tags([('r', 0), ('r', 1), ('b', 2, 0)])
        k.barrier()
        tick(k)
        rd(0)
        VQ = []
        for s_ in range(32):
            n = s_ + 1
            if n < 32:
                if n % BI == 0 or n == 2:
                    tags = [('r', x) for x in range(n, n + (BI if n % BI == 0 else BI - 2))]
                    if n % 8 == 0:
                        tags.append(('b', 2, n // 8))
                    wait_tags(tags)
                    k.barrier()
                    if n % 8 == 0:
                        tick(k)
                rd(n)
                k.waitcnt(lgkm=NRD)
            else:
                k.waitcnt(lgkm=0)
            b = WF + 12 * (s_ & 1)
            for j in range(NA):
                I('v_mfma_f32_32x32x16_bf16', v(ACC + 16 * j, 16), v(b + 4 * j, 4), a(4 * s_, 4),
                  0 if s_ == 0 else v(ACC + 16 * j, 16))
                lead = D if rn[0] < 32 else OPT.get('k4db', 6)
                if j < (2 if s_ < OPT.get('k4ramp', 12) or rn[0] >= 32 else 1) and rn[0] <= s_ + lead and rn[0] < 36:
                    ring(rn[0])
                    rn[0] += 1
                if j == 1:
                    for f_ in extra.get(s_, []):
                        f_()
                for _ in range(4):
                    if VQ:
                        VQ.pop(0)()
            if s_ == 10:
                VQ.extend(stats_ops())
        assert not VQ
        tick(k)
        wait_tags([('x',)])
        for j in range(NA):
            I('v_mfma_f32_32x32x16_bf16', v(ACC + 16 * j, 16), v(EXA + 4 * j, 4), v(EXT, 4), v(ACC + 16 * j, 16))
        assert rn[0] == 36
        for i in range(4):
            batch(3, i)
        if grp == 0:
            I('v_lshrrev_b32', 'v1', 4, 'v2')
            if code_prefetch(k, 8, 9, 44, 8):
                LOG.append(('code',))
        wait_tags([('b', 6, 3)])
        k.barrier()
        tick(k)
        if OPT.get('k4wd', 0):
            I('s_lshr_b32', 's13', 's2', 3)
            I('s_lshl_b32', 's13', 's13', 3)
            I('s_add_u32', 's13', 's13', 's3')
            I('s_mul_i32', 's13', 's13', 3584)
            I('s_and_b32', 's14', 's2', 1)
            I('s_mul_i32', 's14', 's14', 8 * 114688)
            I('s_add_u32', 's13', 's13', 's14')
            I('s_add_u32', 's13', 's13', WD)
            I('s_lshl_b32', 's14', 's3', 12)
            I('s_add_u32', 'm0', 's14', RES[2])
            for q in range(4):
                I('buffer_load_dwordx4', 'v2', s(R_WS, 4), 's13', mods=f'offen offset:{min(q * 1024, 2560)} lds')
                LOG.append(('pf',))
        if grp == 0:
            for j, f in enumerate(FA):
                epi(j, f)
            wait_tags([('b', 3, 3)])
            k.barrier()
            tick(k)
            fragB()
            tick(k)
            epi(3, FB)
            I('s_branch', 'L_k4_done')
            k.label('L_k4_g1')
        else:
            fragB()
            wait_tags([('b', 3, 3)])
            k.barrier()
            tick(k)
            for j, f in enumerate(FA):
                epi(j, f)
            tick(k)
            epi(2, FB)
    k.label('L_k4_done')
    epilogue(k, 4, vtmp=4)
    return k, 256, 512, LDS


HEADER = """; adaLN_cond + sliding-window attention + GEGLU FFN block, gfx950 (MI355X).
"""


def build(gens, path):
    hdr, bodies, descs = [], [], []
    global ST_POL
    base_pol = ST_POL
    for gi, g in enumerate(gens):
        ST_POL = '' if (OPT.get('plain', 0) >> gi) & 1 else base_pol
        k, grid, block, lds = g()
        if OPT.get('biglds', 0):
            lds = max(lds, 90112)
        b, d = kernel_text(k)
        bodies.append(b)
        descs.append(d)
        hdr.append(f'; @launch kernel={k.name} grid=({grid},1,1) block=({block},1,1) lds={lds}')
        print(f'{k.name}: {k.n_ins} instr, vgpr {k.max_v + 1}, agpr {k.max_a + 1}, sgpr {k.max_s + 1}, nops {k.nops_inserted}, lds {lds}',
              file=sys.stderr)
    if OPT.get('dup'):
        d_ = OPT['dup'] - 1
        hdr.insert(d_ + 1, hdr[d_])
    out = HEADER + '\n'.join(hdr) + '\n.amdgcn_target "amdgcn-amd-amdhsa--gfx950"\n.text\n' + '\n'.join(bodies) + \
        '\nL_code_end:\n.section .rodata,"a"\n' + '\n'.join(descs)
    open(path, 'w').write(out)


if __name__ == '__main__':
    import argparse
    ap = argparse.ArgumentParser()
    ap.add_argument('-o', default='adaLN_cond__sliding_block__geglu_ffn__prompt.s')
    ap.add_argument('--stamp', action='store_true')
    ap.add_argument('-n', type=int, default=6)
    ap.add_argument('--stpol', default='sc1')
    ap.add_argument('--opt', default='')
    args = ap.parse_args()
    STAMP = args.stamp
    ST_POL = args.stpol
    for kv in args.opt.split(','):
        if kv:
            a_, b_ = kv.split('=')
            OPT[a_] = int(b_)
    allg = [gen_k0, gen_k1]
    for nm in ('gen_k2', 'gen_k3', 'gen_k4', 'gen_k5'):
        if nm in globals():
            allg.append(globals()[nm])
    build(allg[:args.n], args.o)
```

```python
import sys
import struct
import math
from asmlib import *

import os
OVERLAY = os.environ.get('OVERLAY') is not None
XN = 0x0000000
W1 = 0x0200000
W1_NB = 32 * 3072
KB = 0x0380000
VB = 0x0580000
QB = 0x0780000
MODP = 0x0980000
MODP_P = 3072 * 4
MODF = 0x09A0000
MF_GA, MF_G2, MF_GB, MF_SB = 0, 2048, 4096, 6144
NRM = 0x09C0000
TMX = 0x0A40000
ST2 = 0x0A80000
CSP = 0x0B00000
W4 = 0x0C00000
W4_NB = 33 * 7168
WO = 0x1000000
WD = 0x1080000
OB = XN if OVERLAY else 0x1300000
X1 = QB if OVERLAY else 0x1500000
ACT = 0 if OVERLAY else 0x1800000
STAMPS = 0x2000000
WS_SIZE = 0x2100000

STAMP = False
ST_POL = 'sc1'
OPT = {}


def f32bits(x):
    return struct.unpack('<I', struct.pack('<f', x))[0]


S_X, S_WQKV, S_WO, S_BX, S_WG, S_WU, S_WD, S_C = 16, 18, 20, 22, 24, 26, 28, 30
S_WMOD, S_OUT, S_DBG, S_WS = 32, 34, 36, 38
R_WS = 40


def srd(k, d, base, nbytes):
    if base == S_WS and OPT.get('wsoff', 0):
        k.I('s_add_u32', s(d), s(base), OPT['wsoff'] << 20)
        k.I('s_addc_u32', s(d + 1), s(base + 1), 0)
    else:
        k.I('s_mov_b32', s(d), s(base))
        k.I('s_mov_b32', s(d + 1), s(base + 1))
    k.I('s_mov_b32', s(d + 2), nbytes)
    k.I('s_mov_b32', s(d + 3), 0x20000)


def prologue(k, nwg, need_lo=True):
    I = k.I
    if STAMP:
        I('s_memrealtime', s(96, 2))
    I('s_cmp_ge_u32', 's2', nwg)
    I('s_cbranch_scc1', f'L_end_{k.name}')
    if OPT.get('prio', 0) and k.name[1] in '124':
        I('s_setprio', 3)
    if need_lo:
        I('s_load_dwordx16', s(16, 16), s(0, 2), 0)
    I('s_load_dwordx8', s(32, 8), s(0, 2), 64)
    I('v_and_b32', 'v1', 63, 'v0')
    I('v_lshrrev_b32', 'v2', 6, 'v0')
    I('v_readfirstlane_b32', 's3', 'v2')


def xcd_map(k, mbits, dm, dn, xmb=2):
    I = k.I
    mtot = mbits + 2
    jm = mtot - xmb
    if xmb > 0:
        I('s_bfe_u32', s(dm), 's2', (xmb << 16) | (3 - xmb))
        I('s_lshl_b32', s(dm), s(dm), jm)
    else:
        I('s_mov_b32', s(dm), 0)
    I('s_bfe_u32', s(dn), 's2', (jm << 16) | 3)
    I('s_add_u32', s(dm), s(dm), s(dn))
    I('s_and_b32', s(dn), 's2', (1 << (3 - xmb)) - 1)
    I('s_lshl_b32', s(dn), s(dn), 5 - jm)
    I('s_lshr_b32', 's62', 's2', 3 + jm)
    I('s_add_u32', s(dn), s(dn), 's62')


NEXT = {'k0_mod_kernel': ('k1_qkv_kernel', 'k2_attn_kernel'), 'k1_qkv_kernel': ('k2_attn_kernel', 'k3_wo_kernel'),
        'k2_attn_kernel': ('k3_wo_kernel', 'k4_ffn1_kernel'), 'k3_wo_kernel': ('k4_ffn1_kernel', 'k5_down_kernel'),
        'k4_ffn1_kernel': ('k5_down_kernel', 'L_code_end')}


def code_prefetch(k, vt, vdst, sa, nwaves):
    if not OPT.get('codepf', 1) or k.name not in NEXT:
        return False
    I = k.I
    beg, end = NEXT[k.name]
    I('s_getpc_b64', s(sa, 2))
    k.raw(f'L_pc_{k.name}:')
    I('s_lshr_b32', s(sa + 2), 's2', 3)
    I('s_mul_i32', s(sa + 2), s(sa + 2), nwaves)
    I('s_add_u32', s(sa + 2), s(sa + 2), 's3')
    I('s_lshl_b32', s(sa + 2), s(sa + 2), 13)
    I('v_lshlrev_b32', v(vt), 7, 'v1')
    I('v_add_u32', v(vt), s(sa + 2), v(vt))
    I('v_min_u32', v(vt), f'{end}-{beg}-4', v(vt))
    I('v_add_u32', v(vt), f'{beg}-L_pc_{k.name}', v(vt))
    I('global_load_dword', v(vdst), v(vt), s(sa, 2))
    return True


def tick(k):
    if STAMP:
        n = getattr(k, 'nticks', 0)
        assert n < 12
        k.I('s_memrealtime', s(94, 2))
        k.I('s_memtime', s(100, 2))
        k.waitcnt(lgkm=0)
        k.I('s_mov_b32', s(70 + n), 's94')
        k.I('s_mov_b32', s(82 + n), 's100')
        k.nticks = n + 1


def epilogue(k, idx, vtmp=2):
    I = k.I
    if STAMP:
        k.flush()
        tick(k)
        k.waitcnt(vm=0, lgkm=0)
        I('s_memrealtime', s(98, 2))
        k.waitcnt(lgkm=0)
        I('s_cmp_lg_u32', 's3', OPT.get('stw', 0) if k.name[1] in '124' else min(3, OPT.get('stw', 0)))
        I('s_cbranch_scc1', f'L_end_{k.name}')
        I('v_mov_b32', v(vtmp), 's96')
        I('v_mov_b32', v(vtmp + 1), 's98')
        I('s_lshl_b32', 's96', 's2', 3)
        I('s_add_u32', 's96', 's96', STAMPS + idx * 4096)
        I('v_mov_b32', v(vtmp + 2), 's96')
        I('s_mov_b64', 'exec', 1)
        I('buffer_store_dwordx2', v(vtmp, 2), v(vtmp + 2), s(R_WS, 4), 0, mods='offen')
        I('s_lshl_b32', 's96', 's2', 7)
        I('s_add_u32', 's96', 's96', STAMPS + 0x10000 + idx * 0x8000)
        I('v_mov_b32', v(vtmp + 2), 's96')
        for n in range(24):
            I('v_mov_b32', v(vtmp), s(70 + n) if (n % 12) < k.nticks else 0)
            I('buffer_store_dword', v(vtmp), v(vtmp + 2), s(R_WS, 4), 0, mods=f'offen offset:{4 * n}')
    k.label(f'L_end_{k.name}')
    I('s_endpgm')


def wave_sum_to_sgpr(k, regs, sdst):
    I = k.I
    for sh in ('row_shr:1', 'row_shr:2', 'row_shr:4', 'row_shr:8'):
        for r in regs:
            I('v_add_f32', v(r), v(r), v(r), mods=f'{sh} row_mask:0xf bank_mask:0xf')
    for r in regs:
        I('v_add_f32', v(r), v(r), v(r), mods='row_bcast:15 row_mask:0xa bank_mask:0xf')
    for r in regs:
        I('v_add_f32', v(r), v(r), v(r), mods='row_bcast:31 row_mask:0xc bank_mask:0xf')
    for r, sd in zip(regs, sdst):
        I('v_readlane_b32', s(sd), v(r), 63)


def unpack8(k, dst, src):
    for j in range(4):
        k.I('v_lshlrev_b32', v(dst + 2 * j), 16, v(src + j))
        k.I('v_and_b32', v(dst + 2 * j + 1), 0xffff0000, v(src + j))


def pack8(k, dst, src):
    for j in range(4):
        k.I('v_cvt_pk_bf16_f32', v(dst + j), v(src + 2 * j), v(src + 2 * j + 1))


def gen_k0():
    k = Kernel('k0_mod_kernel')
    I = k.I
    L_A = 0
    L_W = 16384
    L_X = 24576
    L_S = 32768
    L_P = 33024
    LDS = 34048
    prologue(k, 256)
    I('s_and_b32', 's4', 's2', 7)
    I('v_lshrrev_b32', 'v2', 3, 'v1')
    I('v_and_b32', 'v3', 7, 'v1')
    I('v_lshlrev_b32', 'v3', 4, 'v3')
    I('v_mul_u32_u24', 'v4', 6144, 'v2')
    I('v_add_u32', 'v4', 'v4', 'v3')
    I('v_mul_u32_u24', 'v5', 3072, 'v2')
    I('v_add_u32', 'v5', 'v5', 'v3')
    I('v_lshlrev_b32', 'v7', 4, 'v1')
    I('s_lshl_b32', 's10', 's4', 5)
    I('s_lshr_b32', 's11', 's2', 3)
    I('s_add_u32', 's10', 's10', 's11')
    I('s_lshl_b32', 's10', 's10', 3)
    I('s_lshl_b32', 's12', 's3', 1)
    I('s_add_u32', 's12', 's10', 's12')
    I('s_lshl_b32', 's12', 's12', 10)
    I('s_min_u32', 's5', 's2', 191)
    I('s_lshr_b32', 's5', 's5', 2)
    I('s_and_b32', 's6', 's2', 3)
    I('s_lshl_b32', 's13', 's6', 7)
    I('s_lshl_b32', 's14', 's3', 5)
    I('s_add_u32', 's13', 's13', 's14')
    I('v_and_b32', 'v6', 15, 'v1')
    I('v_lshlrev_b32', 'v6', 2, 'v6')
    I('s_lshl_b32', 's15', 's13', 1)
    k.waitcnt(lgkm=0)
    tick(k)
    srd(k, R_WS, S_WS, WS_SIZE)
    srd(k, 44, S_WMOD, 512 * 6144)
    srd(k, 48, S_WQKV, 512 * 3072)
    srd(k, 52, S_X, 2048 * 1024)
    srd(k, 56, S_C, 1024)
    LOG = []
    I('buffer_load_dword', 'v8', 'v6', s(56, 4), 's15', mods='offen'); LOG.append('c')
    I('buffer_load_dwordx4', v(12, 4), 'v7', s(52, 4), 's12', mods='offen'); LOG.append('x')
    I('buffer_load_dwordx4', v(16, 4), 'v7', s(52, 4), 's12', mods='offen offset:1024'); LOG.append('x')
    I('s_mul_i32', 's7', 's13', 6144)
    I('s_lshl_b32', 's8', 's5', 7)
    I('s_add_u32', 's7', 's7', 's8')
    I('s_lshl_b32', 's8', 's3', 12)
    for j in range(4):
        I('s_add_u32', 'm0', 's8', L_A + j * 1024)
        I('s_add_u32', 's9', 's7', j * 8 * 6144)
        I('buffer_load_dwordx4', 'v4', s(44, 4), 's9', mods='offen lds'); LOG.append('g')
    I('s_min_u32', 's14', 's3', 2)
    I('s_lshl_b32', 's14', 's14', 10)
    I('s_mul_i32', 's15', 's11', 16 * 3072)
    I('s_add_u32', 's14', 's14', 's15')
    I('s_lshl_b32', 's15', 's4', 7)
    I('s_add_u32', 's14', 's14', 's15')
    I('s_lshl_b32', 's60', 's3', 11)
    for j in range(2):
        I('s_add_u32', 'm0', 's60', L_W + j * 1024)
        I('s_add_u32', 's9', 's14', j * 8 * 3072)
        I('buffer_load_dwordx4', 'v5', s(48, 4), 's9', mods='offen lds'); LOG.append('w')
    if code_prefetch(k, 21, 27, 64, 4):
        LOG.append('code')
    if OPT.get('k0tlb', 0):
        I('s_cmp_eq_u32', 's3', 0)
        I('s_cselect_b32', 's64', s(S_WG), s(S_WU))
        I('s_cselect_b32', 's65', s(S_WG + 1), s(S_WU + 1))
        I('s_cmp_eq_u32', 's3', 2)
        I('s_cselect_b32', 's64', s(S_WD), 's64')
        I('s_cselect_b32', 's65', s(S_WD + 1), 's65')
        I('s_cmp_eq_u32', 's3', 3)
        I('s_cselect_b32', 's64', s(S_WO), 's64')
        I('s_cselect_b32', 's65', s(S_WO + 1), 's65')
        I('s_mov_b32', 's9', 1792 * 1024)
        I('s_cselect_b32', 's66', 512 * 1024, 's9')
        I('s_cmp_lt_u32', 's2', 16)
        I('s_cselect_b32', 's66', 's66', 0)
        I('s_mov_b32', 's67', 0x20000)
        I('v_lshlrev_b32', 'v21', 15, 'v1')
        I('buffer_load_dword', 'v27', 'v21', s(64, 4), 0, mods='offen'); LOG.append('tlb')
    tick(k)

    def wait_for(tag):
        last = max(i for i, e in enumerate(LOG) if e == tag)
        k.waitcnt(vm=len(LOG) - 1 - last)
    I('v_lshrrev_b32', 'v2', 4, 'v1')
    I('v_bfe_u32', 'v3', 'v1', 2, 2)
    I('v_and_b32', 'v9', 3, 'v1')
    I('v_lshl_add_u32', 'v20', 'v2', 3, 'v3')
    I('v_lshlrev_b32', 'v20', 7, 'v20')
    I('v_lshl_add_u32', 'v20', 'v9', 3, 'v20')
    I('v_add_u32', 'v20', 's8', 'v20')
    I('s_lshl_b32', 's9', 's3', 6)
    I('s_add_u32', 's9', 's9', L_S)
    I('v_lshl_add_u32', 'v22', 'v2', 4, 's9')
    I('v_add_u32', 'v23', 's9', 'v6')
    I('v_lshrrev_b32', 'v24', 5, 'v1')
    I('v_lshl_add_u32', 'v25', 'v24', 3, 'v3')
    I('v_lshlrev_b32', 'v25', 7, 'v25')
    I('v_bfe_u32', 'v26', 'v1', 4, 1)
    I('v_lshl_add_u32', 'v25', 'v26', 5, 'v25')
    I('v_lshl_add_u32', 'v25', 'v9', 3, 'v25')
    I('s_add_u32', 's9', 's60', L_W)
    I('v_add_u32', 'v25', 's9', 'v25')
    wait_for('c')
    I('v_lshlrev_b32', 'v9', 16, 'v8')
    I('v_and_b32', 'v10', 0xffff0000, 'v8')
    I('s_mov_b32', 's14', f32bits(-1.4426950408889634))
    for r, t_ in ((9, 28), (10, 29)):
        I('v_mul_f32', v(t_), 's14', v(r))
    for t_ in (28, 29):
        I('v_exp_f32', v(t_), v(t_))
    for t_ in (28, 29):
        I('v_add_f32', v(t_), 1.0, v(t_))
    for t_ in (28, 29):
        I('v_rcp_f32', v(t_), v(t_))
    for r, t_ in ((9, 28), (10, 29)):
        I('v_mul_f32', v(r), v(r), v(t_))
    I('v_cvt_pk_bf16_f32', 'v9', 'v9', 'v10')
    I('ds_write_b32', 'v23', 'v9')
    wait_for('x')
    tick(k)
    unpack8(k, 64, 12)
    unpack8(k, 72, 16)
    k.waitcnt(lgkm=0)
    I('ds_read_b128', v(48, 4), 'v22')
    for b, t_ in ((64, 40), (72, 41)):
        I('v_add_f32', v(t_), v(b), v(b + 1))
        for j in range(2, 8):
            I('v_add_f32', v(t_), v(t_), v(b + j))
    wave_sum_to_sgpr(k, [40, 41], [62, 63])
    I('s_mov_b32', 's14', f32bits(1.0 / 512))
    for t_, sd in ((40, 62), (41, 63)):
        I('v_mov_b32', v(t_), s(sd))
        I('v_mul_f32', v(t_), 's14', v(t_))
    for b, t_ in ((64, 40), (72, 41)):
        for j in range(8):
            I('v_sub_f32', v(b + j), v(b + j), v(t_))
    for b, t_ in ((64, 42), (72, 43)):
        I('v_mul_f32', v(t_), v(b), v(b))
        for j in range(1, 8):
            I('v_fmac_f32', v(t_), v(b + j), v(b + j))
    wave_sum_to_sgpr(k, [42, 43], [62, 63])
    I('s_mov_b32', 's15', f32bits(1e-5))
    for t_, sd in ((42, 62), (43, 63)):
        I('v_mov_b32', v(t_), s(sd))
        I('v_mov_b32', v(44), 's15')
        I('v_fma_f32', v(t_), v(t_), 's14', v(44))
        I('v_rsq_f32', v(t_), v(t_))
    for b, t_ in ((64, 42), (72, 43)):
        for j in range(8):
            I('v_mul_f32', v(b + j), v(b + j), v(t_))
    pack8(k, 12, 64)
    pack8(k, 16, 72)
    I('v_lshlrev_b32', 'v11', 7, 'v1')
    I('s_lshl_b32', 's9', 's3', 5)
    I('s_add_u32', 's9', 's9', L_X)
    I('v_add_u32', 'v11', 's9', 'v11')
    I('ds_write_b128', 'v11', v(12, 4))
    I('ds_write_b128', 'v11', v(16, 4), mods='offset:16')
    wait_for('g')
    tick(k)
    for cg in range(4):
        I('ds_read_b64_tr_b16', v(80 + 4 * cg, 2), 'v20', mods=f'offset:{cg * 32}')
        I('ds_read_b64_tr_b16', v(82 + 4 * cg, 2), 'v20', mods=f'offset:{cg * 32 + 512}')
    for cg in range(4):
        k.waitcnt(lgkm=6 - 2 * cg)
        I('v_mfma_f32_16x16x32_bf16', v(100 + 4 * cg, 4), v(48, 4), v(80 + 4 * cg, 4), 0)
    wait_for('w')
    for u in range(2):
        I('ds_read_b64_tr_b16', v(52 + 4 * u, 2), 'v25', mods=f'offset:{u * 64}')
        I('ds_read_b64_tr_b16', v(54 + 4 * u, 2), 'v25', mods=f'offset:{u * 64 + 512}')
    I('s_lshl_b32', 's9', 's3', 8)
    I('s_add_u32', 's9', 's9', L_P)
    I('v_add_u32', 'v28', 's9', 'v6')
    for cg in range(4):
        I('ds_write_b32', 'v28', v(100 + 4 * cg), mods=f'offset:{cg * 64}')
    I('s_mul_i32', 's9', 's4', 2 * W1_NB)
    I('s_mul_i32', 's14', 's11', 3072)
    I('s_add_u32', 's9', 's9', 's14')
    I('s_lshl_b32', 's14', 's3', 10)
    I('s_add_u32', 's9', 's9', 's14')
    I('s_add_u32', 's9', 's9', W1)
    I('s_add_u32', 's14', 's9', W1_NB)
    k.waitcnt(lgkm=0)
    I('s_cmp_eq_u32', 's3', 3)
    I('s_cbranch_scc1', 'L_k0_now')
    I('buffer_store_dwordx4', v(52, 4), 'v7', s(R_WS, 4), 's9', mods=f'offen {ST_POL}')
    I('buffer_store_dwordx4', v(56, 4), 'v7', s(R_WS, 4), 's14', mods=f'offen {ST_POL}')
    k.label('L_k0_now')
    tick(k)
    k.barrier()
    tick(k)
    I('s_add_u32', 's9', 's60', L_X)
    I('v_add_u32', 'v11', 's9', 'v7')
    I('ds_read_b128', v(12, 4), 'v11')
    I('ds_read_b128', v(16, 4), 'v11', mods='offset:1024')
    I('v_lshlrev_b32', 'v29', 2, 'v1')
    for w in range(4):
        I('ds_read_b32', v(30 + w), 'v29', mods=f'offset:{L_P + w * 256}')
    I('s_lshr_b32', 's12', 's10', 5)
    I('s_lshl_b32', 's12', 's12', 15)
    I('s_and_b32', 's14', 's10', 31)
    I('s_lshl_b32', 's14', 's14', 4)
    I('s_add_u32', 's12', 's12', 's14')
    I('s_lshl_b32', 's14', 's3', 13)
    I('s_add_u32', 's12', 's12', 's14')
    I('s_add_u32', 's12', 's12', XN)
    I('s_add_u32', 's14', 's12', 4096)
    I('v_lshrrev_b32', 'v11', 3, 'v1')
    I('v_lshlrev_b32', 'v11', 9, 'v11')
    I('v_and_b32', 'v10', 7, 'v1')
    I('v_lshl_add_u32', 'v11', 'v10', 4, 'v11')
    k.waitcnt(lgkm=4)
    I('buffer_store_dwordx4', v(12, 4), 'v11', s(R_WS, 4), 's12', mods=f'offen {ST_POL}')
    I('buffer_store_dwordx4', v(16, 4), 'v11', s(R_WS, 4), 's14', mods=f'offen {ST_POL}')
    I('s_cmp_lg_u32', 's3', 3)
    I('s_cbranch_scc1', 'L_k0_done')
    I('s_cmp_ge_u32', 's2', 192)
    I('s_cbranch_scc1', 'L_k0_done')
    k.waitcnt(lgkm=0)
    I('v_add_f32', 'v30', 'v30', 'v31')
    I('v_add_f32', 'v32', 'v32', 'v33')
    I('v_add_f32', 'v30', 'v30', 'v32')
    I('s_mul_i32', 's9', 's6', MODP_P)
    I('s_lshl_b32', 's14', 's5', 8)
    I('s_add_u32', 's9', 's9', 's14')
    I('s_add_u32', 's9', 's9', MODP)
    I('buffer_store_dword', 'v30', 'v29', s(R_WS, 4), 's9', mods='offen')
    k.label('L_k0_done')
    epilogue(k, 0)
    return k, 256, 256, LDS


QSCALE = 0.25 * 1.4426950408889634


def gen_k1():
    k = Kernel('k1_qkv_kernel')
    I = k.I
    L_G = 98304
    L_E = L_G + 4096
    L_PF = L_E + 49152
    LDS = L_PF + 8192
    prologue(k, 256, need_lo=True)
    xcd_map(k, 2, 4, 5, OPT.get('x1', 2))
    I('s_and_b32', 's61', 's3', 3)
    I('s_lshr_b32', 's63', 's3', 2)
    I('s_lshl_b32', 's6', 's4', 2)
    I('s_add_u32', 's6', 's6', 's61')
    I('v_lshlrev_b32', 'v2', 4, 'v1')
    I('v_lshlrev_b32', 'v4', 3, 'v0')
    I('s_lshl_b32', 's8', 's63', 4)
    I('s_add_u32', 's8', 's8', 's61')
    I('s_mul_i32', 's8', 's8', 3072)
    I('s_mul_i32', 's7', 's5', W1_NB)
    I('s_add_u32', 's7', 's7', 's8')
    I('s_add_u32', 's7', 's7', W1)
    I('s_lshl_b32', 's9', 's6', 15)
    I('s_lshl_b32', 's10', 's63', 14)
    I('s_add_u32', 's9', 's9', 's10')
    I('s_add_u32', 's9', 's9', XN)
    k.waitcnt(lgkm=0)
    tick(k)
    srd(k, R_WS, S_WS, WS_SIZE)
    ACC = 16
    TOK = 64
    WF = 128
    GS = 152
    TM = 184
    LOG = []
    FILL = []
    SJ = 192
    I('s_cmp_ge_u32', 's2', 4)
    I('s_cbranch_scc1', 'L_k1_nosj')
    I('s_lshl_b32', 's10', 's2', 11)
    I('s_add_u32', 's10', 's10', MODP + 4096)
    I('v_lshlrev_b32', 'v3', 2, 'v0')
    for p in range(4):
        I('s_add_u32', 's11', 's10', p * MODP_P)
        I('buffer_load_dword', v(SJ + p), 'v3', s(R_WS, 4), 's11', mods='offen')
    k.label('L_k1_nosj')
    for p in range(4):
        I('s_mov_b32', 's10', MODP + p * MODP_P)
        I('buffer_load_dwordx2', v(ACC + 2 * p, 2), 'v4', s(R_WS, 4), 's10', mods='offen')
        LOG.append('m')

    def w_op(c, q):
        def f():
            if q == 0:
                I('s_add_u32', 's10', 's7', c * 12288)
            I('s_add_u32', 'm0', 's8', c * 12288)
            I('buffer_load_dwordx4', 'v2', s(R_WS, 4), 's10', mods=f'offen offset:{q * 1024} lds')
            LOG.append(('w', c))
        return f

    def t_op(i):
        def f():
            if i % 4 == 0:
                I('s_add_u32', 's11', 's9', i * 1024)
            I('buffer_load_dwordx4', v(TOK + 4 * i, 4), 'v2', s(R_WS, 4), 's11', mods=f'offen offset:{(i % 4) * 1024}')
            LOG.append(('t', i))
        return f
    for c in range(4):
        FILL += [w_op(c, q) for q in range(3)] + [t_op(4 * c + q) for q in range(4)]

    def pf_op(ptr, nbytes):
        def f():
            srd(k, 44, ptr, nbytes)
            I('s_lshl_b32', 's12', 's2', 13)
            I('s_lshl_b32', 's13', 's3', 10)
            I('s_add_u32', 's12', 's12', 's13')
            I('s_add_u32', 'm0', 's13', L_PF)
            I('buffer_load_dwordx4', 'v2', s(44, 4), 's12', mods='offen lds')
            LOG.append(('pf',))
        return f
    def cp_op():
        if code_prefetch(k, 7, 196, 44, 8):
            LOG.append(('code',))
    FILL.append(cp_op)
    if OPT.get('k1pf', 0):
        FILL += [pf_op(S_WG, 512 * 3584), pf_op(S_WU, 512 * 3584), pf_op(S_WD, 1792 * 1024), pf_op(S_WO, 512 * 1024)]
    for _ in range(OPT.get('k1pre', 5)):
        FILL.pop(0)()
    if OPT.get('prio', 0):
        I('s_setprio', 0)
    I('s_mul_i32', 's10', 's63', 16 * 3072)
    I('v_add_u32', 'v3', 's10', 'v2')
    I('v_lshrrev_b32', 'v5', 5, 'v1')
    I('v_lshlrev_b32', 'v5', 5, 'v5')
    I('s_lshl_b32', 's10', 's63', 10)
    I('s_add_u32', 's10', 's10', L_G)
    I('v_add_u32', 'v5', 's10', 'v5')
    I('v_add_u32', 'v6', L_G, 'v4')
    k.waitcnt(vm=len(LOG) - 4)
    for e in range(2):
        I('v_add_f32', v(ACC + e), v(ACC + e), v(ACC + 2 + e))
        I('v_add_f32', v(ACC + 4 + e), v(ACC + 4 + e), v(ACC + 6 + e))
    for e in range(2):
        I('v_add_f32', v(ACC + e), v(ACC + e), v(ACC + 4 + e))
    I('v_cvt_pk_bf16_f32', v(ACC + 2), v(ACC), v(ACC + 1))
    I('v_lshlrev_b32', v(ACC), 16, v(ACC + 2))
    I('v_and_b32', v(ACC + 1), 0xffff0000, v(ACC + 2))
    I('s_cmp_eq_u32', 's63', 0)
    I('s_cbranch_scc1', 'L_k1_issa')
    for e in range(2):
        I('v_add_f32', v(ACC + e), 1.0, v(ACC + e))
    I('v_cvt_pk_bf16_f32', v(ACC + 2), v(ACC), v(ACC + 1))
    I('v_lshlrev_b32', v(ACC), 16, v(ACC + 2))
    I('v_and_b32', v(ACC + 1), 0xffff0000, v(ACC + 2))
    k.label('L_k1_issa')
    I('ds_write_b64', 'v6', v(ACC, 2))
    for _ in range(OPT.get('k1pre2', 5)):
        FILL.pop(0)()
    k.waitcnt(lgkm=0)

    def rdw(i):
        st = WF + 12 * (i & 1)
        for f in range(3):
            I('ds_read_b128', v(st + 4 * f, 4), 'v3', mods=f'offset:{i * 3072 + f * 1024}')

    def rdg(i):
        g = GS + 16 * (i & 1)
        for q in range(2):
            I('ds_read_b128', v(g + 4 * q, 4), 'v5', mods=f'offset:{i * 64 + 16 * q}')
        for q in range(2):
            I('ds_read_b128', v(g + 8 + 4 * q, 4), 'v5', mods=f'offset:{2048 + i * 64 + 16 * q}')

    def mod_ops(i):
        g = GS + 16 * (i & 1)
        tk = TOK + 4 * i
        L = []
        A_ = lambda *a_, **kw: L.append(lambda: I(*a_, **kw))
        for j in range(4):
            A_('v_lshlrev_b32', v(TM + 2 * j), 16, v(tk + j))
            A_('v_and_b32', v(TM + 2 * j + 1), 0xffff0000, v(tk + j))
        if OPT.get('k1pk', 0):
            for j in range(4):
                A_('v_pk_fma_f32', v(TM + 2 * j, 2), v(TM + 2 * j, 2), v(g + 8 + 2 * j, 2), v(g + 2 * j, 2))
        else:
            for j in range(8):
                A_('v_fma_f32', v(TM + j), v(TM + j), v(g + 8 + j), v(g + j))
        for j in range(4):
            A_('v_cvt_pk_bf16_f32', v(tk + j), v(TM + 2 * j), v(TM + 2 * j + 1))
        return L

    def need(tags):
        for tg in tags:
            while tg not in LOG or (tg[0] == 'w' and LOG.count(tg) < 3):
                FILL.pop(0)()
        last = max(i for i, e in enumerate(LOG) if e in tags)
        k.waitcnt(vm=len(LOG) - 1 - last)
    need([('w', 0), ('t', 0)])
    k.barrier()
    tick(k)
    rdw(0)
    rdg(0)
    rdg(1)
    k.waitcnt(lgkm=4)
    for f in mod_ops(0):
        f()
    NSTEP = 16
    for i in range(NSTEP):
        nxt = i + 1
        VQ = []
        if nxt < NSTEP:
            if nxt % 4 == 0:
                need([('w', nxt // 4), ('t', nxt)])
                k.barrier()
                tick(k)
            else:
                need([('t', nxt)])
            rdw(nxt)
            if i + 2 < NSTEP:
                rdg(i + 2)
                k.waitcnt(lgkm=7)
            else:
                k.waitcnt(lgkm=3)
            VQ = mod_ops(nxt)
        else:
            k.waitcnt(lgkm=0)
        st = WF + 12 * (i & 1)
        tok = v(TOK + 4 * i, 4)
        n3 = (len(VQ) + 2) // 3
        for f in range(3):
            c = 0 if i == 0 else v(ACC + 16 * f, 16)
            if f < 2:
                I('v_mfma_f32_32x32x16_bf16', v(ACC + 16 * f, 16), v(st + 4 * f, 4), tok, c)
            else:
                I('v_mfma_f32_32x32x16_bf16', v(ACC + 16 * f, 16), tok, v(st + 4 * f, 4), c)
            for _ in range(OPT.get('k1rate', 1) if f < 2 else OPT.get('k1rate', 1) - 1):
                if FILL:
                    FILL.pop(0)()
            for _ in range(n3):
                if VQ:
                    VQ.pop(0)()
    assert not FILL
    tick(k)
    I('s_mul_i32', 's10', 's3', 6144)
    I('s_add_u32', 's10', 's10', L_E)
    I('v_add_u32', 'v6', 's10', 'v2')
    I('s_xor_b32', 's11', 's3', 4)
    I('s_mul_i32', 's11', 's11', 6144)
    I('s_add_u32', 's11', 's11', L_E)
    I('v_add_u32', 'v7', 's11', 'v2')
    I('s_lshl_b32', 's11', 's5', 17)
    I('s_lshl_b32', 's12', 's6', 10)
    I('s_add_u32', 's11', 's11', 's12')
    I('s_mul_i32', 's12', 's63', KB - QB)
    I('s_add_u32', 's12', 's12', 's11')
    I('s_add_u32', 's12', 's12', QB)
    I('s_add_u32', 's13', 's12', 65536)
    I('s_lshl_b32', 's14', 's63', 9)
    I('s_add_u32', 's14', 's14', 's11')
    I('s_add_u32', 's14', 's14', VB)
    I('v_bfe_u32', 'v4', 'v1', 4, 1)
    I('v_lshlrev_b32', 'v4', 16, 'v4')
    I('v_lshrrev_b32', 'v5', 5, 'v1')
    I('v_lshl_add_u32', 'v4', 'v5', 8, 'v4')
    I('v_and_b32', 'v5', 15, 'v1')
    I('v_lshl_add_u32', 'v4', 'v5', 4, 'v4')
    k.flush()
    KEEP = TOK
    I('s_cmp_eq_u32', 's63', 0)
    I('s_cbranch_scc0', 'L_k1_x1')
    for kh in range(2):
        keep = [ACC + 16 * kh + r for r in range(16)] + [ACC + 32 + 8 * kh + r for r in range(8)]
        send = [ACC + 16 * (1 - kh) + 4 * j for j in range(4)] + [ACC + 32 + 8 * (1 - kh) + 4 * j for j in range(2)]
        for j, r in enumerate(send):
            I('ds_write_b128', 'v6', v(r, 4), mods=f'offset:{j * 1024}')
        if kh == 0:
            I('s_mov_b32', 's15', f32bits(QSCALE))
        else:
            I('s_mov_b32', 's15', f32bits(1.0))
        for j, r in enumerate(keep):
            I('v_mov_b32', v(KEEP + j), v(r))
        if kh == 0:
            I('s_branch', 'L_k1_x2')
            k.label('L_k1_x1')
    k.label('L_k1_x2')
    k.waitcnt(lgkm=0)
    k.barrier()
    for j in range(6):
        I('ds_read_b128', v(ACC + 4 * j, 4), 'v7', mods=f'offset:{j * 1024}')
    P = WF
    dst = [('v2', 's12'), ('v2', 's13'), ('v4', 's14')]
    for g in range(3):
        k.waitcnt(lgkm=4 - 2 * g)
        for r in range(8):
            I('v_add_f32', v(KEEP + 8 * g + r), v(KEEP + 8 * g + r), v(ACC + 8 * g + r))
        if g < 2:
            for r in range(8):
                I('v_mul_f32', v(KEEP + 8 * g + r), 's15', v(KEEP + 8 * g + r))
        pack8(k, P + 4 * g, KEEP + 8 * g)
        I('buffer_store_dwordx4', v(P + 4 * g, 4), dst[g][0], s(R_WS, 4), dst[g][1], mods=f'offen {ST_POL}')
    for g in range(2):
        I('v_dot2_f32_bf16', v(8 + g), v(P + 4 * g), v(P + 4 * g), 0)
        I('v_dot2_f32_bf16', v(10 + g), v(P + 4 * g + 1), v(P + 4 * g + 1), 0)
    for g in range(2):
        I('v_dot2_f32_bf16', v(8 + g), v(P + 4 * g + 2), v(P + 4 * g + 2), v(8 + g))
        I('v_dot2_f32_bf16', v(10 + g), v(P + 4 * g + 3), v(P + 4 * g + 3), v(10 + g))
    for g in range(2):
        I('v_add_f32', v(8 + g), v(8 + g), v(10 + g))
    I('v_permlane32_swap_b32', 'v8', 'v9')
    I('v_add_f32', 'v8', 'v8', 'v9')
    I('v_mov_b32', 'v9', 'v8')
    for sh in ('row_shr:1', 'row_shr:2', 'row_shr:4', 'row_shr:8'):
        I('v_max_f32', 'v9', 'v9', 'v9', mods=f'{sh} row_mask:0xf bank_mask:0xf')
    I('v_max_f32', 'v9', 'v9', 'v9', mods='row_bcast:15 row_mask:0xa bank_mask:0xf')
    I('s_lshl_b32', 's10', 's63', 18)
    I('s_lshl_b32', 's11', 's5', 14)
    I('s_add_u32', 's10', 's10', 's11')
    I('s_lshl_b32', 's11', 's6', 7)
    I('s_add_u32', 's10', 's10', 's11')
    I('s_add_u32', 's10', 's10', NRM)
    I('v_lshrrev_b32', 'v10', 5, 'v1')
    I('v_lshlrev_b32', 'v11', 13, 'v10')
    I('v_and_b32', 'v12', 31, 'v1')
    I('v_lshl_add_u32', 'v11', 'v12', 2, 'v11')
    I('buffer_store_dword', 'v8', 'v11', s(R_WS, 4), 's10', mods='offen')
    I('s_lshl_b32', 's10', 's63', 13)
    I('s_lshl_b32', 's11', 's5', 9)
    I('s_add_u32', 's10', 's10', 's11')
    I('s_lshl_b32', 's11', 's6', 2)
    I('s_add_u32', 's10', 's10', 's11')
    I('s_add_u32', 's10', 's10', TMX)
    I('v_lshlrev_b32', 'v11', 8, 'v10')
    I('s_mov_b32', 'exec_lo', 0x80000000)
    I('s_mov_b32', 'exec_hi', 0x80000000)
    I('buffer_store_dword', 'v9', 'v11', s(R_WS, 4), 's10', mods='offen')
    I('s_mov_b64', 'exec', -1)
    I('s_cmp_ge_u32', 's2', 4)
    I('s_cbranch_scc1', 'L_k1_nomod')
    I('v_lshlrev_b32', 'v3', 2, 'v0')
    I('v_add_f32', 'v16', v(SJ), v(SJ + 1))
    I('v_add_f32', 'v18', v(SJ + 2), v(SJ + 3))
    I('v_add_f32', 'v16', 'v16', 'v18')
    I('v_cvt_pk_bf16_f32', 'v17', 'v16', 'v16')
    I('v_and_b32', 'v18', 0xffff0000, 'v17')
    I('v_add_f32', 'v19', 1.0, 'v18')
    I('v_cvt_pk_bf16_f32', 'v19', 'v19', 'v19')
    I('v_and_b32', 'v19', 0xffff0000, 'v19')
    I('s_cmp_eq_u32', 's2', 1)
    I('s_cbranch_scc1', 'L_k1_sb')
    I('s_mov_b32', 's13', MF_GB)
    I('s_cmp_eq_u32', 's2', 2)
    I('s_cselect_b64', 'vcc', -1, 0)
    I('v_cndmask_b32', 'v18', 'v18', 'v19', 'vcc')
    I('s_cselect_b32', 's13', MF_G2, 's13')
    I('s_cmp_eq_u32', 's2', 0)
    I('s_cselect_b32', 's13', MF_GA, 's13')
    I('s_add_u32', 's13', 's13', MODF)
    I('buffer_store_dword', 'v18', 'v3', s(R_WS, 4), 's13', mods='offen')
    I('s_branch', 'L_k1_nomod')
    k.label('L_k1_sb')
    I('s_mov_b32', 's13', MODF + MF_SB)
    I('v_lshlrev_b32', 'v3', 1, 'v0')
    I('buffer_store_short', 'v17', 'v3', s(R_WS, 4), 's13', mods='offen')
    k.label('L_k1_nomod')
    epilogue(k, 1, vtmp=4)
    return k, 256, 512, LDS


BIG = 1e30


def gen_k2():
    k = Kernel('k2_attn_kernel')
    I = k.I
    L_K, L_V, L_SIDE = 0, 16384, 32768
    LDS = L_SIDE + 32768
    Q, KF, VF, SB_, PB, OA, NM, MK = 16, 20, 56, 128, 176, 192, 208, 224
    MX = 244
    G2R, SBR = 80, 88
    Vb = lambda t: VF + 8 * (t % 3)
    prologue(k, 256)
    xcd_map(k, 1, 5, 4)
    I('s_lshl_b32', 's6', 's5', 3)
    I('s_add_u32', 's6', 's6', 's3')
    I('v_lshlrev_b32', 'v2', 4, 'v1')
    I('s_lshl_b32', 's9', 's4', 16)
    I('s_lshl_b32', 's10', 's6', 10)
    I('s_add_u32', 's10', 's10', 's9')
    I('s_add_u32', 's10', 's10', QB)
    I('s_lshl_b32', 's8', 's3', 11)
    I('v_lshrrev_b32', 'v3', 5, 'v1')
    I('v_bfe_u32', 'v4', 'v1', 4, 1)
    I('v_bfe_u32', 'v5', 'v1', 2, 2)
    I('v_and_b32', 'v6', 1, 'v1')
    I('v_bfe_u32', 'v7', 'v1', 1, 1)
    I('v_lshl_add_u32', 'v6', 'v6', 1, 'v7')
    I('v_lshlrev_b32', 'v13', 8, 'v3')
    I('v_and_b32', 'v14', 15, 'v1')
    I('v_lshl_add_u32', 'v13', 'v14', 4, 'v13')
    I('v_and_b32', 'v12', 31, 'v1')
    I('v_lshlrev_b32', 'v12', 2, 'v12')
    I('v_lshlrev_b32', 'v14', 5, 'v3')
    I('v_lshlrev_b32', 'v15', 4, 'v3')
    I('s_and_b32', 's12', 's3', 3)
    I('s_mul_i32', 's13', 's2', 3)
    I('s_add_u32', 's13', 's13', 's12')
    I('s_lshr_b32', 's15', 's2', 1)
    I('s_add_u32', 's15', 's15', 768)
    I('s_cmp_eq_u32', 's3', 3)
    I('s_cselect_b32', 's57', 's15', 's13')
    I('s_and_b32', 's15', 's2', 1)
    I('s_lshr_b32', 's13', 's3', 2)
    I('s_cmp_eq_u32', 's3', 3)
    I('s_cselect_b32', 's64', 's15', 's13')
    I('s_cmp_eq_u32', 's3', 7)
    I('s_cselect_b32', 's57', 's2', 's57')
    I('s_mul_i32', 's66', 's57', 2341)
    I('s_lshr_b32', 's66', 's66', 16)
    I('s_min_u32', 's66', 's66', 31)
    I('s_mul_i32', 's65', 's66', 28)
    I('s_sub_u32', 's65', 's57', 's65')
    I('s_lshl_b32', 's67', 's66', 6)
    I('s_add_u32', 's67', 's67', MODF + MF_G2)
    I('s_lshl_b32', 's68', 's66', 5)
    I('s_add_u32', 's68', 's68', MODF + MF_SB)
    I('s_lshl_b32', 's11', 's4', 13)
    I('s_lshl_b32', 's12', 's6', 7)
    I('s_add_u32', 's11', 's11', 's12')
    I('s_add_u32', 's11', 's11', NRM)
    I('s_lshl_b32', 's12', 's4', 8)
    I('s_lshl_b32', 's13', 's6', 2)
    I('s_add_u32', 's12', 's12', 's13')
    I('s_add_u32', 's12', 's12', TMX + 8192 - 32)
    I('s_sub_i32', 's14', 8, 's6')
    I('s_max_i32', 's14', 's14', 0)
    I('s_mov_b32', 's58', 0xffff)
    I('s_mov_b32', 's59', 0xffff)
    k.waitcnt(lgkm=0)
    tick(k)
    srd(k, R_WS, S_WS, WS_SIZE)
    I('s_buffer_load_dwordx8', s(48, 8), s(R_WS, 4), 's12')
    I('s_add_u32', 's12', 's12', 32)
    I('s_buffer_load_dword', 's56', s(R_WS, 4), 's12')
    Sb = lambda t: SB_ + 16 * (t % 3)

    def qk(t, C):
        I('v_mfma_f32_32x32x16_bf16', v(Sb(t), 16), v(KF + 4 * t, 4), v(Q, 4), C)

    def consts():
        I('v_and_b32', 'v10', 31, 'v1')
        I('v_lshlrev_b32', 'v11', 2, 'v3')
        I('v_sub_u32', 'v10', 'v10', 'v11')
        I('v_mov_b32', 'v11', f32bits(-BIG))
        for r in range(0, 16, 2):
            for q in range(2):
                kk = ((r + q) & 3) + 8 * ((r + q) >> 2)
                I('v_cmp_le_i32', s(60 + 2 * q, 2), kk, 'v10')
            for q in range(2):
                I('v_cndmask_b32', v(MK + r + q), 'v11', 0, s(60 + 2 * q, 2))

    def rdv(t):
        I('s_mov_b64', 'exec', s(58, 2))
        for j in range(2):
            I('ds_read_b128', v(Vb(t) + 4 * j, 4), 'v247', mods=f'offset:{L_V + t * 1024 + j * 512}')
        I('s_mov_b64', 'exec', -1)

    def lds_reads():
        for t in range(8, -1, -1):
            I('ds_read_b128', v(KF + 4 * t, 4), 'v246', mods=f'offset:{L_K + t * 1024}')

    def attn(tag, exact):
        rdv(8)
        rdv(7)
        if exact:
            qk(8, v(MK, 16))
            qk(7, 0)
            for t in range(8, -1, -1):
                if t - 2 > 0:
                    qk(t - 2, 0)
                elif t - 2 == 0:
                    for r in range(16):
                        I('v_sub_f32', v(Sb(0) + r), 'v11', v(MK + r))
                    qk(0, v(Sb(0), 16))
                b = Sb(t)
                if t == 8:
                    I('v_max3_f32', v(MX), v(b), v(b + 1), v(b + 2))
                    I('v_max3_f32', v(MX + 1), v(b + 3), v(b + 4), v(b + 5))
                    rest = list(range(6, 16))
                else:
                    rest = list(range(16))
                for i in range(0, len(rest), 2):
                    m = MX + ((i // 2) & 1)
                    I('v_max3_f32', v(m), v(m), v(b + rest[i]), v(b + rest[i + 1]))
                if t > 0:
                    I('s_cmp_eq_u32', 's14', t)
                    I('s_cbranch_scc1', f'L_k2_p1{tag}')
            k.label(f'L_k2_p1{tag}')
            k.nop(12)
            I('v_max_f32', v(MX), v(MX), v(MX + 1))
            I('v_mov_b32', v(MX + 1), v(MX))
            I('v_permlane32_swap_b32', v(MX), v(MX + 1))
            I('v_max_f32', v(MX), v(MX), v(MX + 1))
            for r in range(16):
                I('v_sub_f32', v(NM + r), 0, v(MX))
            for r in range(16):
                I('v_add_f32', v(Sb(8) + r), v(MK + r), v(NM))
        else:
            k.waitcnt(lgkm=11)
        qk(8, v(Sb(8), 16))
        qk(7, v(NM, 16))
        if not exact:
            k.waitcnt(lgkm=4)
        qk(6, v(NM, 16))
        for t in range(8, -1, -1):
            b = Sb(t)
            P = PB + 8 * (t & 1)
            E = lambda r: I('v_exp_f32', v(b + r), v(b + r))
            C = lambda j: I('v_cvt_pk_bf16_f32', v(P + j), v(b + 2 * j), v(b + 2 * j + 1))
            if t - 2 >= 0:
                rdv(t - 2)
            for r in range(9):
                E(r)
            for j in range(4):
                C(j)
                E(9 + j)
            E(13)
            k.waitcnt(lgkm=4 if t - 2 >= 0 else (2 if t == 1 else 0))
            I('v_mfma_f32_32x32x16_bf16', v(OA, 16), v(Vb(t), 4), v(P, 4), 0 if t == 8 else v(OA, 16))
            E(14)
            E(15)
            for j in range(4, 8):
                C(j)
            if t - 3 > 0:
                qk(t - 3, v(NM, 16))
            elif t - 3 == 0:
                for r in range(16):
                    I('v_sub_f32', v(Sb(0) + r), 'v11', v(MK + r))
                for r in range(16):
                    I('v_add_f32', v(Sb(0) + r), v(Sb(0) + r), v(NM))
                qk(0, v(Sb(0), 16))
            if t > 0:
                I('s_cmp_eq_u32', 's14', t)
            I('v_mfma_f32_32x32x16_bf16', v(OA, 16), v(Vb(t) + 4, 4), v(P + 4, 4), v(OA, 16))
            if t > 0:
                I('s_cbranch_scc1', f'L_k2_p2{tag}')
        k.label(f'L_k2_p2{tag}')
        k.nop(12)
        k.waitcnt(lgkm=0)

    def side_loads():
        I('v_lshrrev_b32', 'v8', 3, 'v1')
        I('v_and_b32', 'v9', 7, 'v1')
        I('v_lshlrev_b32', 'v9', 4, 'v9')
        I('v_lshl_add_u32', 'v248', 'v8', 10, 'v9')
        I('v_mul_u32_u24', 'v8', 3584, 'v8')
        I('v_add_u32', 'v8', 'v8', 'v9')
        I('s_lshl_b32', 's69', 's3', 12)
        I('s_add_u32', 's69', 's69', L_SIDE)
        I('s_cmp_eq_u32', 's64', 0)
        I('s_cbranch_scc0', 'L_k2_sl1')
        I('s_mul_i32', 's15', 's66', 16 * 3584)
        I('s_lshl_b32', 's60', 's65', 7)
        I('s_add_u32', 's15', 's15', 's60')
        I('s_add_u32', 's60', 's15', 8 * 3584)
        for m_, ptr in enumerate((S_WG, S_WU)):
            srd(k, 44, ptr, 512 * 3584)
            I('s_add_u32', 'm0', 's69', m_ * 2048)
            I('buffer_load_dwordx4', 'v8', s(44, 4), 's15', mods='offen lds')
            I('s_add_u32', 'm0', 's69', m_ * 2048 + 1024)
            I('buffer_load_dwordx4', 'v8', s(44, 4), 's60', mods='offen lds')
        I('s_branch', 'L_k2_sl2')
        k.label('L_k2_sl1')
        I('s_cmp_eq_u32', 's3', 7)
        I('s_cselect_b32', 's44', s(S_WO), s(S_WD))
        I('s_cselect_b32', 's45', s(S_WO + 1), s(S_WD + 1))
        I('s_mov_b32', 's13', 1792 * 1024)
        I('s_cselect_b32', 's46', 512 * 1024, 's13')
        I('s_mov_b32', 's47', 0x20000)
        I('s_lshr_b32', 's12', 's57', 3)
        I('s_lshl_b32', 's12', 's12', 14)
        I('s_and_b32', 's13', 's57', 7)
        I('s_lshl_b32', 's13', 's13', 7)
        I('s_add_u32', 's12', 's12', 's13')
        I('s_mov_b32', 'm0', 's69')
        I('buffer_load_dwordx4', 'v248', s(44, 4), 's12', mods='offen lds')
        I('s_add_u32', 'm0', 's69', 1024)
        I('s_add_u32', 's12', 's12', 8192)
        I('buffer_load_dwordx4', 'v248', s(44, 4), 's12', mods='offen lds')
        k.label('L_k2_sl2')

    I('s_lshl_b32', 's7', 's5', 3)
    I('s_lshl_b32', 's13', 's3', 1)
    I('s_add_i32', 's7', 's7', 's13')
    I('s_add_i32', 's7', 's7', -8)
    I('s_max_i32', 's7', 's7', 0)
    I('s_lshl_b32', 's7', 's7', 10)
    I('s_add_u32', 's7', 's7', 's9')
    I('s_add_u32', 'm0', 's8', L_K)
    I('s_add_u32', 's13', 's7', KB)
    I('buffer_load_dwordx4', 'v2', s(R_WS, 4), 's13', mods='offen lds')
    I('buffer_load_dwordx4', 'v2', s(R_WS, 4), 's13', mods='offen offset:1024 lds')
    I('buffer_load_dwordx4', v(Q, 4), 'v2', s(R_WS, 4), 's10', mods='offen')
    I('buffer_load_dword', v(MX), 'v12', s(R_WS, 4), 's11', mods='offen')
    I('s_add_u32', 'm0', 's8', L_V)
    I('s_add_u32', 's13', 's7', VB)
    I('buffer_load_dwordx4', 'v2', s(R_WS, 4), 's13', mods='offen lds')
    I('buffer_load_dwordx4', 'v2', s(R_WS, 4), 's13', mods='offen offset:1024 lds')
    I('buffer_load_dwordx4', v(G2R, 4), 'v14', s(R_WS, 4), 's67', mods='offen')
    I('buffer_load_dwordx4', v(G2R + 4, 4), 'v14', s(R_WS, 4), 's67', mods='offen offset:16')
    I('buffer_load_dwordx4', v(SBR, 4), 'v15', s(R_WS, 4), 's68', mods='offen')
    if OPT.get('prio', 0):
        I('s_setprio', 0)
    EARLY = OPT.get('k2early', 0)
    if EARLY:
        k.barrier()
        side_loads()
    consts()
    for r in range(24):
        I('v_mov_b32', v(VF + r), 0x3f803f80)
    I('s_lshl_b32', 's13', 's3', 10)
    I('v_add_u32', 'v246', 's13', 'v2')
    I('v_add_u32', 'v247', 's13', 'v13')
    k.waitcnt(lgkm=0)
    for i in range(1, 9):
        I('s_max_u32', 's48', 's48', s(48 + i))
    k.waitcnt(vm=5 + (2 if EARLY else 0))
    I('v_mul_f32', v(MX), 's48', v(MX))
    I('v_sqrt_f32', v(MX), v(MX))
    for r in range(16):
        I('v_sub_f32', v(NM + r), 0, v(MX))
    for r in range(16):
        I('v_add_f32', v(Sb(8) + r), v(MK + r), v(NM))
    if EARLY:
        I('s_cmp_eq_u32', 's64', 0)
        I('s_cbranch_scc1', 'L_k2_wa')
        k.waitcnt(vm=5)
        I('s_branch', 'L_k2_wb')
        k.label('L_k2_wa', flush=False)
        k.waitcnt(vm=7)
        k.label('L_k2_wb', flush=False)
    else:
        k.waitcnt(vm=3)
    tick(k)
    k.barrier()
    tick(k)
    lds_reads()
    code_prefetch(k, 8, 249, 44, 8)
    if not EARLY:
        side_loads()
    attn('a', exact=False)
    tick(k)
    I('v_mov_b32', v(MX), f32bits(2.0 ** -80))
    I('v_cmp_nge_f32', 'vcc', v(OA + 8), v(MX))
    if OPT.get('k2force'):
        I('s_mov_b64', 'vcc', -1)
    k.nop(5)
    I('s_cbranch_vccz', 'L_k2_fin')
    attn('x', exact=True)
    k.label('L_k2_fin')
    I('v_rcp_f32', v(MX), v(OA + 8))
    for r in range(8):
        I('v_mul_f32', v(OA + r), v(OA + r), v(MX))
    pack8(k, PB, OA)
    I('s_lshl_b32', 's12', 's6', 15)
    I('s_lshl_b32', 's13', 's4', 10)
    I('s_add_u32', 's12', 's12', 's13')
    I('s_add_u32', 's12', 's12', OB)
    I('buffer_store_dwordx4', v(PB, 4), 'v2', s(R_WS, 4), 's12', mods=f'offen {ST_POL}')
    k.waitcnt(vm=1)
    tick(k)
    I('s_cmp_eq_u32', 's64', 0)
    I('s_cbranch_scc1', 'L_k2_gu')
    I('s_mov_b32', 's60', 1024)
    I('s_mov_b32', 's61', 512)
    I('s_cmp_eq_u32', 's3', 7)
    I('s_cselect_b32', 's12', 512, 's60')
    I('s_cselect_b32', 's13', 1024, 's61')
    I('v_mul_lo_u32', 'v8', 'v3', 's12')
    I('v_lshl_add_u32', 'v8', 'v5', 7, 'v8')
    I('v_lshl_add_u32', 'v8', 'v4', 5, 'v8')
    I('v_lshl_add_u32', 'v8', 'v6', 3, 'v8')
    I('v_add_u32', 'v8', 's69', 'v8')
    I('v_add_u32', 'v9', 's13', 'v8')
    RU = KF
    for u in range(2):
        I('ds_read_b64_tr_b16', v(RU + 4 * u, 2), 'v8', mods=f'offset:{u * 64}')
        I('ds_read_b64_tr_b16', v(RU + 4 * u + 2, 2), 'v9', mods=f'offset:{u * 64}')
    I('s_mov_b32', 's60', 114688)
    I('s_cselect_b32', 's60', 32768, 's60')
    I('s_mov_b32', 's61', WD)
    I('s_cselect_b32', 's61', WO, 's61')
    I('s_and_b32', 's12', 's57', 7)
    I('s_lshl_b32', 's12', 's12', 1)
    I('s_mul_i32', 's12', 's12', 's60')
    I('s_add_u32', 's61', 's61', 's12')
    I('s_lshr_b32', 's12', 's57', 3)
    I('s_lshl_b32', 's12', 's12', 10)
    I('s_add_u32', 's61', 's61', 's12')
    I('s_add_u32', 's62', 's61', 's60')
    k.waitcnt(lgkm=0)
    I('buffer_store_dwordx4', v(RU, 4), 'v2', s(R_WS, 4), 's61', mods=f'offen {ST_POL}')
    I('buffer_store_dwordx4', v(RU + 4, 4), 'v2', s(R_WS, 4), 's62', mods=f'offen {ST_POL}')
    I('s_branch', 'L_k2_sw1')
    k.label('L_k2_gu')
    I('v_lshlrev_b32', 'v10', 11, 'v4')
    I('v_lshl_add_u32', 'v11', 'v3', 3, 'v5')
    I('v_lshl_add_u32', 'v10', 'v11', 7, 'v10')
    I('v_lshl_add_u32', 'v10', 'v6', 3, 'v10')
    I('v_add_u32', 'v10', 's69', 'v10')
    RW = KF
    for u in range(4):
        I('ds_read_b64_tr_b16', v(RW + 4 * u, 2), 'v10', mods=f'offset:{u * 32}')
        I('ds_read_b64_tr_b16', v(RW + 4 * u + 2, 2), 'v10', mods=f'offset:{u * 32 + 512}')
    I('s_lshl_b32', 's60', 's65', 2)
    I('s_mul_i32', 's15', 's66', 7168)
    I('s_add_u32', 's15', 's15', W4)
    for u in range(4):
        I('s_add_u32', 's12', 's60', u)
        I('s_mul_i32', 's13', 's12', 147)
        I('s_lshr_b32', 's13', 's13', 10)
        I('s_mul_i32', 's61', 's13', 7)
        I('s_sub_u32', 's12', 's12', 's61')
        I('s_mul_i32', 's13', 's13', W4_NB)
        I('s_lshl_b32', 's12', 's12', 10)
        I('s_add_u32', 's12', 's12', 's13')
        I('s_add_u32', s(48 + u), 's12', 's15')
    for j in range(4):
        I('v_mov_b32', v(240 + j), 0x3f803f80)
    I('s_mul_i32', 's62', 's66', 28672)
    I('s_lshl_b32', 's63', 's60', 7)
    I('s_add_u32', 's62', 's62', 's63')
    I('s_add_u32', 's62', 's62', CSP)
    I('v_mul_u32_u24', 'v8', 14336, 'v3')
    I('v_add_u32', 'v8', 'v8', 'v12')
    I('v_cmp_eq_u32', 'vcc', 0, 'v3')
    BS = [96, 112, SB_, SB_ + 16]
    CS = [SB_ + 32, PB, OA, NM]
    T = MK
    for u in range(4):
        k.waitcnt(lgkm=6 - 2 * u)
        I('v_mfma_f32_32x32x16_bf16', v(BS[u], 16), v(SBR, 4), v(RW + 4 * u, 4), 0)
        unpack8(k, T + 8 * (u & 1), RW + 4 * u)
        for j in range(8):
            I('v_mul_f32', v(T + 8 * (u & 1) + j), v(T + 8 * (u & 1) + j), v(G2R + j))
        pack8(k, RW + 16 + 4 * u, T + 8 * (u & 1))
        I('buffer_store_dwordx4', v(RW + 16 + 4 * u, 4), 'v2', s(R_WS, 4), s(48 + u), mods=f'offen {ST_POL}')
        I('v_mfma_f32_32x32x16_bf16', v(CS[u], 16), v(240, 4), v(RW + 16 + 4 * u, 4), 0)
    for u in range(4):
        I('v_cndmask_b32', v(244 + u), v(BS[u]), v(CS[u]), 'vcc')
        I('buffer_store_dword', v(244 + u), 'v8', s(R_WS, 4), 's62', mods=f'offen offset:{128 * u}')
    k.label('L_k2_sw1')
    epilogue(k, 2, vtmp=4)
    return k, 256, 512, LDS


def gen_gemm64(name, idx, NS, A_BASE, A_TB, B_BASE, B_NF, is_k3):
    k = Kernel(name)
    I = k.I
    LDS = 4 * 3 * 4096 + 1024
    prologue(k, 256, need_lo=is_k3)
    xcd_map(k, 3, 4, 5, OPT.get('x3' if is_k3 else 'x5', 2))
    I('v_lshlrev_b32', 'v2', 4, 'v1')
    I('v_lshrrev_b32', 'v3', 5, 'v1')
    I('v_and_b32', 'v4', 31, 'v1')
    NT = 4 * NS
    ROT = OPT.get('rot64', 0)
    I('s_lshr_b32', 's6', 's2', 3)
    I('s_mul_i32', 's6', 's6', NT * ROT)
    I('s_lshr_b32', 's6', 's6', 5)
    I('s_mul_i32', 's61', 's3', NS)
    I('s_add_u32', 's6', 's6', 's61')
    I('s_cmp_ge_u32', 's6', NT)
    I('s_cselect_b32', 's61', NT, 0)
    I('s_sub_u32', 's6', 's6', 's61')
    I('s_lshl_b32', 's6', 's6', 10)
    I('s_and_b32', 's11', 's3', 1)
    I('s_lshr_b32', 's12', 's3', 1)
    I('s_lshl_b32', 's13', 's4', 1)
    I('s_add_u32', 's13', 's13', 's12')
    I('s_lshl_b32', 's14', 's5', 1)
    I('s_add_u32', 's14', 's14', 's11')
    I('s_mul_i32', 's7', 's13', A_TB)
    I('s_add_u32', 's7', 's7', A_BASE)
    I('s_xor_b32', 's8', 's13', 1)
    I('s_mul_i32', 's8', 's8', A_TB)
    I('s_add_u32', 's8', 's8', A_BASE)
    I('s_mul_i32', 's9', 's14', B_NF)
    I('s_add_u32', 's9', 's9', B_BASE)
    I('s_xor_b32', 's10', 's14', 1)
    I('s_mul_i32', 's10', 's10', B_NF)
    I('s_add_u32', 's10', 's10', B_BASE)
    k.waitcnt(lgkm=0)
    tick(k)
    srd(k, R_WS, S_WS, WS_SIZE)
    ACC = 16
    GV = 80
    XR = 96
    RING = 104
    DEPTH = min(NS, OPT.get('gdepth', 8))
    LOG = []

    def ld(st):
        b = RING + 16 * (st % DEPTH)
        va = 'v11' if st & 1 else 'v12'
        I('v_add_u32', va, 's6', 'v2')
        I('s_add_u32', 's6', 's6', 1024)
        I('s_cmp_eq_u32', 's6', NT * 1024)
        I('s_cselect_b32', 's6', 0, 's6')
        for j, r in enumerate((9, 7, 10, 8)):
            I('buffer_load_dwordx4', v(b + 4 * j, 4), va, s(R_WS, 4), s(r), mods='offen')
            LOG.append(('k', st))

    def side_loads():
        I('s_lshl_b32', 's15', 's14', 7)
        I('s_add_u32', 's15', 's15', MODF + (MF_GA if is_k3 else MF_GB))
        I('v_lshlrev_b32', 'v5', 5, 'v3')
        for sp in range(2):
            for q in range(2):
                I('buffer_load_dwordx4', v(GV + 8 * sp + 4 * q, 4), 'v5', s(R_WS, 4), 's15', mods=f'offen offset:{64 * sp + 16 * q}')
                LOG.append(('s', 0))
        if is_k3:
            srd(k, 44, S_X, 2048 * 1024)
            I('s_lshl_b32', 's15', 's13', 15)
            I('s_lshl_b32', 's60', 's14', 6)
            I('s_add_u32', 's15', 's15', 's60')
            I('v_lshlrev_b32', 'v6', 10, 'v4')
            I('v_lshl_add_u32', 'v6', 'v3', 4, 'v6')
            for sp in range(2):
                I('buffer_load_dwordx4', v(XR + 4 * sp, 4), 'v6', s(44, 4), 's15', mods=f'offen offset:{32 * sp}')
                LOG.append(('s', 0))
        else:
            I('s_lshl_b32', 's15', 's13', 15)
            I('s_lshl_b32', 's60', 's14', 11)
            I('s_add_u32', 's15', 's15', 's60')
            I('s_add_u32', 's15', 's15', X1)
            for sp in range(2):
                I('buffer_load_dwordx4', v(XR + 4 * sp, 4), 'v2', s(R_WS, 4), 's15', mods=f'offen offset:{1024 * sp}')
                LOG.append(('s', 0))

    PRE = min(DEPTH, OPT.get('gpre', 4))
    CSL = [False]
    CPF = [0]
    nxt = 0
    for st in range(PRE):
        ld(st)
        nxt += 1
    side_done = False
    for st in range(NS):
        tgt = min(NS, st + DEPTH)
        n_issue = 0
        while nxt < tgt and n_issue < 2:
            ld(nxt)
            nxt += 1
            n_issue += 1
        if nxt == NS and not side_done:
            side_loads()
            if is_k3:
                I('v_mul_u32_u24', 'v8', 14336, 'v3')
                I('v_lshl_add_u32', 'v8', 'v4', 2, 'v8')
                I('s_min_u32', 's15', 's2', 111)
                I('s_lshl_b32', 's15', 's15', 7)
                I('s_mul_i32', 's60', 's3', 8 * 28672)
                I('s_add_u32', 's15', 's15', 's60')
                I('s_add_u32', 's15', 's15', CSP)
                for p in range(8):
                    I('s_add_u32', 's60', 's15', p * 28672)
                    I('buffer_load_dword', v(232 + p), 'v8', s(R_WS, 4), 's60', mods='offen')
                    LOG.append(('s', 0))
            if code_prefetch(k, 13, 14, 48, 4):
                LOG.append(('s', 0))
                CPF[0] = 1
            side_done = True
        last = max(i for i, e in enumerate(LOG) if e == ('k', st))
        if CSL[0]:
            I('s_cmp_lg_u32', 's3', 0)
            I('s_cbranch_scc1', f'L_{name}_w{st}')
            k.waitcnt(vm=min(63, len(LOG) - 1 - last + 32))
            I('s_branch', f'L_{name}_x{st}')
            k.label(f'L_{name}_w{st}', flush=False)
            k.waitcnt(vm=len(LOG) - 1 - last)
            k.label(f'L_{name}_x{st}', flush=False)
        else:
            k.waitcnt(vm=len(LOG) - 1 - last)
        b = RING + 16 * (st % DEPTH)
        B0, A0, B1, A1 = (v(b + 4 * j, 4) for j in range(4))
        for nfl, tbl in ((0, 1), (1, 0), (1, 1), (0, 0)):
            a_ = ACC + 16 * (2 * nfl + tbl)
            I('v_mfma_f32_32x32x16_bf16', v(a_, 16), (B0, B1)[nfl], (A0, A1)[tbl], 0 if st == 0 else v(a_, 16))
    tick(k)
    for a_ in (1, 2, 3):
        x_ = (a_ >> 1) | ((a_ & 1) << 1)
        I('s_xor_b32', 's15', 's3', x_)
        I('s_mul_i32', 's15', 's15', 12288)
        I('v_add_u32', v(7 + a_), 's15', 'v2')
    for a_ in (1, 2, 3):
        for j in range(4):
            I('ds_write_b128', v(7 + a_), v(ACC + 16 * a_ + 4 * j, 4), mods=f'offset:{(a_ - 1) * 4096 + j * 1024}')
    OWN = ACC
    I('s_mul_i32', 's15', 's3', 12288)
    I('v_add_u32', 'v7', 's15', 'v2')
    if is_k3:
        k.waitcnt(vm=CPF[0])
        for st_ in (4, 2, 1):
            for r in range(st_):
                I('v_add_f32', v(232 + r), v(232 + r), v(232 + r + st_))
        I('v_lshlrev_b32', 'v15', 2, 'v0')
        I('ds_write_b32', 'v15', 'v232', mods='offset:49152')
    k.waitcnt(lgkm=0)
    k.barrier()
    tick(k)
    for p in range(3):
        for j in range(4):
            I('ds_read_b128', v(ACC + 16 + 16 * p + 4 * j, 4), 'v7', mods=f'offset:{p * 4096 + j * 1024}')
    for p in range(3):
        k.waitcnt(lgkm=8 - 4 * p)
        for r in range(16):
            I('v_add_f32', v(OWN + r), v(OWN + r), v(ACC + 16 + 16 * p + r))
    k.waitcnt(vm=CPF[0])
    T = ACC + 32
    unpack8(k, T, XR)
    unpack8(k, T + 8, XR + 4)
    for r in range(16):
        I('v_fmac_f32', v(T + r), v(OWN + r), v(GV + r))
    P = ACC + 16
    pack8(k, P, T)
    pack8(k, P + 4, T + 8)
    if is_k3:
        I('s_lshl_b32', 's15', 's13', 15)
        I('s_lshl_b32', 's60', 's14', 11)
        I('s_add_u32', 's15', 's15', 's60')
        I('s_add_u32', 's15', 's15', X1)
        for sp in range(2):
            I('buffer_store_dwordx4', v(P + 4 * sp, 4), 'v2', s(R_WS, 4), 's15', mods=f'offen offset:{1024 * sp} {ST_POL}')
        unpack8(k, T, P)
        unpack8(k, T + 8, P + 4)
        I('v_add_f32', 'v8', v(T), v(T + 1))
        I('v_add_f32', 'v9', v(T + 2), v(T + 3))
        for r in range(4, 16, 2):
            I('v_add_f32', 'v8', 'v8', v(T + r))
            I('v_add_f32', 'v9', 'v9', v(T + r + 1))
        I('v_add_f32', 'v8', 'v8', 'v9')
        I('v_mov_b32', 'v9', 'v8')
        I('v_permlane32_swap_b32', 'v8', 'v9')
        I('v_add_f32', 'v8', 'v8', 'v9')
        I('v_mul_f32', 'v8', f32bits(1.0 / 32), 'v8')
        for r in range(16):
            I('v_sub_f32', v(T + r), v(T + r), 'v8')
        I('v_mul_f32', 'v9', v(T), v(T))
        I('v_mul_f32', 'v10', v(T + 1), v(T + 1))
        for r in range(2, 16, 2):
            I('v_fmac_f32', 'v9', v(T + r), v(T + r))
            I('v_fmac_f32', 'v10', v(T + r + 1), v(T + r + 1))
        I('v_add_f32', 'v9', 'v9', 'v10')
        I('v_mov_b32', 'v10', 'v9')
        I('v_permlane32_swap_b32', 'v9', 'v10')
        I('v_add_f32', 'v9', 'v9', 'v10')
        I('s_lshl_b32', 's15', 's13', 12)
        I('s_lshl_b32', 's60', 's5', 9)
        I('s_add_u32', 's15', 's15', 's60')
        I('s_lshl_b32', 's60', 's11', 3)
        I('s_add_u32', 's15', 's15', 's60')
        I('s_add_u32', 's15', 's15', ST2)
        I('v_lshlrev_b32', 'v10', 4, 'v4')
        I('s_mov_b32', 'exec_hi', 0)
        I('buffer_store_dwordx2', v(8, 2), 'v10', s(R_WS, 4), 's15', mods='offen')
        I('s_mov_b64', 'exec', -1)
        I('s_cmp_ge_u32', 's2', 112)
        I('s_cbranch_scc1', f'L_{name}_noside')
        I('s_cmp_lg_u32', 's3', 0)
        I('s_cbranch_scc1', f'L_{name}_noside')
        T = RING + 16
        I('v_lshlrev_b32', 'v15', 2, 'v1')
        for p in range(4):
            I('ds_read_b32', v(T + p), 'v15', mods=f'offset:{49152 + 256 * p}')
        k.waitcnt(lgkm=0)
        for st_ in (2, 1):
            for r in range(st_):
                I('v_add_f32', v(T + r), v(T + r), v(T + r + st_))
        I('v_cvt_pk_bf16_f32', v(P), v(T), v(T))
        I('v_and_b32', 'v9', 0xffff0000, v(P))
        I('v_sub_f32', 'v9', v(T), 'v9')
        I('v_cvt_pk_bf16_f32', v(P + 1), 'v9', 'v9')
        I('v_mov_b32', v(P + 2), 0)
        I('v_mov_b32', v(P + 3), 0)
        I('s_mul_i32', 's60', 's2', 147)
        I('s_lshr_b32', 's60', 's60', 10)
        I('s_mul_i32', 's61', 's60', 7)
        I('s_sub_u32', 's61', 's2', 's61')
        I('s_mul_i32', 's60', 's60', W4_NB)
        I('s_lshl_b32', 's61', 's61', 10)
        I('s_add_u32', 's60', 's60', 's61')
        I('s_add_u32', 's60', 's60', W4 + 32 * 7168)
        I('buffer_store_dwordx4', v(P, 4), 'v2', s(R_WS, 4), 's60', mods='offen')
        k.label(f'L_{name}_noside')
    else:
        srd(k, 44, S_OUT, 2048 * 1024)
        I('s_lshl_b32', 's15', 's13', 15)
        I('s_lshl_b32', 's60', 's14', 6)
        I('s_add_u32', 's15', 's15', 's60')
        I('v_lshlrev_b32', 'v6', 10, 'v4')
        I('v_lshl_add_u32', 'v6', 'v3', 4, 'v6')
        for sp in range(2):
            I('buffer_store_dwordx4', v(P + 4 * sp, 4), 'v6', s(44, 4), 's15',
              mods=f'offen offset:{32 * sp}' + (' sc1' if OPT.get('outsc1') else ''))
    epilogue(k, idx, vtmp=4)
    return k, 256, 256, LDS


def gen_k3():
    return gen_gemm64('k3_wo_kernel', 3, 8, OB, 32768, WO, 32768, True)


def gen_k5():
    return gen_gemm64('k5_down_kernel', 5, 28, ACT, 112 * 1024, WD, 112 * 1024, False)


def gen_k4():
    k = Kernel('k4_ffn1_kernel')
    I = k.I
    RES = {2: 131072, 3: 32768, 6: 0}
    LDS = 163840
    NR = 16
    D = OPT.get('k4d', 8)
    assert D <= 16 - OPT.get('k4bi', 2)
    prologue(k, 256, need_lo=False)
    xcd_map(k, 2, 4, 5, OPT.get('x4', 2))
    I('s_and_b32', 's61', 's3', 3)
    I('s_lshr_b32', 's63', 's3', 2)
    I('s_lshl_b32', 's6', 's4', 2)
    I('s_add_u32', 's6', 's6', 's61')
    I('v_lshlrev_b32', 'v2', 4, 'v1')
    I('v_lshrrev_b32', 'v3', 5, 'v1')
    I('v_and_b32', 'v4', 31, 'v1')
    I('s_mul_i32', 's7', 's5', W4_NB)
    I('s_add_u32', 's7', 's7', W4)
    I('s_lshl_b32', 's8', 's3', 10)
    I('s_lshl_b32', 's9', 's6', 15)
    I('s_add_u32', 's9', 's9', X1)
    I('s_and_b32', 's10', 's3', 1)
    I('s_and_b32', 's11', 's3', 2)
    I('s_lshl_b32', 's11', 's11', 1)
    I('s_add_u32', 's10', 's10', 's11')
    I('s_lshl_b32', 's10', 's10', 10)
    I('s_add_u32', 's10', 's10', 's7')
    I('s_mov_b32', 's11', 7168)
    I('s_cmp_eq_u32', 's63', 0)
    I('s_cselect_b32', 's9', 's9', 's10')
    I('s_cselect_b32', 's11', 1024, 's11')
    I('s_mul_i32', 's12', 's3', 7168)
    I('s_add_u32', 's12', 's12', 's7')
    I('s_lshl_b32', 's13', 's61', 10)
    I('v_add_u32', 'v5', 's13', 'v2')
    I('s_lshl_b32', 's13', 's63', 11)
    I('s_add_u32', 's13', 's13', 4096)
    I('v_add_u32', 'v6', 's13', 'v2')
    I('v_add_u32', 'v7', RES[2], 'v2')
    I('s_xor_b32', 's13', 's63', 1)
    I('s_lshl_b32', 's13', 's13', 15)
    I('v_add_u32', 'v15', 's13', 'v2')
    I('v_add_u32', 'v0', 65536, 'v5')
    I('v_add_u32', 'v1', 65536, 'v6')
    k.waitcnt(lgkm=0)
    tick(k)
    srd(k, R_WS, S_WS, WS_SIZE)
    ACC, WF, EXT, T, PK, EXB = 16, 80, 104, 108, 116, 124
    STT = ACC + 48
    EXA = T
    I('s_cmp_eq_u32', 's63', 0)
    I('s_cbranch_scc0', 'L_k4_g1')
    nt0 = getattr(k, 'nticks', 0)
    for grp in range(2):
        k.nticks = nt0
        FA = [0, 1, 2] if grp == 0 else [4, 5]
        FB = 3 if grp == 0 else 6
        NA = len(FA)
        LOG = []

        def ring(s_):
            if s_ >= 32:
                batch(6 if s_ < 36 else 3, (s_ - 32) % 4)
                return
            I('s_add_u32', 'm0', 's8', (s_ % NR) * 8192)
            I('buffer_load_dwordx4', 'v2', s(R_WS, 4), 's9', mods='offen lds')
            I('s_add_u32', 's9', 's9', 's11')
            LOG.append(('r', s_))

        def batch(fr, i):
            I('s_add_u32', 'm0', 's8', RES[fr] + i * 8192)
            I('s_add_u32', 's13', 's12', i * 8 * 7168 + fr * 1024)
            I('buffer_load_dwordx4', 'v2', s(R_WS, 4), 's13', mods='offen lds')
            LOG.append(('b', fr, i))

        def stat_loads():
            I('s_lshl_b32', 's13', 's6', 12)
            I('s_add_u32', 's13', 's13', ST2)
            I('v_lshlrev_b32', 'v8', 11, 'v3')
            I('v_lshl_add_u32', 'v8', 'v4', 4, 'v8')
            for q in range(4):
                I('buffer_load_dwordx4', v(STT + 4 * q, 4), 'v8', s(R_WS, 4), 's13', mods=f'offen offset:{q * 512}')
                LOG.append(('st',))

        def ext_loads():
            I('s_add_u32', 's13', 's7', 32 * 7168)
            for j, f in enumerate(FA):
                I('s_add_u32', 's14', 's13', f * 1024)
                I('buffer_load_dwordx4', v(EXA + 4 * j, 4), 'v2', s(R_WS, 4), 's14', mods='offen')
                LOG.append(('x',))
            I('s_add_u32', 's14', 's13', FB * 1024)
            I('buffer_load_dwordx4', v(EXB, 4), 'v2', s(R_WS, 4), 's14', mods='offen')
            LOG.append(('x',))
            if grp == 1:
                pass

        def wait_tags(tags):
            last = max(i for i, e in enumerate(LOG) if e in tags)
            k.waitcnt(vm=len(LOG) - 1 - last)

        def rd(s_):
            so = (s_ % 8) * 8192
            hi = (s_ % NR) >= 8
            b = WF + 12 * (s_ & 1)
            I('ds_read_b128', a(4 * s_, 4), 'v0' if hi else 'v5', mods=f'offset:{so}')
            for j in range(2):
                I('ds_read_b128', v(b + 4 * j, 4), 'v1' if hi else 'v6', mods=f'offset:{so + j * 1024}')
            if grp == 0:
                I('ds_read_b128', v(b + 8, 4), 'v7', mods=f'offset:{s_ * 1024}')
        NRD = 1 + NA

        def stats_ops():
            c0 = -2.0 * 1.4426950408889634 * math.sqrt(2.0 / math.pi)
            c1 = c0 * 0.044715
            L = []
            A_ = lambda *a_, **kw: L.append(lambda: I(*a_, **kw))
            A_('v_add_f32', 'v8', v(STT), v(STT + 2))
            for r in range(4, 16, 2):
                A_('v_add_f32', 'v8', 'v8', v(STT + r))
            A_('v_mov_b32', 'v9', 'v8')
            A_('v_permlane32_swap_b32', 'v8', 'v9')
            A_('v_add_f32', 'v8', 'v8', 'v9')
            A_('v_mul_f32', 'v8', f32bits(1.0 / 16), 'v8')
            A_('v_add_f32', 'v9', v(STT + 1), v(STT + 3))
            for r in range(5, 16, 2):
                A_('v_add_f32', 'v9', 'v9', v(STT + r))
            A_('v_mov_b32', 'v10', 0)
            for r in range(0, 16, 2):
                A_('v_sub_f32', v(STT + r), v(STT + r), 'v8')
                A_('v_fmac_f32', 'v10', v(STT + r), v(STT + r))
            A_('v_fmac_f32', 'v9', f32bits(32.0), 'v10')
            A_('v_mov_b32', 'v10', 'v9')
            A_('v_permlane32_swap_b32', 'v9', 'v10')
            A_('v_add_f32', 'v9', 'v9', 'v10')
            A_('v_mov_b32', 'v10', f32bits(1e-5))
            A_('v_fmac_f32', 'v10', f32bits(1.0 / 512), 'v9')
            A_('v_rsq_f32', 'v11', 'v10')
            A_('v_mul_f32', 'v12', 'v10', 'v11')
            A_('v_sub_f32', 'v13', 0, 'v8')
            A_('v_cmp_eq_u32', 'vcc', 0, 'v3')
            A_('v_cndmask_b32', 'v13', 'v12', 'v13', 'vcc')
            A_('v_cvt_pk_bf16_f32', 'v14', 'v13', 'v13')
            A_('v_and_b32', 'v14', 0xffff0000, 'v14')
            A_('v_sub_f32', 'v9', 'v13', 'v14')
            A_('v_cvt_pk_bf16_f32', v(EXT), 'v14', 'v9')
            A_('v_mov_b32', v(EXT + 1), v(EXT))
            A_('v_mov_b32', v(EXT + 2), 0)
            A_('v_mov_b32', v(EXT + 3), 0)
            A_('v_mul_f32', 'v12', f32bits(c0), 'v11')
            A_('v_mul_f32', 'v13', 'v11', 'v11')
            A_('v_mul_f32', 'v13', 'v13', 'v11')
            A_('v_mul_f32', 'v13', f32bits(c1), 'v13')
            A_('s_mul_i32', 's60', 's6', 112 * 1024)
            A_('s_mul_i32', 's62', 's5', 7 * 1024)
            A_('s_add_u32', 's60', 's60', 's62')
            A_('s_add_u32', 's60', 's60', ACT + grp * 4096)
            return L

        def epi(ai, f):
            g_ = ACC + 16 * ai
            u_ = g_ + 8
            for e in range(8):
                I('v_mul_f32', v(T + e), v(g_ + e), v(g_ + e))
            for e in range(8):
                I('v_fma_f32', v(T + e), v(T + e), 'v13', 'v12')
            for e in range(8):
                I('v_mul_f32', v(T + e), v(T + e), v(g_ + e))
            for e in range(8):
                I('v_exp_f32', v(T + e), v(T + e))
            for e in range(8):
                I('v_mul_f32', v(u_ + e), v(u_ + e), v(g_ + e))
            for e in range(8):
                I('v_fma_f32', v(T + e), v(T + e), 'v10', 'v10')
            for e in range(8):
                I('v_rcp_f32', v(T + e), v(T + e))
            for e in range(8):
                I('v_mul_f32', v(T + e), v(T + e), v(u_ + e))
            P = PK + 4 * (ai & 1)
            pack8(k, P, T)
            I('buffer_store_dwordx4', v(P, 4), 'v2', s(R_WS, 4), 's60', mods=f'offen offset:{(f % 4) * 1024} {ST_POL}')
            LOG.append(('store',))

        def fragB():
            ai = 3 if grp == 0 else 2
            acc = v(ACC + 16 * ai, 16)
            NB_ = 6
            for u in range(NB_ - 1):
                I('ds_read_b128', v(WF + 4 * u, 4), 'v15', mods=f'offset:{u * 1024}')
            I('v_mfma_f32_32x32x16_bf16', acc, v(EXB, 4), v(EXT, 4), 0)
            for u in range(32):
                n = u + NB_ - 1
                if n < 32:
                    I('ds_read_b128', v(WF + 4 * (n % NB_), 4), 'v15', mods=f'offset:{n * 1024}')
                k.waitcnt(lgkm=min(31, n) - u)
                I('v_mfma_f32_32x32x16_bf16', acc, v(WF + 4 * (u % NB_), 4), a(4 * u, 4), acc)

        extra = {}
        bsched = [(2, 1, 1), (2, 2, 5), (2, 3, 10)]
        for fr, i, at in bsched:
            extra.setdefault(at, []).append(lambda fr=fr, i=i: batch(fr, i))
        extra.setdefault(0, []).append(stat_loads)
        extra.setdefault(16, []).append(ext_loads)
        ring(0)
        batch(2, 0)
        PRE = OPT.get('k4pre', 8)
        for s_ in range(1, PRE):
            ring(s_)
        rn = [PRE]
        if OPT.get('prio', 0):
            I('s_setprio', 0)
        BI = OPT.get('k4bi', 2)
        wait_tags([('r', 0), ('r', 1), ('b', 2, 0)])
        k.barrier()
        tick(k)
        rd(0)
        VQ = []
        for s_ in range(32):
            n = s_ + 1
            if n < 32:
                if n % BI == 0 or n == 2:
                    tags = [('r', x) for x in range(n, n + (BI if n % BI == 0 else BI - 2))]
                    if n % 8 == 0:
                        tags.append(('b', 2, n // 8))
                    wait_tags(tags)
                    k.barrier()
                    if n % 8 == 0:
                        tick(k)
                rd(n)
                k.waitcnt(lgkm=NRD)
            else:
                k.waitcnt(lgkm=0)
            b = WF + 12 * (s_ & 1)
            for j in range(NA):
                I('v_mfma_f32_32x32x16_bf16', v(ACC + 16 * j, 16), v(b + 4 * j, 4), a(4 * s_, 4),
                  0 if s_ == 0 else v(ACC + 16 * j, 16))
                lead = D if rn[0] < 32 else OPT.get('k4db', 6)
                if j < (2 if s_ < OPT.get('k4ramp', 12) or rn[0] >= 32 else 1) and rn[0] <= s_ + lead and rn[0] < 36:
                    ring(rn[0])
                    rn[0] += 1
                if j == 1:
                    for f_ in extra.get(s_, []):
                        f_()
                for _ in range(4):
                    if VQ:
                        VQ.pop(0)()
            if s_ == 10:
                VQ.extend(stats_ops())
        assert not VQ
        tick(k)
        wait_tags([('x',)])
        for j in range(NA):
            I('v_mfma_f32_32x32x16_bf16', v(ACC + 16 * j, 16), v(EXA + 4 * j, 4), v(EXT, 4), v(ACC + 16 * j, 16))
        assert rn[0] == 36
        for i in range(4):
            batch(3, i)
        if grp == 0:
            I('v_lshrrev_b32', 'v1', 4, 'v2')
            if code_prefetch(k, 8, 9, 44, 8):
                LOG.append(('code',))
        wait_tags([('b', 6, 3)])
        k.barrier()
        tick(k)
        if OPT.get('k4wd', 0):
            I('s_lshr_b32', 's13', 's2', 3)
            I('s_lshl_b32', 's13', 's13', 3)
            I('s_add_u32', 's13', 's13', 's3')
            I('s_mul_i32', 's13', 's13', 3584)
            I('s_and_b32', 's14', 's2', 1)
            I('s_mul_i32', 's14', 's14', 8 * 114688)
            I('s_add_u32', 's13', 's13', 's14')
            I('s_add_u32', 's13', 's13', WD)
            I('s_lshl_b32', 's14', 's3', 12)
            I('s_add_u32', 'm0', 's14', RES[2])
            for q in range(4):
                I('buffer_load_dwordx4', 'v2', s(R_WS, 4), 's13', mods=f'offen offset:{min(q * 1024, 2560)} lds')
                LOG.append(('pf',))
        if grp == 0:
            for j, f in enumerate(FA):
                epi(j, f)
            wait_tags([('b', 3, 3)])
            k.barrier()
            tick(k)
            fragB()
            tick(k)
            epi(3, FB)
            I('s_branch', 'L_k4_done')
            k.label('L_k4_g1')
        else:
            fragB()
            wait_tags([('b', 3, 3)])
            k.barrier()
            tick(k)
            for j, f in enumerate(FA):
                epi(j, f)
            tick(k)
            epi(2, FB)
    k.label('L_k4_done')
    epilogue(k, 4, vtmp=4)
    return k, 256, 512, LDS


HEADER = """; adaLN_cond + sliding-window attention + GEGLU FFN block, gfx950 (MI355X).
"""


def build(gens, path):
    hdr, bodies, descs = [], [], []
    global ST_POL
    base_pol = ST_POL
    for gi, g in enumerate(gens):
        ST_POL = '' if (OPT.get('plain', 0) >> gi) & 1 else base_pol
        k, grid, block, lds = g()
        if OPT.get('biglds', 0):
            lds = max(lds, 90112)
        b, d = kernel_text(k)
        bodies.append(b)
        descs.append(d)
        hdr.append(f'; @launch kernel={k.name} grid=({grid},1,1) block=({block},1,1) lds={lds}')
        print(f'{k.name}: {k.n_ins} instr, vgpr {k.max_v + 1}, agpr {k.max_a + 1}, sgpr {k.max_s + 1}, nops {k.nops_inserted}, lds {lds}',
              file=sys.stderr)
    if OPT.get('dup'):
        d_ = OPT['dup'] - 1
        hdr.insert(d_ + 1, hdr[d_])
    out = HEADER + '\n'.join(hdr) + '\n.amdgcn_target "amdgcn-amd-amdhsa--gfx950"\n.text\n' + '\n'.join(bodies) + \
        '\nL_code_end:\n.section .rodata,"a"\n' + '\n'.join(descs)
    open(path, 'w').write(out)


if __name__ == '__main__':
    import argparse
    ap = argparse.ArgumentParser()
    ap.add_argument('-o', default='adaLN_cond__sliding_block__geglu_ffn__prompt.s')
    ap.add_argument('--stamp', action='store_true')
    ap.add_argument('-n', type=int, default=6)
    ap.add_argument('--stpol', default='sc1')
    ap.add_argument('--opt', default='')
    args = ap.parse_args()
    STAMP = args.stamp
    ST_POL = args.stpol
    for kv in args.opt.split(','):
        if kv:
            a_, b_ = kv.split('=')
            OPT[a_] = int(b_)
    allg = [gen_k0, gen_k1]
    for nm in ('gen_k2', 'gen_k3', 'gen_k4', 'gen_k5'):
        if nm in globals():
            allg.append(globals()[nm])
    build(allg[:args.n], args.o)
```
